```python
import torch

def _softmax(x, axis=-1):
    return torch.softmax(x, dim=axis)
def _gelu(x):
    return torch.nn.functional.gelu(x, approximate="tanh")
def _silu(x):
    return torch.nn.functional.silu(x)
def _sigmoid(x):
    return torch.sigmoid(x)
def _layernorm(x, axis=-1, eps=1e-5):
    m = x.mean(dim=axis, keepdim=True)
    v = x.var(dim=axis, keepdim=True, unbiased=False)
    return (x - m) / torch.sqrt(v + eps)
def _scatter_add(tgt, idx, src, axis=0):
    return tgt.clone().index_add_(axis, idx, src)
def _segment_sum(src, seg, n):
    out = torch.zeros((n,) + src.shape[1:], dtype=src.dtype)
    return out.index_add_(0, seg, src)
def _pad(x, pw):
    flat = tuple(v for pair in reversed(pw) for v in pair)
    return torch.nn.functional.pad(x, flat)

kernel_name = 'parallel_sum__sliding_block_cached__geglu_ffn__decode'

def setup_inputs():

    _w = (lambda a: (lambda t: t.to(torch.bfloat16) if t.is_floating_point() else t)(torch.as_tensor(a)))
    def _A_setup():
        B, Sq, D = 4, 1, 640
        Hq, Hkv, Sk, Dh = 32, 32, 8192, 192
        assert Hq % Hkv == 0, (Hq, Hkv)
        return {
            "x": _w((lambda *s: torch.randn(*s, dtype=torch.bfloat16) * 0.05)(B, Sq, D)),
            "k_cache": _w((lambda *s: torch.randn(*s, dtype=torch.bfloat16) * 3.2)(B, Hkv, Sk, Dh)),
            "v_cache": _w((lambda *s: torch.randn(*s, dtype=torch.bfloat16) * 1.6)(B, Hkv, Sk, Dh)),
            "wq": _w((lambda *s: torch.randn(*s, dtype=torch.bfloat16) * 3.2)(D, Hq * Dh) * (D ** -0.5)),
            "wo": _w((lambda *s: torch.randn(*s, dtype=torch.bfloat16) * 1.6)(Hq * Dh, D) * ((Hq * Dh) ** -0.5)),
        }
    _A_in = _A_setup()

    def _B_setup():
        B, S, D, F = 4, 1, 640, 1536
        return {
            "x": _w((lambda *s: torch.randn(*s, dtype=torch.bfloat16) * 0.05)(B, S, D)),
            "w_gate": _w((lambda *s: torch.randn(*s, dtype=torch.bfloat16) * 0.05)(D, F)),
            "w_up": _w((lambda *s: torch.randn(*s, dtype=torch.bfloat16) * 0.05)(D, F)),
            "w_down": _w((lambda *s: torch.randn(*s, dtype=torch.bfloat16) * 0.05)(F, D)),
        }
    _B_in = _B_setup()

    return {
        "A_x": _A_in["x"],
        "A_k_cache": _A_in["k_cache"],
        "A_v_cache": _A_in["v_cache"],
        "A_wq": _A_in["wq"],
        "A_wo": _A_in["wo"],
        "B_x": _B_in["x"],
        "B_w_gate": _B_in["w_gate"],
        "B_w_up": _B_in["w_up"],
        "B_w_down": _B_in["w_down"],
    }

def reference(A_x, A_k_cache, A_v_cache, A_wq, A_wo, B_x, B_w_gate, B_w_up, B_w_down):
    def _A_ref(x, k_cache, v_cache, wq, wo):
        B, Sq, D = x.shape
        Hq, Dh = 32, 192
        Hkv, Sk = k_cache.shape[1], k_cache.shape[2]
        W = min(4096, max(256, Sk // 4))
        rep = Hq // Hkv
        q = (lambda x, *d: x.permute(*d))((x @ wq).reshape(B, Sq, Hq, Dh), 0, 2, 1, 3)
        k = (lambda x, n, axis: torch.repeat_interleave(x, n, dim=axis))(k_cache[:, :, Sk - W:, :], rep, axis=1)
        v = (lambda x, n, axis: torch.repeat_interleave(x, n, dim=axis))(v_cache[:, :, Sk - W:, :], rep, axis=1)
        scores = torch.einsum("bhqd,bhkd->bhqk", q, k) * (Dh ** -0.5)
        p = _softmax(scores, axis=-1)
        o = torch.einsum("bhqk,bhkd->bhqd", p, v)
        return (lambda x, *d: x.permute(*d))(o, 0, 2, 1, 3).reshape(B, Sq, Hq * Dh) @ wo

    def _B_ref(x, w_gate, w_up, w_down):
        return (_gelu(x @ w_gate) * (x @ w_up)) @ w_down

    x = A_x
    xn = _layernorm(x, axis=-1)
    return x + _A_ref(xn, A_k_cache, A_v_cache, A_wq, A_wo) + _B_ref(xn, B_w_gate, B_w_up, B_w_down)
```

```python
import re

def _regs(tok):
    tok = tok.strip()
    tok = tok.lstrip('-')
    if tok.startswith('abs(') or tok.startswith('|'):
        tok = tok.replace('abs(', '').replace(')', '').replace('|', '')
    m = re.fullmatch(r'([vsa])(\d+)', tok)
    if m: return m.group(1), {int(m.group(2))}
    m = re.fullmatch(r'([vsa])\[(\d+):(\d+)\]', tok)
    if m: return m.group(1), set(range(int(m.group(2)), int(m.group(3)) + 1))
    if tok == 'vcc': return 's', {106, 107}
    if tok == 'vcc_lo': return 's', {106}
    if tok == 'vcc_hi': return 's', {107}
    if tok == 'm0': return 's', {124}
    if tok == 'exec': return 's', {126, 127}
    return None, set()

TRANS = ('v_exp_f32', 'v_log_f32', 'v_rcp_f32', 'v_rsq_f32', 'v_sqrt_f32', 'v_sin_f32', 'v_cos_f32')

class Ins:
    def __init__(s, text):
        s.text = text
        t = text.split(';')[0].strip()
        parts = t.split(None, 1)
        s.mn = parts[0]
        rest = parts[1] if len(parts) > 1 else ''
        ops, depth, cur = [], 0, ''
        for ch in rest:
            if ch == '[' or ch == '(': depth += 1
            if ch == ']' or ch == ')': depth -= 1
            if ch == ',' and depth == 0:
                ops.append(cur.strip()); cur = ''
            else: cur += ch
        if cur.strip(): ops.append(cur.strip())
        mods = ''
        if ops:
            last = ops[-1].split(None, 1)
            ops[-1] = last[0]
            if len(last) > 1: mods = last[1]
        s.ops, s.mods = ops, mods
        mn = s.mn
        s.vdef, s.vuse, s.sdef, s.suse = set(), set(), set(), set()
        s.dppsrc, s.srcC, s.srcAB, s.stdata = set(), set(), set(), set()
        s.lanesel = set()
        s.cls = 'other'
        def use(tok):
            k, r = _regs(tok)
            if k == 'v': s.vuse |= r
            elif k == 's': s.suse |= r
            elif k == 'a': raise Exception('agpr unsupported')
        def dfn(tok):
            k, r = _regs(tok)
            if k == 'v': s.vdef |= r
            elif k == 's': s.sdef |= r
        if mn.startswith('v_mfma') or mn.startswith('v_smfmac'):
            s.cls = 'mfma'
            dfn(ops[0])
            for o in ops[1:]: use(o)
            s.srcAB = _regs(ops[1])[1] | _regs(ops[2])[1]
            if mn.startswith('v_mfma'):
                k, r = _regs(ops[3]); s.srcC = r if k == 'v' else set()
            else:
                s.srcC = set(s.vdef); s.vuse |= s.vdef; s.srcAB |= _regs(ops[3])[1]
            s.passes = 8 if '32x32' in mn else 4
        elif mn.startswith('v_'):
            s.cls = 'valu'
            s.trans = mn.replace('_e32', '').replace('_e64', '') in TRANS
            if mn.startswith('v_permlane'):
                for o in ops[:2]: dfn(o); use(o)
            elif mn.startswith('v_nop'):
                pass
            else:
                dfn(ops[0])
                st = 1
                if mn.startswith(('v_add_co', 'v_sub_co', 'v_addc_co', 'v_subb_co', 'v_mad_u64')):
                    dfn(ops[1]); st = 2
                for o in ops[st:]: use(o)
                if mn.startswith(('v_fmac', 'v_dot2c', 'v_writelane')) or '_dpp' in mn:
                    use(ops[0])
                if '_dpp' in mn: s.dppsrc = set(s.vuse)
                if mn.startswith(('v_readlane', 'v_writelane')) and _regs(ops[2])[0] == 's':
                    s.lanesel = _regs(ops[2])[1]
        elif mn.startswith(('buffer_', 'global_')):
            s.cls = 'vmem'
            islds = ' lds' in (' ' + mods) or '_lds_' in mn
            s.lds = islds
            if mn.startswith('buffer_load') and not islds or (mn.startswith('global_load') and not islds):
                dfn(ops[0])
                for o in ops[1:]: use(o)
            else:
                for o in ops: use(o)
                if 'atomic' in mn and 'sc0' in mods: dfn(ops[0])
                if mn.startswith('buffer_store') and (mn.endswith('x3') or mn.endswith('x4')):
                    s.stdata = _regs(ops[0])[1]
                if mn.startswith('global_store') and (mn.endswith('x3') or mn.endswith('x4')):
                    s.stdata = _regs(ops[1])[1]
        elif mn.startswith('ds_'):
            s.cls = 'ds'
            if mn.startswith(('ds_read', 'ds_bpermute', 'ds_permute', 'ds_swizzle')) or '_rtn_' in mn:
                dfn(ops[0])
                for o in ops[1:]: use(o)
            else:
                for o in ops: use(o)
        elif mn.startswith(('s_load', 's_memtime', 's_memrealtime', 's_atomic', 's_buffer_load')):
            s.cls = 'smem'
            for o in ops[1:]: use(o)
        elif mn.startswith(('s_waitcnt', 's_barrier', 's_nop', 's_sleep', 's_endpgm', 's_setprio', 's_branch', 's_cbranch')):
            s.cls = 'other'
            if mn.startswith('s_cbranch_vcc'): s.suse |= {106, 107}
        elif mn.startswith('s_'):
            s.cls = 'salu'
            if mn.startswith(('s_cmp', 's_bitcmp')):
                for o in ops: use(o)
            else:
                dfn(ops[0])
                for o in ops[1:]: use(o)
        else:
            raise Exception('unknown mnemonic ' + text)

class Asm:
    def __init__(s):
        s.lines = []
        s.clock = 0
        s.st = {}
        s.saved = {}
        s.seen_labels = set()
        s.vm = []
        s.role = None
        s.maxv = 0
        s.nops_added = 0
    def raw(s, text): s.lines.append(text)
    def comment(s, text): s.lines.append('  ; ' + text)
    def _need(s, i):
        need = 0
        def chk(kind, regs, n):
            nonlocal need
            for r in regs:
                p = s.st.get((kind, r))
                if p is not None:
                    gap = s.clock - p - 1
                    if gap < n: need = max(need, n - gap)
        if i.cls == 'mfma':
            chk('valu_w', i.vuse, 2)
            chk('mfma4_w', i.srcAB, 8); chk('mfma8_w', i.srcAB, 12)
            for r in i.srcC:
                for kind, n in (('mfma4_w', 6), ('mfma8_w', 10)):
                    p = s.st.get((kind, r))
                    if p is not None and s.st.get(('mfma_tuple', r)) != (frozenset(i.srcC), i.passes):
                        gap = s.clock - p - 1
                        if gap < n: need = max(need, n - gap)
            for r in i.vdef - i.srcC:
                chk('mfma4_w', {r}, 8); chk('mfma8_w', {r}, 12)
        if i.cls == 'valu':
            chk('mfma4_w', i.vuse | i.vdef, 8); chk('mfma8_w', i.vuse | i.vdef, 12)
            chk('mfma4_c', i.vdef, 3); chk('mfma8_c', i.vdef, 7)
            chk('valu_w', i.dppsrc, 2)
            if i.mn.startswith('v_permlane'): chk('valu_w', i.vuse, 2)
            if i.mn.startswith(('v_readlane', 'v_readfirstlane')): chk('valu_w', i.vuse, 1)
            chk('trans_w', i.vuse, 1)
            chk('valu_sw', i.suse, 2)
            chk('valu_sw', i.lanesel, 4)
            chk('st_data', i.vdef, 2)
        if i.cls in ('vmem', 'ds'):
            chk('mfma4_w', i.vuse | i.vdef, 8); chk('mfma8_w', i.vuse | i.vdef, 12)
            chk('trans_w', i.vuse, 1)
            chk('st_data', i.vdef, 1)
        if i.cls == 'vmem':
            chk('valu_sw', i.suse, 5)
            if i.lds: chk('salu_w', {124}, 1)
        if i.cls in ('salu', 'smem', 'other'):
            chk('valu_sw', i.suse, 2)
        return need
    def _nop(s, n):
        s.nops_added += n
        while n > 0:
            k = min(n, 16)
            s.lines.append(f'  s_nop {k-1}')
            s.clock += k
            n -= k
    def __call__(s, text, tag=None):
        for line in text.strip().split('\n'):
            line = line.strip()
            if not line or line.startswith(';'): continue
            s._one(line, tag)
    def _one(s, text, tag):
        i = Ins(text)
        if i.mn == 's_nop':
            s.lines.append('  ' + text); s.clock += int(i.ops[0], 0) + 1; return
        n = s._need(i)
        if n: s._nop(n)
        if i.mn.startswith(('s_cbranch', 's_branch')):
            lab = i.ops[0]
            if lab in s.seen_labels:
                s._nop(12)
            else:
                s.saved.setdefault(lab, []).append((s.clock, dict(s.st)))
        s.lines.append('  ' + text)
        c = s.clock
        for r in i.vdef | i.vuse: s.maxv = max(s.maxv, r)
        if i.cls == 'valu':
            for r in i.vdef:
                s.st[('valu_w', r)] = c
                if i.trans: s.st[('trans_w', r)] = c
                else: s.st.pop(('trans_w', r), None)
            for r in i.sdef: s.st[('valu_sw', r)] = c
        if i.cls == 'mfma':
            k = 'mfma%d' % i.passes
            for r in i.vdef:
                s.st[(k + '_w', r)] = c
                s.st[('mfma_tuple', r)] = (frozenset(i.vdef), i.passes)
            for r in i.srcC: s.st[(k + '_c', r)] = c
        if i.cls == 'salu':
            for r in i.sdef:
                s.st[('salu_w', r)] = c
                s.st.pop(('valu_sw', r), None)
        if i.cls == 'vmem':
            for r in i.stdata: s.st[('st_data', r)] = c
            s.vm.append((tag, s.role))
        s.clock += 1
    def label(s, lab):
        s.seen_labels.add(lab)
        for (clk, st) in s.saved.pop(lab, []):
            for k, p in st.items():
                if k[0] == 'mfma_tuple':
                    if s.st.get(k) != p: s.st[k] = None
                    continue
                age = (clk + 1) - p
                np_ = s.clock - age
                if k not in s.st or s.st[k] < np_: s.st[k] = np_
        s.lines.append(lab + ':')
    def wait_vm(s, tag, extra=''):
        idx = max(k for k, (t, r) in enumerate(s.vm) if t == tag)
        assert s.vm[idx][1] is None or s.vm[idx][1] == s.role, (tag, s.vm[idx], s.role)
        n = sum(1 for (t, r) in s.vm[idx + 1:] if r is None or r == s.role)
        n = min(n, 63)
        s(f's_waitcnt vmcnt({n}) {extra}'.strip())
    def text(s): return '\n'.join(s.lines) + '\n'
```

```python
import sys, struct
from asmdsl import Asm

NAME = 'parallel_sum__sliding_block_cached__geglu_ffn__decode_kernel'
def f32(x): return '0x%08x' % struct.unpack('<I', struct.pack('<f', x))[0]
def lanemask(fn):
    m = 0
    for l in range(64):
        if fn(l & 15, l >> 4): m |= 1 << l
    return m

HEADER = open('parallel_sum__sliding_block_cached__geglu_ffn__decode.s.ref').read().split('; Override')[0]

WS_Y  = 0
WS_S  = 0x100000
WS_P  = 0x110000
WS_E  = 0x108000
WS_F  = 0x109000
WS_T  = 0x300000
WS_SZ = 0x400000
L_PART = 0
L_YP   = 16384
L_DUM  = 49152
L_Q    = 53248
L_HID  = 53760
L_FT   = 53888
L_CNT  = 54144
L_X    = 54272
LDS_SZ = 59520
BIG = 0x40000000
SPIN = 1 << 16

def gen(KU=3, KP0=9, T=8, TV=8, RV=12, ILV=1, XBEG=4, XEND=8, SLI=38, GST=6, PRIO=1, SLP=8, KPOLL=20, W0U=1, ROT=1, EXP=0, stamps=0, name=NAME):
    a = Asm()
    SPIN = (1 << 16) if EXP == 0 else 0
    nst = [0]
    SREG = [80,82,84,86,56,58,60,62]
    SETS = {1: ['start','barA','sig','kiss','barB','smax','vend','end'], 2: ['start','bar0','ln','wland','barA','sig','poll','end'], 3: ['start','vend','barC','mm','barD','pub','c1','end']}
    def stamp(nm):
        if stamps and nm in SETS[stamps]:
            nst[0] = SETS[stamps].index(nm)
            r = SREG[nst[0]]
            a(f's_memrealtime s[{r}:{r+1}]'); nst[0] += 1
    a.raw(HEADER.rstrip())
    a.raw(f'; @launch grid=(256,1,1) block=(512,1,1) lds={LDS_SZ}')
    a.raw('.amdgcn_target "amdgcn-amd-amdhsa--gfx950"\n.text\n.globl %s\n.p2align 8\n.type %s,@function\n%s:' % (name, name, name))
    sW_, sH, sB, sS, sJ, sXCD, sP, sIDX = 's3', 's4', 's5', 's6', 's7', 's68', 's69', 's70'
    K, V, W, WO, WD, X, WS, OUT, DBG = 's[8:11]', 's[12:15]', 's[16:19]', 's[20:23]', 's[24:27]', 's[28:31]', 's[32:35]', 's[36:39]', 's[40:43]'
    sKV, sKV2 = 's71', 's72'
    sKV0 = 's73'
    sT0, sT1, sT2, sT3 = 's74', 's75', 's76', 's77'
    sLO32 = 's[78:79]'
    KB = 64
    def kt(i): return f'v[{KB+4*i}:{KB+4*i+3}]'
    def v4(r): return f'v[{r}:{r+3}]'

    a(f'''
    s_cmp_ge_u32 s2, 256
    s_cbranch_scc1 L_end
    s_load_dwordx16 s[44:59], s[0:1], 0
    s_load_dwordx8 s[60:67], s[0:1], 64''')
    stamp('start')
    if PRIO: a('s_setprio 3')
    a(f'''
    v_lshrrev_b32 v14, 6, v0
    v_and_b32 v1, 63, v0
    v_readfirstlane_b32 {sW_}, v14
    v_and_b32 v2, 15, v1
    v_lshrrev_b32 v3, 4, v1
    s_and_b32 {sXCD}, s2, 7
    s_lshr_b32 {sJ}, s2, 3
    s_lshr_b32 {sT0}, {sJ}, 3
    s_lshl_b32 {sH}, {sXCD}, 2
    s_add_u32 {sH}, {sH}, {sT0}
    s_and_b32 {sT1}, {sJ}, 7
    s_lshr_b32 {sB}, {sT1}, 1
    s_and_b32 {sS}, {sT1}, 1
    s_lshl_b32 {sP}, {sH}, 1
    s_add_u32 {sP}, {sP}, {sS}
    s_lshl_b32 {sIDX}, {sXCD}, 5
    s_add_u32 {sIDX}, {sIDX}, {sJ}
    s_mov_b32 s78, -1
    s_mov_b32 s79, 0
    ''')
    gstep = 6144 * 8 if ILV else 6144
    a(f'''
    s_lshl_b32 {sT0}, {sB}, 5
    s_add_u32 {sT0}, {sT0}, {sH}
    s_mul_i32 {sKV0}, {sT0}, 3145728
    s_mul_i32 {sT2}, {sS}, 393216
    s_add_u32 {sKV0}, {sKV0}, {sT2}
    s_add_u32 {sKV0}, {sKV0}, {6144*384}
    s_mul_i32 {sT2}, {sW_}, {6144 if ILV else 49152}
    s_add_u32 {sKV0}, {sKV0}, {sT2}
    ''')
    a(f'''
    s_mul_i32 s97, {sT1}, 80
    s_lshl_b32 {sT2}, {sW_}, 4
    s_add_u32 s97, s97, {sT2}
    s_and_b32 {sT3}, {sJ}, 15
    s_mul_i32 {sT3}, {sT3}, 40
    s_add_u32 {sT3}, {sT3}, {sT2}
    s_sub_u32 {sT3}, {sT3}, 80
    s_mul_i32 s98, {sH}, 384
    s_mul_i32 {sT2}, {sXCD}, 384
    s_movk_i32 s96, 3072
    s_cmp_lt_u32 {sW_}, 5
    s_cselect_b32 s96, 12288, s96
    s_cselect_b32 s97, s97, {sT3}
    s_cselect_b32 s98, s98, {sT2}
    s_mul_i32 s92, s97, s96
    s_add_u32 s92, s92, s98            ; so0
    s_lshl_b32 {sT2}, s96, 3
    s_add_u32 s93, s92, {sT2}          ; so1
    s_cmp_eq_u32 {sW_}, 7
    s_cselect_b32 s99, {BIG}, 0
    s_add_u32 s93, s93, s99
    s_add_u32 s94, s92, s96
    s_add_u32 s95, s93, s96
    ''')
    a(f'''
    v_lshrrev_b32 v14, 3, v2
    v_mul_lo_u32 v20, v14, s99
    v_lshl_add_u32 v14, v14, 2, v3
    v_and_b32 v15, 7, v2
    v_lshlrev_b32 v15, 4, v15
    s_lshl_b32 {sT2}, s96, 1
    v_mul_lo_u32 v16, v3, {sT2}
    v_lshl_add_u32 v16, v2, 4, v16
    v_mul_lo_u32 v17, v14, {sT2}
    v_add3_u32 v17, v17, v15, v20
    v_add_u32 v17, 256, v17            ; vwy
    v_mul_u32_u24 v18, 1280, v3
    v_lshl_add_u32 v18, v2, 4, v18     ; vxs = 1280g+16n
    v_lshlrev_b32 v19, 2, v14
    s_lshl_b32 s97, s97, 1
    ''')
    a(f'''
    v_lshrrev_b32 v20, 2, v2
    v_and_b32 v21, 3, v2
    v_lshlrev_b32 v21, 4, v21
    v_mul_u32_u24 v8, 1536, v20
    v_add_u32 v8, v8, v21
    v_lshrrev_b32 v22, 1, v3
    v_mul_u32_u24 v9, 384, v22
    v_add_u32 v9, v9, v8
    v_and_b32 v22, 1, v3
    v_lshlrev_b32 v22, 6, v22
    v_add3_u32 v9, v9, v22, 64
    v_add_u32 v9, 192, v9              ; vky
    v_lshl_add_u32 v8, v3, 6, v8       ; vkx
    ''')
    a(f'''
    s_lshl_b32 {sT0}, {sB}, 6
    s_add_u32 {sT0}, {sT0}, {sP}
    s_mul_i32 s90, {sT0}, 2560
    s_mul_i32 {sT2}, {sW_}, 320
    s_add_u32 {sT2}, {sT2}, s90
    v_lshlrev_b32 v21, 4, v1
    v_add_u32 v21, {sT2}, v21
    s_lshl_b32 {sT0}, {sB}, 5
    s_add_u32 {sT0}, {sT0}, {sH}
    s_lshl_b32 s91, {sT0}, 8
    s_add_u32 s91, s91, {WS_S}
    s_lshl_b32 {sT2}, {sS}, 3
    s_add_u32 {sT2}, {sT2}, {sW_}
    s_lshl_b32 {sT2}, {sT2}, 4
    s_add_u32 s89, s91, {sT2}
    v_mov_b32 v22, s89
    v_cmp_eq_u32 vcc, 20, v1
    v_cndmask_b32 v21, v21, v22, vcc
    v_mov_b32 v22, {BIG}
    v_cmp_lt_u32 vcc, 20, v1
    v_cndmask_b32 v21, v21, v22, vcc
    v_mov_b32 v24, -1
    v_mov_b32 v25, -1
    v_mov_b32 v26, -1
    v_mov_b32 v27, -1
    s_waitcnt lgkmcnt(0)
    ''')
    def srd(d, p, n):
        a(f's_mov_b32 s{d}, s{p}\ns_and_b32 s{d+1}, s{p+1}, 0xffff\ns_mov_b32 s{d+2}, {n}\ns_mov_b32 s{d+3}, 0x20000')
    a(f's_add_u32 s100, s66, {WS_E}\ns_addc_u32 s101, s67, 0\ns_load_dwordx2 s[100:101], s[100:101], 0')
    srd(28, 44, 5120)
    a(f'''
    s_cmp_lt_u32 {sJ}, 16
    s_cselect_b32 s16, s56, s58
    s_cselect_b32 s17, s57, s59
    s_cmp_lt_u32 {sW_}, 5
    s_cselect_b32 s16, s50, s16
    s_cselect_b32 s17, s51, s17
    s_mov_b32 s18, 1966080
    s_cselect_b32 s18, 7864320, s18
    s_and_b32 s17, s17, 0xffff
    s_mov_b32 s19, 0x20000
    ''')
    a(f'''
    s_lshl_b32 {sT0}, {sW_}, 10
    s_add_u32 {sT2}, {sT0}, {L_X}
    s_mov_b32 m0, {sT2}
    v_lshlrev_b32 v20, 4, v1
    s_cmp_ge_u32 {sW_}, 5
    s_cbranch_scc1 L_nox
    ''')
    a.role = 'x'
    a(f'buffer_load_dwordx4 v20, {X}, {sT0} offen lds', tag='x')
    a.role = None
    a.label('L_nox')
    for i in range(2):
        a(f'buffer_load_dwordx4 {v4(112+12*i)}, v16, {W}, s{92+2*i} offen nt', tag=f'w{i}')
        a(f'buffer_load_dwordx4 {v4(116+12*i)}, v16, {W}, s{93+2*i} offen nt', tag=f'w{i}')
        a(f'buffer_load_dwordx4 {v4(120+12*i)}, v17, {W}, s{92+2*i} offen nt', tag=f'w{i}')
    srd(8, 46, 402653184)
    srd(32, 66, WS_SZ)
    kissued = [0]
    def grp(g):
        if ROT:
            a(f's_add_u32 {sKV}, {sJ if ROT == 1 else "s2"}, {g}\ns_and_b32 {sKV}, {sKV}, 7\ns_mul_i32 {sKV}, {sKV}, {gstep}\ns_add_u32 {sKV}, {sKV}, {sKV0}')
        else:
            a(f's_mov_b32 {sKV}, {sKV0}' if g == 0 else f's_add_u32 {sKV}, {sKV}, {gstep}')
    def kload(paced=False):
        i = kissued[0]; g, e = divmod(i, 6)
        if paced and i >= T: a.wait_vm(f'k{i-T}')
        if e == 0:
            grp(g)
        if e < 4: a(f'buffer_load_dwordx4 {kt(i)}, v8, {K}, {sKV} offen offset:{384*e} nt', tag=f'k{i}')
        else:     a(f'buffer_load_dwordx4 {kt(i)}, v9, {K}, {sKV} offen offset:{768*(e-4)} nt', tag=f'k{i}')
        kissued[0] += 1
    if EXP & 16: a(f'v_mov_b32 v21, {BIG}')
    a(f'buffer_store_dwordx4 v[24:27], v21, {WS}, 0 offen sc1', tag='clr')
    if PRIO: a('s_setprio 0')
    for i in range(KU): kload()
    def kmore(frac):
        while kissued[0] < KU + int((KP0 - KU) * frac + 0.5): kload()
    srd(12, 48, 402653184); srd(20, 52, 7864320); srd(24, 60, 1966080); srd(36, 62, 5120)
    a(f'''
    v_and_b32 v20, 1, v2
    v_cmp_eq_u32 vcc, 1, v20
    v_mov_b32 v21, 0xffff
    v_mov_b32 v22, 0xffff0000
    v_cndmask_b32 v21, v21, v22, vcc
    v_bfe_u32 v20, v2, 1, 2
    ''')
    for r in range(4):
        a(f'v_cmp_eq_u32 vcc, {r}, v20\nv_cndmask_b32 v{4+r}, 0, v21, vcc')
    a(f'''
    v_mul_u32_u24 v10, 384, v3
    v_lshrrev_b32 v20, 3, v2
    v_mul_u32_u24 v11, 3072, v20
    v_add3_u32 v11, v11, v10, v15
    v_add_u32 v11, 256, v11            ; vvy = (g+8*(n>>3))*384+256+16*(n&7)
    v_lshl_add_u32 v10, v2, 4, v10     ; vvx = g*384+16n
    v_mul_u32_u24 v12, 7680, v3
    v_lshl_add_u32 v12, v2, 4, v12     ; vwo = 6g*1280+16n
    v_mov_b32 v22, {BIG}
    v_cmp_eq_u32 vcc, 3, v3
    v_cndmask_b32 v13, v18, v22, vcc   ; vwd = g*1280+16n  (g==3 -> OOB)
    ''')
    a(f'''
    v_lshrrev_b32 v20, 1, v3
    s_lshl_b32 {sT0}, {sW_}, 1
    v_add_u32 v21, {sT0}, v20
    v_mul_u32_u24 v21, 3072, v21
    v_and_b32 v22, 1, v3
    v_lshlrev_b32 v22, 4, v22
    v_add_u32 v21, v21, v22            ; blk*3072 + 16*(g&1)
    v_lshl_add_u32 v22, v2, 5, v21     ; + 32 n
    v_lshl_add_u32 v23, v15, 1, v21
    v_add_u32 v23, 512, v23            ; + 512 + 32*(n&7)
    v_lshrrev_b32 v21, 3, v2
    v_cmp_eq_u32 vcc, v21, v20
    v_lshlrev_b32 v21, 4, v1
    v_add_u32 v21, {L_DUM}, v21
    v_cndmask_b32 v23, v21, v23, vcc
    v_mov_b32 v20, {L_CNT}
    v_mov_b32 v21, 0
    ds_write_b32 v20, v21
    ''')
    a(f'''
    s_waitcnt lgkmcnt(0)
    s_mul_i32 s100, s100, 0x9E3779B1
    s_add_u32 s100, s100, 0x7F4A7C15
    s_mul_i32 s101, s101, 0x85EBCA69
    s_add_u32 s101, s101, 0xC2B2AE35
    ''')
    a.role = 'x'; a.wait_vm('x'); a.role = None
    a('s_barrier')
    stamp('bar0')
    a(f'v_add_u32 v19, s97, v19\nv_min_u32 v19, 1276, v19')
    for i in range(5): a(f'ds_read_b128 {v4(136+4*i)}, v18 offset:{L_X+256*i}')
    for be in range(4): a(f'ds_read_b32 v{156+be}, v19 offset:{L_X+1280*be}')
    kmore(1/6)
    a('s_waitcnt lgkmcnt(0)')
    U = 160
    for i in range(20):
        a(f'v_lshlrev_b32 v{U+2*i}, 16, v{136+i}\nv_and_b32 v{U+2*i+1}, 0xffff0000, v{136+i}')
    for k in range(4): a(f'v_add_f32 v{248+k}, v{U+k}, v{U+4+k}')
    for i in range(8, 40): a(f'v_add_f32 v{248+i%4}, v{248+i%4}, v{U+i}')
    a('v_add_f32 v248, v248, v249\nv_add_f32 v250, v250, v251\nv_add_f32 v248, v248, v250')
    def rowred(op, r, steps=(8, 4, 2, 1)):
        for s_ in steps: a(f'{op}_dpp v{r}, v{r}, v{r} row_ror:{s_} row_mask:0xf bank_mask:0xf')
    rowred('v_add_f32', 248)
    a(f'v_mul_f32 v252, {f32(1/640)}, v248')
    kmore(2/6)
    for i in range(40): a(f'v_sub_f32 v{U+i}, v{U+i}, v252')
    for k in range(4): a(f'v_mul_f32 v{248+k}, v{U+k}, v{U+k}')
    for i in range(4, 40): a(f'v_fmac_f32 v{248+i%4}, v{U+i}, v{U+i}')
    a('v_add_f32 v248, v248, v249\nv_add_f32 v250, v250, v251\nv_add_f32 v248, v248, v250')
    rowred('v_add_f32', 248)
    a(f'''
    v_mul_f32 v248, {f32(1/640)}, v248
    v_cvt_pk_bf16_f32 v249, v252, v248
    v_lshlrev_b32 v252, 16, v249
    v_and_b32 v248, 0xffff0000, v249
    v_add_f32 v248, {f32(1e-5)}, v248
    v_cvt_pk_bf16_f32 v248, v248, v248
    v_and_b32 v248, 0xffff0000, v248
    v_sqrt_f32 v248, v248
    v_cvt_pk_bf16_f32 v248, v248, v248
    v_and_b32 v248, 0xffff0000, v248
    v_rcp_f32 v248, v248
    ''')
    for be in range(4):
        a(f'v_readlane_b32 s{44+be}, v252, {16*be}')
    for be in range(4):
        a(f'v_readlane_b32 s{48+be}, v248, {16*be}')
    kmore(3/6)
    AO = 160
    for be in range(4):
        a(f'''
        v_lshlrev_b32 v248, 16, v{156+be}
        v_and_b32 v249, 0xffff0000, v{156+be}
        v_subrev_f32 v248, s{44+be}, v248
        v_subrev_f32 v249, s{44+be}, v249
        v_cvt_pk_bf16_f32 v250, v248, v249
        v_lshlrev_b32 v248, 16, v250
        v_and_b32 v249, 0xffff0000, v250
        v_mul_f32 v248, s{48+be}, v248
        v_mul_f32 v249, s{48+be}, v249
        v_cvt_pk_bf16_f32 v248, v248, v248
        v_cvt_pk_bf16_f32 v249, v249, v249
        ''')
        for i in range(2):
            for r in range(4):
                a(f'v_and_b32 v{AO+16*i+4*be+r}, v{248+i}, v{4+r}')
    ACC = 200
    stamp('ln')
    kmore(4/6)
    for i in range(2):
        a.wait_vm(f'w{i}')
        for be in range(4):
            for e in range(3):
                d = v4(ACC + 12*be + 4*e)
                a(f'v_mfma_f32_16x16x32_bf16 {d}, {v4(AO+16*i+4*be)}, {v4(112+12*i+4*e)}, {0 if i == 0 else d}')
    stamp('wland')
    kmore(5/6)
    for be in range(4):
        d1, d2, d3 = ACC + 12*be, ACC + 12*be + 4, ACC + 12*be + 8
        for r in range(4):
            a(f'v_cndmask_b32 v{d1+r}, v{d2+r}, v{d1+r}, {sLO32}')
        a(f'ds_write_b128 v22, {v4(d1)} offset:{768*be}')
        a(f'ds_write_b128 v23, {v4(d3)} offset:{768*be}')
    kmore(1)
    a('s_waitcnt lgkmcnt(0)\ns_barrier')
    stamp('barA')
    a(f'''
    s_cmp_ge_u32 {sW_}, 6
    s_cbranch_scc1 L_nopub
    s_cmp_lt_u32 {sW_}, 3
    s_cselect_b32 {sT0}, 0, 27648
    v_lshlrev_b32 v14, 4, v0
    v_add_u32 v15, {sT0}, v14
    ''')
    for u in range(6): a(f'ds_read_b128 {v4(16+4*u)}, v15 offset:{3072*u}')
    a(f's_cbranch_scc0 L_six')
    for u in range(6, 10): a(f'ds_read_b128 {v4(16+4*u)}, v15 offset:{3072*u}')
    a('s_waitcnt lgkmcnt(0)')
    for u in range(4):
        for r in range(4): a(f'v_add_f32 v{16+4*u+r}, v{16+4*u+r}, v{40+4*u+r}')
    a.label('L_six')
    a('s_waitcnt lgkmcnt(0)')
    for u in range(3):
        for r in range(4): a(f'v_add_f32 v{16+4*u+r}, v{16+4*u+r}, v{28+4*u+r}')
    for r in range(4): a(f'v_add_f32 v{16+r}, v{16+r}, v{20+r}')
    for r in range(4): a(f'v_add_f32 v{16+r}, v{16+r}, v{24+r}')
    a(f's_mul_i32 {sT0}, {sIDX}, 6144\ns_add_u32 {sT0}, {sT0}, {WS_P}')
    a.role = 'pub'
    if EXP & 8: a(f'v_mov_b32 v14, {BIG}')
    a(f'buffer_store_dwordx4 v[16:19], v14, {WS}, {sT0} offen sc1', tag='pub')
    a.role = None
    a.label('L_nopub')
    def signal(sfx):
        a.role = 'pub'; a.wait_vm('pub'); a.role = None
        a(f'''
        v_mov_b32 v14, {L_CNT}
        v_mov_b32 v15, 1
        s_mov_b64 exec, 1
        ds_add_rtn_u32 v20, v14, v15
        s_waitcnt lgkmcnt(0)
        v_readfirstlane_b32 {sT0}, v20
        s_cmp_eq_u32 {sT0}, 7
        s_cbranch_scc0 L_nosig{sfx}
        s_lshl_b32 {sT0}, {sIDX}, 3
        s_add_u32 {sT0}, {sT0}, {WS_F}
        v_mov_b32 v20, 0
        v_mov_b32 v14, s100
        v_mov_b32 v15, s101
        ''')
        a.role = 'sig'
        a(f'buffer_store_dwordx2 v[14:15], v20, {WS}, {sT0} offen sc1')
        a.role = None
        a.label(f'L_nosig{sfx}')
        a('s_mov_b64 exec, -1')
    while kissued[0] < KP0 + T: kload(True)
    signal('a')
    stamp('sig')
    while kissued[0] < KPOLL: kload(True)
    a(f's_cmp_eq_u32 {sW_}, 0\ns_cbranch_scc1 L_w0')
    vm_fork, k_fork = list(a.vm), kissued[0]
    while kissued[0] < 48: kload(True)
    stamp('kiss'); stamp('poll')
    a('s_branch L_np3')
    vm_join = list(a.vm)
    a.vm, kissued[0] = vm_fork, k_fork
    a.label('L_w0')
    a(f'''
    v_and_b32 v60, 31, v1
    v_lshlrev_b32 v60, 3, v60
    s_lshl_b32 {sT2}, {sXCD}, 8
    s_add_u32 {sT2}, {sT2}, {WS_F}
    s_mov_b32 {sT1}, {SPIN}
    ''')
    if EXP & 1: a(f'v_mov_b32 v60, {BIG}')
    a(f'buffer_load_dwordx2 v[62:63], v60, {WS}, {sT2} offen sc1', tag='poll')
    while kissued[0] < KPOLL + T - 1: kload(True)
    a.wait_vm('poll')
    a.label('L_spin1')
    a(f'''
    v_cmp_ne_u64 vcc, s[100:101], v[62:63]
    s_cbranch_vccz L_ok1
    s_sub_u32 {sT1}, {sT1}, 1
    s_cbranch_scc1 L_ok1
    s_sleep {SLP}
    buffer_load_dwordx2 v[62:63], v60, {WS}, {sT2} offen sc1
    s_waitcnt vmcnt(0)
    s_branch L_spin1
    ''')
    a.vm.pop()
    a.label('L_ok1')
    stamp('poll')
    a(f'''
    s_lshl_b32 {sT0}, {sH}, 3
    s_mul_i32 {sT0}, {sT0}, 6144
    s_mul_i32 {sT2}, {sB}, 768
    s_add_u32 {sT0}, {sT0}, {sT2}
    s_add_u32 {sT0}, {sT0}, {WS_P}
    v_lshlrev_b32 v60, 4, v1
    v_mov_b32 v61, {BIG}
    v_cmp_gt_u32 vcc, 48, v1
    v_cndmask_b32 v60, v61, v60, vcc
    ''')
    if EXP & 2: a(f'v_mov_b32 v60, {BIG}')
    for t in range(8):
        a(f'buffer_load_dwordx4 {v4(16+4*t)}, v60, {WS}, {sT0} offen sc1', tag='gq')
        if t < 7: a(f's_add_u32 {sT0}, {sT0}, 6144')
    a(f'''
    s_mul_i32 {sT0}, {sXCD}, {32*6144}
    s_add_u32 {sT0}, {sT0}, {sT2}
    s_add_u32 {sT0}, {sT0}, {WS_P+3072}
    s_and_b32 {sT3}, {sP}, 7
    s_mul_i32 {sT3}, {sT3}, 96
    s_add_u32 {sT0}, {sT0}, {sT3}
    v_mul_u32_u24 v61, 6144, v2
    v_lshl_add_u32 v61, v3, 4, v61       ; r*6144 + 16 g
    v_mov_b32 v62, {16*6144-96}
    v_cmp_lt_u32 vcc, 1, v3
    v_cndmask_b32 v62, 0, v62, vcc
    v_add_u32 v62, v62, v61
    ''')
    if EXP & 4: a(f'v_mov_b32 v61, {BIG}\nv_mov_b32 v62, {BIG}')
    a(f'buffer_load_dwordx4 {v4(48)}, v61, {WS}, {sT0} offen sc1', tag='gf')
    a(f'buffer_load_dwordx4 {v4(52)}, v62, {WS}, {sT0} offen offset:64 sc1', tag='gf')
    a(f's_add_u32 {sT0}, {sT0}, {16*6144}')
    a(f'buffer_load_dwordx4 {v4(56)}, v61, {WS}, {sT0} offen offset:32 sc1', tag='gf')
    while kissued[0] < 48: kload(not W0U)
    stamp('kiss')
    a.wait_vm('gq')
    for u in range(4):
        for r in range(4): a(f'v_add_f32 v{16+4*u+r}, v{16+4*u+r}, v{32+4*u+r}')
    for u in range(2):
        for r in range(4): a(f'v_add_f32 v{16+4*u+r}, v{16+4*u+r}, v{24+4*u+r}')
    for r in range(4): a(f'v_add_f32 v{16+r}, v{16+r}, v{20+r}')
    a(f'''
    v_cvt_pk_bf16_f32 v16, v16, v17
    v_cvt_pk_bf16_f32 v17, v18, v19
    v_lshlrev_b32 v60, 3, v1
    ds_write_b64 v60, v[16:17] offset:{L_Q}
    ''')
    a.wait_vm('gf')
    for s_ in (8, 4, 2, 1):
        for r in range(48, 60): a(f'v_add_f32_dpp v{r}, v{r}, v{r} row_ror:{s_} row_mask:0xf bank_mask:0xf')
    a(f'v_lshlrev_b32 v60, 4, v3')
    for i in range(3): a(f'ds_write_b128 v60, {v4(48+4*i)} offset:{L_FT+64*i}')
    a(f'''
    v_min_u32 v60, 23, v1
    v_lshlrev_b32 v60, 2, v60
    s_waitcnt lgkmcnt(0)
    ds_read_b32 v20, v60 offset:{L_FT}
    ds_read_b32 v21, v60 offset:{L_FT+96}
    s_waitcnt lgkmcnt(0)
    v_cvt_pk_bf16_f32 v22, v20, v21
    v_lshlrev_b32 v20, 16, v22
    v_and_b32 v21, 0xffff0000, v22
    v_mul_f32 v22, v20, v20
    v_mul_f32 v22, {f32(0.044715)}, v22
    v_fma_f32 v22, v22, v20, v20           ; x + c x^3
    v_mul_f32 v22, {f32(-2*0.7978845608028654*1.4426950408889634)}, v22
    v_exp_f32 v22, v22
    v_add_f32 v22, 1.0, v22
    v_rcp_f32 v22, v22
    v_mul_f32 v22, v22, v20
    v_cvt_pk_bf16_f32 v22, v22, v22
    v_and_b32 v22, 0xffff0000, v22
    v_mul_f32 v22, v22, v21
    v_cvt_pk_bf16_f32 v22, v22, v22
    v_cmp_gt_u32 vcc, 24, v1
    v_cndmask_b32 v22, 0, v22, vcc
    v_min_u32 v60, 31, v1
    v_lshlrev_b32 v60, 2, v60
    ds_write_b32 v60, v22 offset:{L_HID}
    s_mov_b32 {sT1}, {SPIN}
    ''')
    a('s_waitcnt lgkmcnt(0)')
    a.role = None
    a.vm = vm_join
    a.label('L_np3')
    a('s_barrier')
    stamp('barB')
    a(f'''
    v_and_b32 v14, 3, v2
    v_lshl_add_u32 v15, v3, 2, v14
    v_lshlrev_b32 v15, 4, v15
    ds_read_b128 v[56:59], v15 offset:{L_Q}
    v_and_b32 v15, 0x70, v15
    ds_read_b128 v[60:63], v15 offset:{L_Q+256}
    ''')
    mX = [lanemask(lambda m, g, u=u: (m >> 2) == u) for u in range(4)]
    mY = [lanemask(lambda m, g, w=w: (m >> 2) == 2*w + (g >> 1)) for w in range(2)]
    for k, m in enumerate(mX + mY):
        a(f's_mov_b32 s{44+2*k}, {hex(m & 0xffffffff)}\ns_mov_b32 s{45+2*k}, {hex(m >> 32)}')
    a('s_waitcnt lgkmcnt(0)')
    for k in range(6):
        src = 56 if k < 4 else 60
        for r in range(4): a(f'v_cndmask_b32 v{32+4*k+r}, 0, v{src+r}, s[{44+2*k}:{45+2*k}]')
    vissued = [0]
    def vreg(i): return kt(i % RV)
    def vload():
        i = vissued[0]; g, e = divmod(i, 6); c, x = divmod(e, 3)
        if e == 0:
            grp(g)
            a(f's_add_u32 {sKV2}, {sKV}, 3072')
        if x == 0:   a(f'buffer_load_dwordx4 {vreg(i)}, v10, {V}, {sKV} offen offset:{1536*c} nt', tag=f'v{i}')
        elif x == 1: a(f'buffer_load_dwordx4 {vreg(i)}, v10, {V}, {sKV2} offen offset:{1536*c} nt', tag=f'v{i}')
        else:        a(f'buffer_load_dwordx4 {vreg(i)}, v11, {V}, {sKV} offen offset:{1536*c} nt', tag=f'v{i}')
        vissued[0] += 1
    WDT, WOT = 12, 17
    assert RV <= 12
    a(f'''
    s_mul_i32 s92, {sP}, 24
    s_mul_i32 {sT0}, {sW_}, 3
    s_add_u32 s92, s92, {sT0}
    s_mul_i32 s92, s92, 1280            ; wd base
    s_mul_i32 s93, {sH}, 192
    s_mul_i32 {sT0}, {sW_}, 24
    s_add_u32 s93, s93, {sT0}
    s_mul_i32 s93, s93, 1280
    s_add_u32 s94, s93, 3840
    ''')
    extras = [('wd', c) for c in range(5)] + [('wo', t, c) for t in range(6) for c in range(5)]
    xiss = [0]
    def xload():
        e = extras[xiss[0]]
        if e[0] == 'wd':
            a(f'buffer_load_dwordx4 {kt(WDT+e[1])}, v13, {WD}, s92 offen offset:{256*e[1]} nt', tag='wd')
        else:
            t, c = e[1], e[2]
            a(f'buffer_load_dwordx4 {kt(WOT+5*t+c)}, v12, {WO}, s{93+t//3} offen offset:{1280*(t%3)+256*c} nt', tag='wo')
        xiss[0] += 1
    SC = 0.07216878364870322
    def score_post(g):
        d = 24 + 4*(g & 1); s_ = 16 + g
        a(f'''
        v_mov_b32_dpp v{s_}, v{d} quad_perm:[0,0,0,0] row_mask:0xf bank_mask:0xf
        v_add_f32_dpp v{s_}, v{d+1}, v{s_} quad_perm:[1,1,1,1] row_mask:0xf bank_mask:0xf
        v_add_f32_dpp v{s_}, v{d+2}, v{s_} quad_perm:[2,2,2,2] row_mask:0xf bank_mask:0xf
        v_add_f32_dpp v{s_}, v{d+3}, v{s_} quad_perm:[3,3,3,3] row_mask:0xf bank_mask:0xf
        v_cvt_pk_bf16_f32 v{s_}, v{s_}, v{s_}
        v_and_b32 v{s_}, 0xffff0000, v{s_}
        v_mul_f32 v{s_}, {f32(SC)}, v{s_}
        v_cvt_pk_bf16_f32 v{s_}, v{s_}, v{s_}
        v_and_b32 v{s_}, 0xffff0000, v{s_}
        ''')
    nx = len(extras)
    span = 48 - XBEG - XEND
    seq = []
    xi = 0
    for i in range(48):
        seq.append('v')
        if i == SLI: seq.append('sl')
        while xi < nx and i >= XBEG and (xi + 1) * span <= (i + 1 - XBEG) * nx:
            seq.append('x'); xi += 1
    assert xi == nx
    sp = [0]
    did_wd = [False]
    SS = KB + 4*47
    GF = KB + 4*WDT + 12 - 12 + 16 - 4
    def statload():
        a(f'''
        v_lshlrev_b32 v8, 4, v2
        s_mul_i32 s95, {sP}, 43691
        s_lshr_b32 s95, s95, 17
        s_mul_i32 {sT0}, {sB}, 1280
        s_lshl_b32 {sT1}, s95, 6
        s_add_u32 s96, {sT0}, {sT1}
        s_mul_i32 {sT0}, s95, 3
        s_mov_b32 s97, 1
        s_cmp_lg_u32 {sT0}, {sP}
        s_cselect_b32 s97, 0, s97
        s_cmp_ge_u32 s95, 20
        s_cselect_b32 s97, 0, s97
        s_cmp_lg_u32 {sW_}, 7
        s_cselect_b32 s97, 0, s97
        v_lshlrev_b32 v9, 4, v1
        s_mov_b32 s98, {WS_F}
        s_cmp_eq_u32 s97, 0
        s_cbranch_scc1 L_nogf
        ''')
        a.role = 'cons'
        a(f'buffer_load_dwordx4 {v4(GF)}, v9, {WS}, s98 offen sc1')
        a(f'buffer_load_dwordx4 {v4(GF+4)}, v9, {WS}, s98 offen offset:1024 sc1')
        a.vm.pop(); a.vm.pop()
        a.role = None
        a.label('L_nogf')
        a(f'buffer_load_dwordx2 v[{SS}:{SS+1}], v8, {WS}, s91 offen sc1', tag='sl')
    def pump(lasttag, kfree, vcons):
        while sp[0] < len(seq):
            idx = max(k for k, (t, r) in enumerate(a.vm) if t == lasttag)
            if len(a.vm) - 1 - idx >= TV: break
            op = seq[sp[0]]
            if op == 'v':
                i = vissued[0]
                if i < RV:
                    if i >= kfree: break
                elif i - RV >= vcons: break
                vload()
            elif op == 'x':
                if WDT + xiss[0] >= kfree: break
                xload()
            else:
                if kfree < 48: break
                assert did_wd[0]
                statload()
            sp[0] += 1
    known = 47 - T
    a.wait_vm(f'k{known}')
    for g in range(8):
        d = v4(24 + 4*(g & 1))
        for e in range(6):
            i = 6*g + e
            if i > known:
                a.wait_vm(f'k{i}'); known = i
            a(f'v_mfma_f32_16x16x32_bf16 {d}, {v4(32+4*e)}, {kt(i)}, {0 if e == 0 else d}')
            if i == known: pump(f'k{known}', i + 1, 0)
        if 6*g + 5 < known and (g & 1) == 0 and known < 47:
            known += 1
            a.wait_vm(f'k{known}')
            pump(f'k{known}', 6*g + 6, 0)
        if g > 0: score_post(g-1)
    score_post(7)
    def allred(op, r, t):
        rowred(op, r, (4, 8))
        a(f'v_mov_b32 v{t}, v{r}\nv_permlane16_swap_b32 v{r}, v{t}\n{op} v{r}, v{r}, v{t}')
        a(f'v_mov_b32 v{t}, v{r}\nv_permlane32_swap_b32 v{r}, v{t}\n{op} v{r}, v{r}, v{t}')
    a('v_max3_f32 v14, v16, v17, v18\nv_max3_f32 v15, v19, v20, v21\nv_max3_f32 v14, v14, v22, v23\nv_max_f32 v14, v14, v15')
    allred('v_max_f32', 14, 15)
    L2E = 1.4426950408889634
    for g in range(8): a(f'v_sub_f32 v{16+g}, v{16+g}, v14')
    for g in range(8): a(f'v_mul_f32 v{16+g}, {f32(L2E)}, v{16+g}')
    for g in range(8): a(f'v_exp_f32 v{16+g}, v{16+g}')
    a('v_add_f32 v15, v16, v17\nv_add_f32 v24, v18, v19\nv_add_f32 v25, v20, v21\nv_add_f32 v26, v22, v23\nv_add_f32 v15, v15, v24\nv_add_f32 v25, v25, v26\nv_add_f32 v15, v15, v25')
    allred('v_add_f32', 15, 24)
    for g in range(8): a(f'v_cvt_pk_bf16_f32 v{16+g}, v{16+g}, v{16+g}')
    a(f'''
    v_min_u32 v14, -2, v14
    v_min_u32 v15, -2, v15
    v_mov_b32 v24, 0
    v_readfirstlane_b32 s88, v14          ; own m
    s_mov_b64 exec, 1
    ''')
    a(f'buffer_store_dwordx2 v[14:15], v24, {WS}, s89 offen sc1', tag='stat')
    a('s_mov_b64 exec, -1')
    stamp('smax')
    YA, OA = 44, 32
    a(f'''
    s_mul_i32 {sT0}, {sW_}, 12
    v_lshlrev_b32 v24, 2, v3
    v_add_u32 v24, {sT0}, v24
    v_mov_b32 v25, 124
    v_cmp_eq_u32 vcc, 3, v3
    v_cndmask_b32 v24, v24, v25, vcc
    ds_read_b32 v14, v24 offset:{L_HID}
    s_waitcnt lgkmcnt(0)
    ''')
    for g in range(8):
        for c in range(2):
            A = 24 + 4*c
            if c == 0: a(f'v_mov_b32 v15, v{16+g}\nv_mov_b32_dpp v15, v{16+g} row_shr:4 row_mask:0xf bank_mask:0xa')
            else:      a(f'v_mov_b32 v15, v{16+g}\nv_mov_b32_dpp v15, v{16+g} row_shl:4 row_mask:0xf bank_mask:0x5')
            for r in range(4): a(f'v_and_b32 v{A+r}, v15, v{4+r}')
            for x in range(3):
                i = 6*g + 3*c + x
                d = v4(OA + 4*x)
                a.wait_vm(f'v{i}')
                a(f'v_mfma_f32_16x16x32_bf16 {d}, {v4(A)}, {vreg(i)}, {0 if i < 3 else d}')
                pump(f'v{i}', 48, i + 1)
        if g == 2:
            did_wd[0] = True
            for r in range(4): a(f'v_and_b32 v{24+r}, v14, v{4+r}')
            a.wait_vm('wd')
            for c in range(5):
                a(f'v_mfma_f32_16x16x32_bf16 {v4(YA+4*c)}, v[24:27], {kt(WDT+c)}, 0')
        if g == GST:
            st = KB + 4*WDT
            a(f's_mov_b32 {sT1}, {SPIN}')
            a.wait_vm('sl')
            a.label('L_spin2')
            a(f'''
            v_max_u32 v{st+6}, v{SS}, v{SS+1}
            v_cmp_eq_u32 vcc, -1, v{st+6}
            s_cbranch_vccz L_ok2
            s_sub_u32 {sT1}, {sT1}, 1
            s_cbranch_scc1 L_ok2
            s_sleep 4
            ''')
            a.role = 'spin'
            a(f'buffer_load_dwordx2 v[{SS}:{SS+1}], v8, {WS}, s91 offen sc1')
            a.role = None
            a.vm.pop()
            a('s_waitcnt vmcnt(0)\ns_branch L_spin2')
            a.label('L_ok2')
            a(f'''
            s_cmp_eq_u32 s97, 0
            s_cbranch_scc1 L_ok2b
            s_mov_b32 {sT1}, {SPIN}
            ''')
            a.label('L_spin2b')
            a(f'''
            v_cmp_ne_u64 vcc, s[100:101], v[{GF}:{GF+1}]
            v_cmp_ne_u64 s[44:45], s[100:101], v[{GF+2}:{GF+3}]
            v_cmp_ne_u64 s[46:47], s[100:101], v[{GF+4}:{GF+5}]
            v_cmp_ne_u64 s[48:49], s[100:101], v[{GF+6}:{GF+7}]
            s_or_b64 vcc, vcc, s[44:45]
            s_or_b64 s[46:47], s[46:47], s[48:49]
            s_or_b64 vcc, vcc, s[46:47]
            s_cbranch_scc0 L_ok2c
            s_sub_u32 {sT1}, {sT1}, 1
            s_cbranch_scc1 L_ok2c
            s_sleep {SLP}
            buffer_load_dwordx4 {v4(GF)}, v9, {WS}, s98 offen sc1
            buffer_load_dwordx4 {v4(GF+4)}, v9, {WS}, s98 offen offset:1024 sc1
            s_waitcnt vmcnt(0)
            s_branch L_spin2b
            ''')
            a.vm.pop(); a.vm.pop()
            a.label('L_ok2c')
            a(f'''
            s_cmp_lg_u32 s2, 0
            s_cbranch_scc1 L_ok2b
            s_mov_b32 {sT2}, {WS_E}
            v_mov_b32 v{GF}, s100
            v_mov_b32 v{GF+1}, s101
            s_mov_b64 exec, 1
            buffer_store_dwordx2 v[{GF}:{GF+1}], v9, {WS}, {sT2} offen sc1
            s_mov_b64 exec, -1
            ''')
            a.vm.pop()
            a.label('L_ok2b')
            a(f'v_mov_b32 v{st+6}, v{SS}')
            rowred('v_max_f32', st+6)
            a(f'''
            v_sub_f32 v{st}, v{SS}, v{st+6}
            v_sub_f32 v{st+7}, s88, v{st+6}
            v_mul_f32 v{st}, {f32(L2E)}, v{st}
            v_mul_f32 v{st+7}, {f32(L2E)}, v{st+7}
            v_exp_f32 v{st}, v{st}
            v_exp_f32 v{st+7}, v{st+7}
            v_mul_f32 v{st}, v{st}, v{SS+1}
            ''')
            rowred('v_add_f32', st)
            a(f'''
            v_rcp_f32 v{st}, v{st}
            v_mul_f32 v14, v{st}, v{st+7}          ; factor
            v_and_b32 v{st+5}, 7, v1
            v_lshlrev_b32 v{st+5}, 3, v{st+5}
            s_min_u32 {sT0}, s96, 5056
            v_add_u32 v{st+4}, {sT0}, v{st+5}
            ds_read_b64 v[{st+2}:{st+3}], v{st+4} offset:{L_X}
            ''')
            a(f'''
            v_lshrrev_b32 v{st+6}, 1, v3
            s_lshl_b32 {sT0}, {sW_}, 1
            v_add_u32 v{st+7}, {sT0}, v{st+6}
            v_mul_u32_u24 v{st+7}, 784, v{st+7}
            v_and_b32 v{st+8}, 1, v3
            v_lshlrev_b32 v{st+11}, 4, v{st+8}
            v_add_u32 v{st+7}, v{st+7}, v{st+11}
            v_lshl_add_u32 v{st+8}, v2, 5, v{st+7}
            v_and_b32 v{st+9}, 7, v2
            v_lshl_add_u32 v{st+9}, v{st+9}, 5, v{st+7}
            v_add_u32 v{st+9}, 512, v{st+9}
            v_lshrrev_b32 v{st+7}, 3, v2
            v_cmp_eq_u32 vcc, v{st+7}, v{st+6}
            v_lshlrev_b32 v{st+7}, 4, v1
            v_add_u32 v{st+7}, {L_DUM}, v{st+7}
            v_cndmask_b32 v{st+9}, v{st+7}, v{st+9}, vcc
            v_mul_u32_u24 v{st+10}, 784, v2
            v_mul_u32_u24 v{st+7}, 24, v3
            s_mul_i32 {sT0}, {sW_}, 96
            v_add3_u32 v{st+10}, v{st+10}, v{st+7}, {sT0}
            s_mul_i32 {sT0}, {sW_}, 2560
            v_lshl_add_u32 v{st+11}, v2, 5, v{st+11}
            v_add_u32 v{st+11}, {sT0}, v{st+11}
            v_and_b32 v{st+13}, 31, v1
            v_lshlrev_b32 v{st+13}, 4, v{st+13}
            s_lshl_b32 {sT0}, {sW_}, 9
            v_add_u32 v{st+13}, {sT0}, v{st+13}
            v_mul_u32_u24 v{st+12}, 10240, v{st+6}
            v_add_u32 v{st+12}, v{st+12}, v{st+13}
            ''')
    assert xiss[0] == nx
    stamp('vend')
    st = KB + 4*WDT
    for r in range(4): a(f'v_cndmask_b32 v{OA+r}, v{OA+4+r}, v{OA+r}, {sLO32}')
    for r in range(4): a(f'v_mul_f32 v{OA+r}, v{OA+r}, v14')
    a(f'ds_write_b128 v{st+8}, {v4(OA)}')
    for r in range(4): a(f'v_mul_f32 v{OA+8+r}, v{OA+8+r}, v14')
    a(f'ds_write_b128 v{st+9}, {v4(OA+8)}')
    a('s_waitcnt lgkmcnt(0)\ns_barrier')
    for j in range(3): a(f'ds_read_b64 v[{16+2*j}:{17+2*j}], v{st+10} offset:{8*j}')
    a('s_waitcnt lgkmcnt(0)')
    for s_ in (8, 4, 2, 1):
        for r in range(16, 22): a(f'v_add_f32_dpp v{r}, v{r}, v{r} row_ror:{s_} row_mask:0xf bank_mask:0xf')
    for r in range(16, 22): a(f'v_cvt_pk_bf16_f32 v{r}, v{r}, v{r}')
    a.wait_vm('wo')
    AT = KB
    for t in range(6):
        for r in range(4): a(f'v_and_b32 v{AT+4*t+r}, v{16+t}, v{4+r}')
    for c in range(5):
        for t in range(6):
            d = v4(YA + 4*c)
            a(f'v_mfma_f32_16x16x32_bf16 {d}, {v4(AT+4*t)}, {kt(WOT+5*t+c)}, {d}')
    a(f's_mov_b64 exec, {sLO32}')
    for c in range(5): a(f'ds_write_b128 v{st+11}, {v4(YA+4*c)} offset:{L_YP+512*c}')
    a('s_mov_b64 exec, -1\ns_waitcnt lgkmcnt(0)\ns_barrier')
    a(f's_cmp_ge_u32 {sW_}, 5\ns_cbranch_scc1 L_cons')
    for u in range(4): a(f'ds_read_b128 {v4(16+4*u)}, v{st+12} offset:{L_YP+2560*u}')
    a('s_waitcnt lgkmcnt(0)')
    for r in range(4): a(f'v_add_f32 v{16+r}, v{16+r}, v{20+r}')
    for r in range(4): a(f'v_add_f32 v{24+r}, v{24+r}, v{28+r}')
    for r in range(4): a(f'v_add_f32 v{16+r}, v{16+r}, v{24+r}')
    for r in range(4): a(f'v_mov_b32 v{20+r}, v{16+r}')
    for r in range(4): a(f'v_permlane32_swap_b32 v{16+r}, v{20+r}')
    for r in range(4): a(f'v_add_f32 v{16+r}, v{16+r}, v{20+r}')
    for r in range(4): a(f'v_min_u32 v{16+r}, -2, v{16+r}')
    a(f's_mov_b64 exec, {sLO32}')
    a(f'buffer_store_dwordx4 v[16:19], v{st+13}, {WS}, s90 offen sc1')
    a('s_mov_b64 exec, -1')
    a('s_branch L_fin')
    a.label('L_cons')
    a(f'''
    s_cmp_eq_u32 s97, 0
    s_cbranch_scc1 L_fin
    s_mul_i32 {sT2}, {sB}, {64*2560}
    s_lshl_b32 {sT0}, s95, 7
    s_add_u32 {sT2}, {sT2}, {sT0}
    v_lshrrev_b32 v14, 3, v1
    v_mul_u32_u24 v14, 2560, v14
    v_lshl_add_u32 v14, v{st+5}, 1, v14
    s_mov_b32 {sT1}, {SPIN}
    ''')
    a.label('L_spin3')
    a(f's_mov_b32 {sT0}, {sT2}')
    for i in range(8):
        a(f'buffer_load_dwordx4 {v4(16+4*i)}, v14, {WS}, {sT0} offen sc1')
        if i < 7: a(f's_add_u32 {sT0}, {sT0}, {8*2560}')
    a('s_waitcnt vmcnt(0)')
    a('v_max3_u32 v15, v16, v17, v18')
    for r in range(19, 47, 2): a(f'v_max3_u32 v15, v15, v{r}, v{r+1}')
    a(f'''
    v_max_u32 v15, v15, v47
    v_cmp_eq_u32 vcc, -1, v15
    s_cbranch_vccz L_ok3
    s_sub_u32 {sT1}, {sT1}, 1
    s_cbranch_scc1 L_ok3
    s_branch L_spin3
    ''')
    a.label('L_ok3')
    for u in range(4):
        for r in range(4): a(f'v_add_f32 v{16+4*u+r}, v{16+4*u+r}, v{32+4*u+r}')
    for u in range(2):
        for r in range(4): a(f'v_add_f32 v{16+4*u+r}, v{16+4*u+r}, v{24+4*u+r}')
    for r in range(4): a(f'v_add_f32 v{16+r}, v{16+r}, v{20+r}')
    for r in range(4): a(f'v_add_f32_dpp v{16+r}, v{16+r}, v{16+r} row_ror:8 row_mask:0xf bank_mask:0xf')
    for sw in ('v_permlane16_swap_b32', 'v_permlane32_swap_b32'):
        for r in range(4): a(f'v_mov_b32 v{20+r}, v{16+r}')
        for r in range(4): a(f'{sw} v{16+r}, v{20+r}')
        for r in range(4): a(f'v_add_f32 v{16+r}, v{16+r}, v{20+r}')
    a(f'''
    v_lshlrev_b32 v20, 16, v{st+2}
    v_and_b32 v21, 0xffff0000, v{st+2}
    v_lshlrev_b32 v22, 16, v{st+3}
    v_and_b32 v23, 0xffff0000, v{st+3}
    ''')
    for r in range(4): a(f'v_add_f32 v{16+r}, v{16+r}, v{20+r}')
    a(f'''
    v_cvt_pk_bf16_f32 v16, v16, v17
    v_cvt_pk_bf16_f32 v17, v18, v19
    s_mov_b64 exec, 0xff
    buffer_store_dwordx2 v[16:17], v{st+5}, {OUT}, s96 offen
    s_mov_b64 exec, -1
    ''')
    a.label('L_fin')
    if stamps:
        a('s_waitcnt vmcnt(0)')
        stamp('end')
        a('s_waitcnt lgkmcnt(0)')
        assert nst[0] <= 8
        for k in range(8): a(f'v_mov_b32 v{16+k}, s{SREG[k]}')
        a(f'''
        s_lshl_b32 {sT0}, s2, 3
        s_add_u32 {sT0}, {sT0}, {sW_}
        s_lshl_b32 {sT0}, {sT0}, 5
        s_add_u32 {sT0}, {sT0}, {WS_T}
        v_mov_b32 v14, 0
        s_mov_b64 exec, 1
        buffer_store_dwordx4 v[16:19], v14, {WS}, {sT0} offen
        buffer_store_dwordx4 v[20:23], v14, {WS}, {sT0} offen offset:16
        ''')
    a.label('L_end')
    a('s_endpgm')
    a.raw(f'''.section .rodata,"a"
.p2align 6
.amdhsa_kernel {name}
  .amdhsa_next_free_vgpr 256
  .amdhsa_next_free_sgpr 102
  .amdhsa_accum_offset 256
  .amdhsa_group_segment_fixed_size 0
  .amdhsa_kernarg_size 96
  .amdhsa_user_sgpr_count 2
  .amdhsa_user_sgpr_kernarg_segment_ptr 1
  .amdhsa_system_sgpr_workgroup_id_x 1
  .amdhsa_float_denorm_mode_32 3
.end_amdhsa_kernel''')
    return a.text()

if __name__ == '__main__':
    out = sys.argv[1]
    kw = {}
    for x in sys.argv[2:]:
        k, v = x.split('='); kw[k] = int(v)
    open(out, 'w').write(gen(**kw))
```

```python
import sys, struct
from asmdsl import Asm

NAME = 'parallel_sum__sliding_block_cached__geglu_ffn__decode_kernel'
def f32(x): return '0x%08x' % struct.unpack('<I', struct.pack('<f', x))[0]
def lanemask(fn):
    m = 0
    for l in range(64):
        if fn(l & 15, l >> 4): m |= 1 << l
    return m

HEADER = open('parallel_sum__sliding_block_cached__geglu_ffn__decode.s.ref').read().split('; Override')[0]

WS_Y  = 0
WS_S  = 0x100000
WS_E  = 0x108000
WS_F  = 0x109000
WS_G  = 0x10A000
WS_P  = 0x110000
WS_T  = 0x300000
WS_SZ = 0x400000
L_PART = 0
L_YP   = 16384
L_DUM  = 49152
L_Q    = 53248
L_HID  = 53760
L_CNT  = 53888
L_X    = 54016
L_STG  = 59392
BIG = 0x40000000
L2E = 1.4426950408889634
POL = {0: '', 1: 'nt', 2: 'sc0 nt', 3: 'sc1 nt', 4: 'sc0', 5: 'sc1'}

def gen(KU=3, KP0=9, T=6, TV=7, RV=12, ILV=1, XBEG=4, XEND=8, SLI=38, GST=6, PRIO=1, SLP=8, KPOLL=20, W0N=8, ONEF=1, WPOL=1, SPOL=1, ROT=1,
        NS=12, SEND=44, KCLR=18, EXP=0, stamps=0, name=NAME):
    a = Asm()
    SPIN = (1 << 16) if EXP == 0 else 0
    LDS_SZ = L_STG + 8 * NS * 1024
    assert LDS_SZ <= 163840
    SREG = [80, 82, 84, 86, 56, 58, 60, 62]
    SETS = {1: ['start', 'barA', 'sig', 'kiss', 'barB', 'smax', 'vend', 'end'],
            2: ['start', 'bar0', 'ln', 'barA', 'sig', 'poll', 'qrdy', 'end'],
            3: ['start', 'vend', 'barC', 'mm', 'barD', 'pub', 'c1', 'end'],
            4: ['start', 'karg', 'iss1', 'iss2', 'pre0', 'bar0', 'barA', 'end']}
    def stamp(nm):
        if stamps and nm in SETS[stamps]:
            r = SREG[SETS[stamps].index(nm)]
            a(f's_memrealtime s[{r}:{r+1}]')
    a.raw(HEADER.rstrip())
    a.raw(f'; @launch grid=(256,1,1) block=(512,1,1) lds={LDS_SZ}')
    a.raw('.amdgcn_target "amdgcn-amd-amdhsa--gfx950"\n.text\n.globl %s\n.p2align 8\n.type %s,@function\n%s:' % (name, name, name))
    sW_, sH, sB, sS, sJ, sXCD, sP, sIDX = 's3', 's4', 's5', 's6', 's7', 's68', 's69', 's70'
    K, V, W, WO, WD, X, WS, OUT = 's[8:11]', 's[12:15]', 's[16:19]', 's[20:23]', 's[24:27]', 's[28:31]', 's[32:35]', 's[36:39]'
    sWO0, sWO1, sWDB, sSTG = 's40', 's41', 's42', 's43'
    sKV, sKV2, sKV0 = 's71', 's72', 's73'
    sT0, sT1, sT2, sT3 = 's74', 's75', 's76', 's77'
    sLO32 = 's[78:79]'
    sM, sSOWN, sYB, sSB = 's88', 's89', 's90', 's91'
    TAG = 's[100:101]'
    KB = 64
    WDT, WOT = 12, 17
    def kt(i): return f'v[{KB+4*i}:{KB+4*i+3}]'
    def v4(r): return f'v[{r}:{r+3}]'
    def srd(d, p, n):
        a(f's_mov_b32 s{d}, s{p}\ns_and_b32 s{d+1}, s{p+1}, 0xffff\ns_mov_b32 s{d+2}, {n}\ns_mov_b32 s{d+3}, 0x20000')
    def rowred(op, r, steps=(8, 4, 2, 1)):
        for s_ in steps: a(f'{op}_dpp v{r}, v{r}, v{r} row_ror:{s_} row_mask:0xf bank_mask:0xf')
    gstep = 6144 * 8 if ILV else 6144
    def grp(g):
        if ROT:
            a(f's_add_u32 {sKV}, {sJ}, {g}\ns_and_b32 {sKV}, {sKV}, 7\ns_mul_i32 {sKV}, {sKV}, {gstep}\ns_add_u32 {sKV}, {sKV}, {sKV0}')
        else:
            a(f's_mov_b32 {sKV}, {sKV0}' if g == 0 else f's_add_u32 {sKV}, {sKV}, {gstep}')
    kissued = [0]
    def kload():
        i = kissued[0]; g, e = divmod(i, 6)
        if e == 0: grp(g)
        if e < 4: a(f'buffer_load_dwordx4 {kt(i)}, v8, {K}, {sKV} offen offset:{384*e} nt', tag=f'k{i}')
        else:     a(f'buffer_load_dwordx4 {kt(i)}, v9, {K}, {sKV} offen offset:{768*(e-4)} nt', tag=f'k{i}')
        kissued[0] += 1

    a(f'''
    s_cmp_ge_u32 s2, 256
    s_cbranch_scc1 L_end
    s_load_dwordx16 s[44:59], s[0:1], 0
    s_load_dwordx8 s[60:67], s[0:1], 64''')
    stamp('start')
    if PRIO: a('s_setprio 3')
    a(f'''
    v_lshrrev_b32 v14, 6, v0
    v_and_b32 v1, 63, v0
    v_readfirstlane_b32 {sW_}, v14
    v_and_b32 v2, 15, v1
    v_lshrrev_b32 v3, 4, v1
    s_and_b32 {sXCD}, s2, 7
    s_lshr_b32 {sJ}, s2, 3
    s_lshr_b32 {sT0}, {sJ}, 3
    s_lshl_b32 {sH}, {sXCD}, 2
    s_add_u32 {sH}, {sH}, {sT0}
    s_and_b32 {sT1}, {sJ}, 7
    s_lshr_b32 {sB}, {sT1}, 1
    s_and_b32 {sS}, {sT1}, 1
    s_lshl_b32 {sT0}, {sB}, 5
    s_add_u32 {sSB}, {sT0}, {sH}       ; bh
    s_mul_i32 {sKV0}, {sSB}, 3145728
    s_mul_i32 {sT2}, {sS}, 393216
    s_add_u32 {sKV0}, {sKV0}, {sT2}
    s_add_u32 {sKV0}, {sKV0}, {6144*384}
    s_mul_i32 {sT2}, {sW_}, {6144 if ILV else 49152}
    s_add_u32 {sKV0}, {sKV0}, {sT2}
    v_lshrrev_b32 v20, 2, v2
    v_and_b32 v21, 3, v2
    v_lshlrev_b32 v21, 4, v21
    v_mul_u32_u24 v9, 1536, v20
    v_add_u32 v9, v9, v21
    v_lshl_add_u32 v8, v3, 6, v9       ; vkx = 1536(n>>2)+16(n&3)+64g
    v_lshlrev_b32 v20, 4, v1
    s_lshl_b32 {sT0}, {sW_}, 10
    s_add_u32 m0, {sT0}, {L_X}
    s_mov_b32 s10, 402653184
    s_mov_b32 s11, 0x20000
    s_movk_i32 s30, 5120
    s_mov_b32 s31, 0x20000
    s_waitcnt lgkmcnt(0)
    ''')
    stamp('karg')
    a(f'''
    s_mov_b32 s28, s44
    s_and_b32 s29, s45, 0xffff
    s_mov_b32 s8, s46
    s_and_b32 s9, s47, 0xffff
    s_cmp_ge_u32 {sW_}, 5
    s_cbranch_scc1 L_nox
    ''')
    a.role = 'x'
    a(f'buffer_load_dwordx4 v20, {X}, {sT0} offen lds', tag='x')
    a.role = None
    a.label('L_nox')
    assert KU <= 4
    for i in range(KU): kload()
    stamp('iss1')
    a(f's_add_u32 s100, s66, {WS_E}\ns_addc_u32 s101, s67, 0\ns_load_dwordx2 {TAG}, {TAG}, 0')
    a(f'''
    s_mul_i32 s97, {sT1}, 80
    s_lshl_b32 {sT2}, {sW_}, 4
    s_add_u32 s97, s97, {sT2}
    s_and_b32 {sT3}, {sJ}, 15
    s_mul_i32 {sT3}, {sT3}, 40
    s_add_u32 {sT3}, {sT3}, {sT2}
    s_sub_u32 {sT3}, {sT3}, 80
    s_mul_i32 s98, {sH}, 384
    s_mul_i32 {sT2}, {sXCD}, 384
    s_movk_i32 s96, 3072
    s_cmp_lt_u32 {sJ}, 16
    s_cselect_b32 s16, s56, s58
    s_cselect_b32 s17, s57, s59
    s_mov_b32 s18, 1966080
    s_cmp_lt_u32 {sW_}, 5
    s_cselect_b32 s96, 12288, s96
    s_cselect_b32 s97, s97, {sT3}
    s_cselect_b32 s98, s98, {sT2}
    s_cselect_b32 s16, s50, s16
    s_cselect_b32 s17, s51, s17
    s_cselect_b32 s18, 7864320, s18
    s_and_b32 s17, s17, 0xffff
    s_mov_b32 s19, 0x20000
    s_mul_i32 s92, s97, s96
    s_add_u32 s92, s92, s98            ; so0
    s_lshl_b32 {sT2}, s96, 3
    s_add_u32 s93, s92, {sT2}          ; so1
    s_cmp_eq_u32 {sW_}, 7
    s_cselect_b32 s99, {BIG}, 0
    s_add_u32 s93, s93, s99
    s_add_u32 s94, s92, s96
    s_add_u32 s95, s93, s96
    v_lshrrev_b32 v14, 3, v2
    v_mul_lo_u32 v20, v14, s99
    v_lshl_add_u32 v14, v14, 2, v3     ; g+4*(n>>3)
    v_and_b32 v15, 7, v2
    v_lshlrev_b32 v15, 4, v15          ; 16*(n&7)
    s_lshl_b32 {sT2}, s96, 1
    v_mul_lo_u32 v16, v3, {sT2}
    v_lshl_add_u32 v16, v2, 4, v16
    v_mul_lo_u32 v17, v14, {sT2}
    v_add3_u32 v17, v17, v15, v20
    ''')
    if EXP & 128: a(f'v_mov_b32 v16, {BIG}\nv_mov_b32 v17, {BIG}')
    for i in range(2):
        a(f'buffer_load_dwordx4 {v4(112+12*i)}, v16, {W}, s{92+2*i} offen nt', tag=f'w{i}')
        a(f'buffer_load_dwordx4 {v4(116+12*i)}, v16, {W}, s{93+2*i} offen nt', tag=f'w{i}')
        a(f'buffer_load_dwordx4 {v4(120+12*i)}, v17, {W}, s{92+2*i} offen offset:256 nt', tag=f'w{i}')
    stamp('iss2')
    if PRIO: a('s_setprio 0')
    def kmore(frac):
        while kissued[0] < KU + int((KP0 - KU) * frac + 0.5): kload()
    srd(32, 66, WS_SZ); srd(12, 48, 402653184); srd(20, 52, 7864320); srd(24, 60, 1966080); srd(36, 62, 5120)
    a(f'''
    s_lshl_b32 {sP}, {sH}, 1
    s_add_u32 {sP}, {sP}, {sS}
    s_lshl_b32 {sIDX}, {sXCD}, 5
    s_add_u32 {sIDX}, {sIDX}, {sJ}
    s_mov_b32 s78, -1
    s_mov_b32 s79, 0
    s_lshl_b32 {sT0}, {sB}, 6
    s_add_u32 {sT0}, {sT0}, {sP}
    s_mul_i32 {sYB}, {sT0}, 2560
    s_lshl_b32 {sSB}, {sSB}, 8
    s_add_u32 {sSB}, {sSB}, {WS_S}
    s_lshl_b32 {sT2}, {sS}, 3
    s_add_u32 {sT2}, {sT2}, {sW_}
    s_lshl_b32 {sT2}, {sT2}, 4
    s_add_u32 {sSOWN}, {sSB}, {sT2}
    s_mul_i32 {sWDB}, {sP}, 24
    s_mul_i32 {sT0}, {sW_}, 3
    s_add_u32 {sWDB}, {sWDB}, {sT0}
    s_mul_i32 {sWDB}, {sWDB}, 1280
    s_mul_i32 {sWO0}, {sH}, 192
    s_mul_i32 {sT0}, {sW_}, 24
    s_add_u32 {sWO0}, {sWO0}, {sT0}
    s_mul_i32 {sWO0}, {sWO0}, 1280
    s_add_u32 {sWO1}, {sWO0}, 3840
    s_mul_i32 {sSTG}, {sW_}, {NS*1024}
    s_add_u32 {sSTG}, {sSTG}, {L_STG}
    v_lshrrev_b32 v22, 1, v3
    v_mul_u32_u24 v21, 384, v22
    v_add_u32 v9, v9, v21
    v_and_b32 v22, 1, v3
    v_lshlrev_b32 v22, 6, v22
    v_add3_u32 v9, v9, v22, 64
    v_add_u32 v9, 192, v9              ; vky
    v_mul_u32_u24 v18, 1280, v3
    v_lshl_add_u32 v18, v2, 4, v18     ; 1280g+16n
    s_lshl_b32 s97, s97, 1
    v_lshl_add_u32 v19, v14, 2, s97
    v_min_u32 v19, 1276, v19
    v_and_b32 v20, 1, v2
    v_cmp_eq_u32 vcc, 1, v20
    v_mov_b32 v21, 0xffff
    v_mov_b32 v22, 0xffff0000
    v_cndmask_b32 v21, v21, v22, vcc
    v_bfe_u32 v20, v2, 1, 2
    ''')
    for r in range(4):
        a(f'v_cmp_eq_u32 vcc, {r}, v20\nv_cndmask_b32 v{4+r}, 0, v21, vcc')
    a(f'''
    v_mul_u32_u24 v10, 384, v3
    v_lshrrev_b32 v20, 3, v2
    v_mul_u32_u24 v11, 3072, v20
    v_add3_u32 v11, v11, v10, v15
    v_add_u32 v11, 256, v11            ; vvy = (g+8*(n>>3))*384+256+16*(n&7)
    v_lshl_add_u32 v10, v2, 4, v10     ; vvx = g*384+16n
    v_mul_u32_u24 v12, 7680, v3
    v_lshl_add_u32 v12, v2, 4, v12     ; vwo = 6g*1280+16n
    v_mov_b32 v22, {BIG}
    v_cmp_eq_u32 vcc, 3, v3
    v_cndmask_b32 v13, v18, v22, vcc   ; vwd = g*1280+16n  (g==3 -> out of range)
    v_lshrrev_b32 v20, 1, v3
    s_lshl_b32 {sT0}, {sW_}, 1
    v_add_u32 v21, {sT0}, v20
    v_mul_u32_u24 v21, 3072, v21
    v_and_b32 v22, 1, v3
    v_lshlrev_b32 v22, 4, v22
    v_add_u32 v21, v21, v22            ; blk*3072 + 16*(g&1)
    v_lshl_add_u32 v22, v2, 5, v21     ; + 32 n
    v_lshl_add_u32 v23, v15, 1, v21
    v_add_u32 v23, 512, v23            ; + 512 + 32*(n&7)
    v_lshrrev_b32 v21, 3, v2
    v_cmp_eq_u32 vcc, v21, v20
    v_lshlrev_b32 v21, 4, v1
    v_add_u32 v21, {L_DUM}, v21
    v_cndmask_b32 v23, v21, v23, vcc
    v_mov_b32 v20, {L_CNT}
    v_mov_b32 v21, 0
    ds_write_b32 v20, v21
    ds_write_b32 v20, v21 offset:4
    ds_write_b32 v20, v21 offset:8
    ''')
    if EXP & 64: a(f'v_mov_b32 v12, {BIG}\nv_mov_b32 v13, {BIG}')
    stamp('pre0')
    a.role = 'x'; a.wait_vm('x'); a.role = None
    a('s_barrier')
    stamp('bar0')
    for i in range(5): a(f'ds_read_b128 {v4(136+4*i)}, v18 offset:{L_X+256*i}')
    for be in range(4): a(f'ds_read_b32 v{156+be}, v19 offset:{L_X+1280*be}')
    kmore(1/6)
    a(f'''
    s_waitcnt lgkmcnt(0)
    s_mul_i32 s100, s100, 0x9E3779B1
    s_add_u32 s100, s100, 0x7F4A7C15
    s_mul_i32 s101, s101, 0x85EBCA69
    s_add_u32 s101, s101, 0xC2B2AE35
    ''')
    U = 160
    for i in range(20):
        a(f'v_lshlrev_b32 v{U+2*i}, 16, v{136+i}\nv_and_b32 v{U+2*i+1}, 0xffff0000, v{136+i}')
    a(f'v_pk_add_f32 v[248:249], v[{U}:{U+1}], v[{U+2}:{U+3}]\nv_pk_add_f32 v[250:251], v[{U+4}:{U+5}], v[{U+6}:{U+7}]')
    for i in range(8, 40, 2):
        d = 248 + (i & 2)
        a(f'v_pk_add_f32 v[{d}:{d+1}], v[{d}:{d+1}], v[{U+i}:{U+i+1}]')
    a('v_pk_add_f32 v[248:249], v[248:249], v[250:251]\nv_add_f32 v248, v248, v249')
    rowred('v_add_f32', 248)
    a(f'v_mul_f32 v252, {f32(-1/640)}, v248')
    kmore(2/6)
    for i in range(0, 40, 2): a(f'v_pk_add_f32 v[{U+i}:{U+i+1}], v[{U+i}:{U+i+1}], v[252:253] op_sel_hi:[1,0]')
    a(f'v_pk_mul_f32 v[248:249], v[{U}:{U+1}], v[{U}:{U+1}]\nv_pk_mul_f32 v[250:251], v[{U+2}:{U+3}], v[{U+2}:{U+3}]')
    for i in range(4, 40, 2):
        d = 248 + (i & 2)
        a(f'v_pk_fma_f32 v[{d}:{d+1}], v[{U+i}:{U+i+1}], v[{U+i}:{U+i+1}], v[{d}:{d+1}]')
    a('v_pk_add_f32 v[248:249], v[248:249], v[250:251]\nv_add_f32 v248, v248, v249')
    rowred('v_add_f32', 248)
    a(f'''
    v_mul_f32 v248, {f32(1/640)}, v248
    v_cvt_pk_bf16_f32 v249, v252, v248
    v_lshlrev_b32 v252, 16, v249
    v_and_b32 v248, 0xffff0000, v249
    v_add_f32 v248, {f32(1e-5)}, v248
    v_cvt_pk_bf16_f32 v248, v248, v248
    v_and_b32 v248, 0xffff0000, v248
    v_sqrt_f32 v248, v248
    v_cvt_pk_bf16_f32 v248, v248, v248
    v_and_b32 v248, 0xffff0000, v248
    v_rcp_f32 v248, v248
    ''')
    for be in range(4): a(f'v_readlane_b32 s{44+be}, v252, {16*be}')
    for be in range(4): a(f'v_readlane_b32 s{48+be}, v248, {16*be}')
    kmore(3/6)
    AO = 160
    for be in range(4):
        a(f'''
        v_lshlrev_b32 v248, 16, v{156+be}
        v_and_b32 v249, 0xffff0000, v{156+be}
        v_add_f32 v248, s{44+be}, v248
        v_add_f32 v249, s{44+be}, v249
        v_cvt_pk_bf16_f32 v250, v248, v249
        v_lshlrev_b32 v248, 16, v250
        v_and_b32 v249, 0xffff0000, v250
        v_mul_f32 v248, s{48+be}, v248
        v_mul_f32 v249, s{48+be}, v249
        v_cvt_pk_bf16_f32 v248, v248, v248
        v_cvt_pk_bf16_f32 v249, v249, v249
        ''')
        for i in range(2):
            for r in range(4):
                a(f'v_and_b32 v{AO+16*i+4*be+r}, v{248+i}, v{4+r}')
    ACC = 200
    stamp('ln')
    kmore(4/6)
    for i in range(2):
        a.wait_vm(f'w{i}')
        for be in range(4):
            for e in range(3):
                d = v4(ACC + 12*be + 4*e)
                a(f'v_mfma_f32_16x16x32_bf16 {d}, {v4(AO+16*i+4*be)}, {v4(112+12*i+4*e)}, {0 if i == 0 else d}')
    stamp('wland')
    kmore(5/6)
    for be in range(4):
        d1, d2, d3 = ACC + 12*be, ACC + 12*be + 4, ACC + 12*be + 8
        for r in range(4):
            a(f'v_cndmask_b32 v{d1+r}, v{d2+r}, v{d1+r}, {sLO32}')
        a(f'ds_write_b128 v22, {v4(d1)} offset:{768*be}')
        a(f'ds_write_b128 v23, {v4(d3)} offset:{768*be}')
    kmore(1)
    a('s_waitcnt lgkmcnt(0)\ns_barrier')
    stamp('barA')
    a(f'''
    s_cmp_ge_u32 {sW_}, 6
    s_cbranch_scc1 L_nopub
    s_cmp_lt_u32 {sW_}, 3
    s_cselect_b32 {sT0}, 0, 27648
    v_lshlrev_b32 v14, 4, v0
    v_add_u32 v15, {sT0}, v14
    ''')
    for u in range(6): a(f'ds_read_b128 {v4(16+4*u)}, v15 offset:{3072*u}')
    a(f's_cbranch_scc0 L_six')
    for u in range(6, 10): a(f'ds_read_b128 {v4(16+4*u)}, v15 offset:{3072*u}')
    a('s_waitcnt lgkmcnt(0)')
    def padd(d, s_, n):
        for r in range(0, n, 2): a(f'v_pk_add_f32 v[{d+r}:{d+r+1}], v[{d+r}:{d+r+1}], v[{s_+r}:{s_+r+1}]')
    padd(16, 40, 16)
    a.label('L_six')
    a('s_waitcnt lgkmcnt(0)')
    padd(16, 28, 12); padd(16, 20, 4); padd(16, 24, 4)
    a(f's_mul_i32 {sT0}, {sIDX}, 6144\ns_add_u32 {sT0}, {sT0}, {WS_P}')
    a.role = 'pub'
    if EXP & 8: a(f'v_mov_b32 v14, {BIG}')
    a(f'buffer_store_dwordx4 v[16:19], v14, {WS}, {sT0} offen sc1', tag='pub')
    a.role = None
    a.label('L_nopub')
    wotiles = [(t, c) for t in range(6) for c in range(5)]
    kseq = ['c'] if ONEF else []
    si = 0
    for i in range(KP0, 48):
        kseq.append('k')
        if i == KCLR and not ONEF: kseq.append('c')
        while si < NS and (si + 1) * (SEND - KP0) <= (i + 1 - KP0) * NS:
            kseq.append('s'); si += 1
    assert si == NS
    kp = [0]; sissued = [0]
    def kstep(paced):
        op = kseq[kp[0]]; kp[0] += 1
        if op == 'c':
            a(f'''
            v_and_b32 v24, 31, v1
            v_lshlrev_b32 v24, 4, v24
            v_mov_b32 v25, {BIG}
            v_cndmask_b32 v24, v25, v24, {sLO32}
            s_lshl_b32 {sT0}, {sW_}, 9
            s_add_u32 {sT0}, {sT0}, {sYB}
            s_cmp_ge_u32 {sW_}, {5 if not (EXP & 16) else 0}
            s_cselect_b32 {sT0}, {BIG}, {sT0}
            v_mov_b32 v28, -1
            v_mov_b32 v29, -1
            v_mov_b32 v30, -1
            v_mov_b32 v31, -1
            ''')
        if paced: a(f's_waitcnt vmcnt({T-1})')
        if op == 'k': kload()
        elif op == 'c': a(f'buffer_store_dwordx4 v[28:31], v24, {WS}, {sT0} offen sc1', tag='clr')
        else:
            n = sissued[0]; t, c = wotiles[n]; imm = 1280*(t % 3) + 256*c
            a(f's_add_u32 m0, {sSTG}, {1024*n - imm}' if 1024*n >= imm else f's_sub_u32 m0, {sSTG}, {imm - 1024*n}')
            a(f'buffer_load_dwordx4 v12, {WO}, {sWO0 if t < 3 else sWO1} offen offset:{imm} {POL[SPOL]} lds', tag='stg')
            sissued[0] += 1
    def signal(off, base, lab):
        a(f'''
        v_mov_b32 v14, {L_CNT}
        v_mov_b32 v15, 1
        s_mov_b64 exec, 1
        ds_add_rtn_u32 v20, v14, v15 offset:{off}
        s_waitcnt lgkmcnt(0)
        v_readfirstlane_b32 {sT0}, v20
        s_cmp_eq_u32 {sT0}, 7
        s_cbranch_scc0 {lab}
        s_lshl_b32 {sT0}, {sIDX}, 3
        s_add_u32 {sT0}, {sT0}, {base}
        v_mov_b32 v20, 0
        v_mov_b32 v14, s100
        v_mov_b32 v15, s101
        ''')
        a(f'buffer_store_dwordx2 v[14:15], v20, {WS}, {sT0} offen sc1'); a.vm.pop()
        a.label(lab)
        a('s_mov_b64 exec, -1')
    for _ in range(T): kstep(True)
    if ONEF: a.wait_vm('clr')
    else:
        a.role = 'pub'; a.wait_vm('pub'); a.role = None
    signal(0, WS_F, 'L_nosig')
    stamp('sig')
    while kissued[0] < KPOLL: kstep(True)
    assert KCLR < KPOLL
    a(f's_cmp_eq_u32 {sW_}, 0\ns_cbranch_scc1 L_w0')
    fork = (list(a.vm), kissued[0], kp[0], sissued[0])
    while kp[0] < len(kseq): kstep(True)
    stamp('kiss'); stamp('poll'); stamp('qrdy')
    a('s_branch L_join')
    vm_join = list(a.vm)
    a.vm, kissued[0], kp[0], sissued[0] = fork
    a.label('L_w0')
    a(f'''
    v_and_b32 v60, 31, v1
    v_lshlrev_b32 v60, 3, v60
    s_lshl_b32 {sT2}, {sXCD}, 8
    s_add_u32 {sT2}, {sT2}, {WS_F}
    s_mov_b32 {sT1}, {SPIN}
    ''')
    if EXP & 1: a(f'v_mov_b32 v60, {BIG}')
    a(f'buffer_load_dwordx2 v[62:63], v60, {WS}, {sT2} offen sc1', tag='poll')
    for _ in range(T - 1): kstep(True)
    a.wait_vm('poll')
    a.label('L_spin1')
    a(f'''
    v_cmp_ne_u64 vcc, {TAG}, v[62:63]
    s_cbranch_vccz L_ok1
    s_sub_u32 {sT1}, {sT1}, 1
    s_cbranch_scc1 L_ok1
    s_sleep {SLP}
    buffer_load_dwordx2 v[62:63], v60, {WS}, {sT2} offen sc1
    s_waitcnt vmcnt(0)
    s_branch L_spin1
    ''')
    a.vm.pop()
    a.label('L_ok1')
    stamp('poll')
    a(f'''
    s_mul_i32 {sT0}, {sH}, {8*6144}
    s_mul_i32 {sT2}, {sB}, 768
    s_add_u32 {sT0}, {sT0}, {sT2}
    s_add_u32 {sT0}, {sT0}, {WS_P}
    v_lshlrev_b32 v14, 4, v1
    v_mov_b32 v61, {BIG}
    v_cmp_gt_u32 vcc, 48, v1
    v_cndmask_b32 v14, v61, v14, vcc
    v_and_b32 v62, 7, v1
    v_lshrrev_b32 v15, 3, v1
    v_mul_u32_u24 v15, 6144, v15
    v_lshl_add_u32 v15, v62, 4, v15
    v_cmp_gt_u32 vcc, 6, v62
    v_cndmask_b32 v15, v61, v15, vcc
    ''')
    if EXP & 2: a(f'v_mov_b32 v14, {BIG}')
    if EXP & 4: a(f'v_mov_b32 v15, {BIG}')
    for t in range(8):
        a(f'buffer_load_dwordx4 {v4(16+4*t)}, v14, {WS}, {sT0} offen sc1', tag='gq')
        if t < 7: a(f's_add_u32 {sT0}, {sT0}, 6144')
    a(f'''
    s_mul_i32 {sT0}, {sXCD}, {32*6144}
    s_add_u32 {sT0}, {sT0}, {sT2}
    s_add_u32 {sT0}, {sT0}, {WS_P+3072}
    s_and_b32 {sT3}, {sP}, 7
    s_mul_i32 {sT3}, {sT3}, 96
    s_add_u32 {sT0}, {sT0}, {sT3}
    ''')
    for t in range(4):
        a(f'buffer_load_dwordx4 {v4(48+4*t)}, v15, {WS}, {sT0} offen sc1', tag='gf')
        if t < 3: a(f's_add_u32 {sT0}, {sT0}, {8*6144}')
    for _ in range(W0N): kstep(False)
    a.wait_vm('gq')
    padd(16, 32, 16); padd(16, 24, 8); padd(16, 20, 4)
    a(f'''
    v_cvt_pk_bf16_f32 v16, v16, v17
    v_cvt_pk_bf16_f32 v17, v18, v19
    v_lshlrev_b32 v14, 3, v1
    ds_write_b64 v14, v[16:17] offset:{L_Q}
    ''')
    a.wait_vm('gf')
    padd(48, 52, 4)
    for r in range(0, 4, 2): a(f'v_pk_add_f32 v[{52+r}:{53+r}], v[{56+r}:{57+r}], v[{60+r}:{61+r}]')
    def xred8(base, n, tmp):
        for r in range(n): a(f'v_add_f32_dpp v{base+r}, v{base+r}, v{base+r} row_ror:8 row_mask:0xf bank_mask:0xf')
        for sw in ('v_permlane16_swap_b32', 'v_permlane32_swap_b32'):
            for r in range(n): a(f'v_mov_b32 v{tmp+r}, v{base+r}')
            for r in range(n): a(f'{sw} v{base+r}, v{tmp+r}')
            padd(base, tmp, n)
    xred8(48, 8, 24)
    for r in range(4): a(f'v_cvt_pk_bf16_f32 v{24+r}, v{48+r}, v{52+r}')
    for r in range(4): a(f'v_lshlrev_b32 v{48+r}, 16, v{24+r}\nv_and_b32 v{52+r}, 0xffff0000, v{24+r}')
    for r in range(4): a(f'v_mul_f32 v{24+r}, v{48+r}, v{48+r}')
    for r in range(4): a(f'v_mul_f32 v{24+r}, {f32(0.044715)}, v{24+r}')
    for r in range(4): a(f'v_fma_f32 v{24+r}, v{24+r}, v{48+r}, v{48+r}')
    for r in range(4): a(f'v_mul_f32 v{24+r}, {f32(-2*0.7978845608028654*L2E)}, v{24+r}')
    for r in range(4): a(f'v_exp_f32 v{24+r}, v{24+r}')
    for r in range(4): a(f'v_add_f32 v{24+r}, 1.0, v{24+r}')
    for r in range(4): a(f'v_rcp_f32 v{24+r}, v{24+r}')
    for r in range(4): a(f'v_mul_f32 v{24+r}, v{24+r}, v{48+r}')
    for r in range(4): a(f'v_cvt_pk_bf16_f32 v{24+r}, v{24+r}, v{24+r}')
    for r in range(4): a(f'v_and_b32 v{24+r}, 0xffff0000, v{24+r}')
    for r in range(4): a(f'v_mul_f32 v{24+r}, v{24+r}, v{52+r}')
    for r in range(4): a(f'v_cvt_pk_bf16_f32 v{24+r}, v{24+r}, v{24+r}')
    a(f'''
    v_and_b32 v14, 7, v1
    v_lshlrev_b32 v14, 4, v14
    ds_write_b128 v14, v[24:27] offset:{L_HID}
    v_mov_b32 v14, {L_CNT}
    v_mov_b32 v15, 1
    s_waitcnt lgkmcnt(0)
    ds_write_b32 v14, v15 offset:4
    ''')
    stamp('qrdy')
    while kp[0] < len(kseq): kstep(True)
    stamp('kiss')
    a.vm = vm_join
    a.label('L_join')
    if not ONEF:
        a.wait_vm('clr')
        signal(8, WS_G, 'L_nosig2')
    a(f'v_mov_b32 v14, {L_CNT}\ns_mov_b32 {sT1}, {1<<22}')
    a.label('L_spinq')
    a(f'''
    ds_read_b32 v15, v14 offset:4
    s_waitcnt lgkmcnt(0)
    v_readfirstlane_b32 {sT0}, v15
    s_cmp_lg_u32 {sT0}, 0
    s_cbranch_scc1 L_okq
    s_sub_u32 {sT1}, {sT1}, 1
    s_cbranch_scc1 L_okq
    s_sleep 1
    s_branch L_spinq
    ''')
    a.label('L_okq')
    stamp('barB')
    a(f'''
    v_and_b32 v14, 3, v2
    v_lshl_add_u32 v15, v3, 2, v14
    v_lshlrev_b32 v15, 4, v15
    ds_read_b128 v[56:59], v15 offset:{L_Q}
    v_and_b32 v15, 0x70, v15
    ds_read_b128 v[60:63], v15 offset:{L_Q+256}
    ''')
    mX = [lanemask(lambda m, g, u=u: (m >> 2) == u) for u in range(4)]
    mY = [lanemask(lambda m, g, w=w: (m >> 2) == 2*w + (g >> 1)) for w in range(2)]
    for k, m in enumerate(mX + mY):
        a(f's_mov_b32 s{44+2*k}, {hex(m & 0xffffffff)}\ns_mov_b32 s{45+2*k}, {hex(m >> 32)}')
    a('s_waitcnt lgkmcnt(0)')
    for k in range(6):
        src = 56 if k < 4 else 60
        for r in range(4): a(f'v_cndmask_b32 v{32+4*k+r}, 0, v{src+r}, s[{44+2*k}:{45+2*k}]')
    vissued = [0]
    def vreg(i): return kt(i % RV)
    def vload():
        i = vissued[0]; g, e = divmod(i, 6); c, x = divmod(e, 3)
        if e == 0:
            grp(g)
            a(f's_add_u32 {sKV2}, {sKV}, 3072')
        if x == 0:   a(f'buffer_load_dwordx4 {vreg(i)}, v10, {V}, {sKV} offen offset:{1536*c} nt', tag=f'v{i}')
        elif x == 1: a(f'buffer_load_dwordx4 {vreg(i)}, v10, {V}, {sKV2} offen offset:{1536*c} nt', tag=f'v{i}')
        else:        a(f'buffer_load_dwordx4 {vreg(i)}, v11, {V}, {sKV} offen offset:{1536*c} nt', tag=f'v{i}')
        vissued[0] += 1
    assert RV <= 12
    extras = [('wd', c) for c in range(5)] + [('wo', n) for n in range(NS, 30)]
    xiss = [0]
    def xtile(e): return WDT + e[1] if e[0] == 'wd' else WOT + e[1]
    def xload():
        e = extras[xiss[0]]
        if e[0] == 'wd':
            a(f'buffer_load_dwordx4 {kt(xtile(e))}, v13, {WD}, {sWDB} offen offset:{256*e[1]} {POL[WPOL]}', tag='wd')
        else:
            t, c = wotiles[e[1]]
            a(f'buffer_load_dwordx4 {kt(xtile(e))}, v12, {WO}, {sWO0 if t < 3 else sWO1} offen offset:{1280*(t%3)+256*c} {POL[WPOL]}', tag='wo')
        xiss[0] += 1
    SC = 0.07216878364870322
    def score_post(g):
        d = 24 + 4*(g & 1); s_ = 16 + g
        a(f'''
        v_mov_b32_dpp v{s_}, v{d} quad_perm:[0,0,0,0] row_mask:0xf bank_mask:0xf
        v_add_f32_dpp v{s_}, v{d+1}, v{s_} quad_perm:[1,1,1,1] row_mask:0xf bank_mask:0xf
        v_add_f32_dpp v{s_}, v{d+2}, v{s_} quad_perm:[2,2,2,2] row_mask:0xf bank_mask:0xf
        v_add_f32_dpp v{s_}, v{d+3}, v{s_} quad_perm:[3,3,3,3] row_mask:0xf bank_mask:0xf
        v_cvt_pk_bf16_f32 v{s_}, v{s_}, v{s_}
        v_and_b32 v{s_}, 0xffff0000, v{s_}
        v_mul_f32 v{s_}, {f32(SC)}, v{s_}
        v_cvt_pk_bf16_f32 v{s_}, v{s_}, v{s_}
        v_and_b32 v{s_}, 0xffff0000, v{s_}
        ''')
    nx = len(extras)
    span = 48 - XBEG - XEND
    seq = []
    xi = 0
    for i in range(48):
        seq.append('v')
        if i == SLI: seq.append('sl')
        if xi < 5 and i >= XBEG:
            seq.append('x'); xi += 1
        while xi < nx and i >= XBEG and (xi + 1) * span <= (i + 1 - XBEG) * nx:
            seq.append('x'); xi += 1
    assert xi == nx
    sp = [0]
    did_wd = [False]
    SS = KB + 4*47
    st = KB + 4*WDT
    GF = st + 12
    def statload():
        a(f'''
        v_lshlrev_b32 v8, 4, v2
        s_mul_i32 s95, {sP}, 43691
        s_lshr_b32 s95, s95, 17
        s_mul_i32 {sT0}, {sB}, 1280
        s_lshl_b32 {sT1}, s95, 6
        s_add_u32 s96, {sT0}, {sT1}
        s_mul_i32 {sT0}, s95, 3
        s_mov_b32 s97, 1
        s_cmp_lg_u32 {sT0}, {sP}
        s_cselect_b32 s97, 0, s97
        s_cmp_ge_u32 s95, 20
        s_cselect_b32 s97, 0, s97
        s_cmp_lg_u32 {sW_}, 7
        s_cselect_b32 s97, 0, s97
        v_lshlrev_b32 v9, 4, v1
        s_mov_b32 s98, {WS_F if ONEF else WS_G}
        s_cmp_eq_u32 s97, 0
        s_cbranch_scc1 L_nogf
        buffer_load_dwordx4 {v4(GF)}, v9, {WS}, s98 offen sc1
        buffer_load_dwordx4 {v4(GF+4)}, v9, {WS}, s98 offen offset:1024 sc1
        ''')
        a.vm.pop(); a.vm.pop()
        a.label('L_nogf')
        a(f'buffer_load_dwordx4 {v4(SS)}, v8, {WS}, {sSB} offen sc1', tag='sl')
    def pump(lasttag, kfree, vcons):
        while sp[0] < len(seq):
            idx = max(k for k, (t, r) in enumerate(a.vm) if t == lasttag)
            if len(a.vm) - 1 - idx >= TV: break
            op = seq[sp[0]]
            if op == 'v':
                i = vissued[0]
                if i < RV:
                    if i >= kfree: break
                elif i - RV >= vcons: break
                vload()
            elif op == 'x':
                if xtile(extras[xiss[0]]) >= kfree: break
                xload()
            else:
                assert did_wd[0]
                statload()
            sp[0] += 1
    done = [t for (t, r) in a.vm[:len(a.vm) - T]]
    known = max(int(t[1:]) for t in done if t and t[0] == 'k' and t[1:].isdigit())
    a.wait_vm(f'k{known}')
    for g in range(8):
        d = v4(24 + 4*(g & 1))
        for e in range(6):
            i = 6*g + e
            if i > known:
                a.wait_vm(f'k{i}'); known = i
            a(f'v_mfma_f32_16x16x32_bf16 {d}, {v4(32+4*e)}, {kt(i)}, {0 if e == 0 else d}')
            if i == known: pump(f'k{known}', i + 1, 0)
        if 6*g + 5 < known and (g & 1) == 0 and known < 47:
            known += 1
            a.wait_vm(f'k{known}')
            pump(f'k{known}', 6*g + 6, 0)
        if g > 0: score_post(g-1)
    score_post(7)
    if NS:
        a.wait_vm('stg')
        a(f'v_lshlrev_b32 v14, 4, v1\nv_add_u32 v14, {sSTG}, v14')
        for n in range(NS): a(f'ds_read_b128 {kt(WOT+n)}, v14 offset:{1024*n}')
    def allred(op, r, t):
        rowred(op, r, (4, 8))
        a(f'v_mov_b32 v{t}, v{r}\nv_permlane16_swap_b32 v{r}, v{t}\n{op} v{r}, v{r}, v{t}')
        a(f'v_mov_b32 v{t}, v{r}\nv_permlane32_swap_b32 v{r}, v{t}\n{op} v{r}, v{r}, v{t}')
    a('v_max3_f32 v28, v16, v17, v18\nv_max3_f32 v15, v19, v20, v21\nv_max3_f32 v28, v28, v22, v23\nv_max_f32 v28, v28, v15')
    allred('v_max_f32', 28, 15)
    for g in range(8): a(f'v_sub_f32 v{16+g}, v{16+g}, v28')
    for g in range(8): a(f'v_mul_f32 v{16+g}, {f32(L2E)}, v{16+g}')
    for g in range(8): a(f'v_exp_f32 v{16+g}, v{16+g}')
    a('v_add_f32 v30, v16, v17\nv_add_f32 v24, v18, v19\nv_add_f32 v25, v20, v21\nv_add_f32 v26, v22, v23\nv_add_f32 v30, v30, v24\nv_add_f32 v25, v25, v26\nv_add_f32 v30, v30, v25')
    allred('v_add_f32', 30, 24)
    for g in range(8): a(f'v_cvt_pk_bf16_f32 v{16+g}, v{16+g}, v{16+g}')
    a(f'''
    v_mov_b32 v29, s100
    v_mov_b32 v31, s101
    v_mov_b32 v24, 0
    v_readfirstlane_b32 {sM}, v28          ; own m
    s_mov_b64 exec, 1
    ''')
    a(f'buffer_store_dwordx4 v[28:31], v24, {WS}, {sSOWN} offen sc1', tag='stat')
    a('s_mov_b64 exec, -1')
    stamp('smax')
    YA, OA = 44, 32
    a(f'''
    s_mul_i32 {sT0}, {sW_}, 12
    v_lshlrev_b32 v24, 2, v3
    v_add_u32 v24, {sT0}, v24
    v_mov_b32 v25, 124
    v_cmp_eq_u32 vcc, 3, v3
    v_cndmask_b32 v24, v24, v25, vcc
    ds_read_b32 v14, v24 offset:{L_HID}
    s_waitcnt lgkmcnt(0)
    ''')
    for g in range(8):
        for c in range(2):
            A = 24 + 4*c
            if c == 0: a(f'v_mov_b32 v15, v{16+g}\nv_mov_b32_dpp v15, v{16+g} row_shr:4 row_mask:0xf bank_mask:0xa')
            else:      a(f'v_mov_b32 v15, v{16+g}\nv_mov_b32_dpp v15, v{16+g} row_shl:4 row_mask:0xf bank_mask:0x5')
            for r in range(4): a(f'v_and_b32 v{A+r}, v15, v{4+r}')
            for x in range(3):
                i = 6*g + 3*c + x
                d = v4(OA + 4*x)
                a.wait_vm(f'v{i}')
                a(f'v_mfma_f32_16x16x32_bf16 {d}, {v4(A)}, {vreg(i)}, {0 if i < 3 else d}')
                pump(f'v{i}', 48, i + 1)
        if g == 2:
            did_wd[0] = True
            assert xiss[0] >= 5
            for r in range(4): a(f'v_and_b32 v{24+r}, v14, v{4+r}')
            a.wait_vm('wd')
            for c in range(5):
                a(f'v_mfma_f32_16x16x32_bf16 {v4(YA+4*c)}, v[24:27], {kt(WDT+c)}, 0')
        if g == GST:
            a(f's_mov_b32 {sT1}, {SPIN}')
            a.wait_vm('sl')
            a.label('L_spin2')
            a(f'''
            v_cmp_ne_u32 vcc, s100, v{SS+1}
            v_cmp_ne_u32 s[44:45], s101, v{SS+3}
            s_or_b64 vcc, vcc, s[44:45]
            s_cbranch_scc0 L_ok2
            s_sub_u32 {sT1}, {sT1}, 1
            s_cbranch_scc1 L_ok2
            s_sleep 4
            buffer_load_dwordx4 {v4(SS)}, v8, {WS}, {sSB} offen sc1
            s_waitcnt vmcnt(0)
            s_branch L_spin2
            ''')
            a.vm.pop()
            a.label('L_ok2')
            a(f'''
            s_cmp_eq_u32 s97, 0
            s_cbranch_scc1 L_ok2b
            s_mov_b32 {sT1}, {SPIN}
            ''')
            a.label('L_spin2b')
            a(f'''
            v_cmp_ne_u64 vcc, {TAG}, v[{GF}:{GF+1}]
            v_cmp_ne_u64 s[44:45], {TAG}, v[{GF+2}:{GF+3}]
            v_cmp_ne_u64 s[46:47], {TAG}, v[{GF+4}:{GF+5}]
            v_cmp_ne_u64 s[48:49], {TAG}, v[{GF+6}:{GF+7}]
            s_or_b64 vcc, vcc, s[44:45]
            s_or_b64 s[46:47], s[46:47], s[48:49]
            s_or_b64 vcc, vcc, s[46:47]
            s_cbranch_scc0 L_ok2c
            s_sub_u32 {sT1}, {sT1}, 1
            s_cbranch_scc1 L_ok2c
            s_sleep {SLP}
            buffer_load_dwordx4 {v4(GF)}, v9, {WS}, s98 offen sc1
            buffer_load_dwordx4 {v4(GF+4)}, v9, {WS}, s98 offen offset:1024 sc1
            s_waitcnt vmcnt(0)
            s_branch L_spin2b
            ''')
            a.vm.pop(); a.vm.pop()
            a.label('L_ok2c')
            a(f'''
            s_cmp_lg_u32 s2, 0
            s_cbranch_scc1 L_ok2b
            s_mov_b32 {sT2}, {WS_E}
            v_mov_b32 v{GF}, s100
            v_mov_b32 v{GF+1}, s101
            s_mov_b64 exec, 1
            buffer_store_dwordx2 v[{GF}:{GF+1}], v9, {WS}, {sT2} offen sc1
            s_mov_b64 exec, -1
            ''')
            a.vm.pop()
            a.label('L_ok2b')
            a(f'v_mov_b32 v{st+6}, v{SS}')
            rowred('v_max_f32', st+6)
            a(f'''
            v_sub_f32 v{st}, v{SS}, v{st+6}
            v_sub_f32 v{st+7}, {sM}, v{st+6}
            v_mul_f32 v{st}, {f32(L2E)}, v{st}
            v_mul_f32 v{st+7}, {f32(L2E)}, v{st+7}
            v_exp_f32 v{st}, v{st}
            v_exp_f32 v{st+7}, v{st+7}
            v_mul_f32 v{st}, v{st}, v{SS+2}
            ''')
            rowred('v_add_f32', st)
            a(f'''
            v_rcp_f32 v{st}, v{st}
            v_mul_f32 v14, v{st}, v{st+7}          ; factor
            v_and_b32 v{st+5}, 7, v1
            v_lshlrev_b32 v{st+5}, 3, v{st+5}
            s_min_u32 {sT0}, s96, 5056
            v_add_u32 v{st+4}, {sT0}, v{st+5}
            ds_read_b64 v[{st+2}:{st+3}], v{st+4} offset:{L_X}
            ''')
            a(f'''
            v_lshrrev_b32 v{st+6}, 1, v3
            s_lshl_b32 {sT0}, {sW_}, 1
            v_add_u32 v{st+7}, {sT0}, v{st+6}
            v_mul_u32_u24 v{st+7}, 784, v{st+7}
            v_and_b32 v{st+8}, 1, v3
            v_lshlrev_b32 v{st+11}, 4, v{st+8}
            v_add_u32 v{st+7}, v{st+7}, v{st+11}
            v_lshl_add_u32 v{st+8}, v2, 5, v{st+7}
            v_and_b32 v{st+9}, 7, v2
            v_lshl_add_u32 v{st+9}, v{st+9}, 5, v{st+7}
            v_add_u32 v{st+9}, 512, v{st+9}
            v_lshrrev_b32 v{st+7}, 3, v2
            v_cmp_eq_u32 vcc, v{st+7}, v{st+6}
            v_lshlrev_b32 v{st+7}, 4, v1
            v_add_u32 v{st+7}, {L_DUM}, v{st+7}
            v_cndmask_b32 v{st+9}, v{st+7}, v{st+9}, vcc
            v_mul_u32_u24 v{st+10}, 784, v2
            v_mul_u32_u24 v{st+7}, 24, v3
            s_mul_i32 {sT0}, {sW_}, 96
            v_add3_u32 v{st+10}, v{st+10}, v{st+7}, {sT0}
            s_mul_i32 {sT0}, {sW_}, 2560
            v_lshl_add_u32 v{st+11}, v2, 5, v{st+11}
            v_add_u32 v{st+11}, {sT0}, v{st+11}
            v_and_b32 v{st+13}, 31, v1
            v_lshlrev_b32 v{st+13}, 4, v{st+13}
            s_lshl_b32 {sT0}, {sW_}, 9
            v_add_u32 v{st+13}, {sT0}, v{st+13}
            v_mul_u32_u24 v{st+12}, 10240, v{st+6}
            v_add_u32 v{st+12}, v{st+12}, v{st+13}
            v_lshrrev_b32 v{st+14}, 3, v1
            v_mul_u32_u24 v{st+14}, 2560, v{st+14}
            v_lshl_add_u32 v{st+14}, v{st+5}, 1, v{st+14}
            s_mul_i32 s94, {sB}, {64*2560}
            s_lshl_b32 {sT0}, s95, 7
            s_add_u32 s94, s94, {sT0}
            ''')
    assert xiss[0] == nx and sp[0] == len(seq)
    stamp('vend')
    for r in range(4): a(f'v_cndmask_b32 v{OA+r}, v{OA+4+r}, v{OA+r}, {sLO32}')
    for r in range(4): a(f'v_mul_f32 v{OA+r}, v{OA+r}, v14')
    a(f'ds_write_b128 v{st+8}, {v4(OA)}')
    for r in range(4): a(f'v_mul_f32 v{OA+8+r}, v{OA+8+r}, v14')
    a(f'ds_write_b128 v{st+9}, {v4(OA+8)}')
    a('s_waitcnt lgkmcnt(0)\ns_barrier')
    stamp('barC')
    for j in range(3): a(f'ds_read_b64 v[{16+2*j}:{17+2*j}], v{st+10} offset:{8*j}')
    a('s_waitcnt lgkmcnt(0)')
    for s_ in (8, 4, 2, 1):
        for r in range(16, 22): a(f'v_add_f32_dpp v{r}, v{r}, v{r} row_ror:{s_} row_mask:0xf bank_mask:0xf')
    for r in range(16, 22): a(f'v_cvt_pk_bf16_f32 v{r}, v{r}, v{r}')
    AT = KB
    for t in range(6):
        for r in range(4): a(f'v_and_b32 v{AT+4*t+r}, v{16+t}, v{4+r}')
        if t >= 1:
            for c in range(5):
                d = v4(YA + 4*c)
                a(f'v_mfma_f32_16x16x32_bf16 {d}, {v4(AT+4*(t-1))}, {kt(WOT+5*(t-1)+c)}, {d}')
    for c in range(5):
        d = v4(YA + 4*c)
        a(f'v_mfma_f32_16x16x32_bf16 {d}, {v4(AT+20)}, {kt(WOT+25+c)}, {d}')
    stamp('mm')
    a(f's_mov_b64 exec, {sLO32}')
    for c in range(5): a(f'ds_write_b128 v{st+11}, {v4(YA+4*c)} offset:{L_YP+512*c}')
    a('s_mov_b64 exec, -1\ns_waitcnt lgkmcnt(0)\ns_barrier')
    stamp('barD'); stamp('pub'); stamp('c1')
    a(f's_cmp_ge_u32 {sW_}, 5\ns_cbranch_scc1 L_cons')
    for u in range(4): a(f'ds_read_b128 {v4(16+4*u)}, v{st+12} offset:{L_YP+2560*u}')
    a('s_waitcnt lgkmcnt(0)')
    padd(16, 24, 8); padd(16, 20, 4)
    for r in range(4): a(f'v_mov_b32 v{20+r}, v{16+r}')
    for r in range(4): a(f'v_permlane32_swap_b32 v{16+r}, v{20+r}')
    padd(16, 20, 4)
    for r in range(4): a(f'v_min_u32 v{16+r}, -2, v{16+r}')
    a(f's_mov_b64 exec, {sLO32}')
    a(f'buffer_store_dwordx4 v[16:19], v{st+13}, {WS}, {sYB} offen sc1')
    if stamps:
        a('s_mov_b64 exec, -1\ns_waitcnt lgkmcnt(0)')
        stamp('pub')
        a('s_branch L_fin')
    else:
        a('s_endpgm')
    a.label('L_cons')
    a(f'''
    s_cmp_eq_u32 s97, 0
    s_cbranch_scc1 L_fin
    s_mov_b32 {sT1}, {SPIN}
    ''')
    a.label('L_spin3')
    a(f's_mov_b32 {sT0}, s94')
    for i in range(8):
        a(f'buffer_load_dwordx4 {v4(16+4*i)}, v{st+14}, {WS}, {sT0} offen sc1')
        if i < 7: a(f's_add_u32 {sT0}, {sT0}, {8*2560}')
    a('s_waitcnt vmcnt(0)')
    a('v_max3_u32 v15, v16, v17, v18\nv_max3_u32 v14, v19, v20, v21')
    for k, r in enumerate(range(22, 48, 2)): a(f'v_max3_u32 v{14+(k&1)}, v{14+(k&1)}, v{r}, v{r+1}')
    a(f'''
    v_max_u32 v15, v15, v14
    v_cmp_eq_u32 vcc, -1, v15
    s_cbranch_vccz L_ok3
    s_sub_u32 {sT1}, {sT1}, 1
    s_cbranch_scc1 L_ok3
    s_branch L_spin3
    ''')
    a.label('L_ok3')
    if stamps: a('s_waitcnt lgkmcnt(0)')
    stamp('c1')
    padd(16, 32, 16); padd(16, 24, 8); padd(16, 20, 4)
    xred8(16, 4, 20)
    a(f'''
    v_lshlrev_b32 v20, 16, v{st+2}
    v_and_b32 v21, 0xffff0000, v{st+2}
    v_lshlrev_b32 v22, 16, v{st+3}
    v_and_b32 v23, 0xffff0000, v{st+3}
    ''')
    padd(16, 20, 4)
    a(f'''
    v_cvt_pk_bf16_f32 v16, v16, v17
    v_cvt_pk_bf16_f32 v17, v18, v19
    s_mov_b64 exec, 0xff
    buffer_store_dwordx2 v[16:17], v{st+5}, {OUT}, s96 offen
    s_mov_b64 exec, -1
    ''')
    a.label('L_fin')
    if stamps:
        a('s_waitcnt vmcnt(0)')
        stamp('end')
        a('s_waitcnt lgkmcnt(0)')
        for k in range(8): a(f'v_mov_b32 v{16+k}, s{SREG[k]}')
        a(f'''
        s_lshl_b32 {sT0}, s2, 3
        s_add_u32 {sT0}, {sT0}, {sW_}
        s_lshl_b32 {sT0}, {sT0}, 5
        s_add_u32 {sT0}, {sT0}, {WS_T}
        v_mov_b32 v14, 0
        s_mov_b64 exec, 1
        buffer_store_dwordx4 v[16:19], v14, {WS}, {sT0} offen
        buffer_store_dwordx4 v[20:23], v14, {WS}, {sT0} offen offset:16
        ''')
    a.label('L_end')
    a('s_endpgm')
    a.raw(f'''.section .rodata,"a"
.p2align 6
.amdhsa_kernel {name}
  .amdhsa_next_free_vgpr 256
  .amdhsa_next_free_sgpr 102
  .amdhsa_accum_offset 256
  .amdhsa_group_segment_fixed_size 0
  .amdhsa_kernarg_size 96
  .amdhsa_user_sgpr_count 2
  .amdhsa_user_sgpr_kernarg_segment_ptr 1
  .amdhsa_system_sgpr_workgroup_id_x 1
  .amdhsa_float_denorm_mode_32 3
.end_amdhsa_kernel''')
    return a.text()

if __name__ == '__main__':
    out = sys.argv[1]
    kw = {}
    for x in sys.argv[2:]:
        k, v = x.split('='); kw[k] = int(v)
    open(out, 'w').write(gen(**kw))
```

```python
import sys, struct
from asmdsl import Asm

NAME = 'parallel_sum__sliding_block_cached__geglu_ffn__decode_kernel'
def f32(x): return '0x%08x' % struct.unpack('<I', struct.pack('<f', x))[0]
def lanemask(fn):
    m = 0
    for l in range(64):
        if fn(l & 15, l >> 4): m |= 1 << l
    return m

HEADER = open('parallel_sum__sliding_block_cached__geglu_ffn__decode.s.ref').read().split('; Override')[0]

WS_Y  = 0
WS_S  = 0x100000
WS_E  = 0x108000
WS_F  = 0x109000
WS_G  = 0x10A000
WS_P  = 0x110000
WS_T  = 0x300000
WS_SZ = 0x400000
L_PART = 0
L_YP   = 16384
L_DUM  = 49152
L_Q    = 53248
L_HID  = 53760
L_CNT  = 53888
L_X    = 54016
L_STG  = 59392
BIG = 0x40000000
L2E = 1.4426950408889634
POL = {0: '', 1: 'nt', 2: 'sc0 nt', 3: 'sc1 nt', 4: 'sc0', 5: 'sc1'}

def gen(KU=3, KP0=9, T=6, TV=7, RV=12, ILV=1, XBEG=4, XEND=8, SLI=38, GST=6, PRIO=1, SLP=8, KPOLL=20, W0N=8, ONEF=1, WPOL=1, SPOL=1, KVPOL=1, PPOL=1, DLY=0, ROT=1,
        NS=12, SEND=44, KCLR=18, EXP=0, stamps=0, name=NAME):
    a = Asm()
    SPIN = (1 << 16) if EXP == 0 else 0
    LDS_SZ = L_STG + 8 * NS * 1024
    assert LDS_SZ <= 163840
    SREG = [80, 82, 84, 86, 56, 58, 60, 62]
    SETS = {1: ['start', 'barA', 'sig', 'kiss', 'barB', 'smax', 'vend', 'end'],
            2: ['start', 'bar0', 'ln', 'barA', 'sig', 'poll', 'qrdy', 'end'],
            3: ['start', 'vend', 'barC', 'mm', 'barD', 'pub', 'c1', 'end'],
            4: ['start', 'karg', 'iss1', 'iss2', 'pre0', 'bar0', 'barA', 'end']}
    def stamp(nm):
        if stamps and nm in SETS[stamps]:
            r = SREG[SETS[stamps].index(nm)]
            a(f's_memrealtime s[{r}:{r+1}]')
    a.raw(HEADER.rstrip())
    a.raw(f'; @launch grid=(256,1,1) block=(512,1,1) lds={LDS_SZ}')
    a.raw('.amdgcn_target "amdgcn-amd-amdhsa--gfx950"\n.text\n.globl %s\n.p2align 8\n.type %s,@function\n%s:' % (name, name, name))
    sW_, sH, sB, sS, sJ, sXCD, sP, sIDX = 's3', 's4', 's5', 's6', 's7', 's68', 's69', 's70'
    K, V, W, WO, WD, X, WS, OUT = 's[8:11]', 's[12:15]', 's[16:19]', 's[20:23]', 's[24:27]', 's[28:31]', 's[32:35]', 's[36:39]'
    sWO0, sWO1, sWDB, sSTG = 's40', 's41', 's42', 's43'
    sKV, sKV2, sKV0 = 's71', 's72', 's73'
    sT0, sT1, sT2, sT3 = 's74', 's75', 's76', 's77'
    sLO32 = 's[78:79]'
    sM, sSOWN, sYB, sSB = 's88', 's89', 's90', 's91'
    TAG = 's[100:101]'
    KB = 64
    WDT, WOT = 12, 17
    def kt(i): return f'v[{KB+4*i}:{KB+4*i+3}]'
    def v4(r): return f'v[{r}:{r+3}]'
    def srd(d, p, n):
        a(f's_mov_b32 s{d}, s{p}\ns_and_b32 s{d+1}, s{p+1}, 0xffff\ns_mov_b32 s{d+2}, {n}\ns_mov_b32 s{d+3}, 0x20000')
    def rowred(op, r, steps=(8, 4, 2, 1)):
        for s_ in steps: a(f'{op}_dpp v{r}, v{r}, v{r} row_ror:{s_} row_mask:0xf bank_mask:0xf')
    gstep = 6144 * 8 if ILV else 6144
    def grp(g):
        if ROT:
            a(f's_add_u32 {sKV}, {sJ}, {g}\ns_and_b32 {sKV}, {sKV}, 7\ns_mul_i32 {sKV}, {sKV}, {gstep}\ns_add_u32 {sKV}, {sKV}, {sKV0}')
        else:
            a(f's_mov_b32 {sKV}, {sKV0}' if g == 0 else f's_add_u32 {sKV}, {sKV}, {gstep}')
    kissued = [0]
    def kload():
        i = kissued[0]; g, e = divmod(i, 6)
        if e == 0: grp(g)
        if e < 4: a(f'buffer_load_dwordx4 {kt(i)}, v8, {K}, {sKV} offen offset:{384*e} {POL[KVPOL]}', tag=f'k{i}')
        else:     a(f'buffer_load_dwordx4 {kt(i)}, v9, {K}, {sKV} offen offset:{768*(e-4)} {POL[KVPOL]}', tag=f'k{i}')
        kissued[0] += 1

    a(f'''
    s_cmp_ge_u32 s2, 256
    s_cbranch_scc1 L_end
    s_load_dwordx16 s[44:59], s[0:1], 0
    s_load_dwordx8 s[60:67], s[0:1], 64''')
    stamp('start')
    if DLY: a('s_memrealtime s[86:87]')
    if PRIO: a('s_setprio 3')
    a(f'''
    v_lshrrev_b32 v14, 6, v0
    v_and_b32 v1, 63, v0
    v_readfirstlane_b32 {sW_}, v14
    v_and_b32 v2, 15, v1
    v_lshrrev_b32 v3, 4, v1
    s_and_b32 {sXCD}, s2, 7
    s_lshr_b32 {sJ}, s2, 3
    s_lshr_b32 {sT0}, {sJ}, 3
    s_lshl_b32 {sH}, {sXCD}, 2
    s_add_u32 {sH}, {sH}, {sT0}
    s_and_b32 {sT1}, {sJ}, 7
    s_lshr_b32 {sB}, {sT1}, 1
    s_and_b32 {sS}, {sT1}, 1
    s_lshl_b32 {sT0}, {sB}, 5
    s_add_u32 {sSB}, {sT0}, {sH}       ; bh
    s_mul_i32 {sKV0}, {sSB}, 3145728
    s_mul_i32 {sT2}, {sS}, 393216
    s_add_u32 {sKV0}, {sKV0}, {sT2}
    s_add_u32 {sKV0}, {sKV0}, {6144*384}
    s_mul_i32 {sT2}, {sW_}, {6144 if ILV else 49152}
    s_add_u32 {sKV0}, {sKV0}, {sT2}
    v_lshrrev_b32 v20, 2, v2
    v_and_b32 v21, 3, v2
    v_lshlrev_b32 v21, 4, v21
    v_mul_u32_u24 v9, 1536, v20
    v_add_u32 v9, v9, v21
    v_lshl_add_u32 v8, v3, 6, v9       ; vkx = 1536(n>>2)+16(n&3)+64g
    v_lshlrev_b32 v20, 4, v1
    s_lshl_b32 {sT0}, {sW_}, 10
    s_add_u32 m0, {sT0}, {L_X}
    s_mov_b32 s10, 402653184
    s_mov_b32 s11, 0x20000
    s_movk_i32 s30, 5120
    s_mov_b32 s31, 0x20000
    s_waitcnt lgkmcnt(0)
    ''')
    stamp('karg')
    a(f'''
    s_mov_b32 s28, s44
    s_and_b32 s29, s45, 0xffff
    s_mov_b32 s8, s46
    s_and_b32 s9, s47, 0xffff
    s_cmp_ge_u32 {sW_}, 5
    s_cbranch_scc1 L_nox
    ''')
    a.role = 'x'
    a(f'buffer_load_dwordx4 v20, {X}, {sT0} offen lds', tag='x')
    a.role = None
    a.label('L_nox')
    assert KU <= 4
    for i in range(KU): kload()
    stamp('iss1')
    a(f's_add_u32 s100, s66, {WS_E}\ns_addc_u32 s101, s67, 0\ns_load_dwordx2 {TAG}, {TAG}, 0')
    a(f'''
    s_mul_i32 s97, {sT1}, 80
    s_lshl_b32 {sT2}, {sW_}, 4
    s_add_u32 s97, s97, {sT2}
    s_and_b32 {sT3}, {sJ}, 15
    s_mul_i32 {sT3}, {sT3}, 40
    s_add_u32 {sT3}, {sT3}, {sT2}
    s_sub_u32 {sT3}, {sT3}, 80
    s_mul_i32 s98, {sH}, 384
    s_mul_i32 {sT2}, {sXCD}, 384
    s_movk_i32 s96, 3072
    s_cmp_lt_u32 {sJ}, 16
    s_cselect_b32 s16, s56, s58
    s_cselect_b32 s17, s57, s59
    s_mov_b32 s18, 1966080
    s_cmp_lt_u32 {sW_}, 5
    s_cselect_b32 s96, 12288, s96
    s_cselect_b32 s97, s97, {sT3}
    s_cselect_b32 s98, s98, {sT2}
    s_cselect_b32 s16, s50, s16
    s_cselect_b32 s17, s51, s17
    s_cselect_b32 s18, 7864320, s18
    s_and_b32 s17, s17, 0xffff
    s_mov_b32 s19, 0x20000
    s_mul_i32 s92, s97, s96
    s_add_u32 s92, s92, s98            ; so0
    s_lshl_b32 {sT2}, s96, 3
    s_add_u32 s93, s92, {sT2}          ; so1
    s_cmp_eq_u32 {sW_}, 7
    s_cselect_b32 s99, {BIG}, 0
    s_add_u32 s93, s93, s99
    s_add_u32 s94, s92, s96
    s_add_u32 s95, s93, s96
    v_lshrrev_b32 v14, 3, v2
    v_mul_lo_u32 v20, v14, s99
    v_lshl_add_u32 v14, v14, 2, v3     ; g+4*(n>>3)
    v_and_b32 v15, 7, v2
    v_lshlrev_b32 v15, 4, v15          ; 16*(n&7)
    s_lshl_b32 {sT2}, s96, 1
    v_mul_lo_u32 v16, v3, {sT2}
    v_lshl_add_u32 v16, v2, 4, v16
    v_mul_lo_u32 v17, v14, {sT2}
    v_add3_u32 v17, v17, v15, v20
    ''')
    if EXP & 128: a(f'v_mov_b32 v16, {BIG}\nv_mov_b32 v17, {BIG}')
    for i in range(2):
        a(f'buffer_load_dwordx4 {v4(112+12*i)}, v16, {W}, s{92+2*i} offen {POL[PPOL]}', tag=f'w{i}')
        a(f'buffer_load_dwordx4 {v4(116+12*i)}, v16, {W}, s{93+2*i} offen {POL[PPOL]}', tag=f'w{i}')
        a(f'buffer_load_dwordx4 {v4(120+12*i)}, v17, {W}, s{92+2*i} offen offset:256 {POL[PPOL]}', tag=f'w{i}')
    stamp('iss2')
    if PRIO: a('s_setprio 0')
    def kmore(frac):
        while kissued[0] < KU + int((KP0 - KU) * frac + 0.5): kload()
    srd(32, 66, WS_SZ); srd(12, 48, 402653184); srd(20, 52, 7864320); srd(24, 60, 1966080); srd(36, 62, 5120)
    a(f'''
    s_lshl_b32 {sP}, {sH}, 1
    s_add_u32 {sP}, {sP}, {sS}
    s_lshl_b32 {sIDX}, {sXCD}, 5
    s_add_u32 {sIDX}, {sIDX}, {sJ}
    s_mov_b32 s78, -1
    s_mov_b32 s79, 0
    s_lshl_b32 {sT0}, {sB}, 6
    s_add_u32 {sT0}, {sT0}, {sP}
    s_mul_i32 {sYB}, {sT0}, 2560
    s_lshl_b32 {sSB}, {sSB}, 8
    s_add_u32 {sSB}, {sSB}, {WS_S}
    s_lshl_b32 {sT2}, {sS}, 3
    s_add_u32 {sT2}, {sT2}, {sW_}
    s_lshl_b32 {sT2}, {sT2}, 4
    s_add_u32 {sSOWN}, {sSB}, {sT2}
    s_mul_i32 {sWDB}, {sP}, 24
    s_mul_i32 {sT0}, {sW_}, 3
    s_add_u32 {sWDB}, {sWDB}, {sT0}
    s_mul_i32 {sWDB}, {sWDB}, 1280
    s_mul_i32 {sWO0}, {sH}, 192
    s_mul_i32 {sT0}, {sW_}, 24
    s_add_u32 {sWO0}, {sWO0}, {sT0}
    s_mul_i32 {sWO0}, {sWO0}, 1280
    s_add_u32 {sWO1}, {sWO0}, 3840
    s_mul_i32 {sSTG}, {sW_}, {NS*1024}
    s_add_u32 {sSTG}, {sSTG}, {L_STG}
    v_lshrrev_b32 v22, 1, v3
    v_mul_u32_u24 v21, 384, v22
    v_add_u32 v9, v9, v21
    v_and_b32 v22, 1, v3
    v_lshlrev_b32 v22, 6, v22
    v_add3_u32 v9, v9, v22, 64
    v_add_u32 v9, 192, v9              ; vky
    v_mul_u32_u24 v18, 1280, v3
    v_lshl_add_u32 v18, v2, 4, v18     ; 1280g+16n
    s_lshl_b32 s97, s97, 1
    v_lshl_add_u32 v19, v14, 2, s97
    v_min_u32 v19, 1276, v19
    v_and_b32 v20, 1, v2
    v_cmp_eq_u32 vcc, 1, v20
    v_mov_b32 v21, 0xffff
    v_mov_b32 v22, 0xffff0000
    v_cndmask_b32 v21, v21, v22, vcc
    v_bfe_u32 v20, v2, 1, 2
    ''')
    for r in range(4):
        a(f'v_cmp_eq_u32 vcc, {r}, v20\nv_cndmask_b32 v{4+r}, 0, v21, vcc')
    a(f'''
    v_mul_u32_u24 v10, 384, v3
    v_lshrrev_b32 v20, 3, v2
    v_mul_u32_u24 v11, 3072, v20
    v_add3_u32 v11, v11, v10, v15
    v_add_u32 v11, 256, v11            ; vvy = (g+8*(n>>3))*384+256+16*(n&7)
    v_lshl_add_u32 v10, v2, 4, v10     ; vvx = g*384+16n
    v_mul_u32_u24 v12, 7680, v3
    v_lshl_add_u32 v12, v2, 4, v12     ; vwo = 6g*1280+16n
    v_mov_b32 v22, {BIG}
    v_cmp_eq_u32 vcc, 3, v3
    v_cndmask_b32 v13, v18, v22, vcc   ; vwd = g*1280+16n  (g==3 -> out of range)
    v_lshrrev_b32 v20, 1, v3
    s_lshl_b32 {sT0}, {sW_}, 1
    v_add_u32 v21, {sT0}, v20
    v_mul_u32_u24 v21, 3072, v21
    v_and_b32 v22, 1, v3
    v_lshlrev_b32 v22, 4, v22
    v_add_u32 v21, v21, v22            ; blk*3072 + 16*(g&1)
    v_lshl_add_u32 v22, v2, 5, v21     ; + 32 n
    v_lshl_add_u32 v23, v15, 1, v21
    v_add_u32 v23, 512, v23            ; + 512 + 32*(n&7)
    v_lshrrev_b32 v21, 3, v2
    v_cmp_eq_u32 vcc, v21, v20
    v_lshlrev_b32 v21, 4, v1
    v_add_u32 v21, {L_DUM}, v21
    v_cndmask_b32 v23, v21, v23, vcc
    v_mov_b32 v20, {L_CNT}
    v_mov_b32 v21, 0
    ds_write_b32 v20, v21
    ds_write_b32 v20, v21 offset:4
    ds_write_b32 v20, v21 offset:8
    ''')
    if EXP & 64: a(f'v_mov_b32 v12, {BIG}\nv_mov_b32 v13, {BIG}')
    stamp('pre0')
    a.role = 'x'; a.wait_vm('x'); a.role = None
    a('s_barrier')
    stamp('bar0')
    for i in range(5): a(f'ds_read_b128 {v4(136+4*i)}, v18 offset:{L_X+256*i}')
    for be in range(4): a(f'ds_read_b32 v{156+be}, v19 offset:{L_X+1280*be}')
    kmore(1/6)
    a(f'''
    s_waitcnt lgkmcnt(0)
    s_mul_i32 s100, s100, 0x9E3779B1
    s_add_u32 s100, s100, 0x7F4A7C15
    s_mul_i32 s101, s101, 0x85EBCA69
    s_add_u32 s101, s101, 0xC2B2AE35
    ''')
    U = 160
    for i in range(20):
        a(f'v_lshlrev_b32 v{U+2*i}, 16, v{136+i}\nv_and_b32 v{U+2*i+1}, 0xffff0000, v{136+i}')
    a(f'v_pk_add_f32 v[248:249], v[{U}:{U+1}], v[{U+2}:{U+3}]\nv_pk_add_f32 v[250:251], v[{U+4}:{U+5}], v[{U+6}:{U+7}]')
    for i in range(8, 40, 2):
        d = 248 + (i & 2)
        a(f'v_pk_add_f32 v[{d}:{d+1}], v[{d}:{d+1}], v[{U+i}:{U+i+1}]')
    a('v_pk_add_f32 v[248:249], v[248:249], v[250:251]\nv_add_f32 v248, v248, v249')
    rowred('v_add_f32', 248)
    a(f'v_mul_f32 v252, {f32(-1/640)}, v248')
    kmore(2/6)
    for i in range(0, 40, 2): a(f'v_pk_add_f32 v[{U+i}:{U+i+1}], v[{U+i}:{U+i+1}], v[252:253] op_sel_hi:[1,0]')
    a(f'v_pk_mul_f32 v[248:249], v[{U}:{U+1}], v[{U}:{U+1}]\nv_pk_mul_f32 v[250:251], v[{U+2}:{U+3}], v[{U+2}:{U+3}]')
    for i in range(4, 40, 2):
        d = 248 + (i & 2)
        a(f'v_pk_fma_f32 v[{d}:{d+1}], v[{U+i}:{U+i+1}], v[{U+i}:{U+i+1}], v[{d}:{d+1}]')
    a('v_pk_add_f32 v[248:249], v[248:249], v[250:251]\nv_add_f32 v248, v248, v249')
    rowred('v_add_f32', 248)
    a(f'''
    v_mul_f32 v248, {f32(1/640)}, v248
    v_cvt_pk_bf16_f32 v249, v252, v248
    v_lshlrev_b32 v252, 16, v249
    v_and_b32 v248, 0xffff0000, v249
    v_add_f32 v248, {f32(1e-5)}, v248
    v_cvt_pk_bf16_f32 v248, v248, v248
    v_and_b32 v248, 0xffff0000, v248
    v_sqrt_f32 v248, v248
    v_cvt_pk_bf16_f32 v248, v248, v248
    v_and_b32 v248, 0xffff0000, v248
    v_rcp_f32 v248, v248
    ''')
    for be in range(4): a(f'v_readlane_b32 s{44+be}, v252, {16*be}')
    for be in range(4): a(f'v_readlane_b32 s{48+be}, v248, {16*be}')
    kmore(3/6)
    AO = 160
    for be in range(4):
        a(f'''
        v_lshlrev_b32 v248, 16, v{156+be}
        v_and_b32 v249, 0xffff0000, v{156+be}
        v_add_f32 v248, s{44+be}, v248
        v_add_f32 v249, s{44+be}, v249
        v_cvt_pk_bf16_f32 v250, v248, v249
        v_lshlrev_b32 v248, 16, v250
        v_and_b32 v249, 0xffff0000, v250
        v_mul_f32 v248, s{48+be}, v248
        v_mul_f32 v249, s{48+be}, v249
        v_cvt_pk_bf16_f32 v248, v248, v248
        v_cvt_pk_bf16_f32 v249, v249, v249
        ''')
        for i in range(2):
            for r in range(4):
                a(f'v_and_b32 v{AO+16*i+4*be+r}, v{248+i}, v{4+r}')
    ACC = 200
    stamp('ln')
    kmore(4/6)
    for i in range(2):
        a.wait_vm(f'w{i}')
        for be in range(4):
            for e in range(3):
                d = v4(ACC + 12*be + 4*e)
                a(f'v_mfma_f32_16x16x32_bf16 {d}, {v4(AO+16*i+4*be)}, {v4(112+12*i+4*e)}, {0 if i == 0 else d}')
    stamp('wland')
    kmore(5/6)
    for be in range(4):
        d1, d2, d3 = ACC + 12*be, ACC + 12*be + 4, ACC + 12*be + 8
        for r in range(4):
            a(f'v_cndmask_b32 v{d1+r}, v{d2+r}, v{d1+r}, {sLO32}')
        a(f'ds_write_b128 v22, {v4(d1)} offset:{768*be}')
        a(f'ds_write_b128 v23, {v4(d3)} offset:{768*be}')
    kmore(1)
    a('s_waitcnt lgkmcnt(0)\ns_barrier')
    stamp('barA')
    a(f'''
    s_cmp_ge_u32 {sW_}, 6
    s_cbranch_scc1 L_nopub
    s_cmp_lt_u32 {sW_}, 3
    s_cselect_b32 {sT0}, 0, 27648
    v_lshlrev_b32 v14, 4, v0
    v_add_u32 v15, {sT0}, v14
    ''')
    for u in range(6): a(f'ds_read_b128 {v4(16+4*u)}, v15 offset:{3072*u}')
    a(f's_cbranch_scc0 L_six')
    for u in range(6, 10): a(f'ds_read_b128 {v4(16+4*u)}, v15 offset:{3072*u}')
    a('s_waitcnt lgkmcnt(0)')
    def padd(d, s_, n):
        for r in range(0, n, 2): a(f'v_pk_add_f32 v[{d+r}:{d+r+1}], v[{d+r}:{d+r+1}], v[{s_+r}:{s_+r+1}]')
    padd(16, 40, 16)
    a.label('L_six')
    a('s_waitcnt lgkmcnt(0)')
    padd(16, 28, 12); padd(16, 20, 4); padd(16, 24, 4)
    a(f's_mul_i32 {sT0}, {sIDX}, 6144\ns_add_u32 {sT0}, {sT0}, {WS_P}')
    a.role = 'pub'
    if EXP & 8: a(f'v_mov_b32 v14, {BIG}')
    a(f'buffer_store_dwordx4 v[16:19], v14, {WS}, {sT0} offen sc1', tag='pub')
    a.role = None
    a.label('L_nopub')
    wotiles = [(t, c) for t in range(6) for c in range(5)]
    kseq = ['c'] if ONEF else []
    si = 0
    for i in range(KP0, 48):
        kseq.append('k')
        if i == KCLR and not ONEF: kseq.append('c')
        while si < NS and (si + 1) * (SEND - KP0) <= (i + 1 - KP0) * NS:
            kseq.append('s'); si += 1
    assert si == NS
    kp = [0]; sissued = [0]
    def kstep(paced):
        op = kseq[kp[0]]; kp[0] += 1
        if op == 'c':
            a(f'''
            v_and_b32 v24, 31, v1
            v_lshlrev_b32 v24, 4, v24
            v_mov_b32 v25, {BIG}
            v_cndmask_b32 v24, v25, v24, {sLO32}
            s_lshl_b32 {sT0}, {sW_}, 9
            s_add_u32 {sT0}, {sT0}, {sYB}
            s_cmp_ge_u32 {sW_}, {5 if not (EXP & 16) else 0}
            s_cselect_b32 {sT0}, {BIG}, {sT0}
            v_mov_b32 v28, -1
            v_mov_b32 v29, -1
            v_mov_b32 v30, -1
            v_mov_b32 v31, -1
            ''')
        if paced: a(f's_waitcnt vmcnt({T-1})')
        if op == 'k': kload()
        elif op == 'c': a(f'buffer_store_dwordx4 v[28:31], v24, {WS}, {sT0} offen sc1', tag='clr')
        else:
            n = sissued[0]; t, c = wotiles[n]; imm = 1280*(t % 3) + 256*c
            a(f's_add_u32 m0, {sSTG}, {1024*n - imm}' if 1024*n >= imm else f's_sub_u32 m0, {sSTG}, {imm - 1024*n}')
            a(f'buffer_load_dwordx4 v12, {WO}, {sWO0 if t < 3 else sWO1} offen offset:{imm} {POL[SPOL]} lds', tag='stg')
            sissued[0] += 1
    def signal(off, base, lab):
        a(f'''
        v_mov_b32 v14, {L_CNT}
        v_mov_b32 v15, 1
        s_mov_b64 exec, 1
        ds_add_rtn_u32 v20, v14, v15 offset:{off}
        s_waitcnt lgkmcnt(0)
        v_readfirstlane_b32 {sT0}, v20
        s_cmp_eq_u32 {sT0}, 7
        s_cbranch_scc0 {lab}
        s_lshl_b32 {sT0}, {sIDX}, 3
        s_add_u32 {sT0}, {sT0}, {base}
        v_mov_b32 v20, 0
        v_mov_b32 v14, s100
        v_mov_b32 v15, s101
        ''')
        a(f'buffer_store_dwordx2 v[14:15], v20, {WS}, {sT0} offen sc1'); a.vm.pop()
        a.label(lab)
        a('s_mov_b64 exec, -1')
    for _ in range(T): kstep(True)
    if ONEF: a.wait_vm('clr')
    else:
        a.role = 'pub'; a.wait_vm('pub'); a.role = None
    signal(0, WS_F, 'L_nosig')
    stamp('sig')
    while kissued[0] < KPOLL: kstep(True)
    assert KCLR < KPOLL
    a(f's_cmp_eq_u32 {sW_}, 0\ns_cbranch_scc1 L_w0')
    fork = (list(a.vm), kissued[0], kp[0], sissued[0])
    while kp[0] < len(kseq): kstep(True)
    stamp('kiss'); stamp('poll'); stamp('qrdy')
    a('s_branch L_join')
    vm_join = list(a.vm)
    a.vm, kissued[0], kp[0], sissued[0] = fork
    a.label('L_w0')
    a(f'''
    v_and_b32 v60, 31, v1
    v_lshlrev_b32 v60, 3, v60
    s_lshl_b32 {sT2}, {sXCD}, 8
    s_add_u32 {sT2}, {sT2}, {WS_F}
    s_mov_b32 {sT1}, {SPIN}
    ''')
    if EXP & 1: a(f'v_mov_b32 v60, {BIG}')
    a(f'buffer_load_dwordx2 v[62:63], v60, {WS}, {sT2} offen sc1', tag='poll')
    for _ in range(T - 1): kstep(True)
    a.wait_vm('poll')
    a.label('L_spin1')
    a(f'''
    v_cmp_ne_u64 vcc, {TAG}, v[62:63]
    s_cbranch_vccz L_ok1
    s_sub_u32 {sT1}, {sT1}, 1
    s_cbranch_scc1 L_ok1
    s_sleep {SLP}
    buffer_load_dwordx2 v[62:63], v60, {WS}, {sT2} offen sc1
    s_waitcnt vmcnt(0)
    s_branch L_spin1
    ''')
    a.vm.pop()
    a.label('L_ok1')
    stamp('poll')
    a(f'''
    s_mul_i32 {sT0}, {sH}, {8*6144}
    s_mul_i32 {sT2}, {sB}, 768
    s_add_u32 {sT0}, {sT0}, {sT2}
    s_add_u32 {sT0}, {sT0}, {WS_P}
    v_lshlrev_b32 v14, 4, v1
    v_mov_b32 v61, {BIG}
    v_cmp_gt_u32 vcc, 48, v1
    v_cndmask_b32 v14, v61, v14, vcc
    v_and_b32 v62, 7, v1
    v_lshrrev_b32 v15, 3, v1
    v_mul_u32_u24 v15, 6144, v15
    v_lshl_add_u32 v15, v62, 4, v15
    v_cmp_gt_u32 vcc, 6, v62
    v_cndmask_b32 v15, v61, v15, vcc
    ''')
    if EXP & 2: a(f'v_mov_b32 v14, {BIG}')
    if EXP & 4: a(f'v_mov_b32 v15, {BIG}')
    for t in range(8):
        a(f'buffer_load_dwordx4 {v4(16+4*t)}, v14, {WS}, {sT0} offen sc1', tag='gq')
        if t < 7: a(f's_add_u32 {sT0}, {sT0}, 6144')
    a(f'''
    s_mul_i32 {sT0}, {sXCD}, {32*6144}
    s_add_u32 {sT0}, {sT0}, {sT2}
    s_add_u32 {sT0}, {sT0}, {WS_P+3072}
    s_and_b32 {sT3}, {sP}, 7
    s_mul_i32 {sT3}, {sT3}, 96
    s_add_u32 {sT0}, {sT0}, {sT3}
    ''')
    for t in range(4):
        a(f'buffer_load_dwordx4 {v4(48+4*t)}, v15, {WS}, {sT0} offen sc1', tag='gf')
        if t < 3: a(f's_add_u32 {sT0}, {sT0}, {8*6144}')
    for _ in range(W0N): kstep(False)
    a.wait_vm('gq')
    padd(16, 32, 16); padd(16, 24, 8); padd(16, 20, 4)
    a(f'''
    v_cvt_pk_bf16_f32 v16, v16, v17
    v_cvt_pk_bf16_f32 v17, v18, v19
    v_lshlrev_b32 v14, 3, v1
    ds_write_b64 v14, v[16:17] offset:{L_Q}
    ''')
    a.wait_vm('gf')
    padd(48, 52, 4)
    for r in range(0, 4, 2): a(f'v_pk_add_f32 v[{52+r}:{53+r}], v[{56+r}:{57+r}], v[{60+r}:{61+r}]')
    def xred8(base, n, tmp):
        for r in range(n): a(f'v_add_f32_dpp v{base+r}, v{base+r}, v{base+r} row_ror:8 row_mask:0xf bank_mask:0xf')
        for sw in ('v_permlane16_swap_b32', 'v_permlane32_swap_b32'):
            for r in range(n): a(f'v_mov_b32 v{tmp+r}, v{base+r}')
            for r in range(n): a(f'{sw} v{base+r}, v{tmp+r}')
            padd(base, tmp, n)
    xred8(48, 8, 24)
    for r in range(4): a(f'v_cvt_pk_bf16_f32 v{24+r}, v{48+r}, v{52+r}')
    for r in range(4): a(f'v_lshlrev_b32 v{48+r}, 16, v{24+r}\nv_and_b32 v{52+r}, 0xffff0000, v{24+r}')
    for r in range(4): a(f'v_mul_f32 v{24+r}, v{48+r}, v{48+r}')
    for r in range(4): a(f'v_mul_f32 v{24+r}, {f32(0.044715)}, v{24+r}')
    for r in range(4): a(f'v_fma_f32 v{24+r}, v{24+r}, v{48+r}, v{48+r}')
    for r in range(4): a(f'v_mul_f32 v{24+r}, {f32(-2*0.7978845608028654*L2E)}, v{24+r}')
    for r in range(4): a(f'v_exp_f32 v{24+r}, v{24+r}')
    for r in range(4): a(f'v_add_f32 v{24+r}, 1.0, v{24+r}')
    for r in range(4): a(f'v_rcp_f32 v{24+r}, v{24+r}')
    for r in range(4): a(f'v_mul_f32 v{24+r}, v{24+r}, v{48+r}')
    for r in range(4): a(f'v_cvt_pk_bf16_f32 v{24+r}, v{24+r}, v{24+r}')
    for r in range(4): a(f'v_and_b32 v{24+r}, 0xffff0000, v{24+r}')
    for r in range(4): a(f'v_mul_f32 v{24+r}, v{24+r}, v{52+r}')
    for r in range(4): a(f'v_cvt_pk_bf16_f32 v{24+r}, v{24+r}, v{24+r}')
    a(f'''
    v_and_b32 v14, 7, v1
    v_lshlrev_b32 v14, 4, v14
    ds_write_b128 v14, v[24:27] offset:{L_HID}
    v_mov_b32 v14, {L_CNT}
    v_mov_b32 v15, 1
    s_waitcnt lgkmcnt(0)
    ds_write_b32 v14, v15 offset:4
    ''')
    stamp('qrdy')
    while kp[0] < len(kseq): kstep(True)
    stamp('kiss')
    a.vm = vm_join
    a.label('L_join')
    if not ONEF:
        a.wait_vm('clr')
        signal(8, WS_G, 'L_nosig2')
    a(f'v_mov_b32 v14, {L_CNT}\ns_mov_b32 {sT1}, {1<<22}')
    a.label('L_spinq')
    a(f'''
    ds_read_b32 v15, v14 offset:4
    s_waitcnt lgkmcnt(0)
    v_readfirstlane_b32 {sT0}, v15
    s_cmp_lg_u32 {sT0}, 0
    s_cbranch_scc1 L_okq
    s_sub_u32 {sT1}, {sT1}, 1
    s_cbranch_scc1 L_okq
    s_sleep 1
    s_branch L_spinq
    ''')
    a.label('L_okq')
    stamp('barB')
    a(f'''
    v_and_b32 v14, 3, v2
    v_lshl_add_u32 v15, v3, 2, v14
    v_lshlrev_b32 v15, 4, v15
    ds_read_b128 v[56:59], v15 offset:{L_Q}
    v_and_b32 v15, 0x70, v15
    ds_read_b128 v[60:63], v15 offset:{L_Q+256}
    ''')
    mX = [lanemask(lambda m, g, u=u: (m >> 2) == u) for u in range(4)]
    mY = [lanemask(lambda m, g, w=w: (m >> 2) == 2*w + (g >> 1)) for w in range(2)]
    for k, m in enumerate(mX + mY):
        a(f's_mov_b32 s{44+2*k}, {hex(m & 0xffffffff)}\ns_mov_b32 s{45+2*k}, {hex(m >> 32)}')
    a('s_waitcnt lgkmcnt(0)')
    for k in range(6):
        src = 56 if k < 4 else 60
        for r in range(4): a(f'v_cndmask_b32 v{32+4*k+r}, 0, v{src+r}, s[{44+2*k}:{45+2*k}]')
    vissued = [0]
    def vreg(i): return kt(i % RV)
    def vload():
        i = vissued[0]; g, e = divmod(i, 6); c, x = divmod(e, 3)
        if e == 0:
            grp(g)
            a(f's_add_u32 {sKV2}, {sKV}, 3072')
        if x == 0:   a(f'buffer_load_dwordx4 {vreg(i)}, v10, {V}, {sKV} offen offset:{1536*c} {POL[KVPOL]}', tag=f'v{i}')
        elif x == 1: a(f'buffer_load_dwordx4 {vreg(i)}, v10, {V}, {sKV2} offen offset:{1536*c} {POL[KVPOL]}', tag=f'v{i}')
        else:        a(f'buffer_load_dwordx4 {vreg(i)}, v11, {V}, {sKV} offen offset:{1536*c} {POL[KVPOL]}', tag=f'v{i}')
        vissued[0] += 1
    assert RV <= 12
    extras = [('wd', c) for c in range(5)] + [('wo', n) for n in range(NS, 30)]
    xiss = [0]
    def xtile(e): return WDT + e[1] if e[0] == 'wd' else WOT + e[1]
    def xload():
        e = extras[xiss[0]]
        if e[0] == 'wd':
            a(f'buffer_load_dwordx4 {kt(xtile(e))}, v13, {WD}, {sWDB} offen offset:{256*e[1]} {POL[WPOL]}', tag='wd')
        else:
            t, c = wotiles[e[1]]
            a(f'buffer_load_dwordx4 {kt(xtile(e))}, v12, {WO}, {sWO0 if t < 3 else sWO1} offen offset:{1280*(t%3)+256*c} {POL[WPOL]}', tag='wo')
        xiss[0] += 1
    SC = 0.07216878364870322
    def score_post(g):
        d = 24 + 4*(g & 1); s_ = 16 + g
        a(f'''
        v_mov_b32_dpp v{s_}, v{d} quad_perm:[0,0,0,0] row_mask:0xf bank_mask:0xf
        v_add_f32_dpp v{s_}, v{d+1}, v{s_} quad_perm:[1,1,1,1] row_mask:0xf bank_mask:0xf
        v_add_f32_dpp v{s_}, v{d+2}, v{s_} quad_perm:[2,2,2,2] row_mask:0xf bank_mask:0xf
        v_add_f32_dpp v{s_}, v{d+3}, v{s_} quad_perm:[3,3,3,3] row_mask:0xf bank_mask:0xf
        v_cvt_pk_bf16_f32 v{s_}, v{s_}, v{s_}
        v_and_b32 v{s_}, 0xffff0000, v{s_}
        v_mul_f32 v{s_}, {f32(SC)}, v{s_}
        v_cvt_pk_bf16_f32 v{s_}, v{s_}, v{s_}
        v_and_b32 v{s_}, 0xffff0000, v{s_}
        ''')
    nx = len(extras)
    span = 48 - XBEG - XEND
    seq = []
    xi = 0
    for i in range(48):
        seq.append('v')
        if i == SLI: seq.append('sl')
        if xi < 5 and i >= XBEG:
            seq.append('x'); xi += 1
        while xi < nx and i >= XBEG and (xi + 1) * span <= (i + 1 - XBEG) * nx:
            seq.append('x'); xi += 1
    assert xi == nx
    sp = [0]
    did_wd = [False]
    SS = KB + 4*47
    st = KB + 4*WDT
    GF = st + 12
    def statload():
        a(f'''
        v_lshlrev_b32 v8, 4, v2
        s_mul_i32 s95, {sP}, 43691
        s_lshr_b32 s95, s95, 17
        s_mul_i32 {sT0}, {sB}, 1280
        s_lshl_b32 {sT1}, s95, 6
        s_add_u32 s96, {sT0}, {sT1}
        s_mul_i32 {sT0}, s95, 3
        s_mov_b32 s97, 1
        s_cmp_lg_u32 {sT0}, {sP}
        s_cselect_b32 s97, 0, s97
        s_cmp_ge_u32 s95, 20
        s_cselect_b32 s97, 0, s97
        s_cmp_lg_u32 {sW_}, 7
        s_cselect_b32 s97, 0, s97
        v_lshlrev_b32 v9, 4, v1
        s_mov_b32 s98, {WS_F if ONEF else WS_G}
        s_cmp_eq_u32 s97, 0
        s_cbranch_scc1 L_nogf
        buffer_load_dwordx4 {v4(GF)}, v9, {WS}, s98 offen sc1
        buffer_load_dwordx4 {v4(GF+4)}, v9, {WS}, s98 offen offset:1024 sc1
        ''')
        a.vm.pop(); a.vm.pop()
        a.label('L_nogf')
        a(f'buffer_load_dwordx4 {v4(SS)}, v8, {WS}, {sSB} offen sc1', tag='sl')
    def pump(lasttag, kfree, vcons):
        while sp[0] < len(seq):
            idx = max(k for k, (t, r) in enumerate(a.vm) if t == lasttag)
            if len(a.vm) - 1 - idx >= TV: break
            op = seq[sp[0]]
            if op == 'v':
                i = vissued[0]
                if i < RV:
                    if i >= kfree: break
                elif i - RV >= vcons: break
                vload()
            elif op == 'x':
                if xtile(extras[xiss[0]]) >= kfree: break
                xload()
            else:
                assert did_wd[0]
                statload()
            sp[0] += 1
    done = [t for (t, r) in a.vm[:len(a.vm) - T]]
    known = max(int(t[1:]) for t in done if t and t[0] == 'k' and t[1:].isdigit())
    a.wait_vm(f'k{known}')
    for g in range(8):
        d = v4(24 + 4*(g & 1))
        for e in range(6):
            i = 6*g + e
            if i > known:
                a.wait_vm(f'k{i}'); known = i
            a(f'v_mfma_f32_16x16x32_bf16 {d}, {v4(32+4*e)}, {kt(i)}, {0 if e == 0 else d}')
            if i == known: pump(f'k{known}', i + 1, 0)
        if 6*g + 5 < known and (g & 1) == 0 and known < 47:
            known += 1
            a.wait_vm(f'k{known}')
            pump(f'k{known}', 6*g + 6, 0)
        if g > 0: score_post(g-1)
    score_post(7)
    if NS:
        a.wait_vm('stg')
        a(f'v_lshlrev_b32 v14, 4, v1\nv_add_u32 v14, {sSTG}, v14')
        for n in range(NS): a(f'ds_read_b128 {kt(WOT+n)}, v14 offset:{1024*n}')
    def allred(op, r, t):
        rowred(op, r, (4, 8))
        a(f'v_mov_b32 v{t}, v{r}\nv_permlane16_swap_b32 v{r}, v{t}\n{op} v{r}, v{r}, v{t}')
        a(f'v_mov_b32 v{t}, v{r}\nv_permlane32_swap_b32 v{r}, v{t}\n{op} v{r}, v{r}, v{t}')
    a('v_max3_f32 v28, v16, v17, v18\nv_max3_f32 v15, v19, v20, v21\nv_max3_f32 v28, v28, v22, v23\nv_max_f32 v28, v28, v15')
    allred('v_max_f32', 28, 15)
    for g in range(8): a(f'v_sub_f32 v{16+g}, v{16+g}, v28')
    for g in range(8): a(f'v_mul_f32 v{16+g}, {f32(L2E)}, v{16+g}')
    for g in range(8): a(f'v_exp_f32 v{16+g}, v{16+g}')
    a('v_add_f32 v30, v16, v17\nv_add_f32 v24, v18, v19\nv_add_f32 v25, v20, v21\nv_add_f32 v26, v22, v23\nv_add_f32 v30, v30, v24\nv_add_f32 v25, v25, v26\nv_add_f32 v30, v30, v25')
    allred('v_add_f32', 30, 24)
    for g in range(8): a(f'v_cvt_pk_bf16_f32 v{16+g}, v{16+g}, v{16+g}')
    a(f'''
    v_mov_b32 v29, s100
    v_mov_b32 v31, s101
    v_mov_b32 v24, 0
    v_readfirstlane_b32 {sM}, v28          ; own m
    s_mov_b64 exec, 1
    ''')
    a(f'buffer_store_dwordx4 v[28:31], v24, {WS}, {sSOWN} offen sc1', tag='stat')
    a('s_mov_b64 exec, -1')
    stamp('smax')
    YA, OA = 44, 32
    a(f'''
    s_mul_i32 {sT0}, {sW_}, 12
    v_lshlrev_b32 v24, 2, v3
    v_add_u32 v24, {sT0}, v24
    v_mov_b32 v25, 124
    v_cmp_eq_u32 vcc, 3, v3
    v_cndmask_b32 v24, v24, v25, vcc
    ds_read_b32 v14, v24 offset:{L_HID}
    s_waitcnt lgkmcnt(0)
    ''')
    for g in range(8):
        for c in range(2):
            A = 24 + 4*c
            if c == 0: a(f'v_mov_b32 v15, v{16+g}\nv_mov_b32_dpp v15, v{16+g} row_shr:4 row_mask:0xf bank_mask:0xa')
            else:      a(f'v_mov_b32 v15, v{16+g}\nv_mov_b32_dpp v15, v{16+g} row_shl:4 row_mask:0xf bank_mask:0x5')
            for r in range(4): a(f'v_and_b32 v{A+r}, v15, v{4+r}')
            for x in range(3):
                i = 6*g + 3*c + x
                d = v4(OA + 4*x)
                a.wait_vm(f'v{i}')
                a(f'v_mfma_f32_16x16x32_bf16 {d}, {v4(A)}, {vreg(i)}, {0 if i < 3 else d}')
                pump(f'v{i}', 48, i + 1)
        if g == 2:
            did_wd[0] = True
            assert xiss[0] >= 5
            for r in range(4): a(f'v_and_b32 v{24+r}, v14, v{4+r}')
            a.wait_vm('wd')
            for c in range(5):
                a(f'v_mfma_f32_16x16x32_bf16 {v4(YA+4*c)}, v[24:27], {kt(WDT+c)}, 0')
        if g == GST:
            a(f's_mov_b32 {sT1}, {SPIN}')
            a.wait_vm('sl')
            a.label('L_spin2')
            a(f'''
            v_cmp_ne_u32 vcc, s100, v{SS+1}
            v_cmp_ne_u32 s[44:45], s101, v{SS+3}
            s_or_b64 vcc, vcc, s[44:45]
            s_cbranch_scc0 L_ok2
            s_sub_u32 {sT1}, {sT1}, 1
            s_cbranch_scc1 L_ok2
            s_sleep 4
            buffer_load_dwordx4 {v4(SS)}, v8, {WS}, {sSB} offen sc1
            s_waitcnt vmcnt(0)
            s_branch L_spin2
            ''')
            a.vm.pop()
            a.label('L_ok2')
            a(f'''
            s_cmp_eq_u32 s97, 0
            s_cbranch_scc1 L_ok2b
            s_mov_b32 {sT1}, {SPIN}
            ''')
            a.label('L_spin2b')
            a(f'''
            v_cmp_ne_u64 vcc, {TAG}, v[{GF}:{GF+1}]
            v_cmp_ne_u64 s[44:45], {TAG}, v[{GF+2}:{GF+3}]
            v_cmp_ne_u64 s[46:47], {TAG}, v[{GF+4}:{GF+5}]
            v_cmp_ne_u64 s[48:49], {TAG}, v[{GF+6}:{GF+7}]
            s_or_b64 vcc, vcc, s[44:45]
            s_or_b64 s[46:47], s[46:47], s[48:49]
            s_or_b64 vcc, vcc, s[46:47]
            s_cbranch_scc0 L_ok2c
            s_sub_u32 {sT1}, {sT1}, 1
            s_cbranch_scc1 L_ok2c
            s_sleep {SLP}
            buffer_load_dwordx4 {v4(GF)}, v9, {WS}, s98 offen sc1
            buffer_load_dwordx4 {v4(GF+4)}, v9, {WS}, s98 offen offset:1024 sc1
            s_waitcnt vmcnt(0)
            s_branch L_spin2b
            ''')
            a.vm.pop(); a.vm.pop()
            a.label('L_ok2c')
            a(f'''
            s_cmp_lg_u32 s2, 0
            s_cbranch_scc1 L_ok2b
            s_mov_b32 {sT2}, {WS_E}
            v_mov_b32 v{GF}, s100
            v_mov_b32 v{GF+1}, s101
            s_mov_b64 exec, 1
            buffer_store_dwordx2 v[{GF}:{GF+1}], v9, {WS}, {sT2} offen sc1
            s_mov_b64 exec, -1
            ''')
            a.vm.pop()
            a.label('L_ok2b')
            a(f'v_mov_b32 v{st+6}, v{SS}')
            rowred('v_max_f32', st+6)
            a(f'''
            v_sub_f32 v{st}, v{SS}, v{st+6}
            v_sub_f32 v{st+7}, {sM}, v{st+6}
            v_mul_f32 v{st}, {f32(L2E)}, v{st}
            v_mul_f32 v{st+7}, {f32(L2E)}, v{st+7}
            v_exp_f32 v{st}, v{st}
            v_exp_f32 v{st+7}, v{st+7}
            v_mul_f32 v{st}, v{st}, v{SS+2}
            ''')
            rowred('v_add_f32', st)
            a(f'''
            v_rcp_f32 v{st}, v{st}
            v_mul_f32 v14, v{st}, v{st+7}          ; factor
            v_and_b32 v{st+5}, 7, v1
            v_lshlrev_b32 v{st+5}, 3, v{st+5}
            s_min_u32 {sT0}, s96, 5056
            v_add_u32 v{st+4}, {sT0}, v{st+5}
            ds_read_b64 v[{st+2}:{st+3}], v{st+4} offset:{L_X}
            ''')
            a(f'''
            v_lshrrev_b32 v{st+6}, 1, v3
            s_lshl_b32 {sT0}, {sW_}, 1
            v_add_u32 v{st+7}, {sT0}, v{st+6}
            v_mul_u32_u24 v{st+7}, 784, v{st+7}
            v_and_b32 v{st+8}, 1, v3
            v_lshlrev_b32 v{st+11}, 4, v{st+8}
            v_add_u32 v{st+7}, v{st+7}, v{st+11}
            v_lshl_add_u32 v{st+8}, v2, 5, v{st+7}
            v_and_b32 v{st+9}, 7, v2
            v_lshl_add_u32 v{st+9}, v{st+9}, 5, v{st+7}
            v_add_u32 v{st+9}, 512, v{st+9}
            v_lshrrev_b32 v{st+7}, 3, v2
            v_cmp_eq_u32 vcc, v{st+7}, v{st+6}
            v_lshlrev_b32 v{st+7}, 4, v1
            v_add_u32 v{st+7}, {L_DUM}, v{st+7}
            v_cndmask_b32 v{st+9}, v{st+7}, v{st+9}, vcc
            v_mul_u32_u24 v{st+10}, 784, v2
            v_mul_u32_u24 v{st+7}, 24, v3
            s_mul_i32 {sT0}, {sW_}, 96
            v_add3_u32 v{st+10}, v{st+10}, v{st+7}, {sT0}
            s_mul_i32 {sT0}, {sW_}, 2560
            v_lshl_add_u32 v{st+11}, v2, 5, v{st+11}
            v_add_u32 v{st+11}, {sT0}, v{st+11}
            v_and_b32 v{st+13}, 31, v1
            v_lshlrev_b32 v{st+13}, 4, v{st+13}
            s_lshl_b32 {sT0}, {sW_}, 9
            v_add_u32 v{st+13}, {sT0}, v{st+13}
            v_mul_u32_u24 v{st+12}, 10240, v{st+6}
            v_add_u32 v{st+12}, v{st+12}, v{st+13}
            v_lshrrev_b32 v{st+14}, 3, v1
            v_mul_u32_u24 v{st+14}, 2560, v{st+14}
            v_lshl_add_u32 v{st+14}, v{st+5}, 1, v{st+14}
            s_mul_i32 s94, {sB}, {64*2560}
            s_lshl_b32 {sT0}, s95, 7
            s_add_u32 s94, s94, {sT0}
            ''')
    assert xiss[0] == nx and sp[0] == len(seq)
    stamp('vend')
    for r in range(4): a(f'v_cndmask_b32 v{OA+r}, v{OA+4+r}, v{OA+r}, {sLO32}')
    for r in range(4): a(f'v_mul_f32 v{OA+r}, v{OA+r}, v14')
    a(f'ds_write_b128 v{st+8}, {v4(OA)}')
    for r in range(4): a(f'v_mul_f32 v{OA+8+r}, v{OA+8+r}, v14')
    a(f'ds_write_b128 v{st+9}, {v4(OA+8)}')
    a('s_waitcnt lgkmcnt(0)\ns_barrier')
    stamp('barC')
    for j in range(3): a(f'ds_read_b64 v[{16+2*j}:{17+2*j}], v{st+10} offset:{8*j}')
    a('s_waitcnt lgkmcnt(0)')
    for s_ in (8, 4, 2, 1):
        for r in range(16, 22): a(f'v_add_f32_dpp v{r}, v{r}, v{r} row_ror:{s_} row_mask:0xf bank_mask:0xf')
    for r in range(16, 22): a(f'v_cvt_pk_bf16_f32 v{r}, v{r}, v{r}')
    AT = KB
    for t in range(6):
        for r in range(4): a(f'v_and_b32 v{AT+4*t+r}, v{16+t}, v{4+r}')
        if t >= 1:
            for c in range(5):
                d = v4(YA + 4*c)
                a(f'v_mfma_f32_16x16x32_bf16 {d}, {v4(AT+4*(t-1))}, {kt(WOT+5*(t-1)+c)}, {d}')
    for c in range(5):
        d = v4(YA + 4*c)
        a(f'v_mfma_f32_16x16x32_bf16 {d}, {v4(AT+20)}, {kt(WOT+25+c)}, {d}')
    stamp('mm')
    a(f's_mov_b64 exec, {sLO32}')
    for c in range(5): a(f'ds_write_b128 v{st+11}, {v4(YA+4*c)} offset:{L_YP+512*c}')
    a('s_mov_b64 exec, -1\ns_waitcnt lgkmcnt(0)\ns_barrier')
    stamp('barD'); stamp('pub'); stamp('c1')
    a(f's_cmp_ge_u32 {sW_}, 5\ns_cbranch_scc1 L_cons')
    for u in range(4): a(f'ds_read_b128 {v4(16+4*u)}, v{st+12} offset:{L_YP+2560*u}')
    a('s_waitcnt lgkmcnt(0)')
    padd(16, 24, 8); padd(16, 20, 4)
    for r in range(4): a(f'v_mov_b32 v{20+r}, v{16+r}')
    for r in range(4): a(f'v_permlane32_swap_b32 v{16+r}, v{20+r}')
    padd(16, 20, 4)
    for r in range(4): a(f'v_min_u32 v{16+r}, -2, v{16+r}')
    a(f's_mov_b64 exec, {sLO32}')
    a(f'buffer_store_dwordx4 v[16:19], v{st+13}, {WS}, {sYB} offen sc1')
    if stamps:
        a('s_mov_b64 exec, -1\ns_waitcnt lgkmcnt(0)')
        stamp('pub')
        a('s_branch L_fin')
    else:
        a('s_endpgm')
    a.label('L_cons')
    a(f'''
    s_cmp_eq_u32 s97, 0
    s_cbranch_scc1 L_fin
    s_mov_b32 {sT1}, {SPIN}
    ''')
    a.label('L_spin3')
    a(f's_mov_b32 {sT0}, s94')
    for i in range(8):
        a(f'buffer_load_dwordx4 {v4(16+4*i)}, v{st+14}, {WS}, {sT0} offen sc1')
        if i < 7: a(f's_add_u32 {sT0}, {sT0}, {8*2560}')
    a('s_waitcnt vmcnt(0)')
    a('v_max3_u32 v15, v16, v17, v18\nv_max3_u32 v14, v19, v20, v21')
    for k, r in enumerate(range(22, 48, 2)): a(f'v_max3_u32 v{14+(k&1)}, v{14+(k&1)}, v{r}, v{r+1}')
    a(f'''
    v_max_u32 v15, v15, v14
    v_cmp_eq_u32 vcc, -1, v15
    s_cbranch_vccz L_ok3
    s_sub_u32 {sT1}, {sT1}, 1
    s_cbranch_scc1 L_ok3
    s_branch L_spin3
    ''')
    a.label('L_ok3')
    if stamps: a('s_waitcnt lgkmcnt(0)')
    stamp('c1')
    padd(16, 32, 16); padd(16, 24, 8); padd(16, 20, 4)
    xred8(16, 4, 20)
    a(f'''
    v_lshlrev_b32 v20, 16, v{st+2}
    v_and_b32 v21, 0xffff0000, v{st+2}
    v_lshlrev_b32 v22, 16, v{st+3}
    v_and_b32 v23, 0xffff0000, v{st+3}
    ''')
    padd(16, 20, 4)
    a(f'''
    v_cvt_pk_bf16_f32 v16, v16, v17
    v_cvt_pk_bf16_f32 v17, v18, v19
    s_mov_b64 exec, 0xff
    buffer_store_dwordx2 v[16:17], v{st+5}, {OUT}, s96 offen
    s_mov_b64 exec, -1
    ''')
    if DLY:
        a(f'''
        s_waitcnt vmcnt(0)
        s_memrealtime s[84:85]
        s_waitcnt lgkmcnt(0)
        s_sub_u32 s82, s84, s86
        s_mul_i32 s82, s82, {DLY}
        s_min_u32 s82, s82, 100000
        ''')
        a.label('L_dly')
        a(f'''
        s_memrealtime s[84:85]
        s_waitcnt lgkmcnt(0)
        s_sub_u32 s83, s84, s86
        s_cmp_lt_u32 s83, s82
        s_cbranch_scc1 L_dly
        ''')
    a.label('L_fin')
    if stamps:
        a('s_waitcnt vmcnt(0)')
        stamp('end')
        a('s_waitcnt lgkmcnt(0)')
        for k in range(8): a(f'v_mov_b32 v{16+k}, s{SREG[k]}')
        a(f'''
        s_lshl_b32 {sT0}, s2, 3
        s_add_u32 {sT0}, {sT0}, {sW_}
        s_lshl_b32 {sT0}, {sT0}, 5
        s_add_u32 {sT0}, {sT0}, {WS_T}
        v_mov_b32 v14, 0
        s_mov_b64 exec, 1
        buffer_store_dwordx4 v[16:19], v14, {WS}, {sT0} offen
        buffer_store_dwordx4 v[20:23], v14, {WS}, {sT0} offen offset:16
        ''')
    a.label('L_end')
    a('s_endpgm')
    a.raw(f'''.section .rodata,"a"
.p2align 6
.amdhsa_kernel {name}
  .amdhsa_next_free_vgpr 256
  .amdhsa_next_free_sgpr 102
  .amdhsa_accum_offset 256
  .amdhsa_group_segment_fixed_size 0
  .amdhsa_kernarg_size 96
  .amdhsa_user_sgpr_count 2
  .amdhsa_user_sgpr_kernarg_segment_ptr 1
  .amdhsa_system_sgpr_workgroup_id_x 1
  .amdhsa_float_denorm_mode_32 3
.end_amdhsa_kernel''')
    return a.text()

if __name__ == '__main__':
    out = sys.argv[1]
    kw = {}
    for x in sys.argv[2:]:
        k, v = x.split('='); kw[k] = int(v)
    open(out, 'w').write(gen(**kw))
```

```python
import sys, struct
from asmdsl import Asm

NAME = 'parallel_sum__sliding_block_cached__geglu_ffn__decode_kernel'
def f32(x): return '0x%08x' % struct.unpack('<I', struct.pack('<f', x))[0]
def lanemask(fn):
    m = 0
    for l in range(64):
        if fn(l & 15, l >> 4): m |= 1 << l
    return m

HEADER = open('parallel_sum__sliding_block_cached__geglu_ffn__decode.s.ref').read().split('; Override')[0]

WS_Y  = 0
WS_S  = 0x100000
WS_E  = 0x108000
WS_F  = 0x109000
WS_G  = 0x10A000
WS_P  = 0x110000
WS_T  = 0x300000
WS_SZ = 0x400000
L_PART = 0
L_YP   = 16384
L_DUM  = 49152
L_Q    = 53248
L_HID  = 53760
L_CNT  = 53888
L_X    = 54016
L_STG  = 59392
BIG = 0x40000000
L2E = 1.4426950408889634
POL = {0: '', 1: 'nt', 2: 'sc0 nt', 3: 'sc1 nt', 4: 'sc0', 5: 'sc1'}

def gen(KU=3, KP0=9, T=5, TV=6, TVE=12, VE=30, RV=12, ILV=1, XBEG=4, XEND=14, SLI=33, GST=6, PRIO=1, SLP=8, KPOLL=26, W0N=8, ONEF=1, WPOL=0, SPOL=0, KVPOL=1, PPOL=0, DLY=0, ROT=1,
        NS=12, SEND=44, KCLR=18, EXP=0, stamps=0, name=NAME):
    a = Asm()
    SPIN = (1 << 16) if EXP == 0 else 0
    LDS_SZ = L_STG + 8 * NS * 1024
    assert LDS_SZ <= 163840
    SREG = [80, 82, 84, 86, 56, 58, 60, 62]
    SETS = {1: ['start', 'barA', 'sig', 'kiss', 'barB', 'smax', 'vend', 'end'],
            2: ['start', 'bar0', 'ln', 'barA', 'sig', 'poll', 'qrdy', 'end'],
            3: ['start', 'vend', 'barC', 'mm', 'barD', 'pub', 'c1', 'end'],
            5: ['start', 'ki12', 'ki18', 'ki24', 'ki30', 'ki36', 'ki42', 'ki47'],
            6: ['start', 'ki47', 'vc0', 'vc12', 'vc24', 'vc36', 'vc42', 'vc47'],
            4: ['start', 'karg', 'iss1', 'iss2', 'pre0', 'bar0', 'barA', 'end']}
    def stamp(nm):
        if stamps and nm in SETS[stamps]:
            r = SREG[SETS[stamps].index(nm)]
            a(f's_memrealtime s[{r}:{r+1}]')
    a.raw(HEADER.rstrip())
    a.raw(f'; @launch grid=(256,1,1) block=(512,1,1) lds={LDS_SZ}')
    a.raw('.amdgcn_target "amdgcn-amd-amdhsa--gfx950"\n.text\n.globl %s\n.p2align 8\n.type %s,@function\n%s:' % (name, name, name))
    sW_, sH, sB, sS, sJ, sXCD, sP, sIDX = 's3', 's4', 's5', 's6', 's7', 's68', 's69', 's70'
    K, V, W, WO, WD, X, WS, OUT = 's[8:11]', 's[12:15]', 's[16:19]', 's[20:23]', 's[24:27]', 's[28:31]', 's[32:35]', 's[36:39]'
    sWO0, sWO1, sWDB, sSTG = 's40', 's41', 's42', 's43'
    sKV, sKV2, sKV0 = 's71', 's72', 's73'
    sT0, sT1, sT2, sT3 = 's74', 's75', 's76', 's77'
    sLO32 = 's[78:79]'
    sM, sSOWN, sYB, sSB = 's88', 's89', 's90', 's91'
    TAG = 's[100:101]'
    KB = 64
    WDT, WOT = 12, 17
    def kt(i): return f'v[{KB+4*i}:{KB+4*i+3}]'
    def v4(r): return f'v[{r}:{r+3}]'
    def srd(d, p, n):
        a(f's_mov_b32 s{d}, s{p}\ns_and_b32 s{d+1}, s{p+1}, 0xffff\ns_mov_b32 s{d+2}, {n}\ns_mov_b32 s{d+3}, 0x20000')
    def rowred(op, r, steps=(8, 4, 2, 1)):
        for s_ in steps: a(f'{op}_dpp v{r}, v{r}, v{r} row_ror:{s_} row_mask:0xf bank_mask:0xf')
    gstep = 6144 * 8 if ILV else 6144
    def grp(g):
        if ROT:
            a(f's_add_u32 {sKV}, {sJ}, {g}\ns_and_b32 {sKV}, {sKV}, 7\ns_mul_i32 {sKV}, {sKV}, {gstep}\ns_add_u32 {sKV}, {sKV}, {sKV0}')
        else:
            a(f's_mov_b32 {sKV}, {sKV0}' if g == 0 else f's_add_u32 {sKV}, {sKV}, {gstep}')
    kissued = [0]
    def kload():
        i = kissued[0]; g, e = divmod(i, 6)
        stamp(f'ki{i}')
        if e == 0: grp(g)
        if e < 4: a(f'buffer_load_dwordx4 {kt(i)}, v8, {K}, {sKV} offen offset:{384*e} {POL[KVPOL]}', tag=f'k{i}')
        else:     a(f'buffer_load_dwordx4 {kt(i)}, v9, {K}, {sKV} offen offset:{768*(e-4)} {POL[KVPOL]}', tag=f'k{i}')
        kissued[0] += 1

    a(f'''
    s_cmp_ge_u32 s2, 256
    s_cbranch_scc1 L_end
    s_load_dwordx16 s[44:59], s[0:1], 0
    s_load_dwordx8 s[60:67], s[0:1], 64''')
    stamp('start')
    if DLY: a('s_memrealtime s[86:87]')
    if PRIO: a('s_setprio 3')
    a(f'''
    v_lshrrev_b32 v14, 6, v0
    v_and_b32 v1, 63, v0
    v_readfirstlane_b32 {sW_}, v14
    v_and_b32 v2, 15, v1
    v_lshrrev_b32 v3, 4, v1
    s_and_b32 {sXCD}, s2, 7
    s_lshr_b32 {sJ}, s2, 3
    s_lshr_b32 {sT0}, {sJ}, 3
    s_lshl_b32 {sH}, {sXCD}, 2
    s_add_u32 {sH}, {sH}, {sT0}
    s_and_b32 {sT1}, {sJ}, 7
    s_lshr_b32 {sB}, {sT1}, 1
    s_and_b32 {sS}, {sT1}, 1
    s_lshl_b32 {sT0}, {sB}, 5
    s_add_u32 {sSB}, {sT0}, {sH}       ; bh
    s_mul_i32 {sKV0}, {sSB}, 3145728
    s_mul_i32 {sT2}, {sS}, 393216
    s_add_u32 {sKV0}, {sKV0}, {sT2}
    s_add_u32 {sKV0}, {sKV0}, {6144*384}
    s_mul_i32 {sT2}, {sW_}, {6144 if ILV else 49152}
    s_add_u32 {sKV0}, {sKV0}, {sT2}
    v_lshrrev_b32 v20, 2, v2
    v_and_b32 v21, 3, v2
    v_lshlrev_b32 v21, 4, v21
    v_mul_u32_u24 v9, 1536, v20
    v_add_u32 v9, v9, v21
    v_lshl_add_u32 v8, v3, 6, v9       ; vkx = 1536(n>>2)+16(n&3)+64g
    v_lshlrev_b32 v20, 4, v1
    s_lshl_b32 {sT0}, {sW_}, 10
    s_add_u32 m0, {sT0}, {L_X}
    s_mov_b32 s10, 402653184
    s_mov_b32 s11, 0x20000
    s_movk_i32 s30, 5120
    s_mov_b32 s31, 0x20000
    s_waitcnt lgkmcnt(0)
    ''')
    stamp('karg')
    a(f'''
    s_mov_b32 s28, s44
    s_and_b32 s29, s45, 0xffff
    s_mov_b32 s8, s46
    s_and_b32 s9, s47, 0xffff
    s_cmp_ge_u32 {sW_}, 5
    s_cbranch_scc1 L_nox
    ''')
    a.role = 'x'
    a(f'buffer_load_dwordx4 v20, {X}, {sT0} offen lds', tag='x')
    a.role = None
    a.label('L_nox')
    assert KU <= 4
    for i in range(KU): kload()
    stamp('iss1')
    a(f's_add_u32 s100, s66, {WS_E}\ns_addc_u32 s101, s67, 0\ns_load_dwordx2 {TAG}, {TAG}, 0')
    a(f'''
    s_mul_i32 s97, {sT1}, 80
    s_lshl_b32 {sT2}, {sW_}, 4
    s_add_u32 s97, s97, {sT2}
    s_and_b32 {sT3}, {sJ}, 15
    s_mul_i32 {sT3}, {sT3}, 40
    s_add_u32 {sT3}, {sT3}, {sT2}
    s_sub_u32 {sT3}, {sT3}, 80
    s_mul_i32 s98, {sH}, 384
    s_mul_i32 {sT2}, {sXCD}, 384
    s_movk_i32 s96, 3072
    s_cmp_lt_u32 {sJ}, 16
    s_cselect_b32 s16, s56, s58
    s_cselect_b32 s17, s57, s59
    s_mov_b32 s18, 1966080
    s_cmp_lt_u32 {sW_}, 5
    s_cselect_b32 s96, 12288, s96
    s_cselect_b32 s97, s97, {sT3}
    s_cselect_b32 s98, s98, {sT2}
    s_cselect_b32 s16, s50, s16
    s_cselect_b32 s17, s51, s17
    s_cselect_b32 s18, 7864320, s18
    s_and_b32 s17, s17, 0xffff
    s_mov_b32 s19, 0x20000
    s_mul_i32 s92, s97, s96
    s_add_u32 s92, s92, s98            ; so0
    s_lshl_b32 {sT2}, s96, 3
    s_add_u32 s93, s92, {sT2}          ; so1
    s_cmp_eq_u32 {sW_}, 7
    s_cselect_b32 s99, {BIG}, 0
    s_add_u32 s93, s93, s99
    s_add_u32 s94, s92, s96
    s_add_u32 s95, s93, s96
    v_lshrrev_b32 v14, 3, v2
    v_mul_lo_u32 v20, v14, s99
    v_lshl_add_u32 v14, v14, 2, v3     ; g+4*(n>>3)
    v_and_b32 v15, 7, v2
    v_lshlrev_b32 v15, 4, v15          ; 16*(n&7)
    s_lshl_b32 {sT2}, s96, 1
    v_mul_lo_u32 v16, v3, {sT2}
    v_lshl_add_u32 v16, v2, 4, v16
    v_mul_lo_u32 v17, v14, {sT2}
    v_add3_u32 v17, v17, v15, v20
    ''')
    if EXP & 128: a(f'v_mov_b32 v16, {BIG}\nv_mov_b32 v17, {BIG}')
    for i in range(2):
        a(f'buffer_load_dwordx4 {v4(112+12*i)}, v16, {W}, s{92+2*i} offen {POL[PPOL]}', tag=f'w{i}')
        a(f'buffer_load_dwordx4 {v4(116+12*i)}, v16, {W}, s{93+2*i} offen {POL[PPOL]}', tag=f'w{i}')
        a(f'buffer_load_dwordx4 {v4(120+12*i)}, v17, {W}, s{92+2*i} offen offset:256 {POL[PPOL]}', tag=f'w{i}')
    stamp('iss2')
    if PRIO: a('s_setprio 0')
    def kmore(frac):
        while kissued[0] < KU + int((KP0 - KU) * frac + 0.5): kload()
    srd(32, 66, WS_SZ); srd(12, 48, 402653184); srd(20, 52, 7864320); srd(24, 60, 1966080); srd(36, 62, 5120)
    a(f'''
    s_lshl_b32 {sP}, {sH}, 1
    s_add_u32 {sP}, {sP}, {sS}
    s_lshl_b32 {sIDX}, {sXCD}, 5
    s_add_u32 {sIDX}, {sIDX}, {sJ}
    s_mov_b32 s78, -1
    s_mov_b32 s79, 0
    s_lshl_b32 {sT0}, {sB}, 6
    s_add_u32 {sT0}, {sT0}, {sP}
    s_mul_i32 {sYB}, {sT0}, 2560
    s_lshl_b32 {sSB}, {sSB}, 8
    s_add_u32 {sSB}, {sSB}, {WS_S}
    s_lshl_b32 {sT2}, {sS}, 3
    s_add_u32 {sT2}, {sT2}, {sW_}
    s_lshl_b32 {sT2}, {sT2}, 4
    s_add_u32 {sSOWN}, {sSB}, {sT2}
    s_mul_i32 {sWDB}, {sP}, 24
    s_mul_i32 {sT0}, {sW_}, 3
    s_add_u32 {sWDB}, {sWDB}, {sT0}
    s_mul_i32 {sWDB}, {sWDB}, 1280
    s_mul_i32 {sWO0}, {sH}, 192
    s_mul_i32 {sT0}, {sW_}, 24
    s_add_u32 {sWO0}, {sWO0}, {sT0}
    s_mul_i32 {sWO0}, {sWO0}, 1280
    s_add_u32 {sWO1}, {sWO0}, 3840
    s_mul_i32 {sSTG}, {sW_}, {NS*1024}
    s_add_u32 {sSTG}, {sSTG}, {L_STG}
    v_lshrrev_b32 v22, 1, v3
    v_mul_u32_u24 v21, 384, v22
    v_add_u32 v9, v9, v21
    v_and_b32 v22, 1, v3
    v_lshlrev_b32 v22, 6, v22
    v_add3_u32 v9, v9, v22, 64
    v_add_u32 v9, 192, v9              ; vky
    v_mul_u32_u24 v18, 1280, v3
    v_lshl_add_u32 v18, v2, 4, v18     ; 1280g+16n
    s_lshl_b32 s97, s97, 1
    v_lshl_add_u32 v19, v14, 2, s97
    v_min_u32 v19, 1276, v19
    v_and_b32 v20, 1, v2
    v_cmp_eq_u32 vcc, 1, v20
    v_mov_b32 v21, 0xffff
    v_mov_b32 v22, 0xffff0000
    v_cndmask_b32 v21, v21, v22, vcc
    v_bfe_u32 v20, v2, 1, 2
    ''')
    for r in range(4):
        a(f'v_cmp_eq_u32 vcc, {r}, v20\nv_cndmask_b32 v{4+r}, 0, v21, vcc')
    a(f'''
    v_mul_u32_u24 v10, 384, v3
    v_lshrrev_b32 v20, 3, v2
    v_mul_u32_u24 v11, 3072, v20
    v_add3_u32 v11, v11, v10, v15
    v_add_u32 v11, 256, v11            ; vvy = (g+8*(n>>3))*384+256+16*(n&7)
    v_lshl_add_u32 v10, v2, 4, v10     ; vvx = g*384+16n
    v_mul_u32_u24 v12, 7680, v3
    v_lshl_add_u32 v12, v2, 4, v12     ; vwo = 6g*1280+16n
    v_mov_b32 v22, {BIG}
    v_cmp_eq_u32 vcc, 3, v3
    v_cndmask_b32 v13, v18, v22, vcc   ; vwd = g*1280+16n  (g==3 -> out of range)
    v_lshrrev_b32 v20, 1, v3
    s_lshl_b32 {sT0}, {sW_}, 1
    v_add_u32 v21, {sT0}, v20
    v_mul_u32_u24 v21, 3072, v21
    v_and_b32 v22, 1, v3
    v_lshlrev_b32 v22, 4, v22
    v_add_u32 v21, v21, v22            ; blk*3072 + 16*(g&1)
    v_lshl_add_u32 v22, v2, 5, v21     ; + 32 n
    v_lshl_add_u32 v23, v15, 1, v21
    v_add_u32 v23, 512, v23            ; + 512 + 32*(n&7)
    v_lshrrev_b32 v21, 3, v2
    v_cmp_eq_u32 vcc, v21, v20
    v_lshlrev_b32 v21, 4, v1
    v_add_u32 v21, {L_DUM}, v21
    v_cndmask_b32 v23, v21, v23, vcc
    v_mov_b32 v20, {L_CNT}
    v_mov_b32 v21, 0
    ds_write_b32 v20, v21
    ds_write_b32 v20, v21 offset:4
    ds_write_b32 v20, v21 offset:8
    ''')
    if EXP & 64: a(f'v_mov_b32 v12, {BIG}\nv_mov_b32 v13, {BIG}')
    stamp('pre0')
    a.role = 'x'; a.wait_vm('x'); a.role = None
    a('s_barrier')
    stamp('bar0')
    for i in range(5): a(f'ds_read_b128 {v4(136+4*i)}, v18 offset:{L_X+256*i}')
    for be in range(4): a(f'ds_read_b32 v{156+be}, v19 offset:{L_X+1280*be}')
    kmore(1/6)
    a(f'''
    s_waitcnt lgkmcnt(0)
    s_mul_i32 s100, s100, 0x9E3779B1
    s_add_u32 s100, s100, 0x7F4A7C15
    s_mul_i32 s101, s101, 0x85EBCA69
    s_add_u32 s101, s101, 0xC2B2AE35
    ''')
    U = 160
    for i in range(20):
        a(f'v_lshlrev_b32 v{U+2*i}, 16, v{136+i}\nv_and_b32 v{U+2*i+1}, 0xffff0000, v{136+i}')
    a(f'v_pk_add_f32 v[248:249], v[{U}:{U+1}], v[{U+2}:{U+3}]\nv_pk_add_f32 v[250:251], v[{U+4}:{U+5}], v[{U+6}:{U+7}]')
    for i in range(8, 40, 2):
        d = 248 + (i & 2)
        a(f'v_pk_add_f32 v[{d}:{d+1}], v[{d}:{d+1}], v[{U+i}:{U+i+1}]')
    a('v_pk_add_f32 v[248:249], v[248:249], v[250:251]\nv_add_f32 v248, v248, v249')
    rowred('v_add_f32', 248)
    a(f'v_mul_f32 v252, {f32(-1/640)}, v248')
    kmore(2/6)
    for i in range(0, 40, 2): a(f'v_pk_add_f32 v[{U+i}:{U+i+1}], v[{U+i}:{U+i+1}], v[252:253] op_sel_hi:[1,0]')
    a(f'v_pk_mul_f32 v[248:249], v[{U}:{U+1}], v[{U}:{U+1}]\nv_pk_mul_f32 v[250:251], v[{U+2}:{U+3}], v[{U+2}:{U+3}]')
    for i in range(4, 40, 2):
        d = 248 + (i & 2)
        a(f'v_pk_fma_f32 v[{d}:{d+1}], v[{U+i}:{U+i+1}], v[{U+i}:{U+i+1}], v[{d}:{d+1}]')
    a('v_pk_add_f32 v[248:249], v[248:249], v[250:251]\nv_add_f32 v248, v248, v249')
    rowred('v_add_f32', 248)
    a(f'''
    v_mul_f32 v248, {f32(1/640)}, v248
    v_cvt_pk_bf16_f32 v249, v252, v248
    v_lshlrev_b32 v252, 16, v249
    v_and_b32 v248, 0xffff0000, v249
    v_add_f32 v248, {f32(1e-5)}, v248
    v_cvt_pk_bf16_f32 v248, v248, v248
    v_and_b32 v248, 0xffff0000, v248
    v_sqrt_f32 v248, v248
    v_cvt_pk_bf16_f32 v248, v248, v248
    v_and_b32 v248, 0xffff0000, v248
    v_rcp_f32 v248, v248
    ''')
    for be in range(4): a(f'v_readlane_b32 s{44+be}, v252, {16*be}')
    for be in range(4): a(f'v_readlane_b32 s{48+be}, v248, {16*be}')
    kmore(3/6)
    AO = 160
    for be in range(4):
        a(f'''
        v_lshlrev_b32 v248, 16, v{156+be}
        v_and_b32 v249, 0xffff0000, v{156+be}
        v_add_f32 v248, s{44+be}, v248
        v_add_f32 v249, s{44+be}, v249
        v_cvt_pk_bf16_f32 v250, v248, v249
        v_lshlrev_b32 v248, 16, v250
        v_and_b32 v249, 0xffff0000, v250
        v_mul_f32 v248, s{48+be}, v248
        v_mul_f32 v249, s{48+be}, v249
        v_cvt_pk_bf16_f32 v248, v248, v248
        v_cvt_pk_bf16_f32 v249, v249, v249
        ''')
        for i in range(2):
            for r in range(4):
                a(f'v_and_b32 v{AO+16*i+4*be+r}, v{248+i}, v{4+r}')
    ACC = 200
    stamp('ln')
    kmore(4/6)
    for i in range(2):
        a.wait_vm(f'w{i}')
        for be in range(4):
            for e in range(3):
                d = v4(ACC + 12*be + 4*e)
                a(f'v_mfma_f32_16x16x32_bf16 {d}, {v4(AO+16*i+4*be)}, {v4(112+12*i+4*e)}, {0 if i == 0 else d}')
    stamp('wland')
    kmore(5/6)
    for be in range(4):
        d1, d2, d3 = ACC + 12*be, ACC + 12*be + 4, ACC + 12*be + 8
        for r in range(4):
            a(f'v_cndmask_b32 v{d1+r}, v{d2+r}, v{d1+r}, {sLO32}')
        a(f'ds_write_b128 v22, {v4(d1)} offset:{768*be}')
        a(f'ds_write_b128 v23, {v4(d3)} offset:{768*be}')
    kmore(1)
    a('s_waitcnt lgkmcnt(0)\ns_barrier')
    stamp('barA')
    a(f'''
    s_cmp_ge_u32 {sW_}, 6
    s_cbranch_scc1 L_nopub
    s_cmp_lt_u32 {sW_}, 3
    s_cselect_b32 {sT0}, 0, 27648
    v_lshlrev_b32 v14, 4, v0
    v_add_u32 v15, {sT0}, v14
    ''')
    for u in range(6): a(f'ds_read_b128 {v4(16+4*u)}, v15 offset:{3072*u}')
    a(f's_cbranch_scc0 L_six')
    for u in range(6, 10): a(f'ds_read_b128 {v4(16+4*u)}, v15 offset:{3072*u}')
    a('s_waitcnt lgkmcnt(0)')
    def padd(d, s_, n):
        for r in range(0, n, 2): a(f'v_pk_add_f32 v[{d+r}:{d+r+1}], v[{d+r}:{d+r+1}], v[{s_+r}:{s_+r+1}]')
    padd(16, 40, 16)
    a.label('L_six')
    a('s_waitcnt lgkmcnt(0)')
    padd(16, 28, 12); padd(16, 20, 4); padd(16, 24, 4)
    a(f's_mul_i32 {sT0}, {sIDX}, 6144\ns_add_u32 {sT0}, {sT0}, {WS_P}')
    a.role = 'pub'
    if EXP & 8: a(f'v_mov_b32 v14, {BIG}')
    a(f'buffer_store_dwordx4 v[16:19], v14, {WS}, {sT0} offen sc1', tag='pub')
    a.role = None
    a.label('L_nopub')
    wotiles = [(t, c) for t in range(6) for c in range(5)]
    kseq = ['c'] if ONEF else []
    si = 0
    for i in range(KP0, 48):
        kseq.append('k')
        if i == KCLR and not ONEF: kseq.append('c')
        while si < NS and (si + 1) * (SEND - KP0) <= (i + 1 - KP0) * NS:
            kseq.append('s'); si += 1
    assert si == NS
    kp = [0]; sissued = [0]
    def kstep(paced):
        op = kseq[kp[0]]; kp[0] += 1
        if op == 'c':
            a(f'''
            v_and_b32 v24, 31, v1
            v_lshlrev_b32 v24, 4, v24
            v_mov_b32 v25, {BIG}
            v_cndmask_b32 v24, v25, v24, {sLO32}
            s_lshl_b32 {sT0}, {sW_}, 9
            s_add_u32 {sT0}, {sT0}, {sYB}
            s_cmp_ge_u32 {sW_}, {5 if not (EXP & 16) else 0}
            s_cselect_b32 {sT0}, {BIG}, {sT0}
            v_mov_b32 v28, -1
            v_mov_b32 v29, -1
            v_mov_b32 v30, -1
            v_mov_b32 v31, -1
            ''')
        if paced: a(f's_waitcnt vmcnt({T-1})')
        if op == 'k': kload()
        elif op == 'c': a(f'buffer_store_dwordx4 v[28:31], v24, {WS}, {sT0} offen sc1', tag='clr')
        else:
            n = sissued[0]; t, c = wotiles[n]; imm = 1280*(t % 3) + 256*c
            a(f's_add_u32 m0, {sSTG}, {1024*n - imm}' if 1024*n >= imm else f's_sub_u32 m0, {sSTG}, {imm - 1024*n}')
            a(f'buffer_load_dwordx4 v12, {WO}, {sWO0 if t < 3 else sWO1} offen offset:{imm} {POL[SPOL]} lds', tag='stg')
            sissued[0] += 1
    def signal(off, base, lab):
        a(f'''
        v_mov_b32 v14, {L_CNT}
        v_mov_b32 v15, 1
        s_mov_b64 exec, 1
        ds_add_rtn_u32 v20, v14, v15 offset:{off}
        s_waitcnt lgkmcnt(0)
        v_readfirstlane_b32 {sT0}, v20
        s_cmp_eq_u32 {sT0}, 7
        s_cbranch_scc0 {lab}
        s_lshl_b32 {sT0}, {sIDX}, 3
        s_add_u32 {sT0}, {sT0}, {base}
        v_mov_b32 v20, 0
        v_mov_b32 v14, s100
        v_mov_b32 v15, s101
        ''')
        a(f'buffer_store_dwordx2 v[14:15], v20, {WS}, {sT0} offen sc1'); a.vm.pop()
        a.label(lab)
        a('s_mov_b64 exec, -1')
    for _ in range(T): kstep(True)
    if ONEF: a.wait_vm('clr')
    else:
        a.role = 'pub'; a.wait_vm('pub'); a.role = None
    signal(0, WS_F, 'L_nosig')
    stamp('sig')
    while kissued[0] < KPOLL: kstep(True)
    assert KCLR < KPOLL
    a(f's_cmp_eq_u32 {sW_}, 0\ns_cbranch_scc1 L_w0')
    fork = (list(a.vm), kissued[0], kp[0], sissued[0])
    while kp[0] < len(kseq): kstep(True)
    stamp('kiss'); stamp('poll'); stamp('qrdy')
    a('s_branch L_join')
    vm_join = list(a.vm)
    a.vm, kissued[0], kp[0], sissued[0] = fork
    a.label('L_w0')
    a(f'''
    v_and_b32 v60, 31, v1
    v_lshlrev_b32 v60, 3, v60
    s_lshl_b32 {sT2}, {sXCD}, 8
    s_add_u32 {sT2}, {sT2}, {WS_F}
    s_mov_b32 {sT1}, {SPIN}
    ''')
    if EXP & 1: a(f'v_mov_b32 v60, {BIG}')
    a(f'buffer_load_dwordx2 v[62:63], v60, {WS}, {sT2} offen sc1', tag='poll')
    for _ in range(T - 1): kstep(True)
    a.wait_vm('poll')
    a.label('L_spin1')
    a(f'''
    v_cmp_ne_u64 vcc, {TAG}, v[62:63]
    s_cbranch_vccz L_ok1
    s_sub_u32 {sT1}, {sT1}, 1
    s_cbranch_scc1 L_ok1
    s_sleep {SLP}
    buffer_load_dwordx2 v[62:63], v60, {WS}, {sT2} offen sc1
    s_waitcnt vmcnt(0)
    s_branch L_spin1
    ''')
    a.vm.pop()
    a.label('L_ok1')
    stamp('poll')
    a(f'''
    s_mul_i32 {sT0}, {sH}, {8*6144}
    s_mul_i32 {sT2}, {sB}, 768
    s_add_u32 {sT0}, {sT0}, {sT2}
    s_add_u32 {sT0}, {sT0}, {WS_P}
    v_lshlrev_b32 v14, 4, v1
    v_mov_b32 v61, {BIG}
    v_cmp_gt_u32 vcc, 48, v1
    v_cndmask_b32 v14, v61, v14, vcc
    v_and_b32 v62, 7, v1
    v_lshrrev_b32 v15, 3, v1
    v_mul_u32_u24 v15, 6144, v15
    v_lshl_add_u32 v15, v62, 4, v15
    v_cmp_gt_u32 vcc, 6, v62
    v_cndmask_b32 v15, v61, v15, vcc
    ''')
    if EXP & 2: a(f'v_mov_b32 v14, {BIG}')
    if EXP & 4: a(f'v_mov_b32 v15, {BIG}')
    for t in range(8):
        a(f'buffer_load_dwordx4 {v4(16+4*t)}, v14, {WS}, {sT0} offen sc1', tag='gq')
        if t < 7: a(f's_add_u32 {sT0}, {sT0}, 6144')
    a(f'''
    s_mul_i32 {sT0}, {sXCD}, {32*6144}
    s_add_u32 {sT0}, {sT0}, {sT2}
    s_add_u32 {sT0}, {sT0}, {WS_P+3072}
    s_and_b32 {sT3}, {sP}, 7
    s_mul_i32 {sT3}, {sT3}, 96
    s_add_u32 {sT0}, {sT0}, {sT3}
    ''')
    for t in range(4):
        a(f'buffer_load_dwordx4 {v4(48+4*t)}, v15, {WS}, {sT0} offen sc1', tag='gf')
        if t < 3: a(f's_add_u32 {sT0}, {sT0}, {8*6144}')
    for _ in range(W0N): kstep(False)
    a.wait_vm('gq')
    padd(16, 32, 16); padd(16, 24, 8); padd(16, 20, 4)
    a(f'''
    v_cvt_pk_bf16_f32 v16, v16, v17
    v_cvt_pk_bf16_f32 v17, v18, v19
    v_lshlrev_b32 v14, 3, v1
    ds_write_b64 v14, v[16:17] offset:{L_Q}
    ''')
    a.wait_vm('gf')
    padd(48, 52, 4)
    for r in range(0, 4, 2): a(f'v_pk_add_f32 v[{52+r}:{53+r}], v[{56+r}:{57+r}], v[{60+r}:{61+r}]')
    def xred8(base, n, tmp):
        for r in range(n): a(f'v_add_f32_dpp v{base+r}, v{base+r}, v{base+r} row_ror:8 row_mask:0xf bank_mask:0xf')
        for sw in ('v_permlane16_swap_b32', 'v_permlane32_swap_b32'):
            for r in range(n): a(f'v_mov_b32 v{tmp+r}, v{base+r}')
            for r in range(n): a(f'{sw} v{base+r}, v{tmp+r}')
            padd(base, tmp, n)
    xred8(48, 8, 24)
    for r in range(4): a(f'v_cvt_pk_bf16_f32 v{24+r}, v{48+r}, v{52+r}')
    for r in range(4): a(f'v_lshlrev_b32 v{48+r}, 16, v{24+r}\nv_and_b32 v{52+r}, 0xffff0000, v{24+r}')
    for r in range(4): a(f'v_mul_f32 v{24+r}, v{48+r}, v{48+r}')
    for r in range(4): a(f'v_mul_f32 v{24+r}, {f32(0.044715)}, v{24+r}')
    for r in range(4): a(f'v_fma_f32 v{24+r}, v{24+r}, v{48+r}, v{48+r}')
    for r in range(4): a(f'v_mul_f32 v{24+r}, {f32(-2*0.7978845608028654*L2E)}, v{24+r}')
    for r in range(4): a(f'v_exp_f32 v{24+r}, v{24+r}')
    for r in range(4): a(f'v_add_f32 v{24+r}, 1.0, v{24+r}')
    for r in range(4): a(f'v_rcp_f32 v{24+r}, v{24+r}')
    for r in range(4): a(f'v_mul_f32 v{24+r}, v{24+r}, v{48+r}')
    for r in range(4): a(f'v_cvt_pk_bf16_f32 v{24+r}, v{24+r}, v{24+r}')
    for r in range(4): a(f'v_and_b32 v{24+r}, 0xffff0000, v{24+r}')
    for r in range(4): a(f'v_mul_f32 v{24+r}, v{24+r}, v{52+r}')
    for r in range(4): a(f'v_cvt_pk_bf16_f32 v{24+r}, v{24+r}, v{24+r}')
    a(f'''
    v_and_b32 v14, 7, v1
    v_lshlrev_b32 v14, 4, v14
    ds_write_b128 v14, v[24:27] offset:{L_HID}
    v_mov_b32 v14, {L_CNT}
    v_mov_b32 v15, 1
    s_waitcnt lgkmcnt(0)
    ds_write_b32 v14, v15 offset:4
    ''')
    stamp('qrdy')
    while kp[0] < len(kseq): kstep(True)
    stamp('kiss')
    a.vm = vm_join
    a.label('L_join')
    if not ONEF:
        a.wait_vm('clr')
        signal(8, WS_G, 'L_nosig2')
    a(f'v_mov_b32 v14, {L_CNT}\ns_mov_b32 {sT1}, {1<<22}')
    a.label('L_spinq')
    a(f'''
    ds_read_b32 v15, v14 offset:4
    s_waitcnt lgkmcnt(0)
    v_readfirstlane_b32 {sT0}, v15
    s_cmp_lg_u32 {sT0}, 0
    s_cbranch_scc1 L_okq
    s_sub_u32 {sT1}, {sT1}, 1
    s_cbranch_scc1 L_okq
    s_sleep 1
    s_branch L_spinq
    ''')
    a.label('L_okq')
    stamp('barB')
    a(f'''
    v_and_b32 v14, 3, v2
    v_lshl_add_u32 v15, v3, 2, v14
    v_lshlrev_b32 v15, 4, v15
    ds_read_b128 v[56:59], v15 offset:{L_Q}
    v_and_b32 v15, 0x70, v15
    ds_read_b128 v[60:63], v15 offset:{L_Q+256}
    ''')
    mX = [lanemask(lambda m, g, u=u: (m >> 2) == u) for u in range(4)]
    mY = [lanemask(lambda m, g, w=w: (m >> 2) == 2*w + (g >> 1)) for w in range(2)]
    for k, m in enumerate(mX + mY):
        a(f's_mov_b32 s{44+2*k}, {hex(m & 0xffffffff)}\ns_mov_b32 s{45+2*k}, {hex(m >> 32)}')
    a('s_waitcnt lgkmcnt(0)')
    for k in range(6):
        src = 56 if k < 4 else 60
        for r in range(4): a(f'v_cndmask_b32 v{32+4*k+r}, 0, v{src+r}, s[{44+2*k}:{45+2*k}]')
    vissued = [0]
    def vreg(i): return kt(i % RV)
    def vload():
        i = vissued[0]; g, e = divmod(i, 6); c, x = divmod(e, 3)
        if e == 0:
            grp(g)
            a(f's_add_u32 {sKV2}, {sKV}, 3072')
        if x == 0:   a(f'buffer_load_dwordx4 {vreg(i)}, v10, {V}, {sKV} offen offset:{1536*c} {POL[KVPOL]}', tag=f'v{i}')
        elif x == 1: a(f'buffer_load_dwordx4 {vreg(i)}, v10, {V}, {sKV2} offen offset:{1536*c} {POL[KVPOL]}', tag=f'v{i}')
        else:        a(f'buffer_load_dwordx4 {vreg(i)}, v11, {V}, {sKV} offen offset:{1536*c} {POL[KVPOL]}', tag=f'v{i}')
        vissued[0] += 1
    assert RV <= 12
    extras = [('wd', c) for c in range(5)] + [('wo', n) for n in range(NS, 30)]
    xiss = [0]
    def xtile(e): return WDT + e[1] if e[0] == 'wd' else WOT + e[1]
    def xload():
        e = extras[xiss[0]]
        if e[0] == 'wd':
            a(f'buffer_load_dwordx4 {kt(xtile(e))}, v13, {WD}, {sWDB} offen offset:{256*e[1]} {POL[WPOL]}', tag='wd')
        else:
            t, c = wotiles[e[1]]
            a(f'buffer_load_dwordx4 {kt(xtile(e))}, v12, {WO}, {sWO0 if t < 3 else sWO1} offen offset:{1280*(t%3)+256*c} {POL[WPOL]}', tag='wo')
        xiss[0] += 1
    SC = 0.07216878364870322
    def score_post(g):
        d = 24 + 4*(g & 1); s_ = 16 + g
        a(f'''
        v_mov_b32_dpp v{s_}, v{d} quad_perm:[0,0,0,0] row_mask:0xf bank_mask:0xf
        v_add_f32_dpp v{s_}, v{d+1}, v{s_} quad_perm:[1,1,1,1] row_mask:0xf bank_mask:0xf
        v_add_f32_dpp v{s_}, v{d+2}, v{s_} quad_perm:[2,2,2,2] row_mask:0xf bank_mask:0xf
        v_add_f32_dpp v{s_}, v{d+3}, v{s_} quad_perm:[3,3,3,3] row_mask:0xf bank_mask:0xf
        v_cvt_pk_bf16_f32 v{s_}, v{s_}, v{s_}
        v_and_b32 v{s_}, 0xffff0000, v{s_}
        v_mul_f32 v{s_}, {f32(SC)}, v{s_}
        v_cvt_pk_bf16_f32 v{s_}, v{s_}, v{s_}
        v_and_b32 v{s_}, 0xffff0000, v{s_}
        ''')
    nx = len(extras)
    span = 48 - XBEG - XEND
    seq = []
    xi = 0
    for i in range(48):
        seq.append('v')
        if i == SLI: seq.append('sl')
        if xi < 5 and i >= XBEG:
            seq.append('x'); xi += 1
        while xi < nx and i >= XBEG and (xi + 1) * span <= (i + 1 - XBEG) * nx:
            seq.append('x'); xi += 1
    assert xi == nx
    sp = [0]
    did_wd = [False]
    SS = KB + 4*47
    st = KB + 4*WDT
    GF = st + 12
    def statload():
        a(f'''
        v_lshlrev_b32 v8, 4, v2
        s_mul_i32 s95, {sP}, 43691
        s_lshr_b32 s95, s95, 17
        s_mul_i32 {sT0}, {sB}, 1280
        s_lshl_b32 {sT1}, s95, 6
        s_add_u32 s96, {sT0}, {sT1}
        s_mul_i32 {sT0}, s95, 3
        s_mov_b32 s97, 1
        s_cmp_lg_u32 {sT0}, {sP}
        s_cselect_b32 s97, 0, s97
        s_cmp_ge_u32 s95, 20
        s_cselect_b32 s97, 0, s97
        s_cmp_lg_u32 {sW_}, 7
        s_cselect_b32 s97, 0, s97
        v_lshlrev_b32 v9, 4, v1
        s_mov_b32 s98, {WS_F if ONEF else WS_G}
        s_cmp_eq_u32 s97, 0
        s_cbranch_scc1 L_nogf
        buffer_load_dwordx4 {v4(GF)}, v9, {WS}, s98 offen sc1
        buffer_load_dwordx4 {v4(GF+4)}, v9, {WS}, s98 offen offset:1024 sc1
        ''')
        a.vm.pop(); a.vm.pop()
        a.label('L_nogf')
        a(f'buffer_load_dwordx4 {v4(SS)}, v8, {WS}, {sSB} offen sc1', tag='sl')
    def pump(lasttag, kfree, vcons):
        while sp[0] < len(seq):
            idx = max(k for k, (t, r) in enumerate(a.vm) if t == lasttag)
            if len(a.vm) - 1 - idx >= (TV if vcons < VE else TVE): break
            op = seq[sp[0]]
            if op == 'v':
                i = vissued[0]
                if i < RV:
                    if i >= kfree: break
                elif i - RV >= vcons: break
                vload()
            elif op == 'x':
                if xtile(extras[xiss[0]]) >= kfree: break
                xload()
            else:
                assert did_wd[0]
                statload()
            sp[0] += 1
    done = [t for (t, r) in a.vm[:len(a.vm) - T]]
    known = max(int(t[1:]) for t in done if t and t[0] == 'k' and t[1:].isdigit())
    a.wait_vm(f'k{known}')
    for g in range(8):
        d = v4(24 + 4*(g & 1))
        for e in range(6):
            i = 6*g + e
            if i > known:
                a.wait_vm(f'k{i}'); known = i
            a(f'v_mfma_f32_16x16x32_bf16 {d}, {v4(32+4*e)}, {kt(i)}, {0 if e == 0 else d}')
            if i == known: pump(f'k{known}', i + 1, 0)
        if 6*g + 5 < known and (g & 1) == 0 and known < 47:
            known += 1
            a.wait_vm(f'k{known}')
            pump(f'k{known}', 6*g + 6, 0)
        if g > 0: score_post(g-1)
    score_post(7)
    if NS:
        a.wait_vm('stg')
        a(f'v_lshlrev_b32 v14, 4, v1\nv_add_u32 v14, {sSTG}, v14')
        for n in range(NS): a(f'ds_read_b128 {kt(WOT+n)}, v14 offset:{1024*n}')
    def allred(op, r, t):
        rowred(op, r, (4, 8))
        a(f'v_mov_b32 v{t}, v{r}\nv_permlane16_swap_b32 v{r}, v{t}\n{op} v{r}, v{r}, v{t}')
        a(f'v_mov_b32 v{t}, v{r}\nv_permlane32_swap_b32 v{r}, v{t}\n{op} v{r}, v{r}, v{t}')
    a('v_max3_f32 v28, v16, v17, v18\nv_max3_f32 v15, v19, v20, v21\nv_max3_f32 v28, v28, v22, v23\nv_max_f32 v28, v28, v15')
    allred('v_max_f32', 28, 15)
    for g in range(8): a(f'v_sub_f32 v{16+g}, v{16+g}, v28')
    for g in range(8): a(f'v_mul_f32 v{16+g}, {f32(L2E)}, v{16+g}')
    for g in range(8): a(f'v_exp_f32 v{16+g}, v{16+g}')
    a('v_add_f32 v30, v16, v17\nv_add_f32 v24, v18, v19\nv_add_f32 v25, v20, v21\nv_add_f32 v26, v22, v23\nv_add_f32 v30, v30, v24\nv_add_f32 v25, v25, v26\nv_add_f32 v30, v30, v25')
    allred('v_add_f32', 30, 24)
    for g in range(8): a(f'v_cvt_pk_bf16_f32 v{16+g}, v{16+g}, v{16+g}')
    a(f'''
    v_mov_b32 v29, s100
    v_mov_b32 v31, s101
    v_mov_b32 v24, 0
    v_readfirstlane_b32 {sM}, v28          ; own m
    s_mov_b64 exec, 1
    ''')
    a(f'buffer_store_dwordx4 v[28:31], v24, {WS}, {sSOWN} offen sc1', tag='stat')
    a('s_mov_b64 exec, -1')
    stamp('smax')
    YA, OA = 44, 32
    a(f'''
    s_mul_i32 {sT0}, {sW_}, 12
    v_lshlrev_b32 v24, 2, v3
    v_add_u32 v24, {sT0}, v24
    v_mov_b32 v25, 124
    v_cmp_eq_u32 vcc, 3, v3
    v_cndmask_b32 v24, v24, v25, vcc
    ds_read_b32 v14, v24 offset:{L_HID}
    s_waitcnt lgkmcnt(0)
    ''')
    for g in range(8):
        for c in range(2):
            A = 24 + 4*c
            if c == 0: a(f'v_mov_b32 v15, v{16+g}\nv_mov_b32_dpp v15, v{16+g} row_shr:4 row_mask:0xf bank_mask:0xa')
            else:      a(f'v_mov_b32 v15, v{16+g}\nv_mov_b32_dpp v15, v{16+g} row_shl:4 row_mask:0xf bank_mask:0x5')
            for r in range(4): a(f'v_and_b32 v{A+r}, v15, v{4+r}')
            for x in range(3):
                i = 6*g + 3*c + x
                d = v4(OA + 4*x)
                a.wait_vm(f'v{i}')
                stamp(f'vc{i}')
                a(f'v_mfma_f32_16x16x32_bf16 {d}, {v4(A)}, {vreg(i)}, {0 if i < 3 else d}')
                pump(f'v{i}', 48, i + 1)
        if g == 2:
            did_wd[0] = True
            assert xiss[0] >= 5
            for r in range(4): a(f'v_and_b32 v{24+r}, v14, v{4+r}')
            a.wait_vm('wd')
            for c in range(5):
                a(f'v_mfma_f32_16x16x32_bf16 {v4(YA+4*c)}, v[24:27], {kt(WDT+c)}, 0')
        if g == GST:
            a(f's_mov_b32 {sT1}, {SPIN}')
            a.wait_vm('sl')
            a.label('L_spin2')
            a(f'''
            v_cmp_ne_u32 vcc, s100, v{SS+1}
            v_cmp_ne_u32 s[44:45], s101, v{SS+3}
            s_or_b64 vcc, vcc, s[44:45]
            s_cbranch_scc0 L_ok2
            s_sub_u32 {sT1}, {sT1}, 1
            s_cbranch_scc1 L_ok2
            s_sleep 4
            buffer_load_dwordx4 {v4(SS)}, v8, {WS}, {sSB} offen sc1
            s_waitcnt vmcnt(0)
            s_branch L_spin2
            ''')
            a.vm.pop()
            a.label('L_ok2')
            a(f'''
            s_cmp_eq_u32 s97, 0
            s_cbranch_scc1 L_ok2b
            s_mov_b32 {sT1}, {SPIN}
            ''')
            a.label('L_spin2b')
            a(f'''
            v_cmp_ne_u64 vcc, {TAG}, v[{GF}:{GF+1}]
            v_cmp_ne_u64 s[44:45], {TAG}, v[{GF+2}:{GF+3}]
            v_cmp_ne_u64 s[46:47], {TAG}, v[{GF+4}:{GF+5}]
            v_cmp_ne_u64 s[48:49], {TAG}, v[{GF+6}:{GF+7}]
            s_or_b64 vcc, vcc, s[44:45]
            s_or_b64 s[46:47], s[46:47], s[48:49]
            s_or_b64 vcc, vcc, s[46:47]
            s_cbranch_scc0 L_ok2c
            s_sub_u32 {sT1}, {sT1}, 1
            s_cbranch_scc1 L_ok2c
            s_sleep {SLP}
            buffer_load_dwordx4 {v4(GF)}, v9, {WS}, s98 offen sc1
            buffer_load_dwordx4 {v4(GF+4)}, v9, {WS}, s98 offen offset:1024 sc1
            s_waitcnt vmcnt(0)
            s_branch L_spin2b
            ''')
            a.vm.pop(); a.vm.pop()
            a.label('L_ok2c')
            a(f'''
            s_cmp_lg_u32 s2, 0
            s_cbranch_scc1 L_ok2b
            s_mov_b32 {sT2}, {WS_E}
            v_mov_b32 v{GF}, s100
            v_mov_b32 v{GF+1}, s101
            s_mov_b64 exec, 1
            buffer_store_dwordx2 v[{GF}:{GF+1}], v9, {WS}, {sT2} offen sc1
            s_mov_b64 exec, -1
            ''')
            a.vm.pop()
            a.label('L_ok2b')
            a(f'v_mov_b32 v{st+6}, v{SS}')
            rowred('v_max_f32', st+6)
            a(f'''
            v_sub_f32 v{st}, v{SS}, v{st+6}
            v_sub_f32 v{st+7}, {sM}, v{st+6}
            v_mul_f32 v{st}, {f32(L2E)}, v{st}
            v_mul_f32 v{st+7}, {f32(L2E)}, v{st+7}
            v_exp_f32 v{st}, v{st}
            v_exp_f32 v{st+7}, v{st+7}
            v_mul_f32 v{st}, v{st}, v{SS+2}
            ''')
            rowred('v_add_f32', st)
            a(f'''
            v_rcp_f32 v{st}, v{st}
            v_mul_f32 v14, v{st}, v{st+7}          ; factor
            v_and_b32 v{st+5}, 7, v1
            v_lshlrev_b32 v{st+5}, 3, v{st+5}
            s_min_u32 {sT0}, s96, 5056
            v_add_u32 v{st+4}, {sT0}, v{st+5}
            ds_read_b64 v[{st+2}:{st+3}], v{st+4} offset:{L_X}
            ''')
            a(f'''
            v_lshrrev_b32 v{st+6}, 1, v3
            s_lshl_b32 {sT0}, {sW_}, 1
            v_add_u32 v{st+7}, {sT0}, v{st+6}
            v_mul_u32_u24 v{st+7}, 784, v{st+7}
            v_and_b32 v{st+8}, 1, v3
            v_lshlrev_b32 v{st+11}, 4, v{st+8}
            v_add_u32 v{st+7}, v{st+7}, v{st+11}
            v_lshl_add_u32 v{st+8}, v2, 5, v{st+7}
            v_and_b32 v{st+9}, 7, v2
            v_lshl_add_u32 v{st+9}, v{st+9}, 5, v{st+7}
            v_add_u32 v{st+9}, 512, v{st+9}
            v_lshrrev_b32 v{st+7}, 3, v2
            v_cmp_eq_u32 vcc, v{st+7}, v{st+6}
            v_lshlrev_b32 v{st+7}, 4, v1
            v_add_u32 v{st+7}, {L_DUM}, v{st+7}
            v_cndmask_b32 v{st+9}, v{st+7}, v{st+9}, vcc
            v_mul_u32_u24 v{st+10}, 784, v2
            v_mul_u32_u24 v{st+7}, 24, v3
            s_mul_i32 {sT0}, {sW_}, 96
            v_add3_u32 v{st+10}, v{st+10}, v{st+7}, {sT0}
            s_mul_i32 {sT0}, {sW_}, 2560
            v_lshl_add_u32 v{st+11}, v2, 5, v{st+11}
            v_add_u32 v{st+11}, {sT0}, v{st+11}
            v_and_b32 v{st+13}, 31, v1
            v_lshlrev_b32 v{st+13}, 4, v{st+13}
            s_lshl_b32 {sT0}, {sW_}, 9
            v_add_u32 v{st+13}, {sT0}, v{st+13}
            v_mul_u32_u24 v{st+12}, 10240, v{st+6}
            v_add_u32 v{st+12}, v{st+12}, v{st+13}
            v_lshrrev_b32 v{st+14}, 3, v1
            v_mul_u32_u24 v{st+14}, 2560, v{st+14}
            v_lshl_add_u32 v{st+14}, v{st+5}, 1, v{st+14}
            s_mul_i32 s94, {sB}, {64*2560}
            s_lshl_b32 {sT0}, s95, 7
            s_add_u32 s94, s94, {sT0}
            ''')
    assert xiss[0] == nx and sp[0] == len(seq)
    stamp('vend')
    for r in range(4): a(f'v_cndmask_b32 v{OA+r}, v{OA+4+r}, v{OA+r}, {sLO32}')
    for r in range(4): a(f'v_mul_f32 v{OA+r}, v{OA+r}, v14')
    a(f'ds_write_b128 v{st+8}, {v4(OA)}')
    for r in range(4): a(f'v_mul_f32 v{OA+8+r}, v{OA+8+r}, v14')
    a(f'ds_write_b128 v{st+9}, {v4(OA+8)}')
    a('s_waitcnt lgkmcnt(0)\ns_barrier')
    stamp('barC')
    for j in range(3): a(f'ds_read_b64 v[{16+2*j}:{17+2*j}], v{st+10} offset:{8*j}')
    a('s_waitcnt lgkmcnt(0)')
    for s_ in (8, 4, 2, 1):
        for r in range(16, 22): a(f'v_add_f32_dpp v{r}, v{r}, v{r} row_ror:{s_} row_mask:0xf bank_mask:0xf')
    for r in range(16, 22): a(f'v_cvt_pk_bf16_f32 v{r}, v{r}, v{r}')
    AT = KB
    for t in range(6):
        for r in range(4): a(f'v_and_b32 v{AT+4*t+r}, v{16+t}, v{4+r}')
        if t >= 1:
            for c in range(5):
                d = v4(YA + 4*c)
                a(f'v_mfma_f32_16x16x32_bf16 {d}, {v4(AT+4*(t-1))}, {kt(WOT+5*(t-1)+c)}, {d}')
    for c in range(5):
        d = v4(YA + 4*c)
        a(f'v_mfma_f32_16x16x32_bf16 {d}, {v4(AT+20)}, {kt(WOT+25+c)}, {d}')
    stamp('mm')
    a(f's_mov_b64 exec, {sLO32}')
    for c in range(5): a(f'ds_write_b128 v{st+11}, {v4(YA+4*c)} offset:{L_YP+512*c}')
    a('s_mov_b64 exec, -1\ns_waitcnt lgkmcnt(0)\ns_barrier')
    stamp('barD'); stamp('pub'); stamp('c1')
    a(f's_cmp_ge_u32 {sW_}, 5\ns_cbranch_scc1 L_cons')
    for u in range(4): a(f'ds_read_b128 {v4(16+4*u)}, v{st+12} offset:{L_YP+2560*u}')
    a('s_waitcnt lgkmcnt(0)')
    padd(16, 24, 8); padd(16, 20, 4)
    for r in range(4): a(f'v_mov_b32 v{20+r}, v{16+r}')
    for r in range(4): a(f'v_permlane32_swap_b32 v{16+r}, v{20+r}')
    padd(16, 20, 4)
    for r in range(4): a(f'v_min_u32 v{16+r}, -2, v{16+r}')
    a(f's_mov_b64 exec, {sLO32}')
    a(f'buffer_store_dwordx4 v[16:19], v{st+13}, {WS}, {sYB} offen sc1')
    if stamps:
        a('s_mov_b64 exec, -1\ns_waitcnt lgkmcnt(0)')
        stamp('pub')
        a('s_branch L_fin')
    else:
        a('s_endpgm')
    a.label('L_cons')
    a(f'''
    s_cmp_eq_u32 s97, 0
    s_cbranch_scc1 L_fin
    s_mov_b32 {sT1}, {SPIN}
    ''')
    a.label('L_spin3')
    a(f's_mov_b32 {sT0}, s94')
    for i in range(8):
        a(f'buffer_load_dwordx4 {v4(16+4*i)}, v{st+14}, {WS}, {sT0} offen sc1')
        if i < 7: a(f's_add_u32 {sT0}, {sT0}, {8*2560}')
    a('s_waitcnt vmcnt(0)')
    a('v_max3_u32 v15, v16, v17, v18\nv_max3_u32 v14, v19, v20, v21')
    for k, r in enumerate(range(22, 48, 2)): a(f'v_max3_u32 v{14+(k&1)}, v{14+(k&1)}, v{r}, v{r+1}')
    a(f'''
    v_max_u32 v15, v15, v14
    v_cmp_eq_u32 vcc, -1, v15
    s_cbranch_vccz L_ok3
    s_sub_u32 {sT1}, {sT1}, 1
    s_cbranch_scc1 L_ok3
    s_branch L_spin3
    ''')
    a.label('L_ok3')
    if stamps: a('s_waitcnt lgkmcnt(0)')
    stamp('c1')
    padd(16, 32, 16); padd(16, 24, 8); padd(16, 20, 4)
    xred8(16, 4, 20)
    a(f'''
    v_lshlrev_b32 v20, 16, v{st+2}
    v_and_b32 v21, 0xffff0000, v{st+2}
    v_lshlrev_b32 v22, 16, v{st+3}
    v_and_b32 v23, 0xffff0000, v{st+3}
    ''')
    padd(16, 20, 4)
    a(f'''
    v_cvt_pk_bf16_f32 v16, v16, v17
    v_cvt_pk_bf16_f32 v17, v18, v19
    s_mov_b64 exec, 0xff
    buffer_store_dwordx2 v[16:17], v{st+5}, {OUT}, s96 offen
    s_mov_b64 exec, -1
    ''')
    if DLY:
        a(f'''
        s_waitcnt vmcnt(0)
        s_memrealtime s[84:85]
        s_waitcnt lgkmcnt(0)
        s_sub_u32 s82, s84, s86
        s_mul_i32 s82, s82, {DLY}
        s_min_u32 s82, s82, 100000
        ''')
        a.label('L_dly')
        a(f'''
        s_memrealtime s[84:85]
        s_waitcnt lgkmcnt(0)
        s_sub_u32 s83, s84, s86
        s_cmp_lt_u32 s83, s82
        s_cbranch_scc1 L_dly
        ''')
    a.label('L_fin')
    if stamps:
        a('s_waitcnt vmcnt(0)')
        stamp('end')
        a('s_waitcnt lgkmcnt(0)')
        for k in range(8): a(f'v_mov_b32 v{16+k}, s{SREG[k]}')
        a(f'''
        s_lshl_b32 {sT0}, s2, 3
        s_add_u32 {sT0}, {sT0}, {sW_}
        s_lshl_b32 {sT0}, {sT0}, 5
        s_add_u32 {sT0}, {sT0}, {WS_T}
        v_mov_b32 v14, 0
        s_mov_b64 exec, 1
        buffer_store_dwordx4 v[16:19], v14, {WS}, {sT0} offen
        buffer_store_dwordx4 v[20:23], v14, {WS}, {sT0} offen offset:16
        ''')
    a.label('L_end')
    a('s_endpgm')
    a.raw(f'''.section .rodata,"a"
.p2align 6
.amdhsa_kernel {name}
  .amdhsa_next_free_vgpr 256
  .amdhsa_next_free_sgpr 102
  .amdhsa_accum_offset 256
  .amdhsa_group_segment_fixed_size 0
  .amdhsa_kernarg_size 96
  .amdhsa_user_sgpr_count 2
  .amdhsa_user_sgpr_kernarg_segment_ptr 1
  .amdhsa_system_sgpr_workgroup_id_x 1
  .amdhsa_float_denorm_mode_32 3
.end_amdhsa_kernel''')
    return a.text()

if __name__ == '__main__':
    out = sys.argv[1]
    kw = {}
    for x in sys.argv[2:]:
        k, v = x.split('='); kw[k] = int(v)
    open(out, 'w').write(gen(**kw))
```

```python
import sys, struct
from asmdsl import Asm

NAME = 'parallel_sum__sliding_block_cached__geglu_ffn__decode_kernel'
def f32(x): return '0x%08x' % struct.unpack('<I', struct.pack('<f', x))[0]
def lanemask(fn):
    m = 0
    for l in range(64):
        if fn(l & 15, l >> 4): m |= 1 << l
    return m

HEADER = open('parallel_sum__sliding_block_cached__geglu_ffn__decode.s.ref').read().split('; Override')[0]

WS_Y  = 0
WS_S  = 0x100000
WS_E  = 0x108000
WS_F  = 0x109000
WS_G  = 0x10A000
WS_P  = 0x110000
WS_T  = 0x300000
WS_SZ = 0x400000
L_PART = 0
L_DUM  = 14336
L_Q    = 15360
L_HID  = 15872
L_CNT  = 16000
L_X    = 16128
L_STG  = 21504
L_YP   = L_STG
BIG = 0x40000000
L2E = 1.4426950408889634
POL = {0: '', 1: 'nt', 2: 'sc0 nt', 3: 'sc1 nt', 4: 'sc0', 5: 'sc1', 6: 'sc0 sc1', 7: 'sc0 sc1 nt'}

def gen(KU=3, KW=0, KP0=9, XL=4, T=5, TV=6, TVE=12, VE=30, RV=12, ILV=1, XBEG=4, XEND=14, SLI=33, GST=6, PRIO=1, SLP=8, KPOLL=26, W0N=5, WPOL=0, SPOL=0, KVPOL=1, PPOL=0, DLY=0, PSL=0, CM=2, PM=0, YLP=5, YSP=5, YCP=5, ROT=1,
        NS=17, SEND=44, EXP=0, stamps=0, name=NAME):
    a = Asm()
    SPIN = (1 << 16) if EXP == 0 else 0
    LDS_SZ = L_STG + max(8 * NS * 1024, 25600)
    assert LDS_SZ <= 163840
    SREG = [80, 82, 84, 86, 56, 58, 60, 62]
    SETS = {1: ['start', 'barA', 'sig', 'kiss', 'barB', 'smax', 'vend', 'end'],
            2: ['start', 'bar0', 'ln', 'barA', 'sig', 'poll', 'qrdy', 'end'],
            3: ['start', 'vend', 'barC', 'mm', 'barD', 'pub', 'c1', 'end'],
            5: ['start', 'ki12', 'ki18', 'ki24', 'ki30', 'ki36', 'ki42', 'ki47'],
            6: ['start', 'ki47', 'vc0', 'vc12', 'vc24', 'vc36', 'vc42', 'vc47'],
            7: ['start', 'bar0', 'barA', 'ki12', 'ki24', 'ki47', 'vc24', 'vc47'],
            4: ['start', 'karg', 'iss1', 'iss2', 'pre0', 'bar0', 'barA', 'end']}
    def stamp(nm):
        if stamps and nm in SETS[stamps]:
            r = SREG[SETS[stamps].index(nm)]
            a(f's_memrealtime s[{r}:{r+1}]')
    a.raw(HEADER.rstrip())
    a.raw(f'; @launch grid=(256,1,1) block=(512,1,1) lds={LDS_SZ}')
    a.raw('.amdgcn_target "amdgcn-amd-amdhsa--gfx950"\n.text\n.globl %s\n.p2align 8\n.type %s,@function\n%s:' % (name, name, name))
    sW_, sH, sB, sS, sJ, sXCD, sP, sIDX = 's3', 's4', 's5', 's6', 's7', 's68', 's69', 's70'
    K, V, W, WO, WD, X, WS, OUT = 's[8:11]', 's[12:15]', 's[16:19]', 's[20:23]', 's[24:27]', 's[28:31]', 's[32:35]', 's[36:39]'
    sWO0, sWO1, sWDB, sSTG, sWO2, sWO3 = 's40', 's41', 's42', 's43', 's64', 's65'
    sKV, sKV2, sKV0 = 's71', 's72', 's73'
    sT0, sT1, sT2, sT3 = 's74', 's75', 's76', 's77'
    sLO32 = 's[78:79]'
    sM, sSOWN, sYB, sSB = 's88', 's89', 's90', 's91'
    TAG = 's[100:101]'
    KB = 64
    WDT, WOT = 12, 17
    def kt(i): return f'v[{KB+4*i}:{KB+4*i+3}]'
    def v4(r): return f'v[{r}:{r+3}]'
    def srd(d, p, n):
        a(f's_mov_b32 s{d}, s{p}\ns_and_b32 s{d+1}, s{p+1}, 0xffff\ns_mov_b32 s{d+2}, {n}\ns_mov_b32 s{d+3}, 0x20000')
    def rowred(op, r, steps=(8, 4, 2, 1)):
        for s_ in steps: a(f'{op}_dpp v{r}, v{r}, v{r} row_ror:{s_} row_mask:0xf bank_mask:0xf')
    gstep = 6144 * 8 if ILV else 6144
    def grp(g):
        if ROT:
            a(f's_add_u32 {sKV}, {sJ}, {g}\ns_and_b32 {sKV}, {sKV}, 7\ns_mul_i32 {sKV}, {sKV}, {gstep}\ns_add_u32 {sKV}, {sKV}, {sKV0}')
        else:
            a(f's_mov_b32 {sKV}, {sKV0}' if g == 0 else f's_add_u32 {sKV}, {sKV}, {gstep}')
    kissued = [0]
    def kload():
        i = kissued[0]; g, e = divmod(i, 6)
        stamp(f'ki{i}')
        if e == 0: grp(g)
        if e < 4: a(f'buffer_load_dwordx4 {kt(i)}, v8, {K}, {sKV} offen offset:{384*e} {POL[KVPOL]}', tag=f'k{i}')
        else:     a(f'buffer_load_dwordx4 {kt(i)}, v9, {K}, {sKV} offen offset:{768*(e-4)} {POL[KVPOL]}', tag=f'k{i}')
        kissued[0] += 1

    a(f'''
    s_cmp_ge_u32 s2, 256
    s_cbranch_scc1 L_end
    s_load_dwordx16 s[44:59], s[0:1], 0
    s_load_dwordx8 s[60:67], s[0:1], 64''')
    stamp('start')
    if DLY: a('s_memrealtime s[86:87]')
    if PRIO: a('s_setprio 3')
    a(f'''
    v_lshrrev_b32 v14, 6, v0
    v_and_b32 v1, 63, v0
    v_readfirstlane_b32 {sW_}, v14
    v_and_b32 v2, 15, v1
    v_lshrrev_b32 v3, 4, v1
    s_and_b32 {sXCD}, s2, 7
    s_lshr_b32 {sJ}, s2, 3
    s_lshr_b32 {sT0}, {sJ}, 3
    s_lshl_b32 {sH}, {sXCD}, 2
    s_add_u32 {sH}, {sH}, {sT0}
    s_and_b32 {sT1}, {sJ}, 7
    s_lshr_b32 {sB}, {sT1}, 1
    s_and_b32 {sS}, {sT1}, 1
    s_lshl_b32 {sT0}, {sB}, 5
    s_add_u32 {sSB}, {sT0}, {sH}       ; bh
    s_mul_i32 {sKV0}, {sSB}, 3145728
    s_mul_i32 {sT2}, {sS}, 393216
    s_add_u32 {sKV0}, {sKV0}, {sT2}
    s_add_u32 {sKV0}, {sKV0}, {6144*384}
    s_mul_i32 {sT2}, {sW_}, {6144 if ILV else 49152}
    s_add_u32 {sKV0}, {sKV0}, {sT2}
    v_lshrrev_b32 v20, 2, v2
    v_and_b32 v21, 3, v2
    v_lshlrev_b32 v21, 4, v21
    v_mul_u32_u24 v9, 1536, v20
    v_add_u32 v9, v9, v21
    v_lshl_add_u32 v8, v3, 6, v9       ; vkx = 1536(n>>2)+16(n&3)+64g
    v_lshlrev_b32 v20, 4, v1
    s_lshl_b32 {sT0}, {sW_}, 10
    s_add_u32 m0, {sT0}, {L_X}
    s_mov_b32 s10, 402653184
    s_mov_b32 s11, 0x20000
    s_movk_i32 s30, 5120
    s_mov_b32 s31, 0x20000
    s_waitcnt lgkmcnt(0)
    ''')
    stamp('karg')
    a(f'''
    s_mov_b32 s28, s44
    s_and_b32 s29, s45, 0xffff
    s_mov_b32 s8, s46
    s_and_b32 s9, s47, 0xffff
    s_cmp_ge_u32 {sW_}, 5
    s_cbranch_scc1 L_nox
    ''')
    a.role = 'x'
    a(f'buffer_load_dwordx4 v20, {X}, {sT0} offen lds', tag='x')
    a.role = None
    a.label('L_nox')
    assert KU <= 4
    for i in range(KU): kload()
    stamp('iss1')
    a(f's_add_u32 s100, s66, {WS_E}\ns_addc_u32 s101, s67, 0\ns_load_dwordx2 {TAG}, {TAG}, 0')
    a(f'''
    s_mul_i32 {sT2}, {sXCD}, 27
    s_add_u32 {sT2}, {sT2}, {sJ}
    s_mul_i32 s92, {sT2}, 43691
    s_lshr_b32 s92, s92, 17            ; blk
    s_mul_i32 {sT3}, s92, 3
    s_sub_u32 s93, {sT2}, {sT3}        ; split
    s_mul_i32 s97, s93, 224
    s_lshl_b32 {sT2}, {sW_}, 5
    s_add_u32 s97, s97, {sT2}
    s_sub_u32 {sT2}, s92, 48
    s_sub_u32 {sT3}, s92, 60
    s_cmp_lt_u32 s92, 60
    s_cselect_b32 s16, s56, s58
    s_cselect_b32 s17, s57, s59
    s_cselect_b32 s98, {sT2}, {sT3}
    s_movk_i32 s96, 3072
    s_mov_b32 s18, 1966080
    s_cmp_lt_u32 s92, 48
    s_cselect_b32 s16, s50, s16
    s_cselect_b32 s17, s51, s17
    s_cselect_b32 s18, 7864320, s18
    s_cselect_b32 s96, 12288, s96
    s_cselect_b32 s98, s92, s98
    s_and_b32 s17, s17, 0xffff
    s_mov_b32 s19, 0x20000
    s_mul_i32 s94, s97, s96
    s_lshl_b32 s98, s98, 8
    s_add_u32 s94, s94, s98            ; soffset
    s_cmp_eq_u32 {sW_}, 7
    s_cselect_b32 s94, {BIG}, s94
    s_cmp_ge_u32 {sJ}, {27 if not (EXP & 128) else 0}
    s_cselect_b32 s94, {BIG}, s94
    v_mul_lo_u32 v16, v3, s96
    v_lshl_add_u32 v16, v2, 4, v16     ; g*RS+16n
    s_lshl_b32 s96, s96, 2
    v_lshrrev_b32 v22, 1, v3
    v_mul_u32_u24 v21, 384, v22
    v_add_u32 v9, v9, v21
    v_and_b32 v22, 1, v3
    v_lshlrev_b32 v22, 6, v22
    v_add3_u32 v9, v9, v22, 64
    v_add_u32 v9, 192, v9              ; vky
    ''')
    WT = 224
    for t in range(8):
        a(f'buffer_load_dwordx4 {v4(WT+4*t)}, v16, {W}, s94 offen {POL[PPOL]}', tag=f'w{t}')
        if t < 7: a(f's_add_u32 s94, s94, s96')
        if t == 3:
            for _ in range(KW): kload()
    KU = KU + KW
    stamp('iss2')
    if PRIO: a('s_setprio 0')
    def kmore(frac):
        while kissued[0] < KU + int((KP0 - KU) * frac + 0.5): kload()
    srd(32, 66, WS_SZ); srd(12, 48, 402653184); srd(20, 52, 7864320); srd(24, 60, 1966080); srd(36, 62, 5120)
    a(f'''
    s_lshl_b32 {sP}, {sH}, 1
    s_add_u32 {sP}, {sP}, {sS}
    s_lshl_b32 {sIDX}, {sXCD}, 5
    s_add_u32 {sIDX}, {sIDX}, {sJ}
    s_mov_b32 s78, -1
    s_mov_b32 s79, 0
    s_lshl_b32 {sT0}, {sB}, 6
    s_add_u32 {sT0}, {sT0}, {sP}
    s_mul_i32 {sYB}, {sT0}, 2560
    s_lshl_b32 {sSB}, {sSB}, 8
    s_add_u32 {sSB}, {sSB}, {WS_S}
    s_lshl_b32 {sT2}, {sS}, 3
    s_add_u32 {sT2}, {sT2}, {sW_}
    s_lshl_b32 {sT2}, {sT2}, 4
    s_add_u32 {sSOWN}, {sSB}, {sT2}
    s_mul_i32 {sWDB}, {sP}, 24
    s_mul_i32 {sT0}, {sW_}, 3
    s_add_u32 {sWDB}, {sWDB}, {sT0}
    s_mul_i32 {sWDB}, {sWDB}, 1280
    s_mul_i32 {sWO0}, {sH}, 192
    s_mul_i32 {sT0}, {sW_}, 24
    s_add_u32 {sWO0}, {sWO0}, {sT0}
    s_mul_i32 {sWO0}, {sWO0}, 1280
    s_add_u32 {sWO1}, {sWO0}, 5120
    s_add_u32 {sWO2}, {sWO0}, 15360
    s_add_u32 {sWO3}, {sWO0}, 20480
    s_mul_i32 {sSTG}, {sW_}, {NS*1024}
    s_add_u32 {sSTG}, {sSTG}, {L_STG}
    v_mov_b32 v17, 1280
    v_mul_u32_u24 v18, 1280, v3
    v_lshl_add_u32 v18, v2, 4, v18     ; 1280g+16n
    s_lshl_b32 s97, s97, 1
    s_min_u32 s97, s97, 1216
    v_lshl_add_u32 v19, v3, 1, s97
    v_lshrrev_b32 v14, 3, v2
    v_mad_u32_u24 v19, v14, v17, v19   ; + 1280*(m>>3)
    v_and_b32 v15, 7, v2
    v_lshlrev_b32 v15, 4, v15          ; 16*(n&7)
    v_and_b32 v20, 1, v2
    v_cmp_eq_u32 vcc, 1, v20
    v_mov_b32 v21, 0xffff
    v_mov_b32 v22, 0xffff0000
    v_cndmask_b32 v21, v21, v22, vcc
    v_bfe_u32 v20, v2, 1, 2
    ''')
    for r in range(4):
        a(f'v_cmp_eq_u32 vcc, {r}, v20\nv_cndmask_b32 v{4+r}, 0, v21, vcc')
    a(f'''
    v_mul_u32_u24 v10, 384, v3
    v_lshrrev_b32 v20, 3, v2
    v_mul_u32_u24 v11, 3072, v20
    v_add3_u32 v11, v11, v10, v15
    v_add_u32 v11, 256, v11            ; vvy = (g+8*(n>>3))*384+256+16*(n&7)
    v_lshl_add_u32 v10, v2, 4, v10     ; vvx = g*384+16n
    v_lshrrev_b32 v12, 1, v3
    v_mul_u32_u24 v12, 5120, v12
    v_add_u32 v12, v12, v18            ; vwo = (6(g>>1)+(g&1))*1280+16n
    v_mov_b32 v22, {BIG}
    v_cmp_eq_u32 vcc, 3, v3
    v_cndmask_b32 v13, v18, v22, vcc   ; vwd = g*1280+16n  (g==3 -> out of range)
    v_lshrrev_b32 v20, 1, v3
    v_lshlrev_b32 v20, 9, v20
    v_and_b32 v22, 1, v3
    v_lshl_add_u32 v22, v22, 4, v20
    v_lshl_add_u32 v22, v2, 5, v22
    s_lshl_b32 {sT0}, {sW_}, 11
    v_add_u32 v22, {sT0}, v22
    v_mov_b32 v20, {L_CNT}
    v_mov_b32 v21, 0
    ds_write_b32 v20, v21
    ds_write_b32 v20, v21 offset:4
    ''')
    if EXP & 64: a(f'v_mov_b32 v12, {BIG}\nv_mov_b32 v13, {BIG}')
    stamp('pre0')
    a.role = 'x'; a.wait_vm('x'); a.role = None
    a('s_barrier')
    stamp('bar0')
    XS, XO, U, XN, AB, ACC, XV = 24, 44, 184, 184, 200, 216, 168
    for i in range(5): a(f'ds_read_b128 {v4(XS+4*i)}, v18 offset:{L_X+256*i}')
    for pr in range(2):
        for t in range(8): a(f'ds_read_u16 v{XV+8*pr+t}, v19 offset:{L_X+2560*pr+8*t}')
    kmore(1/6)
    a(f'''
    s_waitcnt lgkmcnt(0)
    s_mul_i32 s100, s100, 0x9E3779B1
    s_add_u32 s100, s100, 0x7F4A7C15
    s_mul_i32 s101, s101, 0x85EBCA69
    s_add_u32 s101, s101, 0xC2B2AE35
    ''')
    for i in range(20):
        a(f'v_lshlrev_b32 v{U+2*i}, 16, v{XS+i}\nv_and_b32 v{U+2*i+1}, 0xffff0000, v{XS+i}')
    a(f'v_pk_add_f32 v[52:53], v[{U}:{U+1}], v[{U+2}:{U+3}]\nv_pk_add_f32 v[54:55], v[{U+4}:{U+5}], v[{U+6}:{U+7}]')
    for i in range(8, 40, 2):
        d = 52 + (i & 2)
        a(f'v_pk_add_f32 v[{d}:{d+1}], v[{d}:{d+1}], v[{U+i}:{U+i+1}]')
    a('v_pk_add_f32 v[52:53], v[52:53], v[54:55]\nv_add_f32 v52, v52, v53')
    rowred('v_add_f32', 52)
    a(f'v_mul_f32 v56, {f32(-1/640)}, v52')
    kmore(2/6)
    for i in range(0, 40, 2): a(f'v_pk_add_f32 v[{U+i}:{U+i+1}], v[{U+i}:{U+i+1}], v[56:57] op_sel_hi:[1,0]')
    a(f'v_pk_mul_f32 v[52:53], v[{U}:{U+1}], v[{U}:{U+1}]\nv_pk_mul_f32 v[54:55], v[{U+2}:{U+3}], v[{U+2}:{U+3}]')
    for i in range(4, 40, 2):
        d = 52 + (i & 2)
        a(f'v_pk_fma_f32 v[{d}:{d+1}], v[{U+i}:{U+i+1}], v[{U+i}:{U+i+1}], v[{d}:{d+1}]')
    a('v_pk_add_f32 v[52:53], v[52:53], v[54:55]\nv_add_f32 v52, v52, v53')
    rowred('v_add_f32', 52)
    a(f'''
    v_mul_f32 v52, {f32(1/640)}, v52
    v_cvt_pk_bf16_f32 v53, v56, v52
    v_lshlrev_b32 v56, 16, v53
    v_and_b32 v52, 0xffff0000, v53
    v_add_f32 v52, {f32(1e-5)}, v52
    v_cvt_pk_bf16_f32 v52, v52, v52
    v_and_b32 v52, 0xffff0000, v52
    v_sqrt_f32 v52, v52
    v_cvt_pk_bf16_f32 v52, v52, v52
    v_and_b32 v52, 0xffff0000, v52
    v_rcp_f32 v52, v52
    v_lshlrev_b32 v53, 6, v14
    v_add_u32 v54, 128, v53
    ds_bpermute_b32 v58, v53, v56
    ds_bpermute_b32 v60, v54, v56
    ds_bpermute_b32 v24, v53, v52
    ds_bpermute_b32 v26, v54, v52
    ''')
    kmore(3/6)
    for k in range(16): a(f'v_lshlrev_b32 v{XN+k}, 16, v{XV+k}')
    a('s_waitcnt lgkmcnt(0)')
    for pr in range(2):
        for k in range(4):
            r = XN + 8*pr + 2*k
            a(f'v_pk_add_f32 v[{r}:{r+1}], v[{r}:{r+1}], v[{58+2*pr}:{59+2*pr}] op_sel_hi:[1,0]')
    for k in range(8): a(f'v_cvt_pk_bf16_f32 v{XO+k}, v{XN+2*k}, v{XN+2*k+1}')
    for k in range(8): a(f'v_lshlrev_b32 v{XN+2*k}, 16, v{XO+k}\nv_and_b32 v{XN+2*k+1}, 0xffff0000, v{XO+k}')
    for pr in range(2):
        for k in range(4):
            r = XN + 8*pr + 2*k
            a(f'v_pk_mul_f32 v[{r}:{r+1}], v[{r}:{r+1}], v[{24+2*pr}:{25+2*pr}] op_sel_hi:[1,0]')
    for k in range(16): a(f'v_cvt_pk_bf16_f32 v{XN+k}, v{XN+k}, v{XN+k}')
    stamp('ln')
    kmore(4/6)
    for t in range(8):
        for pr in range(2):
            ab = AB + 4*((2*t + pr) & 3)
            for r in range(4): a(f'v_and_b32 v{ab+r}, v{XN+8*pr+t}, v{4+r}')
        a.wait_vm(f'w{t}')
        for pr in range(2):
            ab = AB + 4*((2*t + pr) & 3); d = v4(ACC + 4*pr)
            a(f'v_mfma_f32_16x16x32_bf16 {d}, {v4(ab)}, {v4(WT+4*t)}, {0 if t == 0 else d}')
        if t == 3: kmore(5/6)
    stamp('wland')
    kmore(1)
    a(f's_cmp_eq_u32 {sW_}, 7\ns_cbranch_scc1 L_nopart')
    for pr in range(2): a(f'ds_write_b128 v22, {v4(ACC+4*pr)} offset:{1024*pr}')
    a.label('L_nopart')
    a('s_waitcnt lgkmcnt(0)\ns_barrier')
    stamp('barA')
    def padd(d, s_, n):
        for r in range(0, n, 2): a(f'v_pk_add_f32 v[{d+r}:{d+r+1}], v[{d+r}:{d+r+1}], v[{s_+r}:{s_+r+1}]')
    a(f'''
    s_cmp_lt_u32 {sW_}, 6
    s_cbranch_scc1 L_nopub
    v_and_b32 v14, 127, v0
    v_lshlrev_b32 v15, 4, v14
    ''')
    for u in range(7): a(f'ds_read_b128 {v4(16+4*u)}, v15 offset:{2048*u}')
    a(f'''
    v_lshrrev_b32 v14, 5, v14
    s_mov_b32 {sT0}, {36864-512}
    v_mad_u32_u24 v14, v14, {sT0}, v15     ; b*36864 + 16*(t&31)
    s_mul_i32 {sT0}, s93, 147456
    s_lshl_b32 {sT2}, s92, 9
    s_add_u32 {sT0}, {sT0}, {sT2}
    s_add_u32 {sT0}, {sT0}, {WS_P}
    s_cmp_ge_u32 {sJ}, {27 if not (EXP & 8) else 0}
    s_cselect_b32 {sT0}, {BIG}, {sT0}
    s_waitcnt lgkmcnt(0)
    ''')
    padd(16, 32, 12); padd(16, 24, 8); padd(16, 20, 4)
    a.role = 'pub'
    a(f'buffer_store_dwordx4 v[16:19], v14, {WS}, {sT0} offen sc1', tag='pub')
    a.role = None
    a.label('L_nopub')
    def wotile(n):
        uc, h = divmod(n, 2); c, u = divmod(uc, 3)
        return [[sWO0, sWO1], [sWO2, sWO3]][h][u == 2], (2560 if u == 1 else 0) + 256*c
    kseq = ['c']
    si = 0
    for i in range(KP0, 48):
        kseq.append('k')
        while si < NS and (si + 1) * (SEND - KP0) <= (i + 1 - KP0) * NS:
            kseq.append('s'); si += 1
    assert si == NS
    kp = [0]; sissued = [0]
    def kstep(paced):
        op = kseq[kp[0]]; kp[0] += 1
        if op == 'c':
            a(f'''
            v_and_b32 v24, 31, v1
            v_lshlrev_b32 v24, 4, v24
            v_mov_b32 v25, {BIG}
            v_cndmask_b32 v24, v25, v24, {sLO32}
            s_lshl_b32 {sT0}, {sW_}, 9
            s_add_u32 {sT0}, {sT0}, {sYB}
            s_cmp_ge_u32 {sW_}, {5 if not (EXP & 16) else 0}
            s_cselect_b32 {sT0}, {BIG}, {sT0}
            v_mov_b32 v28, -1
            v_mov_b32 v29, -1
            v_mov_b32 v30, -1
            v_mov_b32 v31, -1
            ''')
        if paced: a(f's_waitcnt vmcnt({T-1})')
        if op == 'k': kload()
        elif op == 'c': a(f'buffer_store_dwordx4 v[28:31], v24, {WS}, {sT0} offen {POL[YCP]}', tag='clr')
        else:
            n = sissued[0]; so, imm = wotile(n)
            a(f's_add_u32 m0, {sSTG}, {1024*n - imm}' if 1024*n >= imm else f's_sub_u32 m0, {sSTG}, {imm - 1024*n}')
            a(f'buffer_load_dwordx4 v12, {WO}, {so} offen offset:{imm} {POL[SPOL]} lds', tag='stg')
            sissued[0] += 1
    for _ in range(T): kstep(True)
    a.wait_vm('clr')
    a(f'''
    v_mov_b32 v14, {L_CNT}
    v_mov_b32 v15, 1
    s_mov_b64 exec, 1
    ds_add_rtn_u32 v20, v14, v15
    s_waitcnt lgkmcnt(0)
    v_readfirstlane_b32 {sT0}, v20
    s_cmp_eq_u32 {sT0}, 7
    s_cbranch_scc0 L_nosig
    s_mov_b64 exec, 3
    s_lshl_b32 {sT0}, s92, 2
    s_add_u32 {sT0}, {sT0}, s93
    s_lshl_b32 {sT0}, {sT0}, 3
    s_add_u32 {sT0}, {sT0}, {WS_F}
    s_cmp_ge_u32 {sJ}, 27
    s_cselect_b32 {sT0}, {BIG}, {sT0}
    s_lshl_b32 {sT2}, {sIDX}, 3
    s_add_u32 {sT2}, {sT2}, {WS_G}
    v_mov_b32 v20, {sT0}
    v_writelane_b32 v20, {sT2}, 1
    v_mov_b32 v14, s100
    v_mov_b32 v15, s101
    ''')
    a(f'buffer_store_dwordx2 v[14:15], v20, {WS}, 0 offen sc1'); a.vm.pop()
    a.label('L_nosig')
    a('s_mov_b64 exec, -1')
    stamp('sig')
    while kissued[0] < KPOLL: kstep(True)
    a(f's_cmp_eq_u32 {sW_}, 0\ns_cbranch_scc1 L_w0')
    fork = (list(a.vm), kissued[0], kp[0], sissued[0])
    while kp[0] < len(kseq): kstep(True)
    stamp('kiss'); stamp('poll'); stamp('qrdy')
    a('s_branch L_join')
    vm_join = list(a.vm)
    a.vm, kissued[0], kp[0], sissued[0] = fork
    a.label('L_w0')
    a(f'''
    v_min_u32 v60, 59, v1
    v_lshlrev_b32 v60, 2, v60
    s_mul_i32 {sT0}, {sH}, 192
    s_mul_i32 {sT2}, {sP}, 24
    s_add_u32 {sT2}, {sT2}, {6144-192}
    s_add_u32 {sT3}, {sT2}, {1536-24}
    v_mov_b32 v61, {sT0}
    v_mov_b32 v62, {sT2}
    v_cmp_le_u32 vcc, 48, v1
    v_cndmask_b32 v61, v61, v62, vcc
    v_mov_b32 v62, {sT3}
    v_cmp_le_u32 vcc, 54, v1
    v_cndmask_b32 v61, v61, v62, vcc
    v_add_u32 v60, v60, v61
    v_lshrrev_b32 v61, 7, v60
    v_lshlrev_b32 v61, 5, v61
    v_lshlrev_b32 v60, 2, v60
    s_mov_b32 {sT2}, {WS_F}
    s_mov_b32 {sT1}, {SPIN}
    ''')
    if EXP & 1: a(f'v_mov_b32 v61, {BIG}')
    a(f'buffer_load_dwordx4 v[16:19], v61, {WS}, {sT2} offen sc1')
    a(f'buffer_load_dwordx2 v[20:21], v61, {WS}, {sT2} offen offset:16 sc1', tag='poll')
    for _ in range(T - 1): kstep(True)
    a.wait_vm('poll')
    a.label('L_spin1')
    a(f'''
    v_cmp_ne_u64 vcc, {TAG}, v[16:17]
    v_cmp_ne_u64 s[44:45], {TAG}, v[18:19]
    v_cmp_ne_u64 s[46:47], {TAG}, v[20:21]
    s_or_b64 vcc, vcc, s[44:45]
    s_or_b64 vcc, vcc, s[46:47]
    s_cbranch_scc0 L_ok1
    s_sub_u32 {sT1}, {sT1}, 1
    s_cbranch_scc1 L_ok1
    s_sleep {SLP}
    buffer_load_dwordx4 v[16:19], v61, {WS}, {sT2} offen sc1
    buffer_load_dwordx2 v[20:21], v61, {WS}, {sT2} offen offset:16 sc1
    s_waitcnt vmcnt(0)
    s_branch L_spin1
    ''')
    a.vm.pop(); a.vm.pop()
    a.label('L_ok1')
    stamp('poll')
    a(f's_mul_i32 {sT0}, {sB}, 36864\ns_add_u32 {sT0}, {sT0}, {WS_P}')
    if EXP & 2: a(f'v_mov_b32 v60, {BIG}')
    for t in range(3):
        a(f'buffer_load_dwordx4 {v4(16+4*t)}, v60, {WS}, {sT0} offen sc1', tag='gq')
        if t < 2: a(f's_add_u32 {sT0}, {sT0}, 147456')
    for _ in range(W0N): kstep(False)
    a.wait_vm('gq')
    padd(16, 20, 4); padd(16, 24, 4)
    a(f'''
    v_cvt_pk_bf16_f32 v16, v16, v17
    v_cvt_pk_bf16_f32 v17, v18, v19
    v_lshlrev_b32 v14, 3, v1
    ds_write_b64 v14, v[16:17] offset:{L_Q}
    v_min_u32 v14, 23, v1
    v_lshlrev_b32 v14, 1, v14
    s_waitcnt lgkmcnt(0)
    ds_read_u16 v20, v14 offset:{L_Q+384}
    ds_read_u16 v21, v14 offset:{L_Q+432}
    s_waitcnt lgkmcnt(0)
    v_lshlrev_b32 v20, 16, v20
    v_lshlrev_b32 v21, 16, v21             ; up
    v_mul_f32 v22, v20, v20
    v_mul_f32 v22, {f32(0.044715)}, v22
    v_fma_f32 v22, v22, v20, v20           ; x + c x^3
    v_mul_f32 v22, {f32(-2*0.7978845608028654*L2E)}, v22
    v_exp_f32 v22, v22
    v_add_f32 v22, 1.0, v22
    v_rcp_f32 v22, v22
    v_mul_f32 v22, v22, v20
    v_cvt_pk_bf16_f32 v22, v22, v22
    v_and_b32 v22, 0xffff0000, v22
    v_mul_f32 v22, v22, v21
    v_cvt_pk_bf16_f32 v22, v22, v22
    v_cmp_gt_u32 vcc, 24, v1
    v_cndmask_b32 v22, 0, v22, vcc
    v_min_u32 v14, 31, v1
    v_lshlrev_b32 v14, 2, v14
    ds_write_b32 v14, v22 offset:{L_HID}
    v_mov_b32 v14, {L_CNT}
    v_mov_b32 v15, 1
    s_waitcnt lgkmcnt(0)
    ds_write_b32 v14, v15 offset:4
    ''')
    def xred8(base, n, tmp):
        for r in range(n): a(f'v_add_f32_dpp v{base+r}, v{base+r}, v{base+r} row_ror:8 row_mask:0xf bank_mask:0xf')
        for sw in ('v_permlane16_swap_b32', 'v_permlane32_swap_b32'):
            for r in range(n): a(f'v_mov_b32 v{tmp+r}, v{base+r}')
            for r in range(n): a(f'{sw} v{base+r}, v{tmp+r}')
            padd(base, tmp, n)
    stamp('qrdy')
    while kp[0] < len(kseq): kstep(True)
    stamp('kiss')
    a.vm = vm_join
    a.label('L_join')
    a(f'v_mov_b32 v14, {L_CNT}\ns_mov_b32 {sT1}, {1<<22}')
    a.label('L_spinq')
    a(f'''
    ds_read_b32 v15, v14 offset:4
    s_waitcnt lgkmcnt(0)
    v_readfirstlane_b32 {sT0}, v15
    s_cmp_lg_u32 {sT0}, 0
    s_cbranch_scc1 L_okq
    s_sub_u32 {sT1}, {sT1}, 1
    s_cbranch_scc1 L_okq
    s_sleep 1
    s_branch L_spinq
    ''')
    a.label('L_okq')
    stamp('barB')
    a(f'''
    v_and_b32 v14, 3, v2
    v_lshl_add_u32 v15, v3, 2, v14
    v_lshlrev_b32 v15, 4, v15
    ds_read_b128 v[56:59], v15 offset:{L_Q}
    v_and_b32 v15, 0x70, v15
    ds_read_b128 v[60:63], v15 offset:{L_Q+256}
    ''')
    mX = [lanemask(lambda m, g, u=u: (m >> 2) == u) for u in range(4)]
    mY = [lanemask(lambda m, g, w=w: (m >> 2) == 2*w + (g >> 1)) for w in range(2)]
    for k, m in enumerate(mX + mY):
        a(f's_mov_b32 s{44+2*k}, {hex(m & 0xffffffff)}\ns_mov_b32 s{45+2*k}, {hex(m >> 32)}')
    a('s_waitcnt lgkmcnt(0)')
    for k in range(6):
        src = 56 if k < 4 else 60
        for r in range(4): a(f'v_cndmask_b32 v{32+4*k+r}, 0, v{src+r}, s[{44+2*k}:{45+2*k}]')
    vissued = [0]
    def vreg(i): return kt(i % RV)
    def vload():
        i = vissued[0]; g, e = divmod(i, 6); c, x = divmod(e, 3)
        if e == 0:
            grp(g)
            a(f's_add_u32 {sKV2}, {sKV}, 3072')
        if x == 0:   a(f'buffer_load_dwordx4 {vreg(i)}, v10, {V}, {sKV} offen offset:{1536*c} {POL[KVPOL]}', tag=f'v{i}')
        elif x == 1: a(f'buffer_load_dwordx4 {vreg(i)}, v10, {V}, {sKV2} offen offset:{1536*c} {POL[KVPOL]}', tag=f'v{i}')
        else:        a(f'buffer_load_dwordx4 {vreg(i)}, v11, {V}, {sKV} offen offset:{1536*c} {POL[KVPOL]}', tag=f'v{i}')
        vissued[0] += 1
    assert RV <= 12
    extras = [('wd', c) for c in range(5)] + [('wo', n) for n in range(NS, 30)]
    xiss = [0]
    def xtile(e): return WDT + e[1] if e[0] == 'wd' else WOT + e[1]
    def xload():
        e = extras[xiss[0]]
        if e[0] == 'wd':
            a(f'buffer_load_dwordx4 {kt(xtile(e))}, v13, {WD}, {sWDB} offen offset:{256*e[1]} {POL[WPOL]}', tag='wd')
        else:
            so, imm = wotile(e[1])
            a(f'buffer_load_dwordx4 {kt(xtile(e))}, v12, {WO}, {so} offen offset:{imm} {POL[WPOL]}', tag=f'wo{e[1]}')
        xiss[0] += 1
    SC = 0.07216878364870322
    def score_post(g):
        d = 24 + 4*(g & 1); s_ = 16 + g
        a(f'''
        v_mov_b32_dpp v{s_}, v{d} quad_perm:[0,0,0,0] row_mask:0xf bank_mask:0xf
        v_add_f32_dpp v{s_}, v{d+1}, v{s_} quad_perm:[1,1,1,1] row_mask:0xf bank_mask:0xf
        v_add_f32_dpp v{s_}, v{d+2}, v{s_} quad_perm:[2,2,2,2] row_mask:0xf bank_mask:0xf
        v_add_f32_dpp v{s_}, v{d+3}, v{s_} quad_perm:[3,3,3,3] row_mask:0xf bank_mask:0xf
        v_cvt_pk_bf16_f32 v{s_}, v{s_}, v{s_}
        v_and_b32 v{s_}, 0xffff0000, v{s_}
        v_mul_f32 v{s_}, {f32(SC)}, v{s_}
        v_cvt_pk_bf16_f32 v{s_}, v{s_}, v{s_}
        v_and_b32 v{s_}, 0xffff0000, v{s_}
        ''')
    nx = len(extras) - XL
    span = 48 - XBEG - XEND
    seq = []
    xi = 0
    for i in range(48):
        seq.append('v')
        if i == SLI: seq.append('sl')
        if xi < 5 and i >= XBEG:
            seq.append('x'); xi += 1
        while xi < nx and i >= XBEG and (xi + 1) * span <= (i + 1 - XBEG) * nx:
            seq.append('x'); xi += 1
    assert xi == nx
    seq += ['x'] * XL
    nx += XL
    sp = [0]
    did_wd = [False]
    SS = KB + 4*47
    st = KB + 4*WDT
    GF = st + 12
    def statload():
        a(f'''
        v_lshlrev_b32 v8, 4, v2
        s_mul_i32 s95, {sP}, 43691
        s_lshr_b32 s95, s95, 17
        s_mul_i32 {sT0}, {sB}, 1280
        s_lshl_b32 {sT1}, s95, 6
        s_add_u32 s96, {sT0}, {sT1}
        s_mul_i32 {sT0}, s95, 3
        s_mov_b32 s97, 1
        s_cmp_lg_u32 {sT0}, {sP}
        s_cselect_b32 s97, 0, s97
        s_cmp_ge_u32 s95, 20
        s_cselect_b32 s97, 0, s97
        s_cmp_lg_u32 {sW_}, 7
        s_cselect_b32 s97, 0, s97
        v_lshlrev_b32 v9, 4, v1
        s_mov_b32 s98, {WS_G}
        s_cmp_eq_u32 s97, 0
        s_cbranch_scc1 L_nogf
        buffer_load_dwordx4 {v4(GF)}, v9, {WS}, s98 offen sc1
        buffer_load_dwordx4 {v4(GF+4)}, v9, {WS}, s98 offen offset:1024 sc1
        ''')
        a.vm.pop(); a.vm.pop()
        a.label('L_nogf')
        a(f'buffer_load_dwordx4 {v4(SS)}, v8, {WS}, {sSB} offen sc1', tag='sl')
    def pump(lasttag, kfree, vcons):
        while sp[0] < len(seq):
            idx = max(k for k, (t, r) in enumerate(a.vm) if t == lasttag)
            if len(a.vm) - 1 - idx >= (TV if vcons < VE else TVE): break
            op = seq[sp[0]]
            if op == 'v':
                i = vissued[0]
                if i < RV:
                    if i >= kfree: break
                elif i - RV >= vcons: break
                vload()
            elif op == 'x':
                if xtile(extras[xiss[0]]) >= kfree: break
                xload()
            else:
                assert did_wd[0]
                statload()
            sp[0] += 1
    done = [t for (t, r) in a.vm[:len(a.vm) - T]]
    known = max(int(t[1:]) for t in done if t and t[0] == 'k' and t[1:].isdigit())
    a.wait_vm(f'k{known}')
    for g in range(8):
        d = v4(24 + 4*(g & 1))
        for e in range(6):
            i = 6*g + e
            if i > known:
                a.wait_vm(f'k{i}'); known = i
            a(f'v_mfma_f32_16x16x32_bf16 {d}, {v4(32+4*e)}, {kt(i)}, {0 if e == 0 else d}')
            if i == known: pump(f'k{known}', i + 1, 0)
        if 6*g + 5 < known and (g & 1) == 0 and known < 47:
            known += 1
            a.wait_vm(f'k{known}')
            pump(f'k{known}', 6*g + 6, 0)
        if g > 0: score_post(g-1)
    score_post(7)
    if NS:
        a.wait_vm('stg')
        a(f'v_lshlrev_b32 v14, 4, v1\nv_add_u32 v14, {sSTG}, v14')
        for n in range(NS): a(f'ds_read_b128 {kt(WOT+n)}, v14 offset:{1024*n}')
    def allred(op, r, t):
        rowred(op, r, (4, 8))
        a(f'v_mov_b32 v{t}, v{r}\nv_permlane16_swap_b32 v{r}, v{t}\n{op} v{r}, v{r}, v{t}')
        a(f'v_mov_b32 v{t}, v{r}\nv_permlane32_swap_b32 v{r}, v{t}\n{op} v{r}, v{r}, v{t}')
    a('v_max3_f32 v28, v16, v17, v18\nv_max3_f32 v15, v19, v20, v21\nv_max3_f32 v28, v28, v22, v23\nv_max_f32 v28, v28, v15')
    allred('v_max_f32', 28, 15)
    for g in range(8): a(f'v_sub_f32 v{16+g}, v{16+g}, v28')
    for g in range(8): a(f'v_mul_f32 v{16+g}, {f32(L2E)}, v{16+g}')
    for g in range(8): a(f'v_exp_f32 v{16+g}, v{16+g}')
    a('v_add_f32 v30, v16, v17\nv_add_f32 v24, v18, v19\nv_add_f32 v25, v20, v21\nv_add_f32 v26, v22, v23\nv_add_f32 v30, v30, v24\nv_add_f32 v25, v25, v26\nv_add_f32 v30, v30, v25')
    allred('v_add_f32', 30, 24)
    for g in range(8): a(f'v_cvt_pk_bf16_f32 v{16+g}, v{16+g}, v{16+g}')
    a(f'''
    v_mov_b32 v29, s100
    v_mov_b32 v31, s101
    v_mov_b32 v24, 0
    v_readfirstlane_b32 {sM}, v28          ; own m
    s_mov_b64 exec, 1
    ''')
    a(f'buffer_store_dwordx4 v[28:31], v24, {WS}, {sSOWN} offen sc1', tag='stat')
    a('s_mov_b64 exec, -1')
    stamp('smax')
    YA, OA = 44, 32
    a(f'''
    s_mul_i32 {sT0}, {sW_}, 12
    v_lshlrev_b32 v24, 2, v3
    v_add_u32 v24, {sT0}, v24
    v_mov_b32 v25, 124
    v_cmp_eq_u32 vcc, 3, v3
    v_cndmask_b32 v24, v24, v25, vcc
    ds_read_b32 v14, v24 offset:{L_HID}
    s_waitcnt lgkmcnt(0)
    ''')
    for g in range(8):
        for c in range(2):
            A = 24 + 4*c
            if c == 0: a(f'v_mov_b32 v15, v{16+g}\nv_mov_b32_dpp v15, v{16+g} row_shr:4 row_mask:0xf bank_mask:0xa')
            else:      a(f'v_mov_b32 v15, v{16+g}\nv_mov_b32_dpp v15, v{16+g} row_shl:4 row_mask:0xf bank_mask:0x5')
            for r in range(4): a(f'v_and_b32 v{A+r}, v15, v{4+r}')
            for x in range(3):
                i = 6*g + 3*c + x
                d = v4(OA + 4*x)
                a.wait_vm(f'v{i}')
                stamp(f'vc{i}')
                a(f'v_mfma_f32_16x16x32_bf16 {d}, {v4(A)}, {vreg(i)}, {0 if i < 3 else d}')
                pump(f'v{i}', 48, i + 1)
        if g == 2:
            did_wd[0] = True
            assert xiss[0] >= 5
            for r in range(4): a(f'v_and_b32 v{24+r}, v14, v{4+r}')
            a.wait_vm('wd')
            for c in range(5):
                a(f'v_mfma_f32_16x16x32_bf16 {v4(YA+4*c)}, v[24:27], {kt(WDT+c)}, 0')
        if g == GST:
            a(f's_mov_b32 {sT1}, {SPIN}')
            a.wait_vm('sl')
            a.label('L_spin2')
            a(f'''
            v_cmp_ne_u32 vcc, s100, v{SS+1}
            v_cmp_ne_u32 s[44:45], s101, v{SS+3}
            s_or_b64 vcc, vcc, s[44:45]
            s_cbranch_scc0 L_ok2
            s_sub_u32 {sT1}, {sT1}, 1
            s_cbranch_scc1 L_ok2
            s_sleep 4
            buffer_load_dwordx4 {v4(SS)}, v8, {WS}, {sSB} offen sc1
            s_waitcnt vmcnt(0)
            s_branch L_spin2
            ''')
            a.vm.pop()
            a.label('L_ok2')
            a(f'''
            s_cmp_eq_u32 s97, 0
            s_cbranch_scc1 L_ok2b
            s_mov_b32 {sT1}, {SPIN}
            ''')
            a.label('L_spin2b')
            a(f'''
            v_cmp_ne_u64 vcc, {TAG}, v[{GF}:{GF+1}]
            v_cmp_ne_u64 s[44:45], {TAG}, v[{GF+2}:{GF+3}]
            v_cmp_ne_u64 s[46:47], {TAG}, v[{GF+4}:{GF+5}]
            v_cmp_ne_u64 s[48:49], {TAG}, v[{GF+6}:{GF+7}]
            s_or_b64 vcc, vcc, s[44:45]
            s_or_b64 s[46:47], s[46:47], s[48:49]
            s_or_b64 vcc, vcc, s[46:47]
            s_cbranch_scc0 L_ok2c
            s_sub_u32 {sT1}, {sT1}, 1
            s_cbranch_scc1 L_ok2c
            s_sleep {SLP}
            buffer_load_dwordx4 {v4(GF)}, v9, {WS}, s98 offen sc1
            buffer_load_dwordx4 {v4(GF+4)}, v9, {WS}, s98 offen offset:1024 sc1
            s_waitcnt vmcnt(0)
            s_branch L_spin2b
            ''')
            a.vm.pop(); a.vm.pop()
            a.label('L_ok2c')
            a(f'''
            s_cmp_lg_u32 s2, 0
            s_cbranch_scc1 L_ok2b
            s_mov_b32 {sT2}, {WS_E}
            v_mov_b32 v{GF}, s100
            v_mov_b32 v{GF+1}, s101
            s_mov_b64 exec, 1
            buffer_store_dwordx2 v[{GF}:{GF+1}], v9, {WS}, {sT2} offen sc1
            s_mov_b64 exec, -1
            ''')
            a.vm.pop()
            a.label('L_ok2b')
            a(f'v_mov_b32 v{st+6}, v{SS}')
            rowred('v_max_f32', st+6)
            a(f'''
            v_sub_f32 v{st}, v{SS}, v{st+6}
            v_sub_f32 v{st+7}, {sM}, v{st+6}
            v_mul_f32 v{st}, {f32(L2E)}, v{st}
            v_mul_f32 v{st+7}, {f32(L2E)}, v{st+7}
            v_exp_f32 v{st}, v{st}
            v_exp_f32 v{st+7}, v{st+7}
            v_mul_f32 v{st}, v{st}, v{SS+2}
            ''')
            rowred('v_add_f32', st)
            a(f'''
            v_rcp_f32 v{st}, v{st}
            v_mul_f32 v14, v{st}, v{st+7}          ; factor
            v_and_b32 v{st+5}, 7, v1
            v_lshlrev_b32 v{st+5}, 3, v{st+5}
            v_and_b32 v{st+3}, 1, v3
            v_lshlrev_b32 v{st+3}, 2, v{st+3}
            v_and_b32 v{st+4}, 2, v3
            v_add3_u32 v{st+3}, v{st+3}, v{st+4}, v{st+5}
            s_min_u32 {sT0}, s96, 5056
            v_add_u32 v{st+4}, {sT0}, v{st+3}
            ds_read_u16 v{st+2}, v{st+4} offset:{L_X}
            v_and_b32 v{st+15}, 3, v2
            v_mul_u32_u24 v{st+15}, 0x5555, v{st+15}
            s_mov_b32 s44, 0x0f0f0f0f
            s_mov_b32 s45, 0x0f0f0f0f
            s_mov_b32 s46, 0xf0f0f0f0
            s_mov_b32 s47, 0xf0f0f0f0
            ''')
            a(f'''
            v_lshrrev_b32 v{st+6}, 1, v3
            s_lshl_b32 {sT0}, {sW_}, 1
            v_add_u32 v{st+7}, {sT0}, v{st+6}
            v_mul_u32_u24 v{st+7}, 784, v{st+7}
            v_and_b32 v{st+8}, 1, v3
            v_lshlrev_b32 v{st+11}, 4, v{st+8}
            v_add_u32 v{st+7}, v{st+7}, v{st+11}
            v_lshl_add_u32 v{st+8}, v2, 5, v{st+7}
            v_and_b32 v{st+9}, 7, v2
            v_lshl_add_u32 v{st+9}, v{st+9}, 5, v{st+7}
            v_add_u32 v{st+9}, 512, v{st+9}
            v_lshrrev_b32 v{st+7}, 3, v2
            v_cmp_eq_u32 vcc, v{st+7}, v{st+6}
            v_lshlrev_b32 v{st+7}, 4, v1
            v_add_u32 v{st+7}, {L_DUM}, v{st+7}
            v_cndmask_b32 v{st+9}, v{st+7}, v{st+9}, vcc
            v_mul_u32_u24 v{st+10}, 784, v2
            v_mul_u32_u24 v{st+7}, 24, v3
            s_mul_i32 {sT0}, {sW_}, 96
            v_add3_u32 v{st+10}, v{st+10}, v{st+7}, {sT0}
            s_mul_i32 {sT0}, {sW_}, 3200
            v_mul_u32_u24 v{st+11}, 24, v{st+11}
            v_lshl_add_u32 v{st+11}, v2, 4, v{st+11}
            v_add_u32 v{st+11}, {sT0}, v{st+11}           ; y write: 3200w + 384(g&1) + 16n
            v_and_b32 v{st+13}, 31, v1
            v_lshrrev_b32 v{st+7}, 1, v{st+13}
            v_lshlrev_b32 v{st+13}, 4, v{st+13}
            s_lshl_b32 {sT0}, {sW_}, 9
            v_add_u32 v{st+13}, {sT0}, v{st+13}
            v_mul_u32_u24 v{st+12}, 12800, v{st+6}
            v_lshl_add_u32 v{st+12}, v{st+7}, 4, v{st+12}
            v_and_b32 v{st+7}, 1, v1
            v_mul_u32_u24 v{st+7}, 384, v{st+7}
            s_mul_i32 {sT0}, {sW_}, 640
            v_add3_u32 v{st+12}, v{st+12}, v{st+7}, {sT0}  ; y read: 12800(l>>5) + 640w + 384(l&1) + 16((l&31)>>1)
            v_lshrrev_b32 v{st+14}, 3, v1
            v_mul_u32_u24 v{st+14}, 2560, v{st+14}
            v_lshl_add_u32 v{st+14}, v{st+5}, 1, v{st+14}
            s_mul_i32 s94, {sB}, {64*2560}
            s_lshl_b32 {sT0}, s95, 7
            s_add_u32 s94, s94, {sT0}
            ''')
            for i in range(8): a(f's_add_u32 s{48+i}, s94, {8*2560*i}')
    assert xiss[0] == nx and sp[0] == len(seq)
    stamp('vend')
    for r in range(4): a(f'v_cndmask_b32 v{OA+r}, v{OA+4+r}, v{OA+r}, {sLO32}')
    for r in range(4): a(f'v_mul_f32 v{OA+r}, v{OA+r}, v14')
    a(f'ds_write_b128 v{st+8}, {v4(OA)}')
    for r in range(4): a(f'v_mul_f32 v{OA+8+r}, v{OA+8+r}, v14')
    a(f'ds_write_b128 v{st+9}, {v4(OA+8)}')
    a('s_waitcnt lgkmcnt(0)\ns_barrier')
    stamp('barC')
    for j in range(3): a(f'ds_read_b64 v[{16+2*j}:{17+2*j}], v{st+10} offset:{8*j}')
    def dpp(regs, steps):
        for s_ in steps:
            for r in regs: a(f'v_add_f32_dpp v{r}, v{r}, v{r} row_ror:{s_} row_mask:0xf bank_mask:0xf')
    if CM != 2:
        a('s_waitcnt lgkmcnt(0)')
        dpp(range(16, 22), (8, 4, 2, 1))
    AT = KB
    def abuild(u):
        for i in range(2):
            a(f'v_cvt_pk_bf16_f32 v{16+2*u+i}, v{16+2*u+i}, 0')
        for i in range(2):
            a(f'v_cndmask_b32 v{AT+4*u+2*i}, 0, v{16+2*u+i}, s[44:45]\nv_cndmask_b32 v{AT+4*u+2*i+1}, 0, v{16+2*u+i}, s[46:47]')
    def smf(u, c):
        n = (c*3 + u)*2
        if n + 1 >= 30 - XL: a.wait_vm(f'wo{n+1}')
        r = KB + 4*(WOT + n)
        a(f'v_smfmac_f32_16x16x64_bf16 {v4(YA+4*c)}, {v4(AT+4*u)}, v[{r}:{r+7}], v{st+15}')
    def ywrite(c):
        a(f's_mov_b64 exec, {sLO32}\nds_write_b128 v{st+11}, {v4(YA+4*c)} offset:{L_YP+640*c}\ns_mov_b64 exec, -1')
    if CM == 2:
        a('s_waitcnt lgkmcnt(0)' if stamps == 3 else 's_waitcnt lgkmcnt(1)')
        dpp((16, 17, 18), (8, 4, 2, 1))
        abuild(0)
        a('s_waitcnt lgkmcnt(0)')
        dpp((19, 20, 21), (8,))
        smf(0, 0); dpp((19, 20, 21), (4,))
        smf(0, 1); dpp((19, 20, 21), (2,))
        smf(0, 2); dpp((19, 20, 21), (1,))
        smf(0, 3); abuild(1)
        smf(1, 0); abuild(2)
        order = [(1,1),(2,0),(1,2),(2,1),(1,3),(0,4),'w0',(2,2),'w1',(1,4),(2,3),(2,4),'w2','w3','w4']
        for o in order:
            if isinstance(o, str): ywrite(int(o[1]))
            else: smf(*o)
        stamp('mm')
        a('s_waitcnt lgkmcnt(0)\ns_barrier')
    elif CM:
        abuild(0); abuild(1)
        smf(0, 0); smf(0, 1)
        abuild(2)
        order = [(1,0),(1,1),(2,0),(2,1),(0,2),(0,3),(1,2),'w0',(1,3),'w1',(2,2),(0,4),(2,3),(1,4),'w2',(2,4),'w3','w4']
        for o in order:
            if isinstance(o, str): ywrite(int(o[1]))
            else: smf(*o)
        stamp('mm')
        a('s_waitcnt lgkmcnt(0)\ns_barrier')
    else:
        abuild(0); abuild(1)
        smf(0, 0); smf(0, 1)
        abuild(2)
        for c in range(2, 5): smf(0, c)
        for c in range(5): smf(1, c)
        for c in range(5): smf(2, c)
        stamp('mm')
        a(f's_mov_b64 exec, {sLO32}')
        for c in range(5): a(f'ds_write_b128 v{st+11}, {v4(YA+4*c)} offset:{L_YP+640*c}')
        a('s_mov_b64 exec, -1\ns_waitcnt lgkmcnt(0)\ns_barrier')
    stamp('barD'); stamp('pub'); stamp('c1')
    a(f's_cmp_ge_u32 {sW_}, 5\ns_cbranch_scc1 L_cons')
    for u in range(4): a(f'ds_read_b128 {v4(16+4*u)}, v{st+12} offset:{L_YP+3200*u}')
    a('s_waitcnt lgkmcnt(0)')
    padd(16, 24, 8); padd(16, 20, 4)
    for r in range(4): a(f'v_mov_b32 v{20+r}, v{16+r}')
    for r in range(4): a(f'v_permlane32_swap_b32 v{16+r}, v{20+r}')
    padd(16, 20, 4)
    for r in range(4): a(f'v_min_u32 v{16+r}, -2, v{16+r}')
    a(f's_mov_b64 exec, {sLO32}')
    a(f'buffer_store_dwordx4 v[16:19], v{st+13}, {WS}, {sYB} offen {POL[YSP]}')
    if stamps:
        a('s_mov_b64 exec, -1\ns_waitcnt lgkmcnt(0)')
        stamp('pub')
        a('s_branch L_fin')
    else:
        a('s_endpgm')
    a.label('L_cons')
    a(f'''
    s_cmp_eq_u32 s97, 0
    s_cbranch_scc1 L_fin
    s_mov_b32 {sT1}, {SPIN}
    ''')
    a.label('L_spin3')
    for i in range(8):
        a(f'buffer_load_dwordx4 {v4(16+4*i)}, v{st+14}, {WS}, s{48+i} offen {POL[YLP]}')
    a(f's_sub_u32 {sT1}, {sT1}, 1')
    for i in range(8):
        r = 16 + 4*i
        a(f's_waitcnt vmcnt({7-i})')
        if i == 0: a(f'v_max_u32 v14, v{r}, v{r+1}\nv_max_u32 v15, v{r+2}, v{r+3}')
        else: a(f'v_max3_u32 v14, v14, v{r}, v{r+1}\nv_max3_u32 v15, v15, v{r+2}, v{r+3}')
    a(f'''
    v_max_u32 v15, v15, v14
    v_cmp_eq_u32 vcc, -1, v15
    s_cbranch_scc1 L_ok3
    ''')
    if PM: a('s_and_b64 exec, vcc, vcc')
    else: a('s_and_b64 vcc, vcc, vcc')
    a.raw('  s_cbranch_scc1 L_spin3')
    a.label('L_ok3')
    a('s_mov_b64 exec, -1')
    if stamps: a('s_waitcnt lgkmcnt(0)')
    stamp('c1')
    padd(16, 32, 16); padd(16, 24, 8); padd(16, 20, 4)
    a(f'''
    v_lshlrev_b32 v20, 16, v{st+2}
    v_permlane32_swap_b32 v16, v17
    v_permlane32_swap_b32 v18, v19
    v_add_f32 v16, v16, v17
    v_add_f32 v18, v18, v19
    v_permlane16_swap_b32 v16, v18
    v_add_f32 v16, v16, v18
    v_add_f32_dpp v16, v16, v16 row_ror:8 row_mask:0xf bank_mask:0xf
    v_add_f32 v16, v16, v20
    v_cvt_pk_bf16_f32 v16, v16, v16
    s_mov_b32 exec_lo, 0x00ff00ff
    s_mov_b32 exec_hi, 0x00ff00ff
    buffer_store_short v16, v{st+3}, {OUT}, s96 offen
    s_mov_b64 exec, -1
    ''')
    if DLY:
        a(f'''
        s_waitcnt vmcnt(0)
        s_memrealtime s[84:85]
        s_waitcnt lgkmcnt(0)
        s_sub_u32 s82, s84, s86
        s_mul_i32 s82, s82, {DLY}
        s_min_u32 s82, s82, 100000
        ''')
        a.label('L_dly')
        a(f'''
        s_memrealtime s[84:85]
        s_waitcnt lgkmcnt(0)
        s_sub_u32 s83, s84, s86
        s_cmp_lt_u32 s83, s82
        s_cbranch_scc1 L_dly
        ''')
    a.label('L_fin')
    if stamps:
        a('s_waitcnt vmcnt(0)')
        stamp('end')
        a('s_waitcnt lgkmcnt(0)')
        for k in range(8): a(f'v_mov_b32 v{16+k}, s{SREG[k]}')
        a(f'''
        s_lshl_b32 {sT0}, s2, 3
        s_add_u32 {sT0}, {sT0}, {sW_}
        s_lshl_b32 {sT0}, {sT0}, 5
        s_add_u32 {sT0}, {sT0}, {WS_T}
        v_mov_b32 v14, 0
        s_mov_b64 exec, 1
        buffer_store_dwordx4 v[16:19], v14, {WS}, {sT0} offen
        buffer_store_dwordx4 v[20:23], v14, {WS}, {sT0} offen offset:16
        ''')
    a.label('L_end')
    a('s_endpgm')
    a.raw(f'''.section .rodata,"a"
.p2align 6
.amdhsa_kernel {name}
  .amdhsa_next_free_vgpr 256
  .amdhsa_next_free_sgpr 102
  .amdhsa_accum_offset 256
  .amdhsa_group_segment_fixed_size 0
  .amdhsa_kernarg_size 96
  .amdhsa_user_sgpr_count 2
  .amdhsa_user_sgpr_kernarg_segment_ptr 1
  .amdhsa_system_sgpr_workgroup_id_x 1
  .amdhsa_float_denorm_mode_32 3
.end_amdhsa_kernel''')
    return a.text()

if __name__ == '__main__':
    out = sys.argv[1]
    kw = {}
    for x in sys.argv[2:]:
        k, v = x.split('='); kw[k] = int(v)
    open(out, 'w').write(gen(**kw))
```

```python
import sys, struct
from asmdsl import Asm

NAME = 'parallel_sum__sliding_block_cached__geglu_ffn__decode_kernel'
def f32(x): return '0x%08x' % struct.unpack('<I', struct.pack('<f', x))[0]
def lanemask(fn):
    m = 0
    for l in range(64):
        if fn(l & 15, l >> 4): m |= 1 << l
    return m

HEADER = open('parallel_sum__sliding_block_cached__geglu_ffn__decode.s.ref').read().split('; Override')[0]

WS_Y  = 0
WS_S  = 0x100000
WS_E  = 0x108000
WS_F  = 0x109000
WS_G  = 0x10A000
WS_P  = 0x110000
WS_T  = 0x300000
WS_SZ = 0x400000
L_PART = 0
L_DUM  = 14336
L_Q    = 15360
L_HID  = 15872
L_CNT  = 16000
L_X    = 16128
L_STG  = 21504
L_YP   = L_STG
BIG = 0x40000000
L2E = 1.4426950408889634
POL = {0: '', 1: 'nt', 2: 'sc0 nt', 3: 'sc1 nt', 4: 'sc0', 5: 'sc1', 6: 'sc0 sc1', 7: 'sc0 sc1 nt'}

def gen(KU=3, KW=0, KP0=9, XL=4, T=5, TV=6, TVE=12, VE=30, RV=12, ILV=1, XBEG=4, XEND=14, SLI=33, GST=6, PRIO=1, SLP=8, KPOLL=26, W0N=5, WPOL=0, SPOL=0, KVPOL=1, PPOL=0, DLY=0, DSEL=0, PSL=0, CM=2, PM=0, YLP=5, YSP=5, YCP=5, ROT=1,
        NS=17, SEND=44, EXP=0, stamps=0, name=NAME):
    a = Asm()
    SPIN = (1 << 16) if EXP == 0 else 0
    LDS_SZ = L_STG + max(8 * NS * 1024, 25600)
    assert LDS_SZ <= 163840
    SREG = [80, 82, 84, 86, 56, 58, 60, 62]
    SETS = {1: ['start', 'barA', 'sig', 'kiss', 'barB', 'smax', 'vend', 'end'],
            2: ['start', 'bar0', 'ln', 'barA', 'sig', 'poll', 'qrdy', 'end'],
            3: ['start', 'vend', 'barC', 'mm', 'barD', 'pub', 'c1', 'end'],
            5: ['start', 'ki12', 'ki18', 'ki24', 'ki30', 'ki36', 'ki42', 'ki47'],
            6: ['start', 'ki47', 'vc0', 'vc12', 'vc24', 'vc36', 'vc42', 'vc47'],
            7: ['start', 'bar0', 'barA', 'ki12', 'ki24', 'ki47', 'vc24', 'vc47'],
            4: ['start', 'karg', 'iss1', 'iss2', 'pre0', 'bar0', 'barA', 'end']}
    DN = ['end', 'karg', 'iss1', 'bar0', 'barA', 'sig', 'barB', 'vend', 'iss2', 'smax']
    def stamp(nm):
        if DLY and DSEL and nm == DN[DSEL]: a('s_memrealtime s[80:81]')
        if stamps and nm in SETS[stamps]:
            r = SREG[SETS[stamps].index(nm)]
            a(f's_memrealtime s[{r}:{r+1}]')
    a.raw(HEADER.rstrip())
    a.raw(f'; @launch grid=(256,1,1) block=(512,1,1) lds={LDS_SZ}')
    a.raw('.amdgcn_target "amdgcn-amd-amdhsa--gfx950"\n.text\n.globl %s\n.p2align 8\n.type %s,@function\n%s:' % (name, name, name))
    sW_, sH, sB, sS, sJ, sXCD, sP, sIDX = 's3', 's4', 's5', 's6', 's7', 's68', 's69', 's70'
    K, V, W, WO, WD, X, WS, OUT = 's[8:11]', 's[12:15]', 's[16:19]', 's[20:23]', 's[24:27]', 's[28:31]', 's[32:35]', 's[36:39]'
    sWO0, sWO1, sWDB, sSTG, sWO2, sWO3 = 's40', 's41', 's42', 's43', 's64', 's65'
    sKV, sKV2, sKV0 = 's71', 's72', 's73'
    sT0, sT1, sT2, sT3 = 's74', 's75', 's76', 's77'
    sLO32 = 's[78:79]'
    sM, sSOWN, sYB, sSB = 's88', 's89', 's90', 's91'
    TAG = 's[100:101]'
    KB = 64
    WDT, WOT = 12, 17
    def kt(i): return f'v[{KB+4*i}:{KB+4*i+3}]'
    def v4(r): return f'v[{r}:{r+3}]'
    def srd(d, p, n):
        a(f's_mov_b32 s{d}, s{p}\ns_and_b32 s{d+1}, s{p+1}, 0xffff\ns_mov_b32 s{d+2}, {n}\ns_mov_b32 s{d+3}, 0x20000')
    def rowred(op, r, steps=(8, 4, 2, 1)):
        for s_ in steps: a(f'{op}_dpp v{r}, v{r}, v{r} row_ror:{s_} row_mask:0xf bank_mask:0xf')
    gstep = 6144 * 8 if ILV else 6144
    def grp(g):
        if ROT:
            a(f's_add_u32 {sKV}, {sJ}, {g}\ns_and_b32 {sKV}, {sKV}, 7\ns_mul_i32 {sKV}, {sKV}, {gstep}\ns_add_u32 {sKV}, {sKV}, {sKV0}')
        else:
            a(f's_mov_b32 {sKV}, {sKV0}' if g == 0 else f's_add_u32 {sKV}, {sKV}, {gstep}')
    kissued = [0]
    def kload():
        i = kissued[0]; g, e = divmod(i, 6)
        stamp(f'ki{i}')
        if e == 0: grp(g)
        if e < 4: a(f'buffer_load_dwordx4 {kt(i)}, v8, {K}, {sKV} offen offset:{384*e} {POL[KVPOL]}', tag=f'k{i}')
        else:     a(f'buffer_load_dwordx4 {kt(i)}, v9, {K}, {sKV} offen offset:{768*(e-4)} {POL[KVPOL]}', tag=f'k{i}')
        kissued[0] += 1

    a(f'''
    s_cmp_ge_u32 s2, 256
    s_cbranch_scc1 L_end
    s_load_dwordx16 s[44:59], s[0:1], 0
    s_load_dwordx8 s[60:67], s[0:1], 64''')
    stamp('start')
    if DLY: a('s_memrealtime s[86:87]')
    if PRIO: a('s_setprio 3')
    a(f'''
    v_lshrrev_b32 v14, 6, v0
    v_and_b32 v1, 63, v0
    v_readfirstlane_b32 {sW_}, v14
    v_and_b32 v2, 15, v1
    v_lshrrev_b32 v3, 4, v1
    s_and_b32 {sXCD}, s2, 7
    s_lshr_b32 {sJ}, s2, 3
    s_lshr_b32 {sT0}, {sJ}, 3
    s_lshl_b32 {sH}, {sXCD}, 2
    s_add_u32 {sH}, {sH}, {sT0}
    s_and_b32 {sT1}, {sJ}, 7
    s_lshr_b32 {sB}, {sT1}, 1
    s_and_b32 {sS}, {sT1}, 1
    s_lshl_b32 {sT0}, {sB}, 5
    s_add_u32 {sSB}, {sT0}, {sH}       ; bh
    s_mul_i32 {sKV0}, {sSB}, 3145728
    s_mul_i32 {sT2}, {sS}, 393216
    s_add_u32 {sKV0}, {sKV0}, {sT2}
    s_add_u32 {sKV0}, {sKV0}, {6144*384}
    s_mul_i32 {sT2}, {sW_}, {6144 if ILV else 49152}
    s_add_u32 {sKV0}, {sKV0}, {sT2}
    v_lshrrev_b32 v20, 2, v2
    v_and_b32 v21, 3, v2
    v_lshlrev_b32 v21, 4, v21
    v_mul_u32_u24 v9, 1536, v20
    v_add_u32 v9, v9, v21
    v_lshl_add_u32 v8, v3, 6, v9       ; vkx = 1536(n>>2)+16(n&3)+64g
    v_lshlrev_b32 v20, 4, v1
    s_lshl_b32 {sT0}, {sW_}, 10
    s_add_u32 m0, {sT0}, {L_X}
    s_mov_b32 s10, 402653184
    s_mov_b32 s11, 0x20000
    s_movk_i32 s30, 5120
    s_mov_b32 s31, 0x20000
    s_waitcnt lgkmcnt(0)
    ''')
    stamp('karg')
    a(f'''
    s_mov_b32 s28, s44
    s_and_b32 s29, s45, 0xffff
    s_mov_b32 s8, s46
    s_and_b32 s9, s47, 0xffff
    s_cmp_ge_u32 {sW_}, 5
    s_cbranch_scc1 L_nox
    ''')
    a.role = 'x'
    a(f'buffer_load_dwordx4 v20, {X}, {sT0} offen lds', tag='x')
    a.role = None
    a.label('L_nox')
    assert KU <= 4
    for i in range(KU): kload()
    stamp('iss1')
    a(f's_add_u32 s100, s66, {WS_E}\ns_addc_u32 s101, s67, 0\ns_load_dwordx2 {TAG}, {TAG}, 0')
    a(f'''
    s_mul_i32 {sT2}, {sXCD}, 27
    s_add_u32 {sT2}, {sT2}, {sJ}
    s_mul_i32 s92, {sT2}, 43691
    s_lshr_b32 s92, s92, 17            ; blk
    s_mul_i32 {sT3}, s92, 3
    s_sub_u32 s93, {sT2}, {sT3}        ; split
    s_mul_i32 s97, s93, 224
    s_lshl_b32 {sT2}, {sW_}, 5
    s_add_u32 s97, s97, {sT2}
    s_sub_u32 {sT2}, s92, 48
    s_sub_u32 {sT3}, s92, 60
    s_cmp_lt_u32 s92, 60
    s_cselect_b32 s16, s56, s58
    s_cselect_b32 s17, s57, s59
    s_cselect_b32 s98, {sT2}, {sT3}
    s_movk_i32 s96, 3072
    s_mov_b32 s18, 1966080
    s_cmp_lt_u32 s92, 48
    s_cselect_b32 s16, s50, s16
    s_cselect_b32 s17, s51, s17
    s_cselect_b32 s18, 7864320, s18
    s_cselect_b32 s96, 12288, s96
    s_cselect_b32 s98, s92, s98
    s_and_b32 s17, s17, 0xffff
    s_mov_b32 s19, 0x20000
    s_mul_i32 s94, s97, s96
    s_lshl_b32 s98, s98, 8
    s_add_u32 s94, s94, s98            ; soffset
    s_cmp_eq_u32 {sW_}, 7
    s_cselect_b32 s94, {BIG}, s94
    s_cmp_ge_u32 {sJ}, {27 if not (EXP & 128) else 0}
    s_cselect_b32 s94, {BIG}, s94
    v_mul_lo_u32 v16, v3, s96
    v_lshl_add_u32 v16, v2, 4, v16     ; g*RS+16n
    s_lshl_b32 s96, s96, 2
    v_lshrrev_b32 v22, 1, v3
    v_mul_u32_u24 v21, 384, v22
    v_add_u32 v9, v9, v21
    v_and_b32 v22, 1, v3
    v_lshlrev_b32 v22, 6, v22
    v_add3_u32 v9, v9, v22, 64
    v_add_u32 v9, 192, v9              ; vky
    ''')
    WT = 224
    for t in range(8):
        a(f'buffer_load_dwordx4 {v4(WT+4*t)}, v16, {W}, s94 offen {POL[PPOL]}', tag=f'w{t}')
        if t < 7: a(f's_add_u32 s94, s94, s96')
        if t == 3:
            for _ in range(KW): kload()
    KU = KU + KW
    stamp('iss2')
    if PRIO: a('s_setprio 0')
    def kmore(frac):
        while kissued[0] < KU + int((KP0 - KU) * frac + 0.5): kload()
    srd(32, 66, WS_SZ); srd(12, 48, 402653184); srd(20, 52, 7864320); srd(24, 60, 1966080); srd(36, 62, 5120)
    a(f'''
    s_lshl_b32 {sP}, {sH}, 1
    s_add_u32 {sP}, {sP}, {sS}
    s_lshl_b32 {sIDX}, {sXCD}, 5
    s_add_u32 {sIDX}, {sIDX}, {sJ}
    s_mov_b32 s78, -1
    s_mov_b32 s79, 0
    s_lshl_b32 {sT0}, {sB}, 6
    s_add_u32 {sT0}, {sT0}, {sP}
    s_mul_i32 {sYB}, {sT0}, 2560
    s_lshl_b32 {sSB}, {sSB}, 8
    s_add_u32 {sSB}, {sSB}, {WS_S}
    s_lshl_b32 {sT2}, {sS}, 3
    s_add_u32 {sT2}, {sT2}, {sW_}
    s_lshl_b32 {sT2}, {sT2}, 4
    s_add_u32 {sSOWN}, {sSB}, {sT2}
    s_mul_i32 {sWDB}, {sP}, 24
    s_mul_i32 {sT0}, {sW_}, 3
    s_add_u32 {sWDB}, {sWDB}, {sT0}
    s_mul_i32 {sWDB}, {sWDB}, 1280
    s_mul_i32 {sWO0}, {sH}, 192
    s_mul_i32 {sT0}, {sW_}, 24
    s_add_u32 {sWO0}, {sWO0}, {sT0}
    s_mul_i32 {sWO0}, {sWO0}, 1280
    s_add_u32 {sWO1}, {sWO0}, 5120
    s_add_u32 {sWO2}, {sWO0}, 15360
    s_add_u32 {sWO3}, {sWO0}, 20480
    s_mul_i32 {sSTG}, {sW_}, {NS*1024}
    s_add_u32 {sSTG}, {sSTG}, {L_STG}
    v_mov_b32 v17, 1280
    v_mul_u32_u24 v18, 1280, v3
    v_lshl_add_u32 v18, v2, 4, v18     ; 1280g+16n
    s_lshl_b32 s97, s97, 1
    s_min_u32 s97, s97, 1216
    v_lshl_add_u32 v19, v3, 1, s97
    v_lshrrev_b32 v14, 3, v2
    v_mad_u32_u24 v19, v14, v17, v19   ; + 1280*(m>>3)
    v_and_b32 v15, 7, v2
    v_lshlrev_b32 v15, 4, v15          ; 16*(n&7)
    v_and_b32 v20, 1, v2
    v_cmp_eq_u32 vcc, 1, v20
    v_mov_b32 v21, 0xffff
    v_mov_b32 v22, 0xffff0000
    v_cndmask_b32 v21, v21, v22, vcc
    v_bfe_u32 v20, v2, 1, 2
    ''')
    for r in range(4):
        a(f'v_cmp_eq_u32 vcc, {r}, v20\nv_cndmask_b32 v{4+r}, 0, v21, vcc')
    a(f'''
    v_mul_u32_u24 v10, 384, v3
    v_lshrrev_b32 v20, 3, v2
    v_mul_u32_u24 v11, 3072, v20
    v_add3_u32 v11, v11, v10, v15
    v_add_u32 v11, 256, v11            ; vvy = (g+8*(n>>3))*384+256+16*(n&7)
    v_lshl_add_u32 v10, v2, 4, v10     ; vvx = g*384+16n
    v_lshrrev_b32 v12, 1, v3
    v_mul_u32_u24 v12, 5120, v12
    v_add_u32 v12, v12, v18            ; vwo = (6(g>>1)+(g&1))*1280+16n
    v_mov_b32 v22, {BIG}
    v_cmp_eq_u32 vcc, 3, v3
    v_cndmask_b32 v13, v18, v22, vcc   ; vwd = g*1280+16n  (g==3 -> out of range)
    v_lshrrev_b32 v20, 1, v3
    v_lshlrev_b32 v20, 9, v20
    v_and_b32 v22, 1, v3
    v_lshl_add_u32 v22, v22, 4, v20
    v_lshl_add_u32 v22, v2, 5, v22
    s_lshl_b32 {sT0}, {sW_}, 11
    v_add_u32 v22, {sT0}, v22
    v_mov_b32 v20, {L_CNT}
    v_mov_b32 v21, 0
    ds_write_b32 v20, v21
    ds_write_b32 v20, v21 offset:4
    ''')
    if EXP & 64: a(f'v_mov_b32 v12, {BIG}\nv_mov_b32 v13, {BIG}')
    stamp('pre0')
    a.role = 'x'; a.wait_vm('x'); a.role = None
    a('s_barrier')
    stamp('bar0')
    XS, XO, U, XN, AB, ACC, XV = 24, 44, 184, 184, 200, 216, 168
    for i in range(5): a(f'ds_read_b128 {v4(XS+4*i)}, v18 offset:{L_X+256*i}')
    for pr in range(2):
        for t in range(8): a(f'ds_read_u16 v{XV+8*pr+t}, v19 offset:{L_X+2560*pr+8*t}')
    kmore(1/6)
    a(f'''
    s_waitcnt lgkmcnt(0)
    s_mul_i32 s100, s100, 0x9E3779B1
    s_add_u32 s100, s100, 0x7F4A7C15
    s_mul_i32 s101, s101, 0x85EBCA69
    s_add_u32 s101, s101, 0xC2B2AE35
    ''')
    for i in range(20):
        a(f'v_lshlrev_b32 v{U+2*i}, 16, v{XS+i}\nv_and_b32 v{U+2*i+1}, 0xffff0000, v{XS+i}')
    a(f'v_pk_add_f32 v[52:53], v[{U}:{U+1}], v[{U+2}:{U+3}]\nv_pk_add_f32 v[54:55], v[{U+4}:{U+5}], v[{U+6}:{U+7}]')
    for i in range(8, 40, 2):
        d = 52 + (i & 2)
        a(f'v_pk_add_f32 v[{d}:{d+1}], v[{d}:{d+1}], v[{U+i}:{U+i+1}]')
    a('v_pk_add_f32 v[52:53], v[52:53], v[54:55]\nv_add_f32 v52, v52, v53')
    rowred('v_add_f32', 52)
    a(f'v_mul_f32 v56, {f32(-1/640)}, v52')
    kmore(2/6)
    for i in range(0, 40, 2): a(f'v_pk_add_f32 v[{U+i}:{U+i+1}], v[{U+i}:{U+i+1}], v[56:57] op_sel_hi:[1,0]')
    a(f'v_pk_mul_f32 v[52:53], v[{U}:{U+1}], v[{U}:{U+1}]\nv_pk_mul_f32 v[54:55], v[{U+2}:{U+3}], v[{U+2}:{U+3}]')
    for i in range(4, 40, 2):
        d = 52 + (i & 2)
        a(f'v_pk_fma_f32 v[{d}:{d+1}], v[{U+i}:{U+i+1}], v[{U+i}:{U+i+1}], v[{d}:{d+1}]')
    a('v_pk_add_f32 v[52:53], v[52:53], v[54:55]\nv_add_f32 v52, v52, v53')
    rowred('v_add_f32', 52)
    a(f'''
    v_mul_f32 v52, {f32(1/640)}, v52
    v_cvt_pk_bf16_f32 v53, v56, v52
    v_lshlrev_b32 v56, 16, v53
    v_and_b32 v52, 0xffff0000, v53
    v_add_f32 v52, {f32(1e-5)}, v52
    v_cvt_pk_bf16_f32 v52, v52, v52
    v_and_b32 v52, 0xffff0000, v52
    v_sqrt_f32 v52, v52
    v_cvt_pk_bf16_f32 v52, v52, v52
    v_and_b32 v52, 0xffff0000, v52
    v_rcp_f32 v52, v52
    v_lshlrev_b32 v53, 6, v14
    v_add_u32 v54, 128, v53
    ds_bpermute_b32 v58, v53, v56
    ds_bpermute_b32 v60, v54, v56
    ds_bpermute_b32 v24, v53, v52
    ds_bpermute_b32 v26, v54, v52
    ''')
    kmore(3/6)
    for k in range(16): a(f'v_lshlrev_b32 v{XN+k}, 16, v{XV+k}')
    a('s_waitcnt lgkmcnt(0)')
    for pr in range(2):
        for k in range(4):
            r = XN + 8*pr + 2*k
            a(f'v_pk_add_f32 v[{r}:{r+1}], v[{r}:{r+1}], v[{58+2*pr}:{59+2*pr}] op_sel_hi:[1,0]')
    for k in range(8): a(f'v_cvt_pk_bf16_f32 v{XO+k}, v{XN+2*k}, v{XN+2*k+1}')
    for k in range(8): a(f'v_lshlrev_b32 v{XN+2*k}, 16, v{XO+k}\nv_and_b32 v{XN+2*k+1}, 0xffff0000, v{XO+k}')
    for pr in range(2):
        for k in range(4):
            r = XN + 8*pr + 2*k
            a(f'v_pk_mul_f32 v[{r}:{r+1}], v[{r}:{r+1}], v[{24+2*pr}:{25+2*pr}] op_sel_hi:[1,0]')
    for k in range(16): a(f'v_cvt_pk_bf16_f32 v{XN+k}, v{XN+k}, v{XN+k}')
    stamp('ln')
    kmore(4/6)
    for t in range(8):
        for pr in range(2):
            ab = AB + 4*((2*t + pr) & 3)
            for r in range(4): a(f'v_and_b32 v{ab+r}, v{XN+8*pr+t}, v{4+r}')
        a.wait_vm(f'w{t}')
        for pr in range(2):
            ab = AB + 4*((2*t + pr) & 3); d = v4(ACC + 4*pr)
            a(f'v_mfma_f32_16x16x32_bf16 {d}, {v4(ab)}, {v4(WT+4*t)}, {0 if t == 0 else d}')
        if t == 3: kmore(5/6)
    stamp('wland')
    kmore(1)
    a(f's_cmp_eq_u32 {sW_}, 7\ns_cbranch_scc1 L_nopart')
    for pr in range(2): a(f'ds_write_b128 v22, {v4(ACC+4*pr)} offset:{1024*pr}')
    a.label('L_nopart')
    a('s_waitcnt lgkmcnt(0)\ns_barrier')
    stamp('barA')
    def padd(d, s_, n):
        for r in range(0, n, 2): a(f'v_pk_add_f32 v[{d+r}:{d+r+1}], v[{d+r}:{d+r+1}], v[{s_+r}:{s_+r+1}]')
    a(f'''
    s_cmp_lt_u32 {sW_}, 6
    s_cbranch_scc1 L_nopub
    v_and_b32 v14, 127, v0
    v_lshlrev_b32 v15, 4, v14
    ''')
    for u in range(7): a(f'ds_read_b128 {v4(16+4*u)}, v15 offset:{2048*u}')
    a(f'''
    v_lshrrev_b32 v14, 5, v14
    s_mov_b32 {sT0}, {36864-512}
    v_mad_u32_u24 v14, v14, {sT0}, v15     ; b*36864 + 16*(t&31)
    s_mul_i32 {sT0}, s93, 147456
    s_lshl_b32 {sT2}, s92, 9
    s_add_u32 {sT0}, {sT0}, {sT2}
    s_add_u32 {sT0}, {sT0}, {WS_P}
    s_cmp_ge_u32 {sJ}, {27 if not (EXP & 8) else 0}
    s_cselect_b32 {sT0}, {BIG}, {sT0}
    s_waitcnt lgkmcnt(0)
    ''')
    padd(16, 32, 12); padd(16, 24, 8); padd(16, 20, 4)
    a.role = 'pub'
    a(f'buffer_store_dwordx4 v[16:19], v14, {WS}, {sT0} offen sc1', tag='pub')
    a.role = None
    a.label('L_nopub')
    def wotile(n):
        uc, h = divmod(n, 2); c, u = divmod(uc, 3)
        return [[sWO0, sWO1], [sWO2, sWO3]][h][u == 2], (2560 if u == 1 else 0) + 256*c
    kseq = ['c']
    si = 0
    for i in range(KP0, 48):
        kseq.append('k')
        while si < NS and (si + 1) * (SEND - KP0) <= (i + 1 - KP0) * NS:
            kseq.append('s'); si += 1
    assert si == NS
    kp = [0]; sissued = [0]
    def kstep(paced):
        op = kseq[kp[0]]; kp[0] += 1
        if op == 'c':
            a(f'''
            v_and_b32 v24, 31, v1
            v_lshlrev_b32 v24, 4, v24
            v_mov_b32 v25, {BIG}
            v_cndmask_b32 v24, v25, v24, {sLO32}
            s_lshl_b32 {sT0}, {sW_}, 9
            s_add_u32 {sT0}, {sT0}, {sYB}
            s_cmp_ge_u32 {sW_}, {5 if not (EXP & 16) else 0}
            s_cselect_b32 {sT0}, {BIG}, {sT0}
            v_mov_b32 v28, -1
            v_mov_b32 v29, -1
            v_mov_b32 v30, -1
            v_mov_b32 v31, -1
            ''')
        if paced: a(f's_waitcnt vmcnt({T-1})')
        if op == 'k': kload()
        elif op == 'c': a(f'buffer_store_dwordx4 v[28:31], v24, {WS}, {sT0} offen {POL[YCP]}', tag='clr')
        else:
            n = sissued[0]; so, imm = wotile(n)
            a(f's_add_u32 m0, {sSTG}, {1024*n - imm}' if 1024*n >= imm else f's_sub_u32 m0, {sSTG}, {imm - 1024*n}')
            a(f'buffer_load_dwordx4 v12, {WO}, {so} offen offset:{imm} {POL[SPOL]} lds', tag='stg')
            sissued[0] += 1
    for _ in range(T): kstep(True)
    a.wait_vm('clr')
    a(f'''
    v_mov_b32 v14, {L_CNT}
    v_mov_b32 v15, 1
    s_mov_b64 exec, 1
    ds_add_rtn_u32 v20, v14, v15
    s_waitcnt lgkmcnt(0)
    v_readfirstlane_b32 {sT0}, v20
    s_cmp_eq_u32 {sT0}, 7
    s_cbranch_scc0 L_nosig
    s_mov_b64 exec, 3
    s_lshl_b32 {sT0}, s92, 2
    s_add_u32 {sT0}, {sT0}, s93
    s_lshl_b32 {sT0}, {sT0}, 3
    s_add_u32 {sT0}, {sT0}, {WS_F}
    s_cmp_ge_u32 {sJ}, 27
    s_cselect_b32 {sT0}, {BIG}, {sT0}
    s_lshl_b32 {sT2}, {sIDX}, 3
    s_add_u32 {sT2}, {sT2}, {WS_G}
    v_mov_b32 v20, {sT0}
    v_writelane_b32 v20, {sT2}, 1
    v_mov_b32 v14, s100
    v_mov_b32 v15, s101
    ''')
    a(f'buffer_store_dwordx2 v[14:15], v20, {WS}, 0 offen sc1'); a.vm.pop()
    a.label('L_nosig')
    a('s_mov_b64 exec, -1')
    stamp('sig')
    while kissued[0] < KPOLL: kstep(True)
    a(f's_cmp_eq_u32 {sW_}, 0\ns_cbranch_scc1 L_w0')
    fork = (list(a.vm), kissued[0], kp[0], sissued[0])
    while kp[0] < len(kseq): kstep(True)
    stamp('kiss'); stamp('poll'); stamp('qrdy')
    a('s_branch L_join')
    vm_join = list(a.vm)
    a.vm, kissued[0], kp[0], sissued[0] = fork
    a.label('L_w0')
    a(f'''
    v_min_u32 v60, 59, v1
    v_lshlrev_b32 v60, 2, v60
    s_mul_i32 {sT0}, {sH}, 192
    s_mul_i32 {sT2}, {sP}, 24
    s_add_u32 {sT2}, {sT2}, {6144-192}
    s_add_u32 {sT3}, {sT2}, {1536-24}
    v_mov_b32 v61, {sT0}
    v_mov_b32 v62, {sT2}
    v_cmp_le_u32 vcc, 48, v1
    v_cndmask_b32 v61, v61, v62, vcc
    v_mov_b32 v62, {sT3}
    v_cmp_le_u32 vcc, 54, v1
    v_cndmask_b32 v61, v61, v62, vcc
    v_add_u32 v60, v60, v61
    v_lshrrev_b32 v61, 7, v60
    v_lshlrev_b32 v61, 5, v61
    v_lshlrev_b32 v60, 2, v60
    s_mov_b32 {sT2}, {WS_F}
    s_mov_b32 {sT1}, {SPIN}
    ''')
    if EXP & 1: a(f'v_mov_b32 v61, {BIG}')
    a(f'buffer_load_dwordx4 v[16:19], v61, {WS}, {sT2} offen sc1')
    a(f'buffer_load_dwordx2 v[20:21], v61, {WS}, {sT2} offen offset:16 sc1', tag='poll')
    for _ in range(T - 1): kstep(True)
    a.wait_vm('poll')
    a.label('L_spin1')
    a(f'''
    v_cmp_ne_u64 vcc, {TAG}, v[16:17]
    v_cmp_ne_u64 s[44:45], {TAG}, v[18:19]
    v_cmp_ne_u64 s[46:47], {TAG}, v[20:21]
    s_or_b64 vcc, vcc, s[44:45]
    s_or_b64 vcc, vcc, s[46:47]
    s_cbranch_scc0 L_ok1
    s_sub_u32 {sT1}, {sT1}, 1
    s_cbranch_scc1 L_ok1
    s_sleep {SLP}
    buffer_load_dwordx4 v[16:19], v61, {WS}, {sT2} offen sc1
    buffer_load_dwordx2 v[20:21], v61, {WS}, {sT2} offen offset:16 sc1
    s_waitcnt vmcnt(0)
    s_branch L_spin1
    ''')
    a.vm.pop(); a.vm.pop()
    a.label('L_ok1')
    stamp('poll')
    a(f's_mul_i32 {sT0}, {sB}, 36864\ns_add_u32 {sT0}, {sT0}, {WS_P}')
    if EXP & 2: a(f'v_mov_b32 v60, {BIG}')
    for t in range(3):
        a(f'buffer_load_dwordx4 {v4(16+4*t)}, v60, {WS}, {sT0} offen sc1', tag='gq')
        if t < 2: a(f's_add_u32 {sT0}, {sT0}, 147456')
    for _ in range(W0N): kstep(False)
    a.wait_vm('gq')
    padd(16, 20, 4); padd(16, 24, 4)
    a(f'''
    v_cvt_pk_bf16_f32 v16, v16, v17
    v_cvt_pk_bf16_f32 v17, v18, v19
    v_lshlrev_b32 v14, 3, v1
    ds_write_b64 v14, v[16:17] offset:{L_Q}
    v_min_u32 v14, 23, v1
    v_lshlrev_b32 v14, 1, v14
    s_waitcnt lgkmcnt(0)
    ds_read_u16 v20, v14 offset:{L_Q+384}
    ds_read_u16 v21, v14 offset:{L_Q+432}
    s_waitcnt lgkmcnt(0)
    v_lshlrev_b32 v20, 16, v20
    v_lshlrev_b32 v21, 16, v21             ; up
    v_mul_f32 v22, v20, v20
    v_mul_f32 v22, {f32(0.044715)}, v22
    v_fma_f32 v22, v22, v20, v20           ; x + c x^3
    v_mul_f32 v22, {f32(-2*0.7978845608028654*L2E)}, v22
    v_exp_f32 v22, v22
    v_add_f32 v22, 1.0, v22
    v_rcp_f32 v22, v22
    v_mul_f32 v22, v22, v20
    v_cvt_pk_bf16_f32 v22, v22, v22
    v_and_b32 v22, 0xffff0000, v22
    v_mul_f32 v22, v22, v21
    v_cvt_pk_bf16_f32 v22, v22, v22
    v_cmp_gt_u32 vcc, 24, v1
    v_cndmask_b32 v22, 0, v22, vcc
    v_min_u32 v14, 31, v1
    v_lshlrev_b32 v14, 2, v14
    ds_write_b32 v14, v22 offset:{L_HID}
    v_mov_b32 v14, {L_CNT}
    v_mov_b32 v15, 1
    s_waitcnt lgkmcnt(0)
    ds_write_b32 v14, v15 offset:4
    ''')
    def xred8(base, n, tmp):
        for r in range(n): a(f'v_add_f32_dpp v{base+r}, v{base+r}, v{base+r} row_ror:8 row_mask:0xf bank_mask:0xf')
        for sw in ('v_permlane16_swap_b32', 'v_permlane32_swap_b32'):
            for r in range(n): a(f'v_mov_b32 v{tmp+r}, v{base+r}')
            for r in range(n): a(f'{sw} v{base+r}, v{tmp+r}')
            padd(base, tmp, n)
    stamp('qrdy')
    while kp[0] < len(kseq): kstep(True)
    stamp('kiss')
    a.vm = vm_join
    a.label('L_join')
    a(f'v_mov_b32 v14, {L_CNT}\ns_mov_b32 {sT1}, {1<<22}')
    a.label('L_spinq')
    a(f'''
    ds_read_b32 v15, v14 offset:4
    s_waitcnt lgkmcnt(0)
    v_readfirstlane_b32 {sT0}, v15
    s_cmp_lg_u32 {sT0}, 0
    s_cbranch_scc1 L_okq
    s_sub_u32 {sT1}, {sT1}, 1
    s_cbranch_scc1 L_okq
    s_sleep 1
    s_branch L_spinq
    ''')
    a.label('L_okq')
    stamp('barB')
    a(f'''
    v_and_b32 v14, 3, v2
    v_lshl_add_u32 v15, v3, 2, v14
    v_lshlrev_b32 v15, 4, v15
    ds_read_b128 v[56:59], v15 offset:{L_Q}
    v_and_b32 v15, 0x70, v15
    ds_read_b128 v[60:63], v15 offset:{L_Q+256}
    ''')
    mX = [lanemask(lambda m, g, u=u: (m >> 2) == u) for u in range(4)]
    mY = [lanemask(lambda m, g, w=w: (m >> 2) == 2*w + (g >> 1)) for w in range(2)]
    for k, m in enumerate(mX + mY):
        a(f's_mov_b32 s{44+2*k}, {hex(m & 0xffffffff)}\ns_mov_b32 s{45+2*k}, {hex(m >> 32)}')
    a('s_waitcnt lgkmcnt(0)')
    for k in range(6):
        src = 56 if k < 4 else 60
        for r in range(4): a(f'v_cndmask_b32 v{32+4*k+r}, 0, v{src+r}, s[{44+2*k}:{45+2*k}]')
    vissued = [0]
    def vreg(i): return kt(i % RV)
    def vload():
        i = vissued[0]; g, e = divmod(i, 6); c, x = divmod(e, 3)
        if e == 0:
            grp(g)
            a(f's_add_u32 {sKV2}, {sKV}, 3072')
        if x == 0:   a(f'buffer_load_dwordx4 {vreg(i)}, v10, {V}, {sKV} offen offset:{1536*c} {POL[KVPOL]}', tag=f'v{i}')
        elif x == 1: a(f'buffer_load_dwordx4 {vreg(i)}, v10, {V}, {sKV2} offen offset:{1536*c} {POL[KVPOL]}', tag=f'v{i}')
        else:        a(f'buffer_load_dwordx4 {vreg(i)}, v11, {V}, {sKV} offen offset:{1536*c} {POL[KVPOL]}', tag=f'v{i}')
        vissued[0] += 1
    assert RV <= 12
    extras = [('wd', c) for c in range(5)] + [('wo', n) for n in range(NS, 30)]
    xiss = [0]
    def xtile(e): return WDT + e[1] if e[0] == 'wd' else WOT + e[1]
    def xload():
        e = extras[xiss[0]]
        if e[0] == 'wd':
            a(f'buffer_load_dwordx4 {kt(xtile(e))}, v13, {WD}, {sWDB} offen offset:{256*e[1]} {POL[WPOL]}', tag='wd')
        else:
            so, imm = wotile(e[1])
            a(f'buffer_load_dwordx4 {kt(xtile(e))}, v12, {WO}, {so} offen offset:{imm} {POL[WPOL]}', tag=f'wo{e[1]}')
        xiss[0] += 1
    SC = 0.07216878364870322
    def score_post(g):
        d = 24 + 4*(g & 1); s_ = 16 + g
        a(f'''
        v_mov_b32_dpp v{s_}, v{d} quad_perm:[0,0,0,0] row_mask:0xf bank_mask:0xf
        v_add_f32_dpp v{s_}, v{d+1}, v{s_} quad_perm:[1,1,1,1] row_mask:0xf bank_mask:0xf
        v_add_f32_dpp v{s_}, v{d+2}, v{s_} quad_perm:[2,2,2,2] row_mask:0xf bank_mask:0xf
        v_add_f32_dpp v{s_}, v{d+3}, v{s_} quad_perm:[3,3,3,3] row_mask:0xf bank_mask:0xf
        v_cvt_pk_bf16_f32 v{s_}, v{s_}, v{s_}
        v_and_b32 v{s_}, 0xffff0000, v{s_}
        v_mul_f32 v{s_}, {f32(SC)}, v{s_}
        v_cvt_pk_bf16_f32 v{s_}, v{s_}, v{s_}
        v_and_b32 v{s_}, 0xffff0000, v{s_}
        ''')
    nx = len(extras) - XL
    span = 48 - XBEG - XEND
    seq = []
    xi = 0
    for i in range(48):
        seq.append('v')
        if i == SLI: seq.append('sl')
        if xi < 5 and i >= XBEG:
            seq.append('x'); xi += 1
        while xi < nx and i >= XBEG and (xi + 1) * span <= (i + 1 - XBEG) * nx:
            seq.append('x'); xi += 1
    assert xi == nx
    seq += ['x'] * XL
    nx += XL
    sp = [0]
    did_wd = [False]
    SS = KB + 4*47
    st = KB + 4*WDT
    GF = st + 12
    def statload():
        a(f'''
        v_lshlrev_b32 v8, 4, v2
        s_mul_i32 s95, {sP}, 43691
        s_lshr_b32 s95, s95, 17
        s_mul_i32 {sT0}, {sB}, 1280
        s_lshl_b32 {sT1}, s95, 6
        s_add_u32 s96, {sT0}, {sT1}
        s_mul_i32 {sT0}, s95, 3
        s_mov_b32 s97, 1
        s_cmp_lg_u32 {sT0}, {sP}
        s_cselect_b32 s97, 0, s97
        s_cmp_ge_u32 s95, 20
        s_cselect_b32 s97, 0, s97
        s_cmp_lg_u32 {sW_}, 7
        s_cselect_b32 s97, 0, s97
        v_lshlrev_b32 v9, 4, v1
        s_mov_b32 s98, {WS_G}
        s_cmp_eq_u32 s97, 0
        s_cbranch_scc1 L_nogf
        buffer_load_dwordx4 {v4(GF)}, v9, {WS}, s98 offen sc1
        buffer_load_dwordx4 {v4(GF+4)}, v9, {WS}, s98 offen offset:1024 sc1
        ''')
        a.vm.pop(); a.vm.pop()
        a.label('L_nogf')
        a(f'buffer_load_dwordx4 {v4(SS)}, v8, {WS}, {sSB} offen sc1', tag='sl')
    def pump(lasttag, kfree, vcons):
        while sp[0] < len(seq):
            idx = max(k for k, (t, r) in enumerate(a.vm) if t == lasttag)
            if len(a.vm) - 1 - idx >= (TV if vcons < VE else TVE): break
            op = seq[sp[0]]
            if op == 'v':
                i = vissued[0]
                if i < RV:
                    if i >= kfree: break
                elif i - RV >= vcons: break
                vload()
            elif op == 'x':
                if xtile(extras[xiss[0]]) >= kfree: break
                xload()
            else:
                assert did_wd[0]
                statload()
            sp[0] += 1
    done = [t for (t, r) in a.vm[:len(a.vm) - T]]
    known = max(int(t[1:]) for t in done if t and t[0] == 'k' and t[1:].isdigit())
    a.wait_vm(f'k{known}')
    for g in range(8):
        d = v4(24 + 4*(g & 1))
        for e in range(6):
            i = 6*g + e
            if i > known:
                a.wait_vm(f'k{i}'); known = i
            a(f'v_mfma_f32_16x16x32_bf16 {d}, {v4(32+4*e)}, {kt(i)}, {0 if e == 0 else d}')
            if i == known: pump(f'k{known}', i + 1, 0)
        if 6*g + 5 < known and (g & 1) == 0 and known < 47:
            known += 1
            a.wait_vm(f'k{known}')
            pump(f'k{known}', 6*g + 6, 0)
        if g > 0: score_post(g-1)
    score_post(7)
    if NS:
        a.wait_vm('stg')
        a(f'v_lshlrev_b32 v14, 4, v1\nv_add_u32 v14, {sSTG}, v14')
        for n in range(NS): a(f'ds_read_b128 {kt(WOT+n)}, v14 offset:{1024*n}')
    def allred(op, r, t):
        rowred(op, r, (4, 8))
        a(f'v_mov_b32 v{t}, v{r}\nv_permlane16_swap_b32 v{r}, v{t}\n{op} v{r}, v{r}, v{t}')
        a(f'v_mov_b32 v{t}, v{r}\nv_permlane32_swap_b32 v{r}, v{t}\n{op} v{r}, v{r}, v{t}')
    a('v_max3_f32 v28, v16, v17, v18\nv_max3_f32 v15, v19, v20, v21\nv_max3_f32 v28, v28, v22, v23\nv_max_f32 v28, v28, v15')
    allred('v_max_f32', 28, 15)
    for g in range(8): a(f'v_sub_f32 v{16+g}, v{16+g}, v28')
    for g in range(8): a(f'v_mul_f32 v{16+g}, {f32(L2E)}, v{16+g}')
    for g in range(8): a(f'v_exp_f32 v{16+g}, v{16+g}')
    a('v_add_f32 v30, v16, v17\nv_add_f32 v24, v18, v19\nv_add_f32 v25, v20, v21\nv_add_f32 v26, v22, v23\nv_add_f32 v30, v30, v24\nv_add_f32 v25, v25, v26\nv_add_f32 v30, v30, v25')
    allred('v_add_f32', 30, 24)
    for g in range(8): a(f'v_cvt_pk_bf16_f32 v{16+g}, v{16+g}, v{16+g}')
    a(f'''
    v_mov_b32 v29, s100
    v_mov_b32 v31, s101
    v_mov_b32 v24, 0
    v_readfirstlane_b32 {sM}, v28          ; own m
    s_mov_b64 exec, 1
    ''')
    a(f'buffer_store_dwordx4 v[28:31], v24, {WS}, {sSOWN} offen sc1', tag='stat')
    a('s_mov_b64 exec, -1')
    stamp('smax')
    YA, OA = 44, 32
    a(f'''
    s_mul_i32 {sT0}, {sW_}, 12
    v_lshlrev_b32 v24, 2, v3
    v_add_u32 v24, {sT0}, v24
    v_mov_b32 v25, 124
    v_cmp_eq_u32 vcc, 3, v3
    v_cndmask_b32 v24, v24, v25, vcc
    ds_read_b32 v14, v24 offset:{L_HID}
    s_waitcnt lgkmcnt(0)
    ''')
    for g in range(8):
        for c in range(2):
            A = 24 + 4*c
            if c == 0: a(f'v_mov_b32 v15, v{16+g}\nv_mov_b32_dpp v15, v{16+g} row_shr:4 row_mask:0xf bank_mask:0xa')
            else:      a(f'v_mov_b32 v15, v{16+g}\nv_mov_b32_dpp v15, v{16+g} row_shl:4 row_mask:0xf bank_mask:0x5')
            for r in range(4): a(f'v_and_b32 v{A+r}, v15, v{4+r}')
            for x in range(3):
                i = 6*g + 3*c + x
                d = v4(OA + 4*x)
                a.wait_vm(f'v{i}')
                stamp(f'vc{i}')
                a(f'v_mfma_f32_16x16x32_bf16 {d}, {v4(A)}, {vreg(i)}, {0 if i < 3 else d}')
                pump(f'v{i}', 48, i + 1)
        if g == 2:
            did_wd[0] = True
            assert xiss[0] >= 5
            for r in range(4): a(f'v_and_b32 v{24+r}, v14, v{4+r}')
            a.wait_vm('wd')
            for c in range(5):
                a(f'v_mfma_f32_16x16x32_bf16 {v4(YA+4*c)}, v[24:27], {kt(WDT+c)}, 0')
        if g == GST:
            a(f's_mov_b32 {sT1}, {SPIN}')
            a.wait_vm('sl')
            a.label('L_spin2')
            a(f'''
            v_cmp_ne_u32 vcc, s100, v{SS+1}
            v_cmp_ne_u32 s[44:45], s101, v{SS+3}
            s_or_b64 vcc, vcc, s[44:45]
            s_cbranch_scc0 L_ok2
            s_sub_u32 {sT1}, {sT1}, 1
            s_cbranch_scc1 L_ok2
            s_sleep 4
            buffer_load_dwordx4 {v4(SS)}, v8, {WS}, {sSB} offen sc1
            s_waitcnt vmcnt(0)
            s_branch L_spin2
            ''')
            a.vm.pop()
            a.label('L_ok2')
            a(f'''
            s_cmp_eq_u32 s97, 0
            s_cbranch_scc1 L_ok2b
            s_mov_b32 {sT1}, {SPIN}
            ''')
            a.label('L_spin2b')
            a(f'''
            v_cmp_ne_u64 vcc, {TAG}, v[{GF}:{GF+1}]
            v_cmp_ne_u64 s[44:45], {TAG}, v[{GF+2}:{GF+3}]
            v_cmp_ne_u64 s[46:47], {TAG}, v[{GF+4}:{GF+5}]
            v_cmp_ne_u64 s[48:49], {TAG}, v[{GF+6}:{GF+7}]
            s_or_b64 vcc, vcc, s[44:45]
            s_or_b64 s[46:47], s[46:47], s[48:49]
            s_or_b64 vcc, vcc, s[46:47]
            s_cbranch_scc0 L_ok2c
            s_sub_u32 {sT1}, {sT1}, 1
            s_cbranch_scc1 L_ok2c
            s_sleep {SLP}
            buffer_load_dwordx4 {v4(GF)}, v9, {WS}, s98 offen sc1
            buffer_load_dwordx4 {v4(GF+4)}, v9, {WS}, s98 offen offset:1024 sc1
            s_waitcnt vmcnt(0)
            s_branch L_spin2b
            ''')
            a.vm.pop(); a.vm.pop()
            a.label('L_ok2c')
            a(f'''
            s_cmp_lg_u32 s2, 0
            s_cbranch_scc1 L_ok2b
            s_mov_b32 {sT2}, {WS_E}
            v_mov_b32 v{GF}, s100
            v_mov_b32 v{GF+1}, s101
            s_mov_b64 exec, 1
            buffer_store_dwordx2 v[{GF}:{GF+1}], v9, {WS}, {sT2} offen sc1
            s_mov_b64 exec, -1
            ''')
            a.vm.pop()
            a.label('L_ok2b')
            a(f'v_mov_b32 v{st+6}, v{SS}')
            rowred('v_max_f32', st+6)
            a(f'''
            v_sub_f32 v{st}, v{SS}, v{st+6}
            v_sub_f32 v{st+7}, {sM}, v{st+6}
            v_mul_f32 v{st}, {f32(L2E)}, v{st}
            v_mul_f32 v{st+7}, {f32(L2E)}, v{st+7}
            v_exp_f32 v{st}, v{st}
            v_exp_f32 v{st+7}, v{st+7}
            v_mul_f32 v{st}, v{st}, v{SS+2}
            ''')
            rowred('v_add_f32', st)
            a(f'''
            v_rcp_f32 v{st}, v{st}
            v_mul_f32 v14, v{st}, v{st+7}          ; factor
            v_and_b32 v{st+5}, 7, v1
            v_lshlrev_b32 v{st+5}, 3, v{st+5}
            v_and_b32 v{st+3}, 1, v3
            v_lshlrev_b32 v{st+3}, 2, v{st+3}
            v_and_b32 v{st+4}, 2, v3
            v_add3_u32 v{st+3}, v{st+3}, v{st+4}, v{st+5}
            s_min_u32 {sT0}, s96, 5056
            v_add_u32 v{st+4}, {sT0}, v{st+3}
            ds_read_u16 v{st+2}, v{st+4} offset:{L_X}
            v_and_b32 v{st+15}, 3, v2
            v_mul_u32_u24 v{st+15}, 0x5555, v{st+15}
            s_mov_b32 s44, 0x0f0f0f0f
            s_mov_b32 s45, 0x0f0f0f0f
            s_mov_b32 s46, 0xf0f0f0f0
            s_mov_b32 s47, 0xf0f0f0f0
            ''')
            a(f'''
            v_lshrrev_b32 v{st+6}, 1, v3
            s_lshl_b32 {sT0}, {sW_}, 1
            v_add_u32 v{st+7}, {sT0}, v{st+6}
            v_mul_u32_u24 v{st+7}, 784, v{st+7}
            v_and_b32 v{st+8}, 1, v3
            v_lshlrev_b32 v{st+11}, 4, v{st+8}
            v_add_u32 v{st+7}, v{st+7}, v{st+11}
            v_lshl_add_u32 v{st+8}, v2, 5, v{st+7}
            v_and_b32 v{st+9}, 7, v2
            v_lshl_add_u32 v{st+9}, v{st+9}, 5, v{st+7}
            v_add_u32 v{st+9}, 512, v{st+9}
            v_lshrrev_b32 v{st+7}, 3, v2
            v_cmp_eq_u32 vcc, v{st+7}, v{st+6}
            v_lshlrev_b32 v{st+7}, 4, v1
            v_add_u32 v{st+7}, {L_DUM}, v{st+7}
            v_cndmask_b32 v{st+9}, v{st+7}, v{st+9}, vcc
            v_mul_u32_u24 v{st+10}, 784, v2
            v_mul_u32_u24 v{st+7}, 24, v3
            s_mul_i32 {sT0}, {sW_}, 96
            v_add3_u32 v{st+10}, v{st+10}, v{st+7}, {sT0}
            s_mul_i32 {sT0}, {sW_}, 3200
            v_mul_u32_u24 v{st+11}, 24, v{st+11}
            v_lshl_add_u32 v{st+11}, v2, 4, v{st+11}
            v_add_u32 v{st+11}, {sT0}, v{st+11}           ; y write: 3200w + 384(g&1) + 16n
            v_and_b32 v{st+13}, 31, v1
            v_lshrrev_b32 v{st+7}, 1, v{st+13}
            v_lshlrev_b32 v{st+13}, 4, v{st+13}
            s_lshl_b32 {sT0}, {sW_}, 9
            v_add_u32 v{st+13}, {sT0}, v{st+13}
            v_mul_u32_u24 v{st+12}, 12800, v{st+6}
            v_lshl_add_u32 v{st+12}, v{st+7}, 4, v{st+12}
            v_and_b32 v{st+7}, 1, v1
            v_mul_u32_u24 v{st+7}, 384, v{st+7}
            s_mul_i32 {sT0}, {sW_}, 640
            v_add3_u32 v{st+12}, v{st+12}, v{st+7}, {sT0}  ; y read: 12800(l>>5) + 640w + 384(l&1) + 16((l&31)>>1)
            v_lshrrev_b32 v{st+14}, 3, v1
            v_mul_u32_u24 v{st+14}, 2560, v{st+14}
            v_lshl_add_u32 v{st+14}, v{st+5}, 1, v{st+14}
            s_mul_i32 s94, {sB}, {64*2560}
            s_lshl_b32 {sT0}, s95, 7
            s_add_u32 s94, s94, {sT0}
            ''')
            for i in range(8): a(f's_add_u32 s{48+i}, s94, {8*2560*i}')
    assert xiss[0] == nx and sp[0] == len(seq)
    stamp('vend')
    for r in range(4): a(f'v_cndmask_b32 v{OA+r}, v{OA+4+r}, v{OA+r}, {sLO32}')
    for r in range(4): a(f'v_mul_f32 v{OA+r}, v{OA+r}, v14')
    a(f'ds_write_b128 v{st+8}, {v4(OA)}')
    for r in range(4): a(f'v_mul_f32 v{OA+8+r}, v{OA+8+r}, v14')
    a(f'ds_write_b128 v{st+9}, {v4(OA+8)}')
    a('s_waitcnt lgkmcnt(0)\ns_barrier')
    stamp('barC')
    for j in range(3): a(f'ds_read_b64 v[{16+2*j}:{17+2*j}], v{st+10} offset:{8*j}')
    def dpp(regs, steps):
        for s_ in steps:
            for r in regs: a(f'v_add_f32_dpp v{r}, v{r}, v{r} row_ror:{s_} row_mask:0xf bank_mask:0xf')
    if CM != 2:
        a('s_waitcnt lgkmcnt(0)')
        dpp(range(16, 22), (8, 4, 2, 1))
    AT = KB
    def abuild(u):
        for i in range(2):
            a(f'v_cvt_pk_bf16_f32 v{16+2*u+i}, v{16+2*u+i}, 0')
        for i in range(2):
            a(f'v_cndmask_b32 v{AT+4*u+2*i}, 0, v{16+2*u+i}, s[44:45]\nv_cndmask_b32 v{AT+4*u+2*i+1}, 0, v{16+2*u+i}, s[46:47]')
    def smf(u, c):
        n = (c*3 + u)*2
        if n + 1 >= 30 - XL: a.wait_vm(f'wo{n+1}')
        r = KB + 4*(WOT + n)
        a(f'v_smfmac_f32_16x16x64_bf16 {v4(YA+4*c)}, {v4(AT+4*u)}, v[{r}:{r+7}], v{st+15}')
    def ywrite(c):
        a(f's_mov_b64 exec, {sLO32}\nds_write_b128 v{st+11}, {v4(YA+4*c)} offset:{L_YP+640*c}\ns_mov_b64 exec, -1')
    if CM == 2:
        a('s_waitcnt lgkmcnt(0)' if stamps == 3 else 's_waitcnt lgkmcnt(1)')
        dpp((16, 17, 18), (8, 4, 2, 1))
        abuild(0)
        a('s_waitcnt lgkmcnt(0)')
        dpp((19, 20, 21), (8,))
        smf(0, 0); dpp((19, 20, 21), (4,))
        smf(0, 1); dpp((19, 20, 21), (2,))
        smf(0, 2); dpp((19, 20, 21), (1,))
        smf(0, 3); abuild(1)
        smf(1, 0); abuild(2)
        order = [(1,1),(2,0),(1,2),(2,1),(1,3),(0,4),'w0',(2,2),'w1',(1,4),(2,3),(2,4),'w2','w3','w4']
        for o in order:
            if isinstance(o, str): ywrite(int(o[1]))
            else: smf(*o)
        stamp('mm')
        a('s_waitcnt lgkmcnt(0)\ns_barrier')
    elif CM:
        abuild(0); abuild(1)
        smf(0, 0); smf(0, 1)
        abuild(2)
        order = [(1,0),(1,1),(2,0),(2,1),(0,2),(0,3),(1,2),'w0',(1,3),'w1',(2,2),(0,4),(2,3),(1,4),'w2',(2,4),'w3','w4']
        for o in order:
            if isinstance(o, str): ywrite(int(o[1]))
            else: smf(*o)
        stamp('mm')
        a('s_waitcnt lgkmcnt(0)\ns_barrier')
    else:
        abuild(0); abuild(1)
        smf(0, 0); smf(0, 1)
        abuild(2)
        for c in range(2, 5): smf(0, c)
        for c in range(5): smf(1, c)
        for c in range(5): smf(2, c)
        stamp('mm')
        a(f's_mov_b64 exec, {sLO32}')
        for c in range(5): a(f'ds_write_b128 v{st+11}, {v4(YA+4*c)} offset:{L_YP+640*c}')
        a('s_mov_b64 exec, -1\ns_waitcnt lgkmcnt(0)\ns_barrier')
    stamp('barD'); stamp('pub'); stamp('c1')
    a(f's_cmp_ge_u32 {sW_}, 5\ns_cbranch_scc1 L_cons')
    for u in range(4): a(f'ds_read_b128 {v4(16+4*u)}, v{st+12} offset:{L_YP+3200*u}')
    a('s_waitcnt lgkmcnt(0)')
    padd(16, 24, 8); padd(16, 20, 4)
    for r in range(4): a(f'v_mov_b32 v{20+r}, v{16+r}')
    for r in range(4): a(f'v_permlane32_swap_b32 v{16+r}, v{20+r}')
    padd(16, 20, 4)
    for r in range(4): a(f'v_min_u32 v{16+r}, -2, v{16+r}')
    a(f's_mov_b64 exec, {sLO32}')
    a(f'buffer_store_dwordx4 v[16:19], v{st+13}, {WS}, {sYB} offen {POL[YSP]}')
    if stamps:
        a('s_mov_b64 exec, -1\ns_waitcnt lgkmcnt(0)')
        stamp('pub')
        a('s_branch L_fin')
    else:
        a('s_endpgm')
    a.label('L_cons')
    a(f'''
    s_cmp_eq_u32 s97, 0
    s_cbranch_scc1 L_fin
    s_mov_b32 {sT1}, {SPIN}
    ''')
    a.label('L_spin3')
    for i in range(8):
        a(f'buffer_load_dwordx4 {v4(16+4*i)}, v{st+14}, {WS}, s{48+i} offen {POL[YLP]}')
    a(f's_sub_u32 {sT1}, {sT1}, 1')
    for i in range(8):
        r = 16 + 4*i
        a(f's_waitcnt vmcnt({7-i})')
        if i == 0: a(f'v_max_u32 v14, v{r}, v{r+1}\nv_max_u32 v15, v{r+2}, v{r+3}')
        else: a(f'v_max3_u32 v14, v14, v{r}, v{r+1}\nv_max3_u32 v15, v15, v{r+2}, v{r+3}')
    a(f'''
    v_max_u32 v15, v15, v14
    v_cmp_eq_u32 vcc, -1, v15
    s_cbranch_scc1 L_ok3
    ''')
    if PM: a('s_and_b64 exec, vcc, vcc')
    else: a('s_and_b64 vcc, vcc, vcc')
    a.raw('  s_cbranch_scc1 L_spin3')
    a.label('L_ok3')
    a('s_mov_b64 exec, -1')
    if stamps: a('s_waitcnt lgkmcnt(0)')
    stamp('c1')
    padd(16, 32, 16); padd(16, 24, 8); padd(16, 20, 4)
    a(f'''
    v_lshlrev_b32 v20, 16, v{st+2}
    v_permlane32_swap_b32 v16, v17
    v_permlane32_swap_b32 v18, v19
    v_add_f32 v16, v16, v17
    v_add_f32 v18, v18, v19
    v_permlane16_swap_b32 v16, v18
    v_add_f32 v16, v16, v18
    v_add_f32_dpp v16, v16, v16 row_ror:8 row_mask:0xf bank_mask:0xf
    v_add_f32 v16, v16, v20
    v_cvt_pk_bf16_f32 v16, v16, v16
    s_mov_b32 exec_lo, 0x00ff00ff
    s_mov_b32 exec_hi, 0x00ff00ff
    buffer_store_short v16, v{st+3}, {OUT}, s96 offen
    s_mov_b64 exec, -1
    ''')
    if DLY:
        a(f'''
        s_waitcnt vmcnt(0)
        s_memrealtime s[84:85]
        s_waitcnt lgkmcnt(0)
        s_sub_u32 s82, {'s80' if DSEL else 's84'}, s86
        s_mul_i32 s82, s82, {DLY}
        s_add_u32 s82, s82, {6000 if DSEL else 0}
        s_min_u32 s82, s82, 200000
        ''')
        a.label('L_dly')
        a(f'''
        s_memrealtime s[84:85]
        s_waitcnt lgkmcnt(0)
        s_sub_u32 s83, s84, s86
        s_cmp_lt_u32 s83, s82
        s_cbranch_scc1 L_dly
        ''')
    a.label('L_fin')
    if stamps:
        a('s_waitcnt vmcnt(0)')
        stamp('end')
        a('s_waitcnt lgkmcnt(0)')
        for k in range(8): a(f'v_mov_b32 v{16+k}, s{SREG[k]}')
        a(f'''
        s_lshl_b32 {sT0}, s2, 3
        s_add_u32 {sT0}, {sT0}, {sW_}
        s_lshl_b32 {sT0}, {sT0}, 5
        s_add_u32 {sT0}, {sT0}, {WS_T}
        v_mov_b32 v14, 0
        s_mov_b64 exec, 1
        buffer_store_dwordx4 v[16:19], v14, {WS}, {sT0} offen
        buffer_store_dwordx4 v[20:23], v14, {WS}, {sT0} offen offset:16
        ''')
    a.label('L_end')
    a('s_endpgm')
    a.raw(f'''.section .rodata,"a"
.p2align 6
.amdhsa_kernel {name}
  .amdhsa_next_free_vgpr 256
  .amdhsa_next_free_sgpr 102
  .amdhsa_accum_offset 256
  .amdhsa_group_segment_fixed_size 0
  .amdhsa_kernarg_size 96
  .amdhsa_user_sgpr_count 2
  .amdhsa_user_sgpr_kernarg_segment_ptr 1
  .amdhsa_system_sgpr_workgroup_id_x 1
  .amdhsa_float_denorm_mode_32 3
.end_amdhsa_kernel''')
    return a.text()

if __name__ == '__main__':
    out = sys.argv[1]
    kw = {}
    for x in sys.argv[2:]:
        k, v = x.split('='); kw[k] = int(v)
    open(out, 'w').write(gen(**kw))
```

```python
import sys, struct
from asmdsl import Asm

NAME = 'parallel_sum__sliding_block_cached__geglu_ffn__decode_kernel'
def f32(x): return '0x%08x' % struct.unpack('<I', struct.pack('<f', x))[0]
def lanemask(fn):
    m = 0
    for l in range(64):
        if fn(l & 15, l >> 4): m |= 1 << l
    return m

HEADER = open('parallel_sum__sliding_block_cached__geglu_ffn__decode.s.ref').read().split('; Override')[0]

WS_Y  = 0
WS_S  = 0x100000
WS_E  = 0x108000
WS_F  = 0x109000
WS_G  = 0x10A000
WS_P  = 0x110000
WS_T  = 0x300000
WS_SZ = 0x400000
L_PART = 0
L_DUM  = 14336
L_Q    = 15360
L_HID  = 15872
L_CNT  = 16000
L_X    = 16128
L_STG  = 21504
L_YP   = L_STG
BIG = 0x40000000
L2E = 1.4426950408889634
POL = {0: '', 1: 'nt', 2: 'sc0 nt', 3: 'sc1 nt', 4: 'sc0', 5: 'sc1', 6: 'sc0 sc1', 7: 'sc0 sc1 nt'}

def gen(KU=3, KW=0, KP0=9, XL=4, T=5, TV=6, TVE=12, VE=30, RV=12, ILV=1, XBEG=4, XEND=14, SLI=33, GST=6, PRIO=1, SLP=8, KPOLL=26, W0N=5, WPOL=0, SPOL=0, KVPOL=1, PPOL=0, DLY=0, DSEL=0, PF=0, PSL=0, CM=2, PM=0, YLP=5, YSP=5, YCP=5, ROT=1,
        NS=17, SEND=44, EXP=0, stamps=0, name=NAME):
    a = Asm()
    SPIN = (1 << 16) if EXP == 0 else 0
    LDS_SZ = L_STG + max(8 * NS * 1024, 25600)
    assert LDS_SZ <= 163840
    SREG = [80, 82, 84, 86, 56, 58, 60, 62]
    SETS = {1: ['start', 'barA', 'sig', 'kiss', 'barB', 'smax', 'vend', 'end'],
            2: ['start', 'bar0', 'ln', 'barA', 'sig', 'poll', 'qrdy', 'end'],
            3: ['start', 'vend', 'barC', 'mm', 'barD', 'pub', 'c1', 'end'],
            5: ['start', 'ki12', 'ki18', 'ki24', 'ki30', 'ki36', 'ki42', 'ki47'],
            6: ['start', 'ki47', 'vc0', 'vc12', 'vc24', 'vc36', 'vc42', 'vc47'],
            7: ['start', 'bar0', 'barA', 'ki12', 'ki24', 'ki47', 'vc24', 'vc47'],
            4: ['start', 'karg', 'iss1', 'iss2', 'pre0', 'bar0', 'barA', 'end']}
    DN = ['end', 'karg', 'iss1', 'bar0', 'barA', 'sig', 'barB', 'vend', 'iss2', 'smax']
    def stamp(nm):
        if DLY and DSEL and nm == DN[DSEL]: a('s_memrealtime s[80:81]')
        if stamps and nm in SETS[stamps]:
            r = SREG[SETS[stamps].index(nm)]
            a(f's_memrealtime s[{r}:{r+1}]')
    a.raw(HEADER.rstrip())
    a.raw(f'; @launch grid=(256,1,1) block=(512,1,1) lds={LDS_SZ}')
    a.raw('.amdgcn_target "amdgcn-amd-amdhsa--gfx950"\n.text\n.globl %s\n.p2align 8\n.type %s,@function\n%s:' % (name, name, name))
    sW_, sH, sB, sS, sJ, sXCD, sP, sIDX = 's3', 's4', 's5', 's6', 's7', 's68', 's69', 's70'
    K, V, W, WO, WD, X, WS, OUT = 's[8:11]', 's[12:15]', 's[16:19]', 's[20:23]', 's[24:27]', 's[28:31]', 's[32:35]', 's[36:39]'
    sWO0, sWO1, sWDB, sSTG, sWO2, sWO3 = 's40', 's41', 's42', 's43', 's64', 's65'
    sKV, sKV2, sKV0 = 's71', 's72', 's73'
    sT0, sT1, sT2, sT3 = 's74', 's75', 's76', 's77'
    sLO32 = 's[78:79]'
    sM, sSOWN, sYB, sSB = 's88', 's89', 's90', 's91'
    TAG = 's[100:101]'
    KB = 64
    WDT, WOT = 12, 17
    def kt(i): return f'v[{KB+4*i}:{KB+4*i+3}]'
    def v4(r): return f'v[{r}:{r+3}]'
    def srd(d, p, n):
        a(f's_mov_b32 s{d}, s{p}\ns_and_b32 s{d+1}, s{p+1}, 0xffff\ns_mov_b32 s{d+2}, {n}\ns_mov_b32 s{d+3}, 0x20000')
    def rowred(op, r, steps=(8, 4, 2, 1)):
        for s_ in steps: a(f'{op}_dpp v{r}, v{r}, v{r} row_ror:{s_} row_mask:0xf bank_mask:0xf')
    gstep = 6144 * 8 if ILV else 6144
    def grp(g):
        if ROT:
            a(f's_add_u32 {sKV}, {sJ}, {g}\ns_and_b32 {sKV}, {sKV}, 7\ns_mul_i32 {sKV}, {sKV}, {gstep}\ns_add_u32 {sKV}, {sKV}, {sKV0}')
        else:
            a(f's_mov_b32 {sKV}, {sKV0}' if g == 0 else f's_add_u32 {sKV}, {sKV}, {gstep}')
    kissued = [0]
    def kload():
        i = kissued[0]; g, e = divmod(i, 6)
        stamp(f'ki{i}')
        if e == 0: grp(g)
        if e < 4: a(f'buffer_load_dwordx4 {kt(i)}, v8, {K}, {sKV} offen offset:{384*e} {POL[KVPOL]}', tag=f'k{i}')
        else:     a(f'buffer_load_dwordx4 {kt(i)}, v9, {K}, {sKV} offen offset:{768*(e-4)} {POL[KVPOL]}', tag=f'k{i}')
        kissued[0] += 1

    a(f'''
    s_cmp_ge_u32 s2, 256
    s_cbranch_scc1 L_end
    s_load_dwordx16 s[44:59], s[0:1], 0
    s_load_dwordx8 s[60:67], s[0:1], 64''')
    stamp('start')
    if DLY: a('s_memrealtime s[86:87]')
    if PRIO: a('s_setprio 3')
    a(f'''
    v_lshrrev_b32 v14, 6, v0
    v_and_b32 v1, 63, v0
    v_readfirstlane_b32 {sW_}, v14
    v_and_b32 v2, 15, v1
    v_lshrrev_b32 v3, 4, v1
    s_and_b32 {sXCD}, s2, 7
    s_lshr_b32 {sJ}, s2, 3
    s_lshr_b32 {sT0}, {sJ}, 3
    s_lshl_b32 {sH}, {sXCD}, 2
    s_add_u32 {sH}, {sH}, {sT0}
    s_and_b32 {sT1}, {sJ}, 7
    s_lshr_b32 {sB}, {sT1}, 1
    s_and_b32 {sS}, {sT1}, 1
    s_lshl_b32 {sT0}, {sB}, 5
    s_add_u32 {sSB}, {sT0}, {sH}       ; bh
    s_mul_i32 {sKV0}, {sSB}, 3145728
    s_mul_i32 {sT2}, {sS}, 393216
    s_add_u32 {sKV0}, {sKV0}, {sT2}
    s_add_u32 {sKV0}, {sKV0}, {6144*384}
    s_mul_i32 {sT2}, {sW_}, {6144 if ILV else 49152}
    s_add_u32 {sKV0}, {sKV0}, {sT2}
    v_lshrrev_b32 v20, 2, v2
    v_and_b32 v21, 3, v2
    v_lshlrev_b32 v21, 4, v21
    v_mul_u32_u24 v9, 1536, v20
    v_add_u32 v9, v9, v21
    v_lshl_add_u32 v8, v3, 6, v9       ; vkx = 1536(n>>2)+16(n&3)+64g
    v_lshlrev_b32 v20, 4, v1
    s_lshl_b32 {sT0}, {sW_}, 10
    s_add_u32 m0, {sT0}, {L_X}
    s_mov_b32 s10, 402653184
    s_mov_b32 s11, 0x20000
    s_movk_i32 s30, 5120
    s_mov_b32 s31, 0x20000
    s_waitcnt lgkmcnt(0)
    ''')
    stamp('karg')
    a(f'''
    s_mov_b32 s28, s44
    s_and_b32 s29, s45, 0xffff
    s_mov_b32 s8, s46
    s_and_b32 s9, s47, 0xffff
    s_cmp_ge_u32 {sW_}, 5
    s_cbranch_scc1 L_nox
    ''')
    a.role = 'x'
    a(f'buffer_load_dwordx4 v20, {X}, {sT0} offen lds', tag='x')
    a.role = None
    a.label('L_nox')
    assert KU <= 4
    for i in range(KU): kload()
    stamp('iss1')
    a(f's_add_u32 s100, s66, {WS_E}\ns_addc_u32 s101, s67, 0\ns_load_dwordx2 {TAG}, {TAG}, 0')
    a(f'''
    s_mul_i32 {sT2}, {sXCD}, 27
    s_add_u32 {sT2}, {sT2}, {sJ}
    s_mul_i32 s92, {sT2}, 43691
    s_lshr_b32 s92, s92, 17            ; blk
    s_mul_i32 {sT3}, s92, 3
    s_sub_u32 s93, {sT2}, {sT3}        ; split
    s_mul_i32 s97, s93, 224
    s_lshl_b32 {sT2}, {sW_}, 5
    s_add_u32 s97, s97, {sT2}
    s_sub_u32 {sT2}, s92, 48
    s_sub_u32 {sT3}, s92, 60
    s_cmp_lt_u32 s92, 60
    s_cselect_b32 s16, s56, s58
    s_cselect_b32 s17, s57, s59
    s_cselect_b32 s98, {sT2}, {sT3}
    s_movk_i32 s96, 3072
    s_mov_b32 s18, 1966080
    s_cmp_lt_u32 s92, 48
    s_cselect_b32 s16, s50, s16
    s_cselect_b32 s17, s51, s17
    s_cselect_b32 s18, 7864320, s18
    s_cselect_b32 s96, 12288, s96
    s_cselect_b32 s98, s92, s98
    s_and_b32 s17, s17, 0xffff
    s_mov_b32 s19, 0x20000
    s_mul_i32 s94, s97, s96
    s_lshl_b32 s98, s98, 8
    s_add_u32 s94, s94, s98            ; soffset
    s_cmp_eq_u32 {sW_}, 7
    s_cselect_b32 s94, {BIG}, s94
    s_cmp_ge_u32 {sJ}, {27 if not (EXP & 128) else 0}
    s_cselect_b32 s94, {BIG}, s94
    v_mul_lo_u32 v16, v3, s96
    v_lshl_add_u32 v16, v2, 4, v16     ; g*RS+16n
    s_lshl_b32 s96, s96, 2
    v_lshrrev_b32 v22, 1, v3
    v_mul_u32_u24 v21, 384, v22
    v_add_u32 v9, v9, v21
    v_and_b32 v22, 1, v3
    v_lshlrev_b32 v22, 6, v22
    v_add3_u32 v9, v9, v22, 64
    v_add_u32 v9, 192, v9              ; vky
    ''')
    WT = 224
    for t in range(8):
        a(f'buffer_load_dwordx4 {v4(WT+4*t)}, v16, {W}, s94 offen {POL[PPOL]}', tag=f'w{t}')
        if t < 7: a(f's_add_u32 s94, s94, s96')
        if t == 3:
            for _ in range(KW): kload()
    KU = KU + KW
    stamp('iss2')
    if PRIO: a('s_setprio 0')
    def kmore(frac):
        while kissued[0] < KU + int((KP0 - KU) * frac + 0.5): kload()
    srd(32, 66, WS_SZ); srd(12, 48, 402653184); srd(20, 52, 7864320); srd(24, 60, 1966080); srd(36, 62, 5120)
    if PF:
        a(f'''
        s_cmp_lg_u32 {sW_}, 7
        s_cbranch_scc1 L_nopf
        s_mov_b32 {sT0}, {49152 if PF == 1 else 6144}
        v_mul_lo_u32 v24, v1, {sT0}
        s_sub_u32 {sT0}, {sKV0}, {7*6144 if ILV else 7*49152}
        s_mov_b64 exec, {0xff if PF == 1 else -1}
        buffer_load_dword v63, v24, {V}, {sT0} offen nt
        buffer_load_dword v63, v24, {K}, {sT0} offen offset:128 nt
        s_mov_b64 exec, 0xff
        v_lshlrev_b32 v24, 15, v1
        s_mul_i32 {sT0}, {sH}, {192*1280}
        buffer_load_dword v63, v24, {WO}, {sT0} offen
        s_mov_b64 exec, 1
        s_mul_i32 {sT0}, {sH}, {48*1280}
        buffer_load_dword v63, v24, {WD}, {sT0} offen
        buffer_load_dword v63, v24, {OUT}, 0 offen
        s_mov_b32 {sT0}, {WS_E+128}
        buffer_load_dword v63, v24, {WS}, {sT0} offen
        s_mov_b64 exec, -1
        ''')
        for _ in range(6): a.vm.pop()
        a.label('L_nopf')
    a(f'''
    s_lshl_b32 {sP}, {sH}, 1
    s_add_u32 {sP}, {sP}, {sS}
    s_lshl_b32 {sIDX}, {sXCD}, 5
    s_add_u32 {sIDX}, {sIDX}, {sJ}
    s_mov_b32 s78, -1
    s_mov_b32 s79, 0
    s_lshl_b32 {sT0}, {sB}, 6
    s_add_u32 {sT0}, {sT0}, {sP}
    s_mul_i32 {sYB}, {sT0}, 2560
    s_lshl_b32 {sSB}, {sSB}, 8
    s_add_u32 {sSB}, {sSB}, {WS_S}
    s_lshl_b32 {sT2}, {sS}, 3
    s_add_u32 {sT2}, {sT2}, {sW_}
    s_lshl_b32 {sT2}, {sT2}, 4
    s_add_u32 {sSOWN}, {sSB}, {sT2}
    s_mul_i32 {sWDB}, {sP}, 24
    s_mul_i32 {sT0}, {sW_}, 3
    s_add_u32 {sWDB}, {sWDB}, {sT0}
    s_mul_i32 {sWDB}, {sWDB}, 1280
    s_mul_i32 {sWO0}, {sH}, 192
    s_mul_i32 {sT0}, {sW_}, 24
    s_add_u32 {sWO0}, {sWO0}, {sT0}
    s_mul_i32 {sWO0}, {sWO0}, 1280
    s_add_u32 {sWO1}, {sWO0}, 5120
    s_add_u32 {sWO2}, {sWO0}, 15360
    s_add_u32 {sWO3}, {sWO0}, 20480
    s_mul_i32 {sSTG}, {sW_}, {NS*1024}
    s_add_u32 {sSTG}, {sSTG}, {L_STG}
    v_mov_b32 v17, 1280
    v_mul_u32_u24 v18, 1280, v3
    v_lshl_add_u32 v18, v2, 4, v18     ; 1280g+16n
    s_lshl_b32 s97, s97, 1
    s_min_u32 s97, s97, 1216
    v_lshl_add_u32 v19, v3, 1, s97
    v_lshrrev_b32 v14, 3, v2
    v_mad_u32_u24 v19, v14, v17, v19   ; + 1280*(m>>3)
    v_and_b32 v15, 7, v2
    v_lshlrev_b32 v15, 4, v15          ; 16*(n&7)
    v_and_b32 v20, 1, v2
    v_cmp_eq_u32 vcc, 1, v20
    v_mov_b32 v21, 0xffff
    v_mov_b32 v22, 0xffff0000
    v_cndmask_b32 v21, v21, v22, vcc
    v_bfe_u32 v20, v2, 1, 2
    ''')
    for r in range(4):
        a(f'v_cmp_eq_u32 vcc, {r}, v20\nv_cndmask_b32 v{4+r}, 0, v21, vcc')
    a(f'''
    v_mul_u32_u24 v10, 384, v3
    v_lshrrev_b32 v20, 3, v2
    v_mul_u32_u24 v11, 3072, v20
    v_add3_u32 v11, v11, v10, v15
    v_add_u32 v11, 256, v11            ; vvy = (g+8*(n>>3))*384+256+16*(n&7)
    v_lshl_add_u32 v10, v2, 4, v10     ; vvx = g*384+16n
    v_lshrrev_b32 v12, 1, v3
    v_mul_u32_u24 v12, 5120, v12
    v_add_u32 v12, v12, v18            ; vwo = (6(g>>1)+(g&1))*1280+16n
    v_mov_b32 v22, {BIG}
    v_cmp_eq_u32 vcc, 3, v3
    v_cndmask_b32 v13, v18, v22, vcc   ; vwd = g*1280+16n  (g==3 -> out of range)
    v_lshrrev_b32 v20, 1, v3
    v_lshlrev_b32 v20, 9, v20
    v_and_b32 v22, 1, v3
    v_lshl_add_u32 v22, v22, 4, v20
    v_lshl_add_u32 v22, v2, 5, v22
    s_lshl_b32 {sT0}, {sW_}, 11
    v_add_u32 v22, {sT0}, v22
    v_mov_b32 v20, {L_CNT}
    v_mov_b32 v21, 0
    ds_write_b32 v20, v21
    ds_write_b32 v20, v21 offset:4
    ''')
    if EXP & 64: a(f'v_mov_b32 v12, {BIG}\nv_mov_b32 v13, {BIG}')
    stamp('pre0')
    a.role = 'x'; a.wait_vm('x'); a.role = None
    a('s_barrier')
    stamp('bar0')
    XS, XO, U, XN, AB, ACC, XV = 24, 44, 184, 184, 200, 216, 168
    for i in range(5): a(f'ds_read_b128 {v4(XS+4*i)}, v18 offset:{L_X+256*i}')
    for pr in range(2):
        for t in range(8): a(f'ds_read_u16 v{XV+8*pr+t}, v19 offset:{L_X+2560*pr+8*t}')
    kmore(1/6)
    a(f'''
    s_waitcnt lgkmcnt(0)
    s_mul_i32 s100, s100, 0x9E3779B1
    s_add_u32 s100, s100, 0x7F4A7C15
    s_mul_i32 s101, s101, 0x85EBCA69
    s_add_u32 s101, s101, 0xC2B2AE35
    ''')
    for i in range(20):
        a(f'v_lshlrev_b32 v{U+2*i}, 16, v{XS+i}\nv_and_b32 v{U+2*i+1}, 0xffff0000, v{XS+i}')
    a(f'v_pk_add_f32 v[52:53], v[{U}:{U+1}], v[{U+2}:{U+3}]\nv_pk_add_f32 v[54:55], v[{U+4}:{U+5}], v[{U+6}:{U+7}]')
    for i in range(8, 40, 2):
        d = 52 + (i & 2)
        a(f'v_pk_add_f32 v[{d}:{d+1}], v[{d}:{d+1}], v[{U+i}:{U+i+1}]')
    a('v_pk_add_f32 v[52:53], v[52:53], v[54:55]\nv_add_f32 v52, v52, v53')
    rowred('v_add_f32', 52)
    a(f'v_mul_f32 v56, {f32(-1/640)}, v52')
    kmore(2/6)
    for i in range(0, 40, 2): a(f'v_pk_add_f32 v[{U+i}:{U+i+1}], v[{U+i}:{U+i+1}], v[56:57] op_sel_hi:[1,0]')
    a(f'v_pk_mul_f32 v[52:53], v[{U}:{U+1}], v[{U}:{U+1}]\nv_pk_mul_f32 v[54:55], v[{U+2}:{U+3}], v[{U+2}:{U+3}]')
    for i in range(4, 40, 2):
        d = 52 + (i & 2)
        a(f'v_pk_fma_f32 v[{d}:{d+1}], v[{U+i}:{U+i+1}], v[{U+i}:{U+i+1}], v[{d}:{d+1}]')
    a('v_pk_add_f32 v[52:53], v[52:53], v[54:55]\nv_add_f32 v52, v52, v53')
    rowred('v_add_f32', 52)
    a(f'''
    v_mul_f32 v52, {f32(1/640)}, v52
    v_cvt_pk_bf16_f32 v53, v56, v52
    v_lshlrev_b32 v56, 16, v53
    v_and_b32 v52, 0xffff0000, v53
    v_add_f32 v52, {f32(1e-5)}, v52
    v_cvt_pk_bf16_f32 v52, v52, v52
    v_and_b32 v52, 0xffff0000, v52
    v_sqrt_f32 v52, v52
    v_cvt_pk_bf16_f32 v52, v52, v52
    v_and_b32 v52, 0xffff0000, v52
    v_rcp_f32 v52, v52
    v_lshlrev_b32 v53, 6, v14
    v_add_u32 v54, 128, v53
    ds_bpermute_b32 v58, v53, v56
    ds_bpermute_b32 v60, v54, v56
    ds_bpermute_b32 v24, v53, v52
    ds_bpermute_b32 v26, v54, v52
    ''')
    kmore(3/6)
    for k in range(16): a(f'v_lshlrev_b32 v{XN+k}, 16, v{XV+k}')
    a('s_waitcnt lgkmcnt(0)')
    for pr in range(2):
        for k in range(4):
            r = XN + 8*pr + 2*k
            a(f'v_pk_add_f32 v[{r}:{r+1}], v[{r}:{r+1}], v[{58+2*pr}:{59+2*pr}] op_sel_hi:[1,0]')
    for k in range(8): a(f'v_cvt_pk_bf16_f32 v{XO+k}, v{XN+2*k}, v{XN+2*k+1}')
    for k in range(8): a(f'v_lshlrev_b32 v{XN+2*k}, 16, v{XO+k}\nv_and_b32 v{XN+2*k+1}, 0xffff0000, v{XO+k}')
    for pr in range(2):
        for k in range(4):
            r = XN + 8*pr + 2*k
            a(f'v_pk_mul_f32 v[{r}:{r+1}], v[{r}:{r+1}], v[{24+2*pr}:{25+2*pr}] op_sel_hi:[1,0]')
    for k in range(16): a(f'v_cvt_pk_bf16_f32 v{XN+k}, v{XN+k}, v{XN+k}')
    stamp('ln')
    kmore(4/6)
    for t in range(8):
        for pr in range(2):
            ab = AB + 4*((2*t + pr) & 3)
            for r in range(4): a(f'v_and_b32 v{ab+r}, v{XN+8*pr+t}, v{4+r}')
        a.wait_vm(f'w{t}')
        for pr in range(2):
            ab = AB + 4*((2*t + pr) & 3); d = v4(ACC + 4*pr)
            a(f'v_mfma_f32_16x16x32_bf16 {d}, {v4(ab)}, {v4(WT+4*t)}, {0 if t == 0 else d}')
        if t == 3: kmore(5/6)
    stamp('wland')
    kmore(1)
    a(f's_cmp_eq_u32 {sW_}, 7\ns_cbranch_scc1 L_nopart')
    for pr in range(2): a(f'ds_write_b128 v22, {v4(ACC+4*pr)} offset:{1024*pr}')
    a.label('L_nopart')
    a('s_waitcnt lgkmcnt(0)\ns_barrier')
    stamp('barA')
    def padd(d, s_, n):
        for r in range(0, n, 2): a(f'v_pk_add_f32 v[{d+r}:{d+r+1}], v[{d+r}:{d+r+1}], v[{s_+r}:{s_+r+1}]')
    a(f'''
    s_cmp_lt_u32 {sW_}, 6
    s_cbranch_scc1 L_nopub
    v_and_b32 v14, 127, v0
    v_lshlrev_b32 v15, 4, v14
    ''')
    for u in range(7): a(f'ds_read_b128 {v4(16+4*u)}, v15 offset:{2048*u}')
    a(f'''
    v_lshrrev_b32 v14, 5, v14
    s_mov_b32 {sT0}, {36864-512}
    v_mad_u32_u24 v14, v14, {sT0}, v15     ; b*36864 + 16*(t&31)
    s_mul_i32 {sT0}, s93, 147456
    s_lshl_b32 {sT2}, s92, 9
    s_add_u32 {sT0}, {sT0}, {sT2}
    s_add_u32 {sT0}, {sT0}, {WS_P}
    s_cmp_ge_u32 {sJ}, {27 if not (EXP & 8) else 0}
    s_cselect_b32 {sT0}, {BIG}, {sT0}
    s_waitcnt lgkmcnt(0)
    ''')
    padd(16, 32, 12); padd(16, 24, 8); padd(16, 20, 4)
    a.role = 'pub'
    a(f'buffer_store_dwordx4 v[16:19], v14, {WS}, {sT0} offen sc1', tag='pub')
    a.role = None
    a.label('L_nopub')
    def wotile(n):
        uc, h = divmod(n, 2); c, u = divmod(uc, 3)
        return [[sWO0, sWO1], [sWO2, sWO3]][h][u == 2], (2560 if u == 1 else 0) + 256*c
    kseq = ['c']
    si = 0
    for i in range(KP0, 48):
        kseq.append('k')
        while si < NS and (si + 1) * (SEND - KP0) <= (i + 1 - KP0) * NS:
            kseq.append('s'); si += 1
    assert si == NS
    kp = [0]; sissued = [0]
    def kstep(paced):
        op = kseq[kp[0]]; kp[0] += 1
        if op == 'c':
            a(f'''
            v_and_b32 v24, 31, v1
            v_lshlrev_b32 v24, 4, v24
            v_mov_b32 v25, {BIG}
            v_cndmask_b32 v24, v25, v24, {sLO32}
            s_lshl_b32 {sT0}, {sW_}, 9
            s_add_u32 {sT0}, {sT0}, {sYB}
            s_cmp_ge_u32 {sW_}, {5 if not (EXP & 16) else 0}
            s_cselect_b32 {sT0}, {BIG}, {sT0}
            v_mov_b32 v28, -1
            v_mov_b32 v29, -1
            v_mov_b32 v30, -1
            v_mov_b32 v31, -1
            ''')
        if paced: a(f's_waitcnt vmcnt({T-1})')
        if op == 'k': kload()
        elif op == 'c': a(f'buffer_store_dwordx4 v[28:31], v24, {WS}, {sT0} offen {POL[YCP]}', tag='clr')
        else:
            n = sissued[0]; so, imm = wotile(n)
            a(f's_add_u32 m0, {sSTG}, {1024*n - imm}' if 1024*n >= imm else f's_sub_u32 m0, {sSTG}, {imm - 1024*n}')
            a(f'buffer_load_dwordx4 v12, {WO}, {so} offen offset:{imm} {POL[SPOL]} lds', tag='stg')
            sissued[0] += 1
    for _ in range(T): kstep(True)
    a.wait_vm('clr')
    a(f'''
    v_mov_b32 v14, {L_CNT}
    v_mov_b32 v15, 1
    s_mov_b64 exec, 1
    ds_add_rtn_u32 v20, v14, v15
    s_waitcnt lgkmcnt(0)
    v_readfirstlane_b32 {sT0}, v20
    s_cmp_eq_u32 {sT0}, 7
    s_cbranch_scc0 L_nosig
    s_mov_b64 exec, 3
    s_lshl_b32 {sT0}, s92, 2
    s_add_u32 {sT0}, {sT0}, s93
    s_lshl_b32 {sT0}, {sT0}, 3
    s_add_u32 {sT0}, {sT0}, {WS_F}
    s_cmp_ge_u32 {sJ}, 27
    s_cselect_b32 {sT0}, {BIG}, {sT0}
    s_lshl_b32 {sT2}, {sIDX}, 3
    s_add_u32 {sT2}, {sT2}, {WS_G}
    v_mov_b32 v20, {sT0}
    v_writelane_b32 v20, {sT2}, 1
    v_mov_b32 v14, s100
    v_mov_b32 v15, s101
    ''')
    a(f'buffer_store_dwordx2 v[14:15], v20, {WS}, 0 offen sc1'); a.vm.pop()
    a.label('L_nosig')
    a('s_mov_b64 exec, -1')
    stamp('sig')
    while kissued[0] < KPOLL: kstep(True)
    a(f's_cmp_eq_u32 {sW_}, 0\ns_cbranch_scc1 L_w0')
    fork = (list(a.vm), kissued[0], kp[0], sissued[0])
    while kp[0] < len(kseq): kstep(True)
    stamp('kiss'); stamp('poll'); stamp('qrdy')
    a('s_branch L_join')
    vm_join = list(a.vm)
    a.vm, kissued[0], kp[0], sissued[0] = fork
    a.label('L_w0')
    a(f'''
    v_min_u32 v60, 59, v1
    v_lshlrev_b32 v60, 2, v60
    s_mul_i32 {sT0}, {sH}, 192
    s_mul_i32 {sT2}, {sP}, 24
    s_add_u32 {sT2}, {sT2}, {6144-192}
    s_add_u32 {sT3}, {sT2}, {1536-24}
    v_mov_b32 v61, {sT0}
    v_mov_b32 v62, {sT2}
    v_cmp_le_u32 vcc, 48, v1
    v_cndmask_b32 v61, v61, v62, vcc
    v_mov_b32 v62, {sT3}
    v_cmp_le_u32 vcc, 54, v1
    v_cndmask_b32 v61, v61, v62, vcc
    v_add_u32 v60, v60, v61
    v_lshrrev_b32 v61, 7, v60
    v_lshlrev_b32 v61, 5, v61
    v_lshlrev_b32 v60, 2, v60
    s_mov_b32 {sT2}, {WS_F}
    s_mov_b32 {sT1}, {SPIN}
    ''')
    if EXP & 1: a(f'v_mov_b32 v61, {BIG}')
    a(f'buffer_load_dwordx4 v[16:19], v61, {WS}, {sT2} offen sc1')
    a(f'buffer_load_dwordx2 v[20:21], v61, {WS}, {sT2} offen offset:16 sc1', tag='poll')
    for _ in range(T - 1): kstep(True)
    a.wait_vm('poll')
    a.label('L_spin1')
    a(f'''
    v_cmp_ne_u64 vcc, {TAG}, v[16:17]
    v_cmp_ne_u64 s[44:45], {TAG}, v[18:19]
    v_cmp_ne_u64 s[46:47], {TAG}, v[20:21]
    s_or_b64 vcc, vcc, s[44:45]
    s_or_b64 vcc, vcc, s[46:47]
    s_cbranch_scc0 L_ok1
    s_sub_u32 {sT1}, {sT1}, 1
    s_cbranch_scc1 L_ok1
    s_sleep {SLP}
    buffer_load_dwordx4 v[16:19], v61, {WS}, {sT2} offen sc1
    buffer_load_dwordx2 v[20:21], v61, {WS}, {sT2} offen offset:16 sc1
    s_waitcnt vmcnt(0)
    s_branch L_spin1
    ''')
    a.vm.pop(); a.vm.pop()
    a.label('L_ok1')
    stamp('poll')
    a(f's_mul_i32 {sT0}, {sB}, 36864\ns_add_u32 {sT0}, {sT0}, {WS_P}')
    if EXP & 2: a(f'v_mov_b32 v60, {BIG}')
    for t in range(3):
        a(f'buffer_load_dwordx4 {v4(16+4*t)}, v60, {WS}, {sT0} offen sc1', tag='gq')
        if t < 2: a(f's_add_u32 {sT0}, {sT0}, 147456')
    for _ in range(W0N): kstep(False)
    a.wait_vm('gq')
    padd(16, 20, 4); padd(16, 24, 4)
    a(f'''
    v_cvt_pk_bf16_f32 v16, v16, v17
    v_cvt_pk_bf16_f32 v17, v18, v19
    v_lshlrev_b32 v14, 3, v1
    ds_write_b64 v14, v[16:17] offset:{L_Q}
    v_min_u32 v14, 23, v1
    v_lshlrev_b32 v14, 1, v14
    s_waitcnt lgkmcnt(0)
    ds_read_u16 v20, v14 offset:{L_Q+384}
    ds_read_u16 v21, v14 offset:{L_Q+432}
    s_waitcnt lgkmcnt(0)
    v_lshlrev_b32 v20, 16, v20
    v_lshlrev_b32 v21, 16, v21             ; up
    v_mul_f32 v22, v20, v20
    v_mul_f32 v22, {f32(0.044715)}, v22
    v_fma_f32 v22, v22, v20, v20           ; x + c x^3
    v_mul_f32 v22, {f32(-2*0.7978845608028654*L2E)}, v22
    v_exp_f32 v22, v22
    v_add_f32 v22, 1.0, v22
    v_rcp_f32 v22, v22
    v_mul_f32 v22, v22, v20
    v_cvt_pk_bf16_f32 v22, v22, v22
    v_and_b32 v22, 0xffff0000, v22
    v_mul_f32 v22, v22, v21
    v_cvt_pk_bf16_f32 v22, v22, v22
    v_cmp_gt_u32 vcc, 24, v1
    v_cndmask_b32 v22, 0, v22, vcc
    v_min_u32 v14, 31, v1
    v_lshlrev_b32 v14, 2, v14
    ds_write_b32 v14, v22 offset:{L_HID}
    v_mov_b32 v14, {L_CNT}
    v_mov_b32 v15, 1
    s_waitcnt lgkmcnt(0)
    ds_write_b32 v14, v15 offset:4
    ''')
    def xred8(base, n, tmp):
        for r in range(n): a(f'v_add_f32_dpp v{base+r}, v{base+r}, v{base+r} row_ror:8 row_mask:0xf bank_mask:0xf')
        for sw in ('v_permlane16_swap_b32', 'v_permlane32_swap_b32'):
            for r in range(n): a(f'v_mov_b32 v{tmp+r}, v{base+r}')
            for r in range(n): a(f'{sw} v{base+r}, v{tmp+r}')
            padd(base, tmp, n)
    stamp('qrdy')
    while kp[0] < len(kseq): kstep(True)
    stamp('kiss')
    a.vm = vm_join
    a.label('L_join')
    a(f'v_mov_b32 v14, {L_CNT}\ns_mov_b32 {sT1}, {1<<22}')
    a.label('L_spinq')
    a(f'''
    ds_read_b32 v15, v14 offset:4
    s_waitcnt lgkmcnt(0)
    v_readfirstlane_b32 {sT0}, v15
    s_cmp_lg_u32 {sT0}, 0
    s_cbranch_scc1 L_okq
    s_sub_u32 {sT1}, {sT1}, 1
    s_cbranch_scc1 L_okq
    s_sleep 1
    s_branch L_spinq
    ''')
    a.label('L_okq')
    stamp('barB')
    a(f'''
    v_and_b32 v14, 3, v2
    v_lshl_add_u32 v15, v3, 2, v14
    v_lshlrev_b32 v15, 4, v15
    ds_read_b128 v[56:59], v15 offset:{L_Q}
    v_and_b32 v15, 0x70, v15
    ds_read_b128 v[60:63], v15 offset:{L_Q+256}
    ''')
    mX = [lanemask(lambda m, g, u=u: (m >> 2) == u) for u in range(4)]
    mY = [lanemask(lambda m, g, w=w: (m >> 2) == 2*w + (g >> 1)) for w in range(2)]
    for k, m in enumerate(mX + mY):
        a(f's_mov_b32 s{44+2*k}, {hex(m & 0xffffffff)}\ns_mov_b32 s{45+2*k}, {hex(m >> 32)}')
    a('s_waitcnt lgkmcnt(0)')
    for k in range(6):
        src = 56 if k < 4 else 60
        for r in range(4): a(f'v_cndmask_b32 v{32+4*k+r}, 0, v{src+r}, s[{44+2*k}:{45+2*k}]')
    vissued = [0]
    def vreg(i): return kt(i % RV)
    def vload():
        i = vissued[0]; g, e = divmod(i, 6); c, x = divmod(e, 3)
        if e == 0:
            grp(g)
            a(f's_add_u32 {sKV2}, {sKV}, 3072')
        if x == 0:   a(f'buffer_load_dwordx4 {vreg(i)}, v10, {V}, {sKV} offen offset:{1536*c} {POL[KVPOL]}', tag=f'v{i}')
        elif x == 1: a(f'buffer_load_dwordx4 {vreg(i)}, v10, {V}, {sKV2} offen offset:{1536*c} {POL[KVPOL]}', tag=f'v{i}')
        else:        a(f'buffer_load_dwordx4 {vreg(i)}, v11, {V}, {sKV} offen offset:{1536*c} {POL[KVPOL]}', tag=f'v{i}')
        vissued[0] += 1
    assert RV <= 12
    extras = [('wd', c) for c in range(5)] + [('wo', n) for n in range(NS, 30)]
    xiss = [0]
    def xtile(e): return WDT + e[1] if e[0] == 'wd' else WOT + e[1]
    def xload():
        e = extras[xiss[0]]
        if e[0] == 'wd':
            a(f'buffer_load_dwordx4 {kt(xtile(e))}, v13, {WD}, {sWDB} offen offset:{256*e[1]} {POL[WPOL]}', tag='wd')
        else:
            so, imm = wotile(e[1])
            a(f'buffer_load_dwordx4 {kt(xtile(e))}, v12, {WO}, {so} offen offset:{imm} {POL[WPOL]}', tag=f'wo{e[1]}')
        xiss[0] += 1
    SC = 0.07216878364870322
    def score_post(g):
        d = 24 + 4*(g & 1); s_ = 16 + g
        a(f'''
        v_mov_b32_dpp v{s_}, v{d} quad_perm:[0,0,0,0] row_mask:0xf bank_mask:0xf
        v_add_f32_dpp v{s_}, v{d+1}, v{s_} quad_perm:[1,1,1,1] row_mask:0xf bank_mask:0xf
        v_add_f32_dpp v{s_}, v{d+2}, v{s_} quad_perm:[2,2,2,2] row_mask:0xf bank_mask:0xf
        v_add_f32_dpp v{s_}, v{d+3}, v{s_} quad_perm:[3,3,3,3] row_mask:0xf bank_mask:0xf
        v_cvt_pk_bf16_f32 v{s_}, v{s_}, v{s_}
        v_and_b32 v{s_}, 0xffff0000, v{s_}
        v_mul_f32 v{s_}, {f32(SC)}, v{s_}
        v_cvt_pk_bf16_f32 v{s_}, v{s_}, v{s_}
        v_and_b32 v{s_}, 0xffff0000, v{s_}
        ''')
    nx = len(extras) - XL
    span = 48 - XBEG - XEND
    seq = []
    xi = 0
    for i in range(48):
        seq.append('v')
        if i == SLI: seq.append('sl')
        if xi < 5 and i >= XBEG:
            seq.append('x'); xi += 1
        while xi < nx and i >= XBEG and (xi + 1) * span <= (i + 1 - XBEG) * nx:
            seq.append('x'); xi += 1
    assert xi == nx
    seq += ['x'] * XL
    nx += XL
    sp = [0]
    did_wd = [False]
    SS = KB + 4*47
    st = KB + 4*WDT
    GF = st + 12
    def statload():
        a(f'''
        v_lshlrev_b32 v8, 4, v2
        s_mul_i32 s95, {sP}, 43691
        s_lshr_b32 s95, s95, 17
        s_mul_i32 {sT0}, {sB}, 1280
        s_lshl_b32 {sT1}, s95, 6
        s_add_u32 s96, {sT0}, {sT1}
        s_mul_i32 {sT0}, s95, 3
        s_mov_b32 s97, 1
        s_cmp_lg_u32 {sT0}, {sP}
        s_cselect_b32 s97, 0, s97
        s_cmp_ge_u32 s95, 20
        s_cselect_b32 s97, 0, s97
        s_cmp_lg_u32 {sW_}, 7
        s_cselect_b32 s97, 0, s97
        v_lshlrev_b32 v9, 4, v1
        s_mov_b32 s98, {WS_G}
        s_cmp_eq_u32 s97, 0
        s_cbranch_scc1 L_nogf
        buffer_load_dwordx4 {v4(GF)}, v9, {WS}, s98 offen sc1
        buffer_load_dwordx4 {v4(GF+4)}, v9, {WS}, s98 offen offset:1024 sc1
        ''')
        a.vm.pop(); a.vm.pop()
        a.label('L_nogf')
        a(f'buffer_load_dwordx4 {v4(SS)}, v8, {WS}, {sSB} offen sc1', tag='sl')
    def pump(lasttag, kfree, vcons):
        while sp[0] < len(seq):
            idx = max(k for k, (t, r) in enumerate(a.vm) if t == lasttag)
            if len(a.vm) - 1 - idx >= (TV if vcons < VE else TVE): break
            op = seq[sp[0]]
            if op == 'v':
                i = vissued[0]
                if i < RV:
                    if i >= kfree: break
                elif i - RV >= vcons: break
                vload()
            elif op == 'x':
                if xtile(extras[xiss[0]]) >= kfree: break
                xload()
            else:
                assert did_wd[0]
                statload()
            sp[0] += 1
    done = [t for (t, r) in a.vm[:len(a.vm) - T]]
    known = max(int(t[1:]) for t in done if t and t[0] == 'k' and t[1:].isdigit())
    a.wait_vm(f'k{known}')
    for g in range(8):
        d = v4(24 + 4*(g & 1))
        for e in range(6):
            i = 6*g + e
            if i > known:
                a.wait_vm(f'k{i}'); known = i
            a(f'v_mfma_f32_16x16x32_bf16 {d}, {v4(32+4*e)}, {kt(i)}, {0 if e == 0 else d}')
            if i == known: pump(f'k{known}', i + 1, 0)
        if 6*g + 5 < known and (g & 1) == 0 and known < 47:
            known += 1
            a.wait_vm(f'k{known}')
            pump(f'k{known}', 6*g + 6, 0)
        if g > 0: score_post(g-1)
    score_post(7)
    if NS:
        a.wait_vm('stg')
        a(f'v_lshlrev_b32 v14, 4, v1\nv_add_u32 v14, {sSTG}, v14')
        for n in range(NS): a(f'ds_read_b128 {kt(WOT+n)}, v14 offset:{1024*n}')
    def allred(op, r, t):
        rowred(op, r, (4, 8))
        a(f'v_mov_b32 v{t}, v{r}\nv_permlane16_swap_b32 v{r}, v{t}\n{op} v{r}, v{r}, v{t}')
        a(f'v_mov_b32 v{t}, v{r}\nv_permlane32_swap_b32 v{r}, v{t}\n{op} v{r}, v{r}, v{t}')
    a('v_max3_f32 v28, v16, v17, v18\nv_max3_f32 v15, v19, v20, v21\nv_max3_f32 v28, v28, v22, v23\nv_max_f32 v28, v28, v15')
    allred('v_max_f32', 28, 15)
    for g in range(8): a(f'v_sub_f32 v{16+g}, v{16+g}, v28')
    for g in range(8): a(f'v_mul_f32 v{16+g}, {f32(L2E)}, v{16+g}')
    for g in range(8): a(f'v_exp_f32 v{16+g}, v{16+g}')
    a('v_add_f32 v30, v16, v17\nv_add_f32 v24, v18, v19\nv_add_f32 v25, v20, v21\nv_add_f32 v26, v22, v23\nv_add_f32 v30, v30, v24\nv_add_f32 v25, v25, v26\nv_add_f32 v30, v30, v25')
    allred('v_add_f32', 30, 24)
    for g in range(8): a(f'v_cvt_pk_bf16_f32 v{16+g}, v{16+g}, v{16+g}')
    a(f'''
    v_mov_b32 v29, s100
    v_mov_b32 v31, s101
    v_mov_b32 v24, 0
    v_readfirstlane_b32 {sM}, v28          ; own m
    s_mov_b64 exec, 1
    ''')
    a(f'buffer_store_dwordx4 v[28:31], v24, {WS}, {sSOWN} offen sc1', tag='stat')
    a('s_mov_b64 exec, -1')
    stamp('smax')
    YA, OA = 44, 32
    a(f'''
    s_mul_i32 {sT0}, {sW_}, 12
    v_lshlrev_b32 v24, 2, v3
    v_add_u32 v24, {sT0}, v24
    v_mov_b32 v25, 124
    v_cmp_eq_u32 vcc, 3, v3
    v_cndmask_b32 v24, v24, v25, vcc
    ds_read_b32 v14, v24 offset:{L_HID}
    s_waitcnt lgkmcnt(0)
    ''')
    for g in range(8):
        for c in range(2):
            A = 24 + 4*c
            if c == 0: a(f'v_mov_b32 v15, v{16+g}\nv_mov_b32_dpp v15, v{16+g} row_shr:4 row_mask:0xf bank_mask:0xa')
            else:      a(f'v_mov_b32 v15, v{16+g}\nv_mov_b32_dpp v15, v{16+g} row_shl:4 row_mask:0xf bank_mask:0x5')
            for r in range(4): a(f'v_and_b32 v{A+r}, v15, v{4+r}')
            for x in range(3):
                i = 6*g + 3*c + x
                d = v4(OA + 4*x)
                a.wait_vm(f'v{i}')
                stamp(f'vc{i}')
                a(f'v_mfma_f32_16x16x32_bf16 {d}, {v4(A)}, {vreg(i)}, {0 if i < 3 else d}')
                pump(f'v{i}', 48, i + 1)
        if g == 2:
            did_wd[0] = True
            assert xiss[0] >= 5
            for r in range(4): a(f'v_and_b32 v{24+r}, v14, v{4+r}')
            a.wait_vm('wd')
            for c in range(5):
                a(f'v_mfma_f32_16x16x32_bf16 {v4(YA+4*c)}, v[24:27], {kt(WDT+c)}, 0')
        if g == GST:
            a(f's_mov_b32 {sT1}, {SPIN}')
            a.wait_vm('sl')
            a.label('L_spin2')
            a(f'''
            v_cmp_ne_u32 vcc, s100, v{SS+1}
            v_cmp_ne_u32 s[44:45], s101, v{SS+3}
            s_or_b64 vcc, vcc, s[44:45]
            s_cbranch_scc0 L_ok2
            s_sub_u32 {sT1}, {sT1}, 1
            s_cbranch_scc1 L_ok2
            s_sleep 4
            buffer_load_dwordx4 {v4(SS)}, v8, {WS}, {sSB} offen sc1
            s_waitcnt vmcnt(0)
            s_branch L_spin2
            ''')
            a.vm.pop()
            a.label('L_ok2')
            a(f'''
            s_cmp_eq_u32 s97, 0
            s_cbranch_scc1 L_ok2b
            s_mov_b32 {sT1}, {SPIN}
            ''')
            a.label('L_spin2b')
            a(f'''
            v_cmp_ne_u64 vcc, {TAG}, v[{GF}:{GF+1}]
            v_cmp_ne_u64 s[44:45], {TAG}, v[{GF+2}:{GF+3}]
            v_cmp_ne_u64 s[46:47], {TAG}, v[{GF+4}:{GF+5}]
            v_cmp_ne_u64 s[48:49], {TAG}, v[{GF+6}:{GF+7}]
            s_or_b64 vcc, vcc, s[44:45]
            s_or_b64 s[46:47], s[46:47], s[48:49]
            s_or_b64 vcc, vcc, s[46:47]
            s_cbranch_scc0 L_ok2c
            s_sub_u32 {sT1}, {sT1}, 1
            s_cbranch_scc1 L_ok2c
            s_sleep {SLP}
            buffer_load_dwordx4 {v4(GF)}, v9, {WS}, s98 offen sc1
            buffer_load_dwordx4 {v4(GF+4)}, v9, {WS}, s98 offen offset:1024 sc1
            s_waitcnt vmcnt(0)
            s_branch L_spin2b
            ''')
            a.vm.pop(); a.vm.pop()
            a.label('L_ok2c')
            a(f'''
            s_cmp_lg_u32 s2, 0
            s_cbranch_scc1 L_ok2b
            s_mov_b32 {sT2}, {WS_E}
            v_mov_b32 v{GF}, s100
            v_mov_b32 v{GF+1}, s101
            s_mov_b64 exec, 1
            buffer_store_dwordx2 v[{GF}:{GF+1}], v9, {WS}, {sT2} offen sc1
            s_mov_b64 exec, -1
            ''')
            a.vm.pop()
            a.label('L_ok2b')
            a(f'v_mov_b32 v{st+6}, v{SS}')
            rowred('v_max_f32', st+6)
            a(f'''
            v_sub_f32 v{st}, v{SS}, v{st+6}
            v_sub_f32 v{st+7}, {sM}, v{st+6}
            v_mul_f32 v{st}, {f32(L2E)}, v{st}
            v_mul_f32 v{st+7}, {f32(L2E)}, v{st+7}
            v_exp_f32 v{st}, v{st}
            v_exp_f32 v{st+7}, v{st+7}
            v_mul_f32 v{st}, v{st}, v{SS+2}
            ''')
            rowred('v_add_f32', st)
            a(f'''
            v_rcp_f32 v{st}, v{st}
            v_mul_f32 v14, v{st}, v{st+7}          ; factor
            v_and_b32 v{st+5}, 7, v1
            v_lshlrev_b32 v{st+5}, 3, v{st+5}
            v_and_b32 v{st+3}, 1, v3
            v_lshlrev_b32 v{st+3}, 2, v{st+3}
            v_and_b32 v{st+4}, 2, v3
            v_add3_u32 v{st+3}, v{st+3}, v{st+4}, v{st+5}
            s_min_u32 {sT0}, s96, 5056
            v_add_u32 v{st+4}, {sT0}, v{st+3}
            ds_read_u16 v{st+2}, v{st+4} offset:{L_X}
            v_and_b32 v{st+15}, 3, v2
            v_mul_u32_u24 v{st+15}, 0x5555, v{st+15}
            s_mov_b32 s44, 0x0f0f0f0f
            s_mov_b32 s45, 0x0f0f0f0f
            s_mov_b32 s46, 0xf0f0f0f0
            s_mov_b32 s47, 0xf0f0f0f0
            ''')
            a(f'''
            v_lshrrev_b32 v{st+6}, 1, v3
            s_lshl_b32 {sT0}, {sW_}, 1
            v_add_u32 v{st+7}, {sT0}, v{st+6}
            v_mul_u32_u24 v{st+7}, 784, v{st+7}
            v_and_b32 v{st+8}, 1, v3
            v_lshlrev_b32 v{st+11}, 4, v{st+8}
            v_add_u32 v{st+7}, v{st+7}, v{st+11}
            v_lshl_add_u32 v{st+8}, v2, 5, v{st+7}
            v_and_b32 v{st+9}, 7, v2
            v_lshl_add_u32 v{st+9}, v{st+9}, 5, v{st+7}
            v_add_u32 v{st+9}, 512, v{st+9}
            v_lshrrev_b32 v{st+7}, 3, v2
            v_cmp_eq_u32 vcc, v{st+7}, v{st+6}
            v_lshlrev_b32 v{st+7}, 4, v1
            v_add_u32 v{st+7}, {L_DUM}, v{st+7}
            v_cndmask_b32 v{st+9}, v{st+7}, v{st+9}, vcc
            v_mul_u32_u24 v{st+10}, 784, v2
            v_mul_u32_u24 v{st+7}, 24, v3
            s_mul_i32 {sT0}, {sW_}, 96
            v_add3_u32 v{st+10}, v{st+10}, v{st+7}, {sT0}
            s_mul_i32 {sT0}, {sW_}, 3200
            v_mul_u32_u24 v{st+11}, 24, v{st+11}
            v_lshl_add_u32 v{st+11}, v2, 4, v{st+11}
            v_add_u32 v{st+11}, {sT0}, v{st+11}           ; y write: 3200w + 384(g&1) + 16n
            v_and_b32 v{st+13}, 31, v1
            v_lshrrev_b32 v{st+7}, 1, v{st+13}
            v_lshlrev_b32 v{st+13}, 4, v{st+13}
            s_lshl_b32 {sT0}, {sW_}, 9
            v_add_u32 v{st+13}, {sT0}, v{st+13}
            v_mul_u32_u24 v{st+12}, 12800, v{st+6}
            v_lshl_add_u32 v{st+12}, v{st+7}, 4, v{st+12}
            v_and_b32 v{st+7}, 1, v1
            v_mul_u32_u24 v{st+7}, 384, v{st+7}
            s_mul_i32 {sT0}, {sW_}, 640
            v_add3_u32 v{st+12}, v{st+12}, v{st+7}, {sT0}  ; y read: 12800(l>>5) + 640w + 384(l&1) + 16((l&31)>>1)
            v_lshrrev_b32 v{st+14}, 3, v1
            v_mul_u32_u24 v{st+14}, 2560, v{st+14}
            v_lshl_add_u32 v{st+14}, v{st+5}, 1, v{st+14}
            s_mul_i32 s94, {sB}, {64*2560}
            s_lshl_b32 {sT0}, s95, 7
            s_add_u32 s94, s94, {sT0}
            ''')
            for i in range(8): a(f's_add_u32 s{48+i}, s94, {8*2560*i}')
    assert xiss[0] == nx and sp[0] == len(seq)
    stamp('vend')
    for r in range(4): a(f'v_cndmask_b32 v{OA+r}, v{OA+4+r}, v{OA+r}, {sLO32}')
    for r in range(4): a(f'v_mul_f32 v{OA+r}, v{OA+r}, v14')
    a(f'ds_write_b128 v{st+8}, {v4(OA)}')
    for r in range(4): a(f'v_mul_f32 v{OA+8+r}, v{OA+8+r}, v14')
    a(f'ds_write_b128 v{st+9}, {v4(OA+8)}')
    a('s_waitcnt lgkmcnt(0)\ns_barrier')
    stamp('barC')
    for j in range(3): a(f'ds_read_b64 v[{16+2*j}:{17+2*j}], v{st+10} offset:{8*j}')
    def dpp(regs, steps):
        for s_ in steps:
            for r in regs: a(f'v_add_f32_dpp v{r}, v{r}, v{r} row_ror:{s_} row_mask:0xf bank_mask:0xf')
    if CM != 2:
        a('s_waitcnt lgkmcnt(0)')
        dpp(range(16, 22), (8, 4, 2, 1))
    AT = KB
    def abuild(u):
        for i in range(2):
            a(f'v_cvt_pk_bf16_f32 v{16+2*u+i}, v{16+2*u+i}, 0')
        for i in range(2):
            a(f'v_cndmask_b32 v{AT+4*u+2*i}, 0, v{16+2*u+i}, s[44:45]\nv_cndmask_b32 v{AT+4*u+2*i+1}, 0, v{16+2*u+i}, s[46:47]')
    def smf(u, c):
        n = (c*3 + u)*2
        if n + 1 >= 30 - XL: a.wait_vm(f'wo{n+1}')
        r = KB + 4*(WOT + n)
        a(f'v_smfmac_f32_16x16x64_bf16 {v4(YA+4*c)}, {v4(AT+4*u)}, v[{r}:{r+7}], v{st+15}')
    def ywrite(c):
        a(f's_mov_b64 exec, {sLO32}\nds_write_b128 v{st+11}, {v4(YA+4*c)} offset:{L_YP+640*c}\ns_mov_b64 exec, -1')
    if CM == 2:
        a('s_waitcnt lgkmcnt(0)' if stamps == 3 else 's_waitcnt lgkmcnt(1)')
        dpp((16, 17, 18), (8, 4, 2, 1))
        abuild(0)
        a('s_waitcnt lgkmcnt(0)')
        dpp((19, 20, 21), (8,))
        smf(0, 0); dpp((19, 20, 21), (4,))
        smf(0, 1); dpp((19, 20, 21), (2,))
        smf(0, 2); dpp((19, 20, 21), (1,))
        smf(0, 3); abuild(1)
        smf(1, 0); abuild(2)
        order = [(1,1),(2,0),(1,2),(2,1),(1,3),(0,4),'w0',(2,2),'w1',(1,4),(2,3),(2,4),'w2','w3','w4']
        for o in order:
            if isinstance(o, str): ywrite(int(o[1]))
            else: smf(*o)
        stamp('mm')
        a('s_waitcnt lgkmcnt(0)\ns_barrier')
    elif CM:
        abuild(0); abuild(1)
        smf(0, 0); smf(0, 1)
        abuild(2)
        order = [(1,0),(1,1),(2,0),(2,1),(0,2),(0,3),(1,2),'w0',(1,3),'w1',(2,2),(0,4),(2,3),(1,4),'w2',(2,4),'w3','w4']
        for o in order:
            if isinstance(o, str): ywrite(int(o[1]))
            else: smf(*o)
        stamp('mm')
        a('s_waitcnt lgkmcnt(0)\ns_barrier')
    else:
        abuild(0); abuild(1)
        smf(0, 0); smf(0, 1)
        abuild(2)
        for c in range(2, 5): smf(0, c)
        for c in range(5): smf(1, c)
        for c in range(5): smf(2, c)
        stamp('mm')
        a(f's_mov_b64 exec, {sLO32}')
        for c in range(5): a(f'ds_write_b128 v{st+11}, {v4(YA+4*c)} offset:{L_YP+640*c}')
        a('s_mov_b64 exec, -1\ns_waitcnt lgkmcnt(0)\ns_barrier')
    stamp('barD'); stamp('pub'); stamp('c1')
    a(f's_cmp_ge_u32 {sW_}, 5\ns_cbranch_scc1 L_cons')
    for u in range(4): a(f'ds_read_b128 {v4(16+4*u)}, v{st+12} offset:{L_YP+3200*u}')
    a('s_waitcnt lgkmcnt(0)')
    padd(16, 24, 8); padd(16, 20, 4)
    for r in range(4): a(f'v_mov_b32 v{20+r}, v{16+r}')
    for r in range(4): a(f'v_permlane32_swap_b32 v{16+r}, v{20+r}')
    padd(16, 20, 4)
    for r in range(4): a(f'v_min_u32 v{16+r}, -2, v{16+r}')
    a(f's_mov_b64 exec, {sLO32}')
    a(f'buffer_store_dwordx4 v[16:19], v{st+13}, {WS}, {sYB} offen {POL[YSP]}')
    if stamps:
        a('s_mov_b64 exec, -1\ns_waitcnt lgkmcnt(0)')
        stamp('pub')
        a('s_branch L_fin')
    else:
        a('s_endpgm')
    a.label('L_cons')
    a(f'''
    s_cmp_eq_u32 s97, 0
    s_cbranch_scc1 L_fin
    s_mov_b32 {sT1}, {SPIN}
    ''')
    a.label('L_spin3')
    for i in range(8):
        a(f'buffer_load_dwordx4 {v4(16+4*i)}, v{st+14}, {WS}, s{48+i} offen {POL[YLP]}')
    a(f's_sub_u32 {sT1}, {sT1}, 1')
    for i in range(8):
        r = 16 + 4*i
        a(f's_waitcnt vmcnt({7-i})')
        if i == 0: a(f'v_max_u32 v14, v{r}, v{r+1}\nv_max_u32 v15, v{r+2}, v{r+3}')
        else: a(f'v_max3_u32 v14, v14, v{r}, v{r+1}\nv_max3_u32 v15, v15, v{r+2}, v{r+3}')
    a(f'''
    v_max_u32 v15, v15, v14
    v_cmp_eq_u32 vcc, -1, v15
    s_cbranch_scc1 L_ok3
    ''')
    if PM: a('s_and_b64 exec, vcc, vcc')
    else: a('s_and_b64 vcc, vcc, vcc')
    a.raw('  s_cbranch_scc1 L_spin3')
    a.label('L_ok3')
    a('s_mov_b64 exec, -1')
    if stamps: a('s_waitcnt lgkmcnt(0)')
    stamp('c1')
    padd(16, 32, 16); padd(16, 24, 8); padd(16, 20, 4)
    a(f'''
    v_lshlrev_b32 v20, 16, v{st+2}
    v_permlane32_swap_b32 v16, v17
    v_permlane32_swap_b32 v18, v19
    v_add_f32 v16, v16, v17
    v_add_f32 v18, v18, v19
    v_permlane16_swap_b32 v16, v18
    v_add_f32 v16, v16, v18
    v_add_f32_dpp v16, v16, v16 row_ror:8 row_mask:0xf bank_mask:0xf
    v_add_f32 v16, v16, v20
    v_cvt_pk_bf16_f32 v16, v16, v16
    s_mov_b32 exec_lo, 0x00ff00ff
    s_mov_b32 exec_hi, 0x00ff00ff
    buffer_store_short v16, v{st+3}, {OUT}, s96 offen
    s_mov_b64 exec, -1
    ''')
    if DLY:
        a(f'''
        s_waitcnt vmcnt(0)
        s_memrealtime s[84:85]
        s_waitcnt lgkmcnt(0)
        s_sub_u32 s82, {'s80' if DSEL else 's84'}, s86
        s_mul_i32 s82, s82, {DLY}
        s_add_u32 s82, s82, {6000 if DSEL else 0}
        s_min_u32 s82, s82, 200000
        ''')
        a.label('L_dly')
        a(f'''
        s_memrealtime s[84:85]
        s_waitcnt lgkmcnt(0)
        s_sub_u32 s83, s84, s86
        s_cmp_lt_u32 s83, s82
        s_cbranch_scc1 L_dly
        ''')
    a.label('L_fin')
    if stamps:
        a('s_waitcnt vmcnt(0)')
        stamp('end')
        a('s_waitcnt lgkmcnt(0)')
        for k in range(8): a(f'v_mov_b32 v{16+k}, s{SREG[k]}')
        a(f'''
        s_lshl_b32 {sT0}, s2, 3
        s_add_u32 {sT0}, {sT0}, {sW_}
        s_lshl_b32 {sT0}, {sT0}, 5
        s_add_u32 {sT0}, {sT0}, {WS_T}
        v_mov_b32 v14, 0
        s_mov_b64 exec, 1
        buffer_store_dwordx4 v[16:19], v14, {WS}, {sT0} offen
        buffer_store_dwordx4 v[20:23], v14, {WS}, {sT0} offen offset:16
        ''')
    a.label('L_end')
    a('s_endpgm')
    a.raw(f'''.section .rodata,"a"
.p2align 6
.amdhsa_kernel {name}
  .amdhsa_next_free_vgpr 256
  .amdhsa_next_free_sgpr 102
  .amdhsa_accum_offset 256
  .amdhsa_group_segment_fixed_size 0
  .amdhsa_kernarg_size 96
  .amdhsa_user_sgpr_count 2
  .amdhsa_user_sgpr_kernarg_segment_ptr 1
  .amdhsa_system_sgpr_workgroup_id_x 1
  .amdhsa_float_denorm_mode_32 3
.end_amdhsa_kernel''')
    return a.text()

if __name__ == '__main__':
    out = sys.argv[1]
    kw = {}
    for x in sys.argv[2:]:
        k, v = x.split('='); kw[k] = int(v)
    open(out, 'w').write(gen(**kw))
```

```python
import sys, struct
from asmdsl import Asm

NAME = 'parallel_sum__sliding_block_cached__geglu_ffn__decode_kernel'
def f32(x): return '0x%08x' % struct.unpack('<I', struct.pack('<f', x))[0]
def lanemask(fn):
    m = 0
    for l in range(64):
        if fn(l & 15, l >> 4): m |= 1 << l
    return m

HEADER = open('parallel_sum__sliding_block_cached__geglu_ffn__decode.s.ref').read().split('; Override')[0]

WS_Y  = 0
WS_S  = 0x100000
WS_E  = 0x108000
WS_F  = 0x109000
WS_G  = 0x10A000
WS_P  = 0x110000
WS_T  = 0x300000
WS_SZ = 0x400000
L_PART = 0
L_DUM  = 14336
L_Q    = 15360
L_HID  = 15872
L_CNT  = 16000
L_X    = 16128
L_STG  = 21504
L_YP   = L_STG
BIG = 0x40000000
L2E = 1.4426950408889634
POL = {0: '', 1: 'nt', 2: 'sc0 nt', 3: 'sc1 nt', 4: 'sc0', 5: 'sc1', 6: 'sc0 sc1', 7: 'sc0 sc1 nt'}

def gen(KU=3, KW=0, KP0=9, PP=0, PG=2, PI=3, TP=5, XL=4, T=5, TV=6, TVE=12, VE=30, RV=12, ILV=1, XBEG=4, XEND=14, SLI=28, GST=5, PRIO=1, SLP=8, KPOLL=26, W0N=5, WPOL=0, SPOL=0, KVPOL=1, PPOL=0, DLY=0, DSEL=0, PF=0, PSL=0, CM=2, PM=0, YLP=5, YSP=5, YCP=5, ROT=1,
        NS=17, SEND=44, EXP=0, stamps=0, name=NAME):
    a = Asm()
    SPIN = (1 << 19) if EXP == 0 else 0
    LDS_SZ = L_STG + max(8 * NS * 1024, 25600)
    assert LDS_SZ <= 163840
    SREG = [80, 82, 84, 86, 56, 58, 60, 62]
    SETS = {1: ['start', 'barA', 'sig', 'kiss', 'barB', 'smax', 'vend', 'end'],
            2: ['start', 'bar0', 'ln', 'barA', 'sig', 'poll', 'qrdy', 'end'],
            3: ['start', 'vend', 'barC', 'mm', 'barD', 'pub', 'c1', 'end'],
            5: ['start', 'ki12', 'ki18', 'ki24', 'ki30', 'ki36', 'ki42', 'ki47'],
            6: ['start', 'ki47', 'vc0', 'vc12', 'vc24', 'vc36', 'vc42', 'vc47'],
            7: ['start', 'bar0', 'barA', 'ki12', 'ki24', 'ki47', 'vc24', 'vc47'],
            4: ['start', 'karg', 'iss1', 'iss2', 'pre0', 'bar0', 'barA', 'end']}
    DN = ['end', 'karg', 'iss1', 'bar0', 'barA', 'sig', 'barB', 'vend', 'iss2', 'smax']
    def stamp(nm):
        if DLY and DSEL and nm == DN[DSEL]: a('s_memrealtime s[80:81]')
        if stamps and nm in SETS[stamps]:
            r = SREG[SETS[stamps].index(nm)]
            a(f's_memrealtime s[{r}:{r+1}]')
    a.raw(HEADER.rstrip())
    a.raw(f'; @launch grid=(256,1,1) block=(512,1,1) lds={LDS_SZ}')
    a.raw('.amdgcn_target "amdgcn-amd-amdhsa--gfx950"\n.text\n.globl %s\n.p2align 8\n.type %s,@function\n%s:' % (name, name, name))
    sW_, sH, sB, sS, sJ, sXCD, sP, sIDX = 's3', 's4', 's5', 's6', 's7', 's68', 's69', 's70'
    K, V, W, WO, WD, X, WS, OUT = 's[8:11]', 's[12:15]', 's[16:19]', 's[20:23]', 's[24:27]', 's[28:31]', 's[32:35]', 's[36:39]'
    sWO0, sWO1, sWDB, sSTG, sWO2, sWO3 = 's40', 's41', 's42', 's43', 's64', 's65'
    sKV, sKV2, sKV0 = 's71', 's72', 's73'
    sT0, sT1, sT2, sT3 = 's74', 's75', 's76', 's77'
    sLO32 = 's[78:79]'
    sM, sSOWN, sYB, sSB = 's88', 's89', 's90', 's91'
    TAG = 's[100:101]'
    KB = 64
    WDT, WOT = 12, 17
    def kt(i): return f'v[{KB+4*i}:{KB+4*i+3}]'
    def v4(r): return f'v[{r}:{r+3}]'
    def srd(d, p, n):
        a(f's_mov_b32 s{d}, s{p}\ns_and_b32 s{d+1}, s{p+1}, 0xffff\ns_mov_b32 s{d+2}, {n}\ns_mov_b32 s{d+3}, 0x20000')
    def rowred(op, r, steps=(8, 4, 2, 1)):
        for s_ in steps: a(f'{op}_dpp v{r}, v{r}, v{r} row_ror:{s_} row_mask:0xf bank_mask:0xf')
    gstep = 6144 * 8 if ILV else 6144
    def grp(g):
        if ROT:
            a(f's_add_u32 {sKV}, {sJ}, {g}\ns_and_b32 {sKV}, {sKV}, 7\ns_mul_i32 {sKV}, {sKV}, {gstep}\ns_add_u32 {sKV}, {sKV}, {sKV0}')
        else:
            a(f's_mov_b32 {sKV}, {sKV0}' if g == 0 else f's_add_u32 {sKV}, {sKV}, {gstep}')
    kissued = [0]
    def kload():
        i = kissued[0]; g, e = divmod(i, 6)
        stamp(f'ki{i}')
        if e == 0: grp(g)
        if e < 4: a(f'buffer_load_dwordx4 {kt(i)}, v8, {K}, {sKV} offen offset:{384*e} {POL[KVPOL]}', tag=f'k{i}')
        else:     a(f'buffer_load_dwordx4 {kt(i)}, v9, {K}, {sKV} offen offset:{768*(e-4)} {POL[KVPOL]}', tag=f'k{i}')
        kissued[0] += 1

    a(f'''
    s_cmp_ge_u32 s2, 256
    s_cbranch_scc1 L_end
    s_load_dwordx16 s[44:59], s[0:1], 0
    s_load_dwordx8 s[60:67], s[0:1], 64''')
    stamp('start')
    if DLY: a('s_memrealtime s[86:87]')
    if PRIO: a('s_setprio 3')
    a(f'''
    v_lshrrev_b32 v14, 6, v0
    v_and_b32 v1, 63, v0
    v_readfirstlane_b32 {sW_}, v14
    v_and_b32 v2, 15, v1
    v_lshrrev_b32 v3, 4, v1
    s_and_b32 {sXCD}, s2, 7
    s_lshr_b32 {sJ}, s2, 3
    s_lshr_b32 {sT0}, {sJ}, 3
    s_lshl_b32 {sH}, {sXCD}, 2
    s_add_u32 {sH}, {sH}, {sT0}
    s_and_b32 {sT1}, {sJ}, 7
    s_lshr_b32 {sB}, {sT1}, 1
    s_and_b32 {sS}, {sT1}, 1
    s_lshl_b32 {sT0}, {sB}, 5
    s_add_u32 {sSB}, {sT0}, {sH}       ; bh
    s_mul_i32 {sKV0}, {sSB}, 3145728
    s_mul_i32 {sT2}, {sS}, 393216
    s_add_u32 {sKV0}, {sKV0}, {sT2}
    s_add_u32 {sKV0}, {sKV0}, {6144*384}
    s_mul_i32 {sT2}, {sW_}, {6144 if ILV else 49152}
    s_add_u32 {sKV0}, {sKV0}, {sT2}
    v_lshrrev_b32 v20, 2, v2
    v_and_b32 v21, 3, v2
    v_lshlrev_b32 v21, 4, v21
    v_mul_u32_u24 v9, 1536, v20
    v_add_u32 v9, v9, v21
    v_lshl_add_u32 v8, v3, 6, v9       ; vkx = 1536(n>>2)+16(n&3)+64g
    v_lshlrev_b32 v20, 4, v1
    s_lshl_b32 {sT0}, {sW_}, 10
    s_add_u32 m0, {sT0}, {L_X}
    s_mov_b32 s10, 402653184
    s_mov_b32 s11, 0x20000
    s_movk_i32 s30, 5120
    s_mov_b32 s31, 0x20000
    s_waitcnt lgkmcnt(0)
    ''')
    stamp('karg')
    a(f'''
    s_mov_b32 s28, s44
    s_and_b32 s29, s45, 0xffff
    s_mov_b32 s8, s46
    s_and_b32 s9, s47, 0xffff
    s_cmp_ge_u32 {sW_}, 5
    s_cbranch_scc1 L_nox
    ''')
    a.role = 'x'
    a(f'buffer_load_dwordx4 v20, {X}, {sT0} offen lds', tag='x')
    a.role = None
    a.label('L_nox')
    assert KU <= 4
    for i in range(KU): kload()
    stamp('iss1')
    a(f's_add_u32 s100, s66, {WS_E}\ns_addc_u32 s101, s67, 0\ns_load_dwordx2 {TAG}, {TAG}, 0')
    a(f'''
    s_mul_i32 {sT2}, {sXCD}, 27
    s_add_u32 {sT2}, {sT2}, {sJ}
    s_mul_i32 s92, {sT2}, 43691
    s_lshr_b32 s92, s92, 17            ; blk
    s_mul_i32 {sT3}, s92, 3
    s_sub_u32 s93, {sT2}, {sT3}        ; split
    s_mul_i32 s97, s93, 224
    s_lshl_b32 {sT2}, {sW_}, 5
    s_add_u32 s97, s97, {sT2}
    s_sub_u32 {sT2}, s92, 48
    s_sub_u32 {sT3}, s92, 60
    s_cmp_lt_u32 s92, 60
    s_cselect_b32 s16, s56, s58
    s_cselect_b32 s17, s57, s59
    s_cselect_b32 s98, {sT2}, {sT3}
    s_movk_i32 s96, 3072
    s_mov_b32 s18, 1966080
    s_cmp_lt_u32 s92, 48
    s_cselect_b32 s16, s50, s16
    s_cselect_b32 s17, s51, s17
    s_cselect_b32 s18, 7864320, s18
    s_cselect_b32 s96, 12288, s96
    s_cselect_b32 s98, s92, s98
    s_and_b32 s17, s17, 0xffff
    s_mov_b32 s19, 0x20000
    s_mul_i32 s94, s97, s96
    s_lshl_b32 s98, s98, 8
    s_add_u32 s94, s94, s98            ; soffset
    s_cmp_eq_u32 {sW_}, 7
    s_cselect_b32 s94, {BIG}, s94
    s_cmp_ge_u32 {sJ}, {27 if not (EXP & 128) else 0}
    s_cselect_b32 s94, {BIG}, s94
    v_mul_lo_u32 v16, v3, s96
    v_lshl_add_u32 v16, v2, 4, v16     ; g*RS+16n
    s_lshl_b32 s96, s96, 2
    v_lshrrev_b32 v22, 1, v3
    v_mul_u32_u24 v21, 384, v22
    v_add_u32 v9, v9, v21
    v_and_b32 v22, 1, v3
    v_lshlrev_b32 v22, 6, v22
    v_add3_u32 v9, v9, v22, 64
    v_add_u32 v9, 192, v9              ; vky
    ''')
    WT = 224
    wiss = [0]
    def wload():
        t = wiss[0]
        a(f'buffer_load_dwordx4 {v4(WT+4*t)}, v16, {W}, s94 offen {POL[PPOL]}', tag=f'w{t}')
        if t < 7: a(f's_add_u32 s94, s94, s96')
        wiss[0] += 1
    pcnt = [0]
    def pstep(paced=True):
        if paced: a(f's_waitcnt vmcnt({TP-1})')
        pcnt[0] += 1
        if wiss[0] < 8 and pcnt[0] % (PG + 1) != 0: wload()
        else: kload()
    if PP:
        for _ in range(PI): pstep(False)
    else:
        for t in range(8):
            wload()
            if t == 3:
                for _ in range(KW): kload()
        KU = KU + KW
    stamp('iss2')
    if PRIO: a('s_setprio 0')
    def kmore(frac):
        if PP: pstep(); return
        while kissued[0] < KU + int((KP0 - KU) * frac + 0.5): kload()
    def pmore():
        if PP: pstep()
    srd(32, 66, WS_SZ); srd(12, 48, 402653184); srd(20, 52, 7864320); srd(24, 60, 1966080); srd(36, 62, 5120)
    if PF:
        a(f'''
        s_cmp_lg_u32 {sW_}, 7
        s_cbranch_scc1 L_nopf
        s_mov_b32 {sT0}, {49152 if PF == 1 else 6144}
        v_mul_lo_u32 v24, v1, {sT0}
        s_sub_u32 {sT0}, {sKV0}, {7*6144 if ILV else 7*49152}
        s_mov_b64 exec, {0xff if PF == 1 else -1}
        buffer_load_dword v63, v24, {V}, {sT0} offen nt
        buffer_load_dword v63, v24, {K}, {sT0} offen offset:128 nt
        s_mov_b64 exec, 0xff
        v_lshlrev_b32 v24, 15, v1
        s_mul_i32 {sT0}, {sH}, {192*1280}
        buffer_load_dword v63, v24, {WO}, {sT0} offen
        s_mov_b64 exec, 1
        s_mul_i32 {sT0}, {sH}, {48*1280}
        buffer_load_dword v63, v24, {WD}, {sT0} offen
        buffer_load_dword v63, v24, {OUT}, 0 offen
        s_mov_b32 {sT0}, {WS_E+128}
        buffer_load_dword v63, v24, {WS}, {sT0} offen
        s_mov_b64 exec, -1
        ''')
        for _ in range(6): a.vm.pop()
        a.label('L_nopf')
    a(f'''
    s_lshl_b32 {sP}, {sH}, 1
    s_add_u32 {sP}, {sP}, {sS}
    s_lshl_b32 {sIDX}, {sXCD}, 5
    s_add_u32 {sIDX}, {sIDX}, {sJ}
    s_mov_b32 s78, -1
    s_mov_b32 s79, 0
    s_lshl_b32 {sT0}, {sB}, 6
    s_add_u32 {sT0}, {sT0}, {sP}
    s_mul_i32 {sYB}, {sT0}, 2560
    s_lshl_b32 {sSB}, {sSB}, 8
    s_add_u32 {sSB}, {sSB}, {WS_S}
    s_lshl_b32 {sT2}, {sS}, 3
    s_add_u32 {sT2}, {sT2}, {sW_}
    s_lshl_b32 {sT2}, {sT2}, 4
    s_add_u32 {sSOWN}, {sSB}, {sT2}
    s_mul_i32 {sWDB}, {sP}, 24
    s_mul_i32 {sT0}, {sW_}, 3
    s_add_u32 {sWDB}, {sWDB}, {sT0}
    s_mul_i32 {sWDB}, {sWDB}, 1280
    s_mul_i32 {sWO0}, {sH}, 192
    s_mul_i32 {sT0}, {sW_}, 24
    s_add_u32 {sWO0}, {sWO0}, {sT0}
    s_mul_i32 {sWO0}, {sWO0}, 1280
    s_add_u32 {sWO1}, {sWO0}, 5120
    s_add_u32 {sWO2}, {sWO0}, 15360
    s_add_u32 {sWO3}, {sWO0}, 20480
    s_mul_i32 {sSTG}, {sW_}, {NS*1024}
    s_add_u32 {sSTG}, {sSTG}, {L_STG}
    v_mov_b32 v17, 1280
    v_mul_u32_u24 v18, 1280, v3
    v_lshl_add_u32 v18, v2, 4, v18     ; 1280g+16n
    s_lshl_b32 s97, s97, 1
    s_min_u32 s97, s97, 1216
    v_lshl_add_u32 v19, v3, 1, s97
    v_lshrrev_b32 v14, 3, v2
    v_mad_u32_u24 v19, v14, v17, v19   ; + 1280*(m>>3)
    v_and_b32 v15, 7, v2
    v_lshlrev_b32 v15, 4, v15          ; 16*(n&7)
    v_and_b32 v20, 1, v2
    v_cmp_eq_u32 vcc, 1, v20
    v_mov_b32 v21, 0xffff
    v_mov_b32 v22, 0xffff0000
    v_cndmask_b32 v21, v21, v22, vcc
    v_bfe_u32 v20, v2, 1, 2
    ''')
    for r in range(4):
        a(f'v_cmp_eq_u32 vcc, {r}, v20\nv_cndmask_b32 v{4+r}, 0, v21, vcc')
    a(f'''
    v_mul_u32_u24 v10, 384, v3
    v_lshrrev_b32 v20, 3, v2
    v_mul_u32_u24 v11, 3072, v20
    v_add3_u32 v11, v11, v10, v15
    v_add_u32 v11, 256, v11            ; vvy = (g+8*(n>>3))*384+256+16*(n&7)
    v_lshl_add_u32 v10, v2, 4, v10     ; vvx = g*384+16n
    v_lshrrev_b32 v12, 1, v3
    v_mul_u32_u24 v12, 5120, v12
    v_add_u32 v12, v12, v18            ; vwo = (6(g>>1)+(g&1))*1280+16n
    v_mov_b32 v22, {BIG}
    v_cmp_eq_u32 vcc, 3, v3
    v_cndmask_b32 v13, v18, v22, vcc   ; vwd = g*1280+16n  (g==3 -> out of range)
    v_lshrrev_b32 v20, 1, v3
    v_lshlrev_b32 v20, 9, v20
    v_and_b32 v22, 1, v3
    v_lshl_add_u32 v22, v22, 4, v20
    v_lshl_add_u32 v22, v2, 5, v22
    s_lshl_b32 {sT0}, {sW_}, 11
    v_add_u32 v22, {sT0}, v22
    v_mov_b32 v20, {L_CNT}
    v_mov_b32 v21, 0
    ds_write_b32 v20, v21
    ds_write_b32 v20, v21 offset:4
    ''')
    if EXP & 64: a(f'v_mov_b32 v12, {BIG}\nv_mov_b32 v13, {BIG}')
    stamp('pre0')
    a.role = 'x'; a.wait_vm('x'); a.role = None
    a('s_barrier')
    stamp('bar0')
    XS, XO, U, XN, AB, ACC, XV = 24, 44, 184, 184, 200, 216, 168
    for i in range(5): a(f'ds_read_b128 {v4(XS+4*i)}, v18 offset:{L_X+256*i}')
    for pr in range(2):
        for t in range(8): a(f'ds_read_u16 v{XV+8*pr+t}, v19 offset:{L_X+2560*pr+8*t}')
    kmore(1/6)
    a(f'''
    s_waitcnt lgkmcnt(0)
    s_mul_i32 s100, s100, 0x9E3779B1
    s_add_u32 s100, s100, 0x7F4A7C15
    s_mul_i32 s101, s101, 0x85EBCA69
    s_add_u32 s101, s101, 0xC2B2AE35
    ''')
    for i in range(20):
        a(f'v_lshlrev_b32 v{U+2*i}, 16, v{XS+i}\nv_and_b32 v{U+2*i+1}, 0xffff0000, v{XS+i}')
    pmore()
    a(f'v_pk_add_f32 v[52:53], v[{U}:{U+1}], v[{U+2}:{U+3}]\nv_pk_add_f32 v[54:55], v[{U+4}:{U+5}], v[{U+6}:{U+7}]')
    for i in range(8, 40, 2):
        d = 52 + (i & 2)
        a(f'v_pk_add_f32 v[{d}:{d+1}], v[{d}:{d+1}], v[{U+i}:{U+i+1}]')
    a('v_pk_add_f32 v[52:53], v[52:53], v[54:55]\nv_add_f32 v52, v52, v53')
    rowred('v_add_f32', 52)
    a(f'v_mul_f32 v56, {f32(-1/640)}, v52')
    kmore(2/6)
    for i in range(0, 40, 2): a(f'v_pk_add_f32 v[{U+i}:{U+i+1}], v[{U+i}:{U+i+1}], v[56:57] op_sel_hi:[1,0]')
    a(f'v_pk_mul_f32 v[52:53], v[{U}:{U+1}], v[{U}:{U+1}]\nv_pk_mul_f32 v[54:55], v[{U+2}:{U+3}], v[{U+2}:{U+3}]')
    for i in range(4, 40, 2):
        d = 52 + (i & 2)
        a(f'v_pk_fma_f32 v[{d}:{d+1}], v[{U+i}:{U+i+1}], v[{U+i}:{U+i+1}], v[{d}:{d+1}]')
    a('v_pk_add_f32 v[52:53], v[52:53], v[54:55]\nv_add_f32 v52, v52, v53')
    rowred('v_add_f32', 52)
    a(f'''
    v_mul_f32 v52, {f32(1/640)}, v52
    v_cvt_pk_bf16_f32 v53, v56, v52
    v_lshlrev_b32 v56, 16, v53
    v_and_b32 v52, 0xffff0000, v53
    v_add_f32 v52, {f32(1e-5)}, v52
    v_cvt_pk_bf16_f32 v52, v52, v52
    v_and_b32 v52, 0xffff0000, v52
    v_sqrt_f32 v52, v52
    v_cvt_pk_bf16_f32 v52, v52, v52
    v_and_b32 v52, 0xffff0000, v52
    v_rcp_f32 v52, v52
    v_lshlrev_b32 v53, 6, v14
    v_add_u32 v54, 128, v53
    ds_bpermute_b32 v58, v53, v56
    ds_bpermute_b32 v60, v54, v56
    ds_bpermute_b32 v24, v53, v52
    ds_bpermute_b32 v26, v54, v52
    ''')
    kmore(3/6)
    for k in range(16): a(f'v_lshlrev_b32 v{XN+k}, 16, v{XV+k}')
    a('s_waitcnt lgkmcnt(0)')
    for pr in range(2):
        for k in range(4):
            r = XN + 8*pr + 2*k
            a(f'v_pk_add_f32 v[{r}:{r+1}], v[{r}:{r+1}], v[{58+2*pr}:{59+2*pr}] op_sel_hi:[1,0]')
    for k in range(8): a(f'v_cvt_pk_bf16_f32 v{XO+k}, v{XN+2*k}, v{XN+2*k+1}')
    for k in range(8): a(f'v_lshlrev_b32 v{XN+2*k}, 16, v{XO+k}\nv_and_b32 v{XN+2*k+1}, 0xffff0000, v{XO+k}')
    for pr in range(2):
        for k in range(4):
            r = XN + 8*pr + 2*k
            a(f'v_pk_mul_f32 v[{r}:{r+1}], v[{r}:{r+1}], v[{24+2*pr}:{25+2*pr}] op_sel_hi:[1,0]')
    for k in range(16): a(f'v_cvt_pk_bf16_f32 v{XN+k}, v{XN+k}, v{XN+k}')
    stamp('ln')
    kmore(4/6)
    if PP:
        while wiss[0] < 8: pstep()
    for t in range(8):
        for pr in range(2):
            ab = AB + 4*((2*t + pr) & 3)
            for r in range(4): a(f'v_and_b32 v{ab+r}, v{XN+8*pr+t}, v{4+r}')
        a.wait_vm(f'w{t}')
        for pr in range(2):
            ab = AB + 4*((2*t + pr) & 3); d = v4(ACC + 4*pr)
            a(f'v_mfma_f32_16x16x32_bf16 {d}, {v4(ab)}, {v4(WT+4*t)}, {0 if t == 0 else d}')
        if PP:
            idx = max(k for k, (tg, r) in enumerate(a.vm) if tg == f'w{t}')
            while len(a.vm) - 1 - idx < TP: pstep(False)
        elif t == 3: kmore(5/6)
    stamp('wland')
    kmore(1)
    if PP: KP0 = kissued[0]
    a(f's_cmp_eq_u32 {sW_}, 7\ns_cbranch_scc1 L_nopart')
    for pr in range(2): a(f'ds_write_b128 v22, {v4(ACC+4*pr)} offset:{1024*pr}')
    a.label('L_nopart')
    a('s_waitcnt lgkmcnt(0)\ns_barrier')
    stamp('barA')
    def padd(d, s_, n):
        for r in range(0, n, 2): a(f'v_pk_add_f32 v[{d+r}:{d+r+1}], v[{d+r}:{d+r+1}], v[{s_+r}:{s_+r+1}]')
    a(f'''
    s_cmp_lt_u32 {sW_}, 6
    s_cbranch_scc1 L_nopub
    v_and_b32 v14, 127, v0
    v_lshlrev_b32 v15, 4, v14
    ''')
    for u in range(7): a(f'ds_read_b128 {v4(16+4*u)}, v15 offset:{2048*u}')
    a(f'''
    v_lshrrev_b32 v14, 5, v14
    s_mov_b32 {sT0}, {36864-512}
    v_mad_u32_u24 v14, v14, {sT0}, v15     ; b*36864 + 16*(t&31)
    s_mul_i32 {sT0}, s93, 147456
    s_lshl_b32 {sT2}, s92, 9
    s_add_u32 {sT0}, {sT0}, {sT2}
    s_add_u32 {sT0}, {sT0}, {WS_P}
    s_cmp_ge_u32 {sJ}, {27 if not (EXP & 8) else 0}
    s_cselect_b32 {sT0}, {BIG}, {sT0}
    s_waitcnt lgkmcnt(0)
    ''')
    padd(16, 32, 12); padd(16, 24, 8); padd(16, 20, 4)
    a.role = 'pub'
    a(f'buffer_store_dwordx4 v[16:19], v14, {WS}, {sT0} offen sc1', tag='pub')
    a.role = None
    a.label('L_nopub')
    def wotile(n):
        uc, h = divmod(n, 2); c, u = divmod(uc, 3)
        return [[sWO0, sWO1], [sWO2, sWO3]][h][u == 2], (2560 if u == 1 else 0) + 256*c
    kseq = []
    si = 0
    for i in range(KP0, 48):
        kseq.append('k')
        while si < NS and (si + 1) * (SEND - KP0) <= (i + 1 - KP0) * NS:
            kseq.append('s'); si += 1
    assert si == NS
    kp = [0]; sissued = [0]
    def kstep(paced):
        op = kseq[kp[0]]; kp[0] += 1
        if paced: a(f's_waitcnt vmcnt({T-1})')
        if op == 'k': kload()
        else:
            n = sissued[0]; so, imm = wotile(n)
            a(f's_add_u32 m0, {sSTG}, {1024*n - imm}' if 1024*n >= imm else f's_sub_u32 m0, {sSTG}, {imm - 1024*n}')
            a(f'buffer_load_dwordx4 v12, {WO}, {so} offen offset:{imm} {POL[SPOL]} lds', tag='stg')
            sissued[0] += 1
    for _ in range(T - 1): kstep(True)
    a(f's_cmp_lt_u32 {sW_}, 6\ns_cbranch_scc1 L_nosig')
    a.role = 'pub'; a.wait_vm('pub'); a.role = None
    a(f'''
    v_mov_b32 v14, {L_CNT}
    v_mov_b32 v15, 1
    s_mov_b64 exec, 1
    ds_add_rtn_u32 v20, v14, v15
    s_waitcnt lgkmcnt(0)
    v_readfirstlane_b32 {sT0}, v20
    s_cmp_eq_u32 {sT0}, 1
    s_cbranch_scc0 L_nosig
    s_mov_b64 exec, 3
    s_lshl_b32 {sT0}, s92, 2
    s_add_u32 {sT0}, {sT0}, s93
    s_lshl_b32 {sT0}, {sT0}, 3
    s_add_u32 {sT0}, {sT0}, {WS_F}
    s_cmp_ge_u32 {sJ}, 27
    s_cselect_b32 {sT0}, {BIG}, {sT0}
    s_lshl_b32 {sT2}, {sIDX}, 3
    s_add_u32 {sT2}, {sT2}, {WS_G}
    v_mov_b32 v20, {sT0}
    v_writelane_b32 v20, {sT2}, 1
    v_mov_b32 v14, s100
    v_mov_b32 v15, s101
    ''')
    a(f'buffer_store_dwordx2 v[14:15], v20, {WS}, 0 offen sc1'); a.vm.pop()
    a.label('L_nosig')
    a('s_mov_b64 exec, -1')
    stamp('sig')
    while kissued[0] < KPOLL: kstep(True)
    a(f's_cmp_eq_u32 {sW_}, 0\ns_cbranch_scc1 L_w0')
    fork = (list(a.vm), kissued[0], kp[0], sissued[0])
    while kp[0] < len(kseq): kstep(True)
    stamp('kiss'); stamp('poll'); stamp('qrdy')
    a('s_branch L_join')
    vm_join = list(a.vm)
    a.vm, kissued[0], kp[0], sissued[0] = fork
    a.label('L_w0')
    a(f'''
    v_min_u32 v60, 59, v1
    v_lshlrev_b32 v60, 2, v60
    s_mul_i32 {sT0}, {sH}, 192
    s_mul_i32 {sT2}, {sP}, 24
    s_add_u32 {sT2}, {sT2}, {6144-192}
    s_add_u32 {sT3}, {sT2}, {1536-24}
    v_mov_b32 v61, {sT0}
    v_mov_b32 v62, {sT2}
    v_cmp_le_u32 vcc, 48, v1
    v_cndmask_b32 v61, v61, v62, vcc
    v_mov_b32 v62, {sT3}
    v_cmp_le_u32 vcc, 54, v1
    v_cndmask_b32 v61, v61, v62, vcc
    v_add_u32 v60, v60, v61
    v_lshrrev_b32 v61, 7, v60
    v_lshlrev_b32 v61, 5, v61
    v_lshlrev_b32 v60, 2, v60
    s_mov_b32 {sT2}, {WS_F}
    s_mov_b32 {sT1}, {SPIN}
    ''')
    if EXP & 1: a(f'v_mov_b32 v61, {BIG}')
    a(f'buffer_load_dwordx4 v[16:19], v61, {WS}, {sT2} offen sc1')
    a(f'buffer_load_dwordx2 v[20:21], v61, {WS}, {sT2} offen offset:16 sc1', tag='poll')
    for _ in range(T - 1): kstep(True)
    a.wait_vm('poll')
    a.label('L_spin1')
    a(f'''
    v_cmp_ne_u64 vcc, {TAG}, v[16:17]
    v_cmp_ne_u64 s[44:45], {TAG}, v[18:19]
    v_cmp_ne_u64 s[46:47], {TAG}, v[20:21]
    s_or_b64 vcc, vcc, s[44:45]
    s_or_b64 vcc, vcc, s[46:47]
    s_cbranch_scc0 L_ok1
    s_sub_u32 {sT1}, {sT1}, 1
    s_cbranch_scc1 L_ok1
    s_sleep {SLP}
    buffer_load_dwordx4 v[16:19], v61, {WS}, {sT2} offen sc1
    buffer_load_dwordx2 v[20:21], v61, {WS}, {sT2} offen offset:16 sc1
    s_waitcnt vmcnt(0)
    s_branch L_spin1
    ''')
    a.vm.pop(); a.vm.pop()
    a.label('L_ok1')
    stamp('poll')
    a(f's_mul_i32 {sT0}, {sB}, 36864\ns_add_u32 {sT0}, {sT0}, {WS_P}')
    if EXP & 2: a(f'v_mov_b32 v60, {BIG}')
    for t in range(3):
        a(f'buffer_load_dwordx4 {v4(16+4*t)}, v60, {WS}, {sT0} offen sc1', tag='gq')
        if t < 2: a(f's_add_u32 {sT0}, {sT0}, 147456')
    for _ in range(W0N): kstep(False)
    a.wait_vm('gq')
    padd(16, 20, 4); padd(16, 24, 4)
    a(f'''
    v_cvt_pk_bf16_f32 v16, v16, v17
    v_cvt_pk_bf16_f32 v17, v18, v19
    v_lshlrev_b32 v14, 3, v1
    ds_write_b64 v14, v[16:17] offset:{L_Q}
    v_min_u32 v14, 23, v1
    v_lshlrev_b32 v14, 1, v14
    s_waitcnt lgkmcnt(0)
    ds_read_u16 v20, v14 offset:{L_Q+384}
    ds_read_u16 v21, v14 offset:{L_Q+432}
    s_waitcnt lgkmcnt(0)
    v_lshlrev_b32 v20, 16, v20
    v_lshlrev_b32 v21, 16, v21             ; up
    v_mul_f32 v22, v20, v20
    v_mul_f32 v22, {f32(0.044715)}, v22
    v_fma_f32 v22, v22, v20, v20           ; x + c x^3
    v_mul_f32 v22, {f32(-2*0.7978845608028654*L2E)}, v22
    v_exp_f32 v22, v22
    v_add_f32 v22, 1.0, v22
    v_rcp_f32 v22, v22
    v_mul_f32 v22, v22, v20
    v_cvt_pk_bf16_f32 v22, v22, v22
    v_and_b32 v22, 0xffff0000, v22
    v_mul_f32 v22, v22, v21
    v_cvt_pk_bf16_f32 v22, v22, v22
    v_cmp_gt_u32 vcc, 24, v1
    v_cndmask_b32 v22, 0, v22, vcc
    v_min_u32 v14, 31, v1
    v_lshlrev_b32 v14, 2, v14
    ds_write_b32 v14, v22 offset:{L_HID}
    v_mov_b32 v14, {L_CNT}
    v_mov_b32 v15, 1
    s_waitcnt lgkmcnt(0)
    ds_write_b32 v14, v15 offset:4
    ''')
    def xred8(base, n, tmp):
        for r in range(n): a(f'v_add_f32_dpp v{base+r}, v{base+r}, v{base+r} row_ror:8 row_mask:0xf bank_mask:0xf')
        for sw in ('v_permlane16_swap_b32', 'v_permlane32_swap_b32'):
            for r in range(n): a(f'v_mov_b32 v{tmp+r}, v{base+r}')
            for r in range(n): a(f'{sw} v{base+r}, v{tmp+r}')
            padd(base, tmp, n)
    stamp('qrdy')
    while kp[0] < len(kseq): kstep(True)
    stamp('kiss')
    a.vm = vm_join
    a.label('L_join')
    a(f'v_mov_b32 v14, {L_CNT}\ns_mov_b32 {sT1}, {1<<24}')
    a.label('L_spinq')
    a(f'''
    ds_read_b32 v15, v14 offset:4
    s_waitcnt lgkmcnt(0)
    v_readfirstlane_b32 {sT0}, v15
    s_cmp_lg_u32 {sT0}, 0
    s_cbranch_scc1 L_okq
    s_sub_u32 {sT1}, {sT1}, 1
    s_cbranch_scc1 L_okq
    s_sleep 1
    s_branch L_spinq
    ''')
    a.label('L_okq')
    stamp('barB')
    a(f'''
    v_and_b32 v14, 3, v2
    v_lshl_add_u32 v15, v3, 2, v14
    v_lshlrev_b32 v15, 4, v15
    ds_read_b128 v[56:59], v15 offset:{L_Q}
    v_and_b32 v15, 0x70, v15
    ds_read_b128 v[60:63], v15 offset:{L_Q+256}
    ''')
    mX = [lanemask(lambda m, g, u=u: (m >> 2) == u) for u in range(4)]
    mY = [lanemask(lambda m, g, w=w: (m >> 2) == 2*w + (g >> 1)) for w in range(2)]
    for k, m in enumerate(mX + mY):
        a(f's_mov_b32 s{44+2*k}, {hex(m & 0xffffffff)}\ns_mov_b32 s{45+2*k}, {hex(m >> 32)}')
    a('s_waitcnt lgkmcnt(0)')
    for k in range(6):
        src = 56 if k < 4 else 60
        for r in range(4): a(f'v_cndmask_b32 v{32+4*k+r}, 0, v{src+r}, s[{44+2*k}:{45+2*k}]')
    vissued = [0]
    def vreg(i): return kt(i % RV)
    def vload():
        i = vissued[0]; g, e = divmod(i, 6); c, x = divmod(e, 3)
        if e == 0:
            grp(g)
            a(f's_add_u32 {sKV2}, {sKV}, 3072')
        if x == 0:   a(f'buffer_load_dwordx4 {vreg(i)}, v10, {V}, {sKV} offen offset:{1536*c} {POL[KVPOL]}', tag=f'v{i}')
        elif x == 1: a(f'buffer_load_dwordx4 {vreg(i)}, v10, {V}, {sKV2} offen offset:{1536*c} {POL[KVPOL]}', tag=f'v{i}')
        else:        a(f'buffer_load_dwordx4 {vreg(i)}, v11, {V}, {sKV} offen offset:{1536*c} {POL[KVPOL]}', tag=f'v{i}')
        vissued[0] += 1
    assert RV <= 12
    extras = [('wd', c) for c in range(5)] + [('wo', n) for n in range(NS, 30)]
    xiss = [0]
    def xtile(e): return WDT + e[1] if e[0] == 'wd' else WOT + e[1]
    def xload():
        e = extras[xiss[0]]
        if e[0] == 'wd':
            a(f'buffer_load_dwordx4 {kt(xtile(e))}, v13, {WD}, {sWDB} offen offset:{256*e[1]} {POL[WPOL]}', tag='wd')
        else:
            so, imm = wotile(e[1])
            a(f'buffer_load_dwordx4 {kt(xtile(e))}, v12, {WO}, {so} offen offset:{imm} {POL[WPOL]}', tag=f'wo{e[1]}')
        xiss[0] += 1
    SC = 0.07216878364870322
    def score_post(g):
        d = 24 + 4*(g & 1); s_ = 16 + g
        a(f'''
        v_mov_b32_dpp v{s_}, v{d} quad_perm:[0,0,0,0] row_mask:0xf bank_mask:0xf
        v_add_f32_dpp v{s_}, v{d+1}, v{s_} quad_perm:[1,1,1,1] row_mask:0xf bank_mask:0xf
        v_add_f32_dpp v{s_}, v{d+2}, v{s_} quad_perm:[2,2,2,2] row_mask:0xf bank_mask:0xf
        v_add_f32_dpp v{s_}, v{d+3}, v{s_} quad_perm:[3,3,3,3] row_mask:0xf bank_mask:0xf
        v_cvt_pk_bf16_f32 v{s_}, v{s_}, v{s_}
        v_and_b32 v{s_}, 0xffff0000, v{s_}
        v_mul_f32 v{s_}, {f32(SC)}, v{s_}
        v_cvt_pk_bf16_f32 v{s_}, v{s_}, v{s_}
        v_and_b32 v{s_}, 0xffff0000, v{s_}
        ''')
    nx = len(extras) - XL
    span = 48 - XBEG - XEND
    seq = []
    xi = 0
    for i in range(48):
        seq.append('v')
        if i == SLI: seq.append('sl')
        if xi < 5 and i >= XBEG:
            seq.append('x'); xi += 1
        while xi < nx and i >= XBEG and (xi + 1) * span <= (i + 1 - XBEG) * nx:
            seq.append('x'); xi += 1
    assert xi == nx
    seq += ['x'] * XL
    nx += XL
    sp = [0]
    did_wd = [False]
    SS = KB + 4*47
    st = KB + 4*WDT
    GF = st + 12
    def statload():
        a(f'''
        v_lshlrev_b32 v8, 4, v2
        s_mul_i32 s95, {sP}, 43691
        s_lshr_b32 s95, s95, 17
        s_mul_i32 {sT0}, {sB}, 1280
        s_lshl_b32 {sT1}, s95, 6
        s_add_u32 s96, {sT0}, {sT1}
        s_mul_i32 {sT0}, s95, 3
        s_mov_b32 s97, 1
        s_cmp_lg_u32 {sT0}, {sP}
        s_cselect_b32 s97, 0, s97
        s_cmp_ge_u32 s95, 20
        s_cselect_b32 s97, 0, s97
        s_cmp_lg_u32 {sW_}, 7
        s_cselect_b32 s97, 0, s97
        v_lshlrev_b32 v9, 4, v1
        s_mov_b32 s98, {WS_G}
        s_cmp_eq_u32 s2, 0
        s_cselect_b32 s99, s97, 0
        s_cmp_eq_u32 s99, 0
        s_cbranch_scc1 L_nogf
        buffer_load_dwordx4 {v4(GF)}, v9, {WS}, s98 offen sc1
        buffer_load_dwordx4 {v4(GF+4)}, v9, {WS}, s98 offen offset:1024 sc1
        ''')
        a.vm.pop(); a.vm.pop()
        a.label('L_nogf')
        a(f'buffer_load_dwordx4 {v4(SS)}, v8, {WS}, {sSB} offen sc1', tag='sl')
    def pump(lasttag, kfree, vcons):
        while sp[0] < len(seq):
            idx = max(k for k, (t, r) in enumerate(a.vm) if t == lasttag)
            if len(a.vm) - 1 - idx >= (TV if vcons < VE else TVE): break
            op = seq[sp[0]]
            if op == 'v':
                i = vissued[0]
                if i < RV:
                    if i >= kfree: break
                elif i - RV >= vcons: break
                vload()
            elif op == 'x':
                if xtile(extras[xiss[0]]) >= kfree: break
                xload()
            else:
                assert did_wd[0]
                statload()
            sp[0] += 1
    done = [t for (t, r) in a.vm[:len(a.vm) - T]]
    known = max(int(t[1:]) for t in done if t and t[0] == 'k' and t[1:].isdigit())
    a.wait_vm(f'k{known}')
    for g in range(8):
        d = v4(24 + 4*(g & 1))
        for e in range(6):
            i = 6*g + e
            if i > known:
                a.wait_vm(f'k{i}'); known = i
            a(f'v_mfma_f32_16x16x32_bf16 {d}, {v4(32+4*e)}, {kt(i)}, {0 if e == 0 else d}')
            if i == known: pump(f'k{known}', i + 1, 0)
        if 6*g + 5 < known and (g & 1) == 0 and known < 47:
            known += 1
            a.wait_vm(f'k{known}')
            pump(f'k{known}', 6*g + 6, 0)
        if g > 0: score_post(g-1)
    score_post(7)
    if NS:
        a.wait_vm('stg')
        a(f'v_lshlrev_b32 v14, 4, v1\nv_add_u32 v14, {sSTG}, v14')
        for n in range(NS): a(f'ds_read_b128 {kt(WOT+n)}, v14 offset:{1024*n}')
    def allred(op, r, t):
        rowred(op, r, (4, 8))
        a(f'v_mov_b32 v{t}, v{r}\nv_permlane16_swap_b32 v{r}, v{t}\n{op} v{r}, v{r}, v{t}')
        a(f'v_mov_b32 v{t}, v{r}\nv_permlane32_swap_b32 v{r}, v{t}\n{op} v{r}, v{r}, v{t}')
    a('v_max3_f32 v28, v16, v17, v18\nv_max3_f32 v15, v19, v20, v21\nv_max3_f32 v28, v28, v22, v23\nv_max_f32 v28, v28, v15')
    allred('v_max_f32', 28, 15)
    for g in range(8): a(f'v_sub_f32 v{16+g}, v{16+g}, v28')
    for g in range(8): a(f'v_mul_f32 v{16+g}, {f32(L2E)}, v{16+g}')
    for g in range(8): a(f'v_exp_f32 v{16+g}, v{16+g}')
    a('v_add_f32 v30, v16, v17\nv_add_f32 v24, v18, v19\nv_add_f32 v25, v20, v21\nv_add_f32 v26, v22, v23\nv_add_f32 v30, v30, v24\nv_add_f32 v25, v25, v26\nv_add_f32 v30, v30, v25')
    allred('v_add_f32', 30, 24)
    for g in range(8): a(f'v_cvt_pk_bf16_f32 v{16+g}, v{16+g}, v{16+g}')
    a(f'''
    v_mov_b32 v29, s100
    v_mov_b32 v31, s101
    v_mov_b32 v24, 0
    v_readfirstlane_b32 {sM}, v28          ; own m
    s_mov_b64 exec, 1
    ''')
    if EXP & 256: a(f's_cmp_eq_u32 {sW_}, 0\ns_cselect_b32 {sSOWN}, {sSOWN}, {BIG}\ns_cselect_b32 {sSB}, {sSB}, {BIG}')
    a(f'buffer_store_dwordx4 v[28:31], v24, {WS}, {sSOWN} offen sc1', tag='stat')
    a('s_mov_b64 exec, -1')
    stamp('smax')
    YA, OA = 44, 32
    a(f'''
    s_mul_i32 {sT0}, {sW_}, 12
    v_lshlrev_b32 v24, 2, v3
    v_add_u32 v24, {sT0}, v24
    v_mov_b32 v25, 124
    v_cmp_eq_u32 vcc, 3, v3
    v_cndmask_b32 v24, v24, v25, vcc
    ds_read_b32 v14, v24 offset:{L_HID}
    s_waitcnt lgkmcnt(0)
    ''')
    for g in range(8):
        for c in range(2):
            A = 24 + 4*c
            if c == 0: a(f'v_mov_b32 v15, v{16+g}\nv_mov_b32_dpp v15, v{16+g} row_shr:4 row_mask:0xf bank_mask:0xa')
            else:      a(f'v_mov_b32 v15, v{16+g}\nv_mov_b32_dpp v15, v{16+g} row_shl:4 row_mask:0xf bank_mask:0x5')
            for r in range(4): a(f'v_and_b32 v{A+r}, v15, v{4+r}')
            for x in range(3):
                i = 6*g + 3*c + x
                d = v4(OA + 4*x)
                a.wait_vm(f'v{i}')
                stamp(f'vc{i}')
                a(f'v_mfma_f32_16x16x32_bf16 {d}, {v4(A)}, {vreg(i)}, {0 if i < 3 else d}')
                pump(f'v{i}', 48, i + 1)
        if g == 2:
            did_wd[0] = True
            assert xiss[0] >= 5
            for r in range(4): a(f'v_and_b32 v{24+r}, v14, v{4+r}')
            a.wait_vm('wd')
            for c in range(5):
                a(f'v_mfma_f32_16x16x32_bf16 {v4(YA+4*c)}, v[24:27], {kt(WDT+c)}, 0')
        if g == GST:
            a(f's_mov_b32 {sT1}, {SPIN}')
            a.wait_vm('sl')
            a.label('L_spin2')
            a(f'''
            v_cmp_ne_u32 vcc, s100, v{SS+1}
            v_cmp_ne_u32 s[44:45], s101, v{SS+3}
            s_or_b64 vcc, vcc, s[44:45]
            s_cbranch_scc0 L_ok2
            s_sub_u32 {sT1}, {sT1}, 1
            s_cbranch_scc1 L_ok2
            s_sleep 4
            buffer_load_dwordx4 {v4(SS)}, v8, {WS}, {sSB} offen sc1
            s_waitcnt vmcnt(0)
            s_branch L_spin2
            ''')
            a.vm.pop()
            a.label('L_ok2')
            a(f'''
            s_cmp_eq_u32 s99, 0
            s_cbranch_scc1 L_ok2b
            s_mov_b32 {sT1}, {SPIN}
            ''')
            a.label('L_spin2b')
            a(f'''
            v_cmp_ne_u64 vcc, {TAG}, v[{GF}:{GF+1}]
            v_cmp_ne_u64 s[44:45], {TAG}, v[{GF+2}:{GF+3}]
            v_cmp_ne_u64 s[46:47], {TAG}, v[{GF+4}:{GF+5}]
            v_cmp_ne_u64 s[48:49], {TAG}, v[{GF+6}:{GF+7}]
            s_or_b64 vcc, vcc, s[44:45]
            s_or_b64 s[46:47], s[46:47], s[48:49]
            s_or_b64 vcc, vcc, s[46:47]
            s_cbranch_scc0 L_ok2c
            s_sub_u32 {sT1}, {sT1}, 1
            s_cbranch_scc1 L_ok2c
            s_sleep {SLP}
            buffer_load_dwordx4 {v4(GF)}, v9, {WS}, s98 offen sc1
            buffer_load_dwordx4 {v4(GF+4)}, v9, {WS}, s98 offen offset:1024 sc1
            s_waitcnt vmcnt(0)
            s_branch L_spin2b
            ''')
            a.vm.pop(); a.vm.pop()
            a.label('L_ok2c')
            a(f'''
            s_mov_b32 {sT2}, {WS_E}
            v_mov_b32 v{GF}, s100
            v_mov_b32 v{GF+1}, s101
            s_mov_b64 exec, 1
            buffer_store_dwordx2 v[{GF}:{GF+1}], v9, {WS}, {sT2} offen sc1
            s_mov_b64 exec, -1
            ''')
            a.vm.pop()
            a.label('L_ok2b')
            a(f'v_mov_b32 v{st+6}, v{SS}')
            rowred('v_max_f32', st+6)
            a(f'''
            v_sub_f32 v{st}, v{SS}, v{st+6}
            v_sub_f32 v{st+7}, {sM}, v{st+6}
            v_mul_f32 v{st}, {f32(L2E)}, v{st}
            v_mul_f32 v{st+7}, {f32(L2E)}, v{st+7}
            v_exp_f32 v{st}, v{st}
            v_exp_f32 v{st+7}, v{st+7}
            v_mul_f32 v{st}, v{st}, v{SS+2}
            ''')
            rowred('v_add_f32', st)
            a(f'''
            v_rcp_f32 v{st}, v{st}
            v_mul_f32 v14, v{st}, v{st+7}          ; factor
            v_and_b32 v{st+5}, 7, v1
            v_lshlrev_b32 v{st+5}, 3, v{st+5}
            v_and_b32 v{st+3}, 1, v3
            v_lshlrev_b32 v{st+3}, 2, v{st+3}
            v_and_b32 v{st+4}, 2, v3
            v_add3_u32 v{st+3}, v{st+3}, v{st+4}, v{st+5}
            s_min_u32 {sT0}, s96, 5056
            v_add_u32 v{st+4}, {sT0}, v{st+3}
            ds_read_u16 v{st+2}, v{st+4} offset:{L_X}
            v_and_b32 v{st+15}, 3, v2
            v_mul_u32_u24 v{st+15}, 0x5555, v{st+15}
            s_mov_b32 s44, 0x0f0f0f0f
            s_mov_b32 s45, 0x0f0f0f0f
            s_mov_b32 s46, 0xf0f0f0f0
            s_mov_b32 s47, 0xf0f0f0f0
            ''')
            a(f'''
            v_lshrrev_b32 v{st+6}, 1, v3
            s_lshl_b32 {sT0}, {sW_}, 1
            v_add_u32 v{st+7}, {sT0}, v{st+6}
            v_mul_u32_u24 v{st+7}, 784, v{st+7}
            v_and_b32 v{st+8}, 1, v3
            v_lshlrev_b32 v{st+11}, 4, v{st+8}
            v_add_u32 v{st+7}, v{st+7}, v{st+11}
            v_lshl_add_u32 v{st+8}, v2, 5, v{st+7}
            v_and_b32 v{st+9}, 7, v2
            v_lshl_add_u32 v{st+9}, v{st+9}, 5, v{st+7}
            v_add_u32 v{st+9}, 512, v{st+9}
            v_lshrrev_b32 v{st+7}, 3, v2
            v_cmp_eq_u32 vcc, v{st+7}, v{st+6}
            v_lshlrev_b32 v{st+7}, 4, v1
            v_add_u32 v{st+7}, {L_DUM}, v{st+7}
            v_cndmask_b32 v{st+9}, v{st+7}, v{st+9}, vcc
            v_mul_u32_u24 v{st+10}, 784, v2
            v_mul_u32_u24 v{st+7}, 24, v3
            s_mul_i32 {sT0}, {sW_}, 96
            v_add3_u32 v{st+10}, v{st+10}, v{st+7}, {sT0}
            s_mul_i32 {sT0}, {sW_}, 3200
            v_mul_u32_u24 v{st+11}, 24, v{st+11}
            v_lshl_add_u32 v{st+11}, v2, 4, v{st+11}
            v_add_u32 v{st+11}, {sT0}, v{st+11}           ; y write: 3200w + 384(g&1) + 16n
            v_and_b32 v{st+13}, 31, v1
            v_lshrrev_b32 v{st+7}, 1, v{st+13}
            v_lshlrev_b32 v{st+13}, 4, v{st+13}
            s_lshl_b32 {sT0}, {sW_}, 9
            v_add_u32 v{st+13}, {sT0}, v{st+13}
            v_mul_u32_u24 v{st+12}, 12800, v{st+6}
            v_lshl_add_u32 v{st+12}, v{st+7}, 4, v{st+12}
            v_and_b32 v{st+7}, 1, v1
            v_mul_u32_u24 v{st+7}, 384, v{st+7}
            s_mul_i32 {sT0}, {sW_}, 640
            v_add3_u32 v{st+12}, v{st+12}, v{st+7}, {sT0}  ; y read: 12800(l>>5) + 640w + 384(l&1) + 16((l&31)>>1)
            v_lshrrev_b32 v{st+14}, 3, v1
            v_mul_u32_u24 v{st+14}, 2560, v{st+14}
            v_lshl_add_u32 v{st+14}, v{st+5}, 1, v{st+14}
            s_mul_i32 s94, {sB}, {64*2560}
            s_lshl_b32 {sT0}, s95, 7
            s_add_u32 s94, s94, {sT0}
            ''')
            for i in range(8): a(f's_add_u32 s{48+i}, s94, {8*2560*i}')
            a('s_movk_i32 s98, 0xff')
            for k in range(2): a(f'v_bfe_u32 v{st+16+k}, s{100+k}, 0, 8')
    assert xiss[0] == nx and sp[0] == len(seq)
    stamp('vend')
    for r in range(4): a(f'v_cndmask_b32 v{OA+r}, v{OA+4+r}, v{OA+r}, {sLO32}')
    for r in range(4): a(f'v_mul_f32 v{OA+r}, v{OA+r}, v14')
    a(f'ds_write_b128 v{st+8}, {v4(OA)}')
    for r in range(4): a(f'v_mul_f32 v{OA+8+r}, v{OA+8+r}, v14')
    a(f'ds_write_b128 v{st+9}, {v4(OA+8)}')
    a('s_waitcnt lgkmcnt(0)\ns_barrier')
    stamp('barC')
    for j in range(3): a(f'ds_read_b64 v[{16+2*j}:{17+2*j}], v{st+10} offset:{8*j}')
    def dpp(regs, steps):
        for s_ in steps:
            for r in regs: a(f'v_add_f32_dpp v{r}, v{r}, v{r} row_ror:{s_} row_mask:0xf bank_mask:0xf')
    if CM != 2:
        a('s_waitcnt lgkmcnt(0)')
        dpp(range(16, 22), (8, 4, 2, 1))
    AT = KB
    def abuild(u):
        for i in range(2):
            a(f'v_cvt_pk_bf16_f32 v{16+2*u+i}, v{16+2*u+i}, 0')
        for i in range(2):
            a(f'v_cndmask_b32 v{AT+4*u+2*i}, 0, v{16+2*u+i}, s[44:45]\nv_cndmask_b32 v{AT+4*u+2*i+1}, 0, v{16+2*u+i}, s[46:47]')
    def smf(u, c):
        n = (c*3 + u)*2
        if n + 1 >= 30 - XL: a.wait_vm(f'wo{n+1}')
        r = KB + 4*(WOT + n)
        a(f'v_smfmac_f32_16x16x64_bf16 {v4(YA+4*c)}, {v4(AT+4*u)}, v[{r}:{r+7}], v{st+15}')
    def ywrite(c):
        a(f's_mov_b64 exec, {sLO32}\nds_write_b128 v{st+11}, {v4(YA+4*c)} offset:{L_YP+640*c}\ns_mov_b64 exec, -1')
    if CM == 2:
        a('s_waitcnt lgkmcnt(0)' if stamps == 3 else 's_waitcnt lgkmcnt(1)')
        dpp((16, 17, 18), (8, 4, 2, 1))
        abuild(0)
        a('s_waitcnt lgkmcnt(0)')
        dpp((19, 20, 21), (8,))
        smf(0, 0); dpp((19, 20, 21), (4,))
        smf(0, 1); dpp((19, 20, 21), (2,))
        smf(0, 2); dpp((19, 20, 21), (1,))
        smf(0, 3); abuild(1)
        smf(1, 0); abuild(2)
        order = [(1,1),(2,0),(1,2),(2,1),(1,3),(0,4),'w0',(2,2),'w1',(1,4),(2,3),(2,4),'w2','w3','w4']
        for o in order:
            if isinstance(o, str): ywrite(int(o[1]))
            else: smf(*o)
        stamp('mm')
        a('s_waitcnt lgkmcnt(0)\ns_barrier')
    elif CM:
        abuild(0); abuild(1)
        smf(0, 0); smf(0, 1)
        abuild(2)
        order = [(1,0),(1,1),(2,0),(2,1),(0,2),(0,3),(1,2),'w0',(1,3),'w1',(2,2),(0,4),(2,3),(1,4),'w2',(2,4),'w3','w4']
        for o in order:
            if isinstance(o, str): ywrite(int(o[1]))
            else: smf(*o)
        stamp('mm')
        a('s_waitcnt lgkmcnt(0)\ns_barrier')
    else:
        abuild(0); abuild(1)
        smf(0, 0); smf(0, 1)
        abuild(2)
        for c in range(2, 5): smf(0, c)
        for c in range(5): smf(1, c)
        for c in range(5): smf(2, c)
        stamp('mm')
        a(f's_mov_b64 exec, {sLO32}')
        for c in range(5): a(f'ds_write_b128 v{st+11}, {v4(YA+4*c)} offset:{L_YP+640*c}')
        a('s_mov_b64 exec, -1\ns_waitcnt lgkmcnt(0)\ns_barrier')
    stamp('barD'); stamp('pub'); stamp('c1')
    a(f's_cmp_ge_u32 {sW_}, 5\ns_cbranch_scc1 L_cons')
    for u in range(4): a(f'ds_read_b128 {v4(16+4*u)}, v{st+12} offset:{L_YP+3200*u}')
    a('s_waitcnt lgkmcnt(0)')
    padd(16, 24, 8); padd(16, 20, 4)
    for r in range(4): a(f'v_mov_b32 v{20+r}, v{16+r}')
    for r in range(4): a(f'v_permlane32_swap_b32 v{16+r}, v{20+r}')
    padd(16, 20, 4)
    for r in range(2): a(f'v_bfi_b32 v{16+2*r}, s98, v{st+16+r}, v{16+2*r}')
    a(f's_mov_b64 exec, {sLO32}')
    a(f'buffer_store_dwordx4 v[16:19], v{st+13}, {WS}, {sYB} offen {POL[YSP]}')
    if stamps:
        a('s_mov_b64 exec, -1\ns_waitcnt lgkmcnt(0)')
        stamp('pub')
        a('s_branch L_fin')
    else:
        a('s_endpgm')
    a.label('L_cons')
    a(f'''
    s_cmp_eq_u32 s97, 0
    s_cbranch_scc1 L_fin
    s_mov_b32 {sT1}, {SPIN}
    ''')
    a.label('L_spin3')
    for i in range(8):
        a(f'buffer_load_dwordx4 {v4(16+4*i)}, v{st+14}, {WS}, s{48+i} offen {POL[YLP]}')
    a(f's_sub_u32 {sT1}, {sT1}, 1')
    for i in range(8):
        r = 16 + 4*i
        a(f's_waitcnt vmcnt({7-i})')
        for k in range(2): a(f'v_xor_b32 v{r+2*k}, v{r+2*k}, v{st+16+k}')
        if i == 0: a(f'v_or_b32 v15, v{r}, v{r+2}')
        else: a(f'v_or3_b32 v15, v15, v{r}, v{r+2}')
    a(f'''
    v_and_b32 v15, s98, v15
    v_cmp_ne_u32 vcc, 0, v15
    s_cbranch_scc1 L_ok3
    s_and_b64 vcc, vcc, vcc
    ''')
    a.raw('  s_cbranch_scc1 L_spin3')
    a.label('L_ok3')
    a('s_mov_b64 exec, -1')
    if stamps: a('s_waitcnt lgkmcnt(0)')
    stamp('c1')
    padd(16, 32, 16); padd(16, 24, 8); padd(16, 20, 4)
    a(f'''
    v_lshlrev_b32 v20, 16, v{st+2}
    v_permlane32_swap_b32 v16, v17
    v_permlane32_swap_b32 v18, v19
    v_add_f32 v16, v16, v17
    v_add_f32 v18, v18, v19
    v_permlane16_swap_b32 v16, v18
    v_add_f32 v16, v16, v18
    v_add_f32_dpp v16, v16, v16 row_ror:8 row_mask:0xf bank_mask:0xf
    v_add_f32 v16, v16, v20
    v_cvt_pk_bf16_f32 v16, v16, v16
    s_mov_b32 exec_lo, 0x00ff00ff
    s_mov_b32 exec_hi, 0x00ff00ff
    buffer_store_short v16, v{st+3}, {OUT}, s96 offen
    s_mov_b64 exec, -1
    ''')
    if DLY:
        a(f'''
        s_waitcnt vmcnt(0)
        s_memrealtime s[84:85]
        s_waitcnt lgkmcnt(0)
        s_sub_u32 s82, {'s80' if DSEL else 's84'}, s86
        s_mul_i32 s82, s82, {DLY}
        s_add_u32 s82, s82, {6000 if DSEL else 0}
        s_min_u32 s82, s82, 200000
        ''')
        a.label('L_dly')
        a(f'''
        s_memrealtime s[84:85]
        s_waitcnt lgkmcnt(0)
        s_sub_u32 s83, s84, s86
        s_cmp_lt_u32 s83, s82
        s_cbranch_scc1 L_dly
        ''')
    a.label('L_fin')
    if stamps:
        a('s_waitcnt vmcnt(0)')
        stamp('end')
        a('s_waitcnt lgkmcnt(0)')
        for k in range(8): a(f'v_mov_b32 v{16+k}, s{SREG[k]}')
        a(f'''
        s_lshl_b32 {sT0}, s2, 3
        s_add_u32 {sT0}, {sT0}, {sW_}
        s_lshl_b32 {sT0}, {sT0}, 5
        s_add_u32 {sT0}, {sT0}, {WS_T}
        v_mov_b32 v14, 0
        s_mov_b64 exec, 1
        buffer_store_dwordx4 v[16:19], v14, {WS}, {sT0} offen
        buffer_store_dwordx4 v[20:23], v14, {WS}, {sT0} offen offset:16
        ''')
    a.label('L_end')
    a('s_endpgm')
    a.raw(f'''.section .rodata,"a"
.p2align 6
.amdhsa_kernel {name}
  .amdhsa_next_free_vgpr 256
  .amdhsa_next_free_sgpr 102
  .amdhsa_accum_offset 256
  .amdhsa_group_segment_fixed_size 0
  .amdhsa_kernarg_size 96
  .amdhsa_user_sgpr_count 2
  .amdhsa_user_sgpr_kernarg_segment_ptr 1
  .amdhsa_system_sgpr_workgroup_id_x 1
  .amdhsa_float_denorm_mode_32 3
.end_amdhsa_kernel''')
    return a.text()

if __name__ == '__main__':
    out = sys.argv[1]
    kw = {}
    for x in sys.argv[2:]:
        k, v = x.split('='); kw[k] = int(v)
    open(out, 'w').write(gen(**kw))
```

```python
import sys, struct
from asmdsl import Asm

NAME = 'parallel_sum__sliding_block_cached__geglu_ffn__decode_kernel'
def f32(x): return '0x%08x' % struct.unpack('<I', struct.pack('<f', x))[0]
def lanemask(fn):
    m = 0
    for l in range(64):
        if fn(l & 15, l >> 4): m |= 1 << l
    return m

HEADER = open('parallel_sum__sliding_block_cached__geglu_ffn__decode.s.ref').read().split('; Override')[0]

WS_Y  = 0
WS_S  = 0x100000
WS_E  = 0x0F0000
WS_F  = 0x109000
WS_G  = 0x10A000
WS_P  = 0x110000
WS_T  = 0x300000
WS_SZ = 0x400000
L_PART = 0
L_DUM  = 14336
L_Q    = 15360
L_HID  = 15872
L_CNT  = 16000
L_X    = 16128
L_STG  = 21504
L_YP   = L_STG
BIG = 0x40000000
L2E = 1.4426950408889634
POL = {0: '', 1: 'nt', 2: 'sc0 nt', 3: 'sc1 nt', 4: 'sc0', 5: 'sc1', 6: 'sc0 sc1', 7: 'sc0 sc1 nt'}

def gen(KU=3, KW=0, KP0=9, PP=0, PG=2, PI=3, TP=5, XL=4, T=5, TV=6, TVE=12, VE=30, RV=12, ILV=1, XBEG=4, XEND=14, SLI=28, GST=5, PRIO=1, SLP=8, KPOLL=26, W0N=5, WPOL=0, SPOL=0, KVPOL=1, PPOL=0, DLY=0, DSEL=0, NOS=0, PSL=0, CM=2, PM=0, OPOL=0, YLP=5, YSP=5, YCP=5, ROT=3,
        NS=17, SEND=44, EXP=0, stamps=0, name=NAME):
    a = Asm()
    SPIN = (1 << 19) if EXP == 0 else 0
    LDS_SZ = L_STG + max(8 * NS * 1024, 25600)
    assert LDS_SZ <= 163840
    SREG = [80, 82, 84, 86, 56, 58, 60, 62]
    SETS = {1: ['start', 'barA', 'sig', 'kiss', 'barB', 'smax', 'vend', 'end'],
            2: ['start', 'bar0', 'ln', 'barA', 'sig', 'poll', 'qrdy', 'end'],
            3: ['start', 'vend', 'barC', 'mm', 'barD', 'pub', 'c1', 'end'],
            5: ['start', 'ki12', 'ki18', 'ki24', 'ki30', 'ki36', 'ki42', 'ki47'],
            6: ['start', 'ki47', 'vc0', 'vc12', 'vc24', 'vc36', 'vc42', 'vc47'],
            7: ['start', 'bar0', 'barA', 'ki12', 'ki24', 'ki47', 'vc24', 'vc47'],
            4: ['start', 'karg', 'iss1', 'iss2', 'pre0', 'bar0', 'barA', 'end']}
    DN = ['end', 'karg', 'iss1', 'bar0', 'barA', 'sig', 'barB', 'vend', 'iss2', 'smax']
    def stamp(nm):
        if DLY and DSEL and nm == DN[DSEL]: a('s_memrealtime s[80:81]')
        if stamps and nm in SETS[stamps]:
            r = SREG[SETS[stamps].index(nm)]
            a(f's_memrealtime s[{r}:{r+1}]')
    a.raw(HEADER.rstrip())
    a.raw(f'; @launch grid=(256,1,1) block=(512,1,1) lds={LDS_SZ}')
    a.raw('.amdgcn_target "amdgcn-amd-amdhsa--gfx950"\n.text\n.globl %s\n.p2align 8\n.type %s,@function\n%s:' % (name, name, name))
    sW_, sH, sB, sS, sJ, sXCD, sP, sIDX = 's3', 's4', 's5', 's6', 's7', 's68', 's69', 's70'
    K, V, W, WO, WD, X, WS, OUT = 's[8:11]', 's[12:15]', 's[16:19]', 's[20:23]', 's[24:27]', 's[28:31]', 's[32:35]', 's[36:39]'
    sWO0, sWO1, sWDB, sSTG, sWO2, sWO3 = 's40', 's41', 's42', 's43', 's64', 's65'
    sKV, sKV2, sKV0 = 's71', 's72', 's73'
    sT0, sT1, sT2, sT3 = 's74', 's75', 's76', 's77'
    sLO32 = 's[78:79]'
    sM, sSOWN, sYB, sSB = 's88', 's89', 's90', 's91'
    TAG = 's[100:101]'
    KB = 64
    WDT, WOT = 12, 17
    def kt(i): return f'v[{KB+4*i}:{KB+4*i+3}]'
    def v4(r): return f'v[{r}:{r+3}]'
    def srd(d, p, n):
        a(f's_mov_b32 s{d}, s{p}\ns_and_b32 s{d+1}, s{p+1}, 0xffff\ns_mov_b32 s{d+2}, {n}\ns_mov_b32 s{d+3}, 0x20000')
    def rowred(op, r, steps=(8, 4, 2, 1)):
        for s_ in steps: a(f'{op}_dpp v{r}, v{r}, v{r} row_ror:{s_} row_mask:0xf bank_mask:0xf')
    gstep = 6144 * 8 if ILV else 6144
    def grp(g):
        if ROT:
            a(f's_add_u32 {sKV}, {sJ if ROT == 1 else "s67"}, {g}\ns_and_b32 {sKV}, {sKV}, 7\ns_mul_i32 {sKV}, {sKV}, {gstep}\ns_add_u32 {sKV}, {sKV}, {sKV0}')
        else:
            a(f's_mov_b32 {sKV}, {sKV0}' if g == 0 else f's_add_u32 {sKV}, {sKV}, {gstep}')
    kissued = [0]
    def kload():
        i = kissued[0]; g, e = divmod(i, 6)
        stamp(f'ki{i}')
        if e == 0 and g > 0: grp(g)
        if e < 4: a(f'buffer_load_dwordx4 {kt(i)}, v8, {K}, {sKV} offen offset:{384*e} {POL[KVPOL]}', tag=f'k{i}')
        else:     a(f'buffer_load_dwordx4 {kt(i)}, v9, {K}, {sKV} offen offset:{768*(e-4)} {POL[KVPOL]}', tag=f'k{i}')
        kissued[0] += 1

    assert ILV == 1 and ROT == 3 and 1 <= KU <= 4
    a(f'''
    s_load_dwordx2 s[8:9], s[0:1], 8
    s_load_dwordx16 s[44:59], s[0:1], 0
    s_cmp_ge_u32 s2, 256
    s_cbranch_scc1 L_end''')
    stamp('start')
    if DLY: a('s_memrealtime s[86:87]')
    if PRIO: a('s_setprio 3')
    a(f'''
    v_lshrrev_b32 v14, 6, v0
    v_bfe_u32 v20, v0, 2, 2
    v_readfirstlane_b32 {sW_}, v14
    v_and_b32 v21, 3, v0
    v_lshlrev_b32 v21, 4, v21
    v_mul_u32_u24 v9, 1536, v20
    v_bfe_u32 v3, v0, 4, 2
    v_add_u32 v9, v9, v21
    v_lshl_add_u32 v8, v3, 6, v9       ; vkx = 1536(n>>2)+16(n&3)+64g
    s_and_b32 {sXCD}, s2, 7
    s_lshr_b32 {sT0}, s2, 6
    s_lshl2_add_u32 {sH}, {sXCD}, {sT0}
    s_bfe_u32 {sB}, s2, 0x20004
    s_bfe_u32 {sS}, s2, 0x10003
    s_lshl_b32 {sT0}, {sB}, 5
    s_add_u32 {sSB}, {sT0}, {sH}       ; bh
    s_lshl3_add_u32 {sT0}, {sSB}, {sS}
    s_add_u32 {sT0}, {sT0}, 6
    s_lshl_b32 {sT0}, {sT0}, 6
    s_add_u32 {sT0}, {sT0}, {sW_}
    s_mul_i32 {sKV0}, {sT0}, 6144
    s_mul_i32 s67, s2, 0x9E3779B1
    s_bfe_u32 s67, s67, 0x30014
    s_mul_i32 {sKV}, s67, {gstep}
    s_add_u32 {sKV}, {sKV}, {sKV0}
    s_mov_b32 s10, 402653184
    s_mov_b32 s11, 0x20000
    s_waitcnt lgkmcnt(0)
    ''')
    stamp('karg')
    for i in range(KU): kload()
    a(f'''
    s_load_dwordx2 s[24:25], s[0:1], 64
    s_load_dwordx2 s[36:37], s[0:1], 72
    s_load_dwordx2 s[32:33], s[0:1], 88
    v_and_b32 v1, 63, v0
    v_and_b32 v2, 15, v1
    v_lshlrev_b32 v20, 4, v1
    s_lshr_b32 {sJ}, s2, 3
    s_and_b32 {sT1}, {sJ}, 7
    s_mov_b32 s28, s44
    s_mov_b32 s29, s45
    s_movk_i32 s30, 5120
    s_mov_b32 s31, 0x20000
    s_lshl_b32 {sT0}, {sW_}, 10
    s_add_u32 m0, {sT0}, {L_X}
    s_cmp_ge_u32 {sW_}, 5
    s_cbranch_scc1 L_nox
    ''')
    a.role = 'x'
    a(f'buffer_load_dwordx4 v20, {X}, {sT0} offen lds', tag='x')
    a.role = None
    a.label('L_nox')
    stamp('iss1')
    a(f'''
    s_mul_i32 {sT2}, {sXCD}, 27
    s_add_u32 {sT2}, {sT2}, {sJ}
    s_mul_i32 s92, {sT2}, 43691
    s_lshr_b32 s92, s92, 17            ; blk
    s_mul_i32 {sT3}, s92, 3
    s_sub_u32 s93, {sT2}, {sT3}        ; split
    s_mul_i32 s97, s93, 224
    s_lshl_b32 {sT2}, {sW_}, 5
    s_add_u32 s97, s97, {sT2}
    s_sub_u32 {sT2}, s92, 48
    s_sub_u32 {sT3}, s92, 60
    s_cmp_lt_u32 s92, 60
    s_cselect_b32 s16, s56, s58
    s_cselect_b32 s17, s57, s59
    s_cselect_b32 s98, {sT2}, {sT3}
    s_movk_i32 s96, 3072
    s_mov_b32 s18, 1966080
    s_cmp_lt_u32 s92, 48
    s_cselect_b32 s16, s50, s16
    s_cselect_b32 s17, s51, s17
    s_cselect_b32 s18, 7864320, s18
    s_cselect_b32 s96, 12288, s96
    s_cselect_b32 s98, s92, s98
    s_and_b32 s17, s17, 0xffff
    s_mov_b32 s19, 0x20000
    s_mul_i32 s94, s97, s96
    s_lshl_b32 s98, s98, 8
    s_add_u32 s94, s94, s98            ; soffset
    s_cmp_eq_u32 {sW_}, 7
    s_cselect_b32 s94, {BIG}, s94
    s_cmp_ge_u32 {sJ}, {27 if not (EXP & 128) else 0}
    s_cselect_b32 s94, {BIG}, s94
    v_mul_lo_u32 v16, v3, s96
    v_lshl_add_u32 v16, v2, 4, v16     ; g*RS+16n
    s_lshl_b32 s96, s96, 2
    v_lshrrev_b32 v22, 1, v3
    v_mul_u32_u24 v21, 384, v22
    v_add_u32 v9, v9, v21
    v_and_b32 v22, 1, v3
    v_lshlrev_b32 v22, 6, v22
    v_add3_u32 v9, v9, v22, 64
    v_add_u32 v9, 192, v9              ; vky
    ''')
    WT = 224
    wiss = [0]
    def wload():
        t = wiss[0]
        a(f'buffer_load_dwordx4 {v4(WT+4*t)}, v16, {W}, s94 offen {POL[PPOL]}', tag=f'w{t}')
        if t < 7: a(f's_add_u32 s94, s94, s96')
        wiss[0] += 1
    pcnt = [0]
    def pstep(paced=True):
        if paced: a(f's_waitcnt vmcnt({TP-1})')
        pcnt[0] += 1
        if wiss[0] < 8 and pcnt[0] % (PG + 1) != 0: wload()
        else: kload()
    if PP:
        for _ in range(PI): pstep(False)
    else:
        for t in range(8):
            wload()
            if t == 3:
                for _ in range(KW): kload()
        KU = KU + KW
    stamp('iss2')
    if PRIO: a('s_setprio 0')
    def kmore(frac):
        if PP: pstep(); return
        while kissued[0] < KU + int((KP0 - KU) * frac + 0.5): kload()
    def pmore():
        if PP: pstep()
    a(f's_waitcnt lgkmcnt(0)\ns_load_dwordx2 {TAG}, s[32:33], {WS_E}')
    a(f's_mov_b32 s34, {WS_SZ}\ns_mov_b32 s35, 0x20000\ns_mov_b32 s26, 1966080\ns_mov_b32 s27, 0x20000\ns_movk_i32 s38, 5120\ns_mov_b32 s39, 0x20000')
    srd(12, 48, 402653184); srd(20, 52, 7864320)
    a(f'''
    s_lshl_b32 {sP}, {sH}, 1
    s_add_u32 {sP}, {sP}, {sS}
    s_lshl_b32 {sIDX}, {sXCD}, 5
    s_add_u32 {sIDX}, {sIDX}, {sJ}
    s_mov_b32 s78, -1
    s_mov_b32 s79, 0
    s_lshl_b32 {sT0}, {sB}, 6
    s_add_u32 {sT0}, {sT0}, {sP}
    s_mul_i32 {sYB}, {sT0}, 2560
    s_lshl_b32 {sSB}, {sSB}, 8
    s_add_u32 {sSB}, {sSB}, {WS_S}
    s_lshl_b32 {sT2}, {sS}, 3
    s_add_u32 {sT2}, {sT2}, {sW_}
    s_lshl_b32 {sT2}, {sT2}, 4
    s_add_u32 {sSOWN}, {sSB}, {sT2}
    s_mul_i32 {sWDB}, {sP}, 24
    s_mul_i32 {sT0}, {sW_}, 3
    s_add_u32 {sWDB}, {sWDB}, {sT0}
    s_mul_i32 {sWDB}, {sWDB}, 1280
    s_mul_i32 {sWO0}, {sH}, 192
    s_mul_i32 {sT0}, {sW_}, 24
    s_add_u32 {sWO0}, {sWO0}, {sT0}
    s_mul_i32 {sWO0}, {sWO0}, 1280
    s_add_u32 {sWO1}, {sWO0}, 5120
    s_add_u32 {sWO2}, {sWO0}, 15360
    s_add_u32 {sWO3}, {sWO0}, 20480
    s_mul_i32 {sSTG}, {sW_}, {NS*1024}
    s_add_u32 {sSTG}, {sSTG}, {L_STG}
    v_mov_b32 v17, 1280
    v_mul_u32_u24 v18, 1280, v3
    v_lshl_add_u32 v18, v2, 4, v18     ; 1280g+16n
    s_lshl_b32 s97, s97, 1
    s_min_u32 s97, s97, 1216
    v_lshl_add_u32 v19, v3, 1, s97
    v_lshrrev_b32 v14, 3, v2
    v_mad_u32_u24 v19, v14, v17, v19   ; + 1280*(m>>3)
    v_and_b32 v15, 7, v2
    v_lshlrev_b32 v15, 4, v15          ; 16*(n&7)
    v_and_b32 v20, 1, v2
    v_cmp_eq_u32 vcc, 1, v20
    v_mov_b32 v21, 0xffff
    v_mov_b32 v22, 0xffff0000
    v_cndmask_b32 v21, v21, v22, vcc
    v_bfe_u32 v20, v2, 1, 2
    ''')
    for r in range(4):
        a(f'v_cmp_eq_u32 vcc, {r}, v20\nv_cndmask_b32 v{4+r}, 0, v21, vcc')
    a(f'''
    v_mul_u32_u24 v10, 384, v3
    v_lshrrev_b32 v20, 3, v2
    v_mul_u32_u24 v11, 3072, v20
    v_add3_u32 v11, v11, v10, v15
    v_add_u32 v11, 256, v11            ; vvy = (g+8*(n>>3))*384+256+16*(n&7)
    v_lshl_add_u32 v10, v2, 4, v10     ; vvx = g*384+16n
    v_lshrrev_b32 v12, 1, v3
    v_mul_u32_u24 v12, 5120, v12
    v_add_u32 v12, v12, v18            ; vwo = (6(g>>1)+(g&1))*1280+16n
    v_mov_b32 v22, {BIG}
    v_cmp_eq_u32 vcc, 3, v3
    v_cndmask_b32 v13, v18, v22, vcc   ; vwd = g*1280+16n  (g==3 -> out of range)
    v_lshrrev_b32 v20, 1, v3
    v_lshlrev_b32 v20, 9, v20
    v_and_b32 v22, 1, v3
    v_lshl_add_u32 v22, v22, 4, v20
    v_lshl_add_u32 v22, v2, 5, v22
    s_lshl_b32 {sT0}, {sW_}, 11
    v_add_u32 v22, {sT0}, v22
    v_mov_b32 v20, {L_CNT}
    v_mov_b32 v21, 0
    ds_write_b32 v20, v21
    ds_write_b32 v20, v21 offset:4
    ''')
    if EXP & 64: a(f'v_mov_b32 v12, {BIG}\nv_mov_b32 v13, {BIG}')
    stamp('pre0')
    a.role = 'x'; a.wait_vm('x'); a.role = None
    a('s_barrier')
    stamp('bar0')
    XS, XO, U, XN, AB, ACC, XV = 24, 44, 184, 184, 200, 216, 168
    for i in range(5): a(f'ds_read_b128 {v4(XS+4*i)}, v18 offset:{L_X+256*i}')
    for pr in range(2):
        for t in range(8): a(f'ds_read_u16 v{XV+8*pr+t}, v19 offset:{L_X+2560*pr+8*t}')
    kmore(1/6)
    a(f'''
    s_waitcnt lgkmcnt(0)
    s_mul_i32 s100, s100, 0x9E3779B1
    s_add_u32 s100, s100, 0x7F4A7C15
    s_mul_i32 s101, s101, 0x85EBCA69
    s_add_u32 s101, s101, 0xC2B2AE35
    ''')
    for i in range(20):
        a(f'v_lshlrev_b32 v{U+2*i}, 16, v{XS+i}\nv_and_b32 v{U+2*i+1}, 0xffff0000, v{XS+i}')
    pmore()
    a(f'v_pk_add_f32 v[52:53], v[{U}:{U+1}], v[{U+2}:{U+3}]\nv_pk_add_f32 v[54:55], v[{U+4}:{U+5}], v[{U+6}:{U+7}]')
    for i in range(8, 40, 2):
        d = 52 + (i & 2)
        a(f'v_pk_add_f32 v[{d}:{d+1}], v[{d}:{d+1}], v[{U+i}:{U+i+1}]')
    a('v_pk_add_f32 v[52:53], v[52:53], v[54:55]\nv_add_f32 v52, v52, v53')
    rowred('v_add_f32', 52)
    a(f'v_mul_f32 v56, {f32(-1/640)}, v52')
    kmore(2/6)
    for i in range(0, 40, 2): a(f'v_pk_add_f32 v[{U+i}:{U+i+1}], v[{U+i}:{U+i+1}], v[56:57] op_sel_hi:[1,0]')
    a(f'v_pk_mul_f32 v[52:53], v[{U}:{U+1}], v[{U}:{U+1}]\nv_pk_mul_f32 v[54:55], v[{U+2}:{U+3}], v[{U+2}:{U+3}]')
    for i in range(4, 40, 2):
        d = 52 + (i & 2)
        a(f'v_pk_fma_f32 v[{d}:{d+1}], v[{U+i}:{U+i+1}], v[{U+i}:{U+i+1}], v[{d}:{d+1}]')
    a('v_pk_add_f32 v[52:53], v[52:53], v[54:55]\nv_add_f32 v52, v52, v53')
    rowred('v_add_f32', 52)
    a(f'''
    v_mul_f32 v52, {f32(1/640)}, v52
    v_cvt_pk_bf16_f32 v53, v56, v52
    v_lshlrev_b32 v56, 16, v53
    v_and_b32 v52, 0xffff0000, v53
    v_add_f32 v52, {f32(1e-5)}, v52
    v_cvt_pk_bf16_f32 v52, v52, v52
    v_and_b32 v52, 0xffff0000, v52
    v_sqrt_f32 v52, v52
    v_cvt_pk_bf16_f32 v52, v52, v52
    v_and_b32 v52, 0xffff0000, v52
    v_rcp_f32 v52, v52
    v_lshlrev_b32 v53, 6, v14
    v_add_u32 v54, 128, v53
    ds_bpermute_b32 v58, v53, v56
    ds_bpermute_b32 v60, v54, v56
    ds_bpermute_b32 v24, v53, v52
    ds_bpermute_b32 v26, v54, v52
    ''')
    kmore(3/6)
    for k in range(16): a(f'v_lshlrev_b32 v{XN+k}, 16, v{XV+k}')
    a('s_waitcnt lgkmcnt(0)')
    for pr in range(2):
        for k in range(4):
            r = XN + 8*pr + 2*k
            a(f'v_pk_add_f32 v[{r}:{r+1}], v[{r}:{r+1}], v[{58+2*pr}:{59+2*pr}] op_sel_hi:[1,0]')
    for k in range(8): a(f'v_cvt_pk_bf16_f32 v{XO+k}, v{XN+2*k}, v{XN+2*k+1}')
    for k in range(8): a(f'v_lshlrev_b32 v{XN+2*k}, 16, v{XO+k}\nv_and_b32 v{XN+2*k+1}, 0xffff0000, v{XO+k}')
    for pr in range(2):
        for k in range(4):
            r = XN + 8*pr + 2*k
            a(f'v_pk_mul_f32 v[{r}:{r+1}], v[{r}:{r+1}], v[{24+2*pr}:{25+2*pr}] op_sel_hi:[1,0]')
    for k in range(16): a(f'v_cvt_pk_bf16_f32 v{XN+k}, v{XN+k}, v{XN+k}')
    stamp('ln')
    kmore(4/6)
    if PP:
        while wiss[0] < 8: pstep()
    for t in range(8):
        for pr in range(2):
            ab = AB + 4*((2*t + pr) & 3)
            for r in range(4): a(f'v_and_b32 v{ab+r}, v{XN+8*pr+t}, v{4+r}')
        a.wait_vm(f'w{t}')
        for pr in range(2):
            ab = AB + 4*((2*t + pr) & 3); d = v4(ACC + 4*pr)
            a(f'v_mfma_f32_16x16x32_bf16 {d}, {v4(ab)}, {v4(WT+4*t)}, {0 if t == 0 else d}')
        if PP:
            idx = max(k for k, (tg, r) in enumerate(a.vm) if tg == f'w{t}')
            while len(a.vm) - 1 - idx < TP: pstep(False)
        elif t == 3: kmore(5/6)
    stamp('wland')
    kmore(1)
    if PP: KP0 = kissued[0]
    a(f's_cmp_eq_u32 {sW_}, 7\ns_cbranch_scc1 L_nopart')
    for pr in range(2): a(f'ds_write_b128 v22, {v4(ACC+4*pr)} offset:{1024*pr}')
    a.label('L_nopart')
    a('s_waitcnt lgkmcnt(0)\ns_barrier')
    stamp('barA')
    def padd(d, s_, n):
        for r in range(0, n, 2): a(f'v_pk_add_f32 v[{d+r}:{d+r+1}], v[{d+r}:{d+r+1}], v[{s_+r}:{s_+r+1}]')
    a(f'''
    s_cmp_lt_u32 {sW_}, 6
    s_cbranch_scc1 L_nopub
    v_and_b32 v14, 127, v0
    v_lshlrev_b32 v15, 4, v14
    ''')
    for u in range(7): a(f'ds_read_b128 {v4(16+4*u)}, v15 offset:{2048*u}')
    a(f'''
    v_lshrrev_b32 v14, 5, v14
    s_mov_b32 {sT0}, {36864-512}
    v_mad_u32_u24 v14, v14, {sT0}, v15     ; b*36864 + 16*(t&31)
    s_mul_i32 {sT0}, s93, 147456
    s_lshl_b32 {sT2}, s92, 9
    s_add_u32 {sT0}, {sT0}, {sT2}
    s_add_u32 {sT0}, {sT0}, {WS_P}
    s_cmp_ge_u32 {sJ}, {27 if not (EXP & 8) else 0}
    s_cselect_b32 {sT0}, {BIG}, {sT0}
    s_waitcnt lgkmcnt(0)
    ''')
    padd(16, 32, 12); padd(16, 24, 8); padd(16, 20, 4)
    a.role = 'pub'
    a(f'buffer_store_dwordx4 v[16:19], v14, {WS}, {sT0} offen sc1', tag='pub')
    a.role = None
    a.label('L_nopub')
    def wotile(n):
        uc, h = divmod(n, 2); c, u = divmod(uc, 3)
        return [[sWO0, sWO1], [sWO2, sWO3]][h][u == 2], (2560 if u == 1 else 0) + 256*c
    kseq = []
    si = 0
    for i in range(KP0, 48):
        kseq.append('k')
        while si < NS and (si + 1) * (SEND - KP0) <= (i + 1 - KP0) * NS:
            kseq.append('s'); si += 1
    assert si == NS
    kp = [0]; sissued = [0]
    def kstep(paced):
        op = kseq[kp[0]]; kp[0] += 1
        if paced: a(f's_waitcnt vmcnt({T-1})')
        if op == 'k': kload()
        else:
            n = sissued[0]; so, imm = wotile(n)
            a(f's_add_u32 m0, {sSTG}, {1024*n - imm}' if 1024*n >= imm else f's_sub_u32 m0, {sSTG}, {imm - 1024*n}')
            a(f'buffer_load_dwordx4 v12, {WO}, {so} offen offset:{imm} {POL[SPOL]} lds', tag='stg')
            sissued[0] += 1
    for _ in range(T - 1): kstep(True)
    a(f's_cmp_lt_u32 {sW_}, 6\ns_cbranch_scc1 L_nosig')
    a.role = 'pub'; a.wait_vm('pub'); a.role = None
    a(f'''
    v_mov_b32 v14, {L_CNT}
    v_mov_b32 v15, 1
    s_mov_b64 exec, 1
    ds_add_rtn_u32 v20, v14, v15
    s_waitcnt lgkmcnt(0)
    v_readfirstlane_b32 {sT0}, v20
    s_cmp_eq_u32 {sT0}, 1
    s_cbranch_scc0 L_nosig
    s_mov_b64 exec, 3
    s_lshl_b32 {sT0}, s92, 2
    s_add_u32 {sT0}, {sT0}, s93
    s_lshl_b32 {sT0}, {sT0}, 3
    s_add_u32 {sT0}, {sT0}, {WS_F}
    s_cmp_ge_u32 {sJ}, 27
    s_cselect_b32 {sT0}, {BIG}, {sT0}
    s_lshl_b32 {sT2}, {sIDX}, 3
    s_add_u32 {sT2}, {sT2}, {WS_G}
    v_mov_b32 v20, {sT0}
    v_writelane_b32 v20, {sT2}, 1
    v_mov_b32 v14, s100
    v_mov_b32 v15, s101
    ''')
    a(f'buffer_store_dwordx2 v[14:15], v20, {WS}, 0 offen sc1'); a.vm.pop()
    a.label('L_nosig')
    a('s_mov_b64 exec, -1')
    stamp('sig')
    while kissued[0] < KPOLL: kstep(True)
    a(f's_cmp_eq_u32 {sW_}, 0\ns_cbranch_scc1 L_w0')
    fork = (list(a.vm), kissued[0], kp[0], sissued[0])
    while kp[0] < len(kseq): kstep(True)
    stamp('kiss'); stamp('poll'); stamp('qrdy')
    a('s_branch L_join')
    vm_join = list(a.vm)
    a.vm, kissued[0], kp[0], sissued[0] = fork
    a.label('L_w0')
    a(f'''
    v_min_u32 v60, 59, v1
    v_lshlrev_b32 v60, 2, v60
    s_mul_i32 {sT0}, {sH}, 192
    s_mul_i32 {sT2}, {sP}, 24
    s_add_u32 {sT2}, {sT2}, {6144-192}
    s_add_u32 {sT3}, {sT2}, {1536-24}
    v_mov_b32 v61, {sT0}
    v_mov_b32 v62, {sT2}
    v_cmp_le_u32 vcc, 48, v1
    v_cndmask_b32 v61, v61, v62, vcc
    v_mov_b32 v62, {sT3}
    v_cmp_le_u32 vcc, 54, v1
    v_cndmask_b32 v61, v61, v62, vcc
    v_add_u32 v60, v60, v61
    v_lshrrev_b32 v61, 7, v60
    v_lshlrev_b32 v61, 5, v61
    v_lshlrev_b32 v60, 2, v60
    s_mov_b32 {sT2}, {WS_F}
    s_mov_b32 {sT1}, {SPIN}
    ''')
    if EXP & 1: a(f'v_mov_b32 v61, {BIG}')
    a(f'buffer_load_dwordx4 v[16:19], v61, {WS}, {sT2} offen sc1')
    a(f'buffer_load_dwordx2 v[20:21], v61, {WS}, {sT2} offen offset:16 sc1', tag='poll')
    for _ in range(T - 1): kstep(True)
    a.wait_vm('poll')
    a.label('L_spin1')
    a(f'''
    v_cmp_ne_u64 vcc, {TAG}, v[16:17]
    v_cmp_ne_u64 s[44:45], {TAG}, v[18:19]
    v_cmp_ne_u64 s[46:47], {TAG}, v[20:21]
    s_or_b64 vcc, vcc, s[44:45]
    s_or_b64 vcc, vcc, s[46:47]
    s_cbranch_scc0 L_ok1
    s_sub_u32 {sT1}, {sT1}, 1
    s_cbranch_scc1 L_ok1
    s_sleep {SLP}
    buffer_load_dwordx4 v[16:19], v61, {WS}, {sT2} offen sc1
    buffer_load_dwordx2 v[20:21], v61, {WS}, {sT2} offen offset:16 sc1
    s_waitcnt vmcnt(0)
    s_branch L_spin1
    ''')
    a.vm.pop(); a.vm.pop()
    a.label('L_ok1')
    stamp('poll')
    a(f's_mul_i32 {sT0}, {sB}, 36864\ns_add_u32 {sT0}, {sT0}, {WS_P}')
    if EXP & 2: a(f'v_mov_b32 v60, {BIG}')
    for t in range(3):
        a(f'buffer_load_dwordx4 {v4(16+4*t)}, v60, {WS}, {sT0} offen sc1', tag='gq')
        if t < 2: a(f's_add_u32 {sT0}, {sT0}, 147456')
    for _ in range(W0N): kstep(False)
    a.wait_vm('gq')
    padd(16, 20, 4); padd(16, 24, 4)
    a(f'''
    v_cvt_pk_bf16_f32 v16, v16, v17
    v_cvt_pk_bf16_f32 v17, v18, v19
    v_lshlrev_b32 v14, 3, v1
    ds_write_b64 v14, v[16:17] offset:{L_Q}
    v_min_u32 v14, 23, v1
    v_lshlrev_b32 v14, 1, v14
    s_waitcnt lgkmcnt(0)
    ds_read_u16 v20, v14 offset:{L_Q+384}
    ds_read_u16 v21, v14 offset:{L_Q+432}
    s_waitcnt lgkmcnt(0)
    v_lshlrev_b32 v20, 16, v20
    v_lshlrev_b32 v21, 16, v21             ; up
    v_mul_f32 v22, v20, v20
    v_mul_f32 v22, {f32(0.044715)}, v22
    v_fma_f32 v22, v22, v20, v20           ; x + c x^3
    v_mul_f32 v22, {f32(-2*0.7978845608028654*L2E)}, v22
    v_exp_f32 v22, v22
    v_add_f32 v22, 1.0, v22
    v_rcp_f32 v22, v22
    v_mul_f32 v22, v22, v20
    v_cvt_pk_bf16_f32 v22, v22, v22
    v_and_b32 v22, 0xffff0000, v22
    v_mul_f32 v22, v22, v21
    v_cvt_pk_bf16_f32 v22, v22, v22
    v_cmp_gt_u32 vcc, 24, v1
    v_cndmask_b32 v22, 0, v22, vcc
    v_min_u32 v14, 31, v1
    v_lshlrev_b32 v14, 2, v14
    ds_write_b32 v14, v22 offset:{L_HID}
    v_mov_b32 v14, {L_CNT}
    v_mov_b32 v15, 1
    s_waitcnt lgkmcnt(0)
    ds_write_b32 v14, v15 offset:4
    ''')
    def xred8(base, n, tmp):
        for r in range(n): a(f'v_add_f32_dpp v{base+r}, v{base+r}, v{base+r} row_ror:8 row_mask:0xf bank_mask:0xf')
        for sw in ('v_permlane16_swap_b32', 'v_permlane32_swap_b32'):
            for r in range(n): a(f'v_mov_b32 v{tmp+r}, v{base+r}')
            for r in range(n): a(f'{sw} v{base+r}, v{tmp+r}')
            padd(base, tmp, n)
    stamp('qrdy')
    while kp[0] < len(kseq): kstep(True)
    stamp('kiss')
    a.vm = vm_join
    a.label('L_join')
    a(f'v_mov_b32 v14, {L_CNT}\ns_mov_b32 {sT1}, {1<<24}')
    a.label('L_spinq')
    a(f'''
    ds_read_b32 v15, v14 offset:4
    s_waitcnt lgkmcnt(0)
    v_readfirstlane_b32 {sT0}, v15
    s_cmp_lg_u32 {sT0}, 0
    s_cbranch_scc1 L_okq
    s_sub_u32 {sT1}, {sT1}, 1
    s_cbranch_scc1 L_okq
    s_sleep 1
    s_branch L_spinq
    ''')
    a.label('L_okq')
    stamp('barB')
    a(f'''
    v_and_b32 v14, 3, v2
    v_lshl_add_u32 v15, v3, 2, v14
    v_lshlrev_b32 v15, 4, v15
    ds_read_b128 v[56:59], v15 offset:{L_Q}
    v_and_b32 v15, 0x70, v15
    ds_read_b128 v[60:63], v15 offset:{L_Q+256}
    ''')
    mX = [lanemask(lambda m, g, u=u: (m >> 2) == u) for u in range(4)]
    mY = [lanemask(lambda m, g, w=w: (m >> 2) == 2*w + (g >> 1)) for w in range(2)]
    for k, m in enumerate(mX + mY):
        a(f's_mov_b32 s{44+2*k}, {hex(m & 0xffffffff)}\ns_mov_b32 s{45+2*k}, {hex(m >> 32)}')
    a('s_waitcnt lgkmcnt(0)')
    for k in range(6):
        src = 56 if k < 4 else 60
        for r in range(4): a(f'v_cndmask_b32 v{32+4*k+r}, 0, v{src+r}, s[{44+2*k}:{45+2*k}]')
    vissued = [0]
    def vreg(i): return kt(i % RV)
    def vload():
        i = vissued[0]; g, e = divmod(i, 6); c, x = divmod(e, 3)
        if e == 0:
            grp(g)
            a(f's_add_u32 {sKV2}, {sKV}, 3072')
        if x == 0:   a(f'buffer_load_dwordx4 {vreg(i)}, v10, {V}, {sKV} offen offset:{1536*c} {POL[KVPOL]}', tag=f'v{i}')
        elif x == 1: a(f'buffer_load_dwordx4 {vreg(i)}, v10, {V}, {sKV2} offen offset:{1536*c} {POL[KVPOL]}', tag=f'v{i}')
        else:        a(f'buffer_load_dwordx4 {vreg(i)}, v11, {V}, {sKV} offen offset:{1536*c} {POL[KVPOL]}', tag=f'v{i}')
        vissued[0] += 1
    assert RV <= 12
    extras = [('wd', c) for c in range(5)] + [('wo', n) for n in range(NS, 30)]
    xiss = [0]
    def xtile(e): return WDT + e[1] if e[0] == 'wd' else WOT + e[1]
    def xload():
        e = extras[xiss[0]]
        if e[0] == 'wd':
            a(f'buffer_load_dwordx4 {kt(xtile(e))}, v13, {WD}, {sWDB} offen offset:{256*e[1]} {POL[WPOL]}', tag='wd')
        else:
            so, imm = wotile(e[1])
            a(f'buffer_load_dwordx4 {kt(xtile(e))}, v12, {WO}, {so} offen offset:{imm} {POL[WPOL]}', tag=f'wo{e[1]}')
        xiss[0] += 1
    SC = 0.07216878364870322
    def score_post(g):
        d = 24 + 4*(g & 1); s_ = 16 + g
        a(f'''
        v_mov_b32_dpp v{s_}, v{d} quad_perm:[0,0,0,0] row_mask:0xf bank_mask:0xf
        v_add_f32_dpp v{s_}, v{d+1}, v{s_} quad_perm:[1,1,1,1] row_mask:0xf bank_mask:0xf
        v_add_f32_dpp v{s_}, v{d+2}, v{s_} quad_perm:[2,2,2,2] row_mask:0xf bank_mask:0xf
        v_add_f32_dpp v{s_}, v{d+3}, v{s_} quad_perm:[3,3,3,3] row_mask:0xf bank_mask:0xf
        ''')
        if NOS < 1: a(f'v_cvt_pk_bf16_f32 v{s_}, v{s_}, v{s_}\nv_and_b32 v{s_}, 0xffff0000, v{s_}')
        a(f'v_mul_f32 v{s_}, {f32(SC)}, v{s_}')
        if NOS < 2: a(f'v_cvt_pk_bf16_f32 v{s_}, v{s_}, v{s_}\nv_and_b32 v{s_}, 0xffff0000, v{s_}')
    nx = len(extras) - XL
    span = 48 - XBEG - XEND
    seq = []
    xi = 0
    for i in range(48):
        seq.append('v')
        if i == SLI: seq.append('sl')
        if xi < 5 and i >= XBEG:
            seq.append('x'); xi += 1
        while xi < nx and i >= XBEG and (xi + 1) * span <= (i + 1 - XBEG) * nx:
            seq.append('x'); xi += 1
    assert xi == nx
    seq += ['x'] * XL
    nx += XL
    sp = [0]
    did_wd = [False]
    SS = KB + 4*47
    st = KB + 4*WDT
    GF = st + 12
    def statload():
        a(f'''
        v_lshlrev_b32 v8, 4, v2
        s_mul_i32 s95, {sP}, 43691
        s_lshr_b32 s95, s95, 17
        s_mul_i32 {sT0}, {sB}, 1280
        s_lshl_b32 {sT1}, s95, 6
        s_add_u32 s96, {sT0}, {sT1}
        s_mul_i32 {sT0}, s95, 3
        s_mov_b32 s97, 1
        s_cmp_lg_u32 {sT0}, {sP}
        s_cselect_b32 s97, 0, s97
        s_cmp_ge_u32 s95, 20
        s_cselect_b32 s97, 0, s97
        s_cmp_lg_u32 {sW_}, 7
        s_cselect_b32 s97, 0, s97
        v_lshlrev_b32 v9, 4, v1
        s_mov_b32 s98, {WS_G}
        s_cmp_eq_u32 s2, 0
        s_cselect_b32 s99, s97, 0
        s_cmp_eq_u32 s99, 0
        s_cbranch_scc1 L_nogf
        buffer_load_dwordx4 {v4(GF)}, v9, {WS}, s98 offen sc1
        buffer_load_dwordx4 {v4(GF+4)}, v9, {WS}, s98 offen offset:1024 sc1
        ''')
        a.vm.pop(); a.vm.pop()
        a.label('L_nogf')
        a(f'buffer_load_dwordx4 {v4(SS)}, v8, {WS}, {sSB} offen sc1', tag='sl')
    def pump(lasttag, kfree, vcons):
        while sp[0] < len(seq):
            idx = max(k for k, (t, r) in enumerate(a.vm) if t == lasttag)
            if len(a.vm) - 1 - idx >= (TV if vcons < VE else TVE): break
            op = seq[sp[0]]
            if op == 'v':
                i = vissued[0]
                if i < RV:
                    if i >= kfree: break
                elif i - RV >= vcons: break
                vload()
            elif op == 'x':
                if xtile(extras[xiss[0]]) >= kfree: break
                xload()
            else:
                assert did_wd[0]
                statload()
            sp[0] += 1
    done = [t for (t, r) in a.vm[:len(a.vm) - T]]
    known = max(int(t[1:]) for t in done if t and t[0] == 'k' and t[1:].isdigit())
    a.wait_vm(f'k{known}')
    for g in range(8):
        d = v4(24 + 4*(g & 1))
        for e in range(6):
            i = 6*g + e
            if i > known:
                a.wait_vm(f'k{i}'); known = i
            a(f'v_mfma_f32_16x16x32_bf16 {d}, {v4(32+4*e)}, {kt(i)}, {0 if e == 0 else d}')
            if i == known: pump(f'k{known}', i + 1, 0)
        if 6*g + 5 < known and (g & 1) == 0 and known < 47:
            known += 1
            a.wait_vm(f'k{known}')
            pump(f'k{known}', 6*g + 6, 0)
        if g > 0: score_post(g-1)
    score_post(7)
    if NS:
        a.wait_vm('stg')
        a(f'v_lshlrev_b32 v14, 4, v1\nv_add_u32 v14, {sSTG}, v14')
        for n in range(NS): a(f'ds_read_b128 {kt(WOT+n)}, v14 offset:{1024*n}')
    def allred(op, r, t):
        rowred(op, r, (4, 8))
        a(f'v_mov_b32 v{t}, v{r}\nv_permlane16_swap_b32 v{r}, v{t}\n{op} v{r}, v{r}, v{t}')
        a(f'v_mov_b32 v{t}, v{r}\nv_permlane32_swap_b32 v{r}, v{t}\n{op} v{r}, v{r}, v{t}')
    a('v_max3_f32 v28, v16, v17, v18\nv_max3_f32 v15, v19, v20, v21\nv_max3_f32 v28, v28, v22, v23\nv_max_f32 v28, v28, v15')
    allred('v_max_f32', 28, 15)
    for g in range(8): a(f'v_sub_f32 v{16+g}, v{16+g}, v28')
    for g in range(8): a(f'v_mul_f32 v{16+g}, {f32(L2E)}, v{16+g}')
    for g in range(8): a(f'v_exp_f32 v{16+g}, v{16+g}')
    a('v_add_f32 v30, v16, v17\nv_add_f32 v24, v18, v19\nv_add_f32 v25, v20, v21\nv_add_f32 v26, v22, v23\nv_add_f32 v30, v30, v24\nv_add_f32 v25, v25, v26\nv_add_f32 v30, v30, v25')
    allred('v_add_f32', 30, 24)
    for g in range(8): a(f'v_cvt_pk_bf16_f32 v{16+g}, v{16+g}, v{16+g}')
    a(f'''
    v_mov_b32 v29, s100
    v_mov_b32 v31, s101
    v_mov_b32 v24, 0
    v_readfirstlane_b32 {sM}, v28          ; own m
    s_mov_b64 exec, 1
    ''')
    if EXP & 256: a(f's_cmp_eq_u32 {sW_}, 0\ns_cselect_b32 {sSOWN}, {sSOWN}, {BIG}\ns_cselect_b32 {sSB}, {sSB}, {BIG}')
    a(f'buffer_store_dwordx4 v[28:31], v24, {WS}, {sSOWN} offen sc1', tag='stat')
    a('s_mov_b64 exec, -1')
    stamp('smax')
    YA, OA = 44, 32
    a(f'''
    s_mul_i32 {sT0}, {sW_}, 12
    v_lshlrev_b32 v24, 2, v3
    v_add_u32 v24, {sT0}, v24
    v_mov_b32 v25, 124
    v_cmp_eq_u32 vcc, 3, v3
    v_cndmask_b32 v24, v24, v25, vcc
    ds_read_b32 v14, v24 offset:{L_HID}
    s_waitcnt lgkmcnt(0)
    ''')
    for g in range(8):
        for c in range(2):
            A = 24 + 4*c
            if c == 0: a(f'v_mov_b32 v15, v{16+g}\nv_mov_b32_dpp v15, v{16+g} row_shr:4 row_mask:0xf bank_mask:0xa')
            else:      a(f'v_mov_b32 v15, v{16+g}\nv_mov_b32_dpp v15, v{16+g} row_shl:4 row_mask:0xf bank_mask:0x5')
            for r in range(4): a(f'v_and_b32 v{A+r}, v15, v{4+r}')
            for x in range(3):
                i = 6*g + 3*c + x
                d = v4(OA + 4*x)
                a.wait_vm(f'v{i}')
                stamp(f'vc{i}')
                a(f'v_mfma_f32_16x16x32_bf16 {d}, {v4(A)}, {vreg(i)}, {0 if i < 3 else d}')
                pump(f'v{i}', 48, i + 1)
        if g == 2:
            did_wd[0] = True
            assert xiss[0] >= 5
            for r in range(4): a(f'v_and_b32 v{24+r}, v14, v{4+r}')
            a.wait_vm('wd')
            for c in range(5):
                a(f'v_mfma_f32_16x16x32_bf16 {v4(YA+4*c)}, v[24:27], {kt(WDT+c)}, 0')
        if g == GST:
            a(f's_mov_b32 {sT1}, {SPIN}')
            a.wait_vm('sl')
            a.label('L_spin2')
            a(f'''
            v_cmp_ne_u32 vcc, s100, v{SS+1}
            v_cmp_ne_u32 s[44:45], s101, v{SS+3}
            s_or_b64 vcc, vcc, s[44:45]
            s_cbranch_scc0 L_ok2
            s_sub_u32 {sT1}, {sT1}, 1
            s_cbranch_scc1 L_ok2
            s_sleep 4
            buffer_load_dwordx4 {v4(SS)}, v8, {WS}, {sSB} offen sc1
            s_waitcnt vmcnt(0)
            s_branch L_spin2
            ''')
            a.vm.pop()
            a.label('L_ok2')
            a(f'''
            s_cmp_eq_u32 s99, 0
            s_cbranch_scc1 L_ok2b
            s_mov_b32 {sT1}, {SPIN}
            ''')
            a.label('L_spin2b')
            a(f'''
            v_cmp_ne_u64 vcc, {TAG}, v[{GF}:{GF+1}]
            v_cmp_ne_u64 s[44:45], {TAG}, v[{GF+2}:{GF+3}]
            v_cmp_ne_u64 s[46:47], {TAG}, v[{GF+4}:{GF+5}]
            v_cmp_ne_u64 s[48:49], {TAG}, v[{GF+6}:{GF+7}]
            s_or_b64 vcc, vcc, s[44:45]
            s_or_b64 s[46:47], s[46:47], s[48:49]
            s_or_b64 vcc, vcc, s[46:47]
            s_cbranch_scc0 L_ok2c
            s_sub_u32 {sT1}, {sT1}, 1
            s_cbranch_scc1 L_ok2c
            s_sleep {SLP}
            buffer_load_dwordx4 {v4(GF)}, v9, {WS}, s98 offen sc1
            buffer_load_dwordx4 {v4(GF+4)}, v9, {WS}, s98 offen offset:1024 sc1
            s_waitcnt vmcnt(0)
            s_branch L_spin2b
            ''')
            a.vm.pop(); a.vm.pop()
            a.label('L_ok2c')
            a(f'''
            s_mov_b32 {sT2}, {WS_E}
            v_mov_b32 v{GF}, s100
            v_mov_b32 v{GF+1}, s101
            s_mov_b64 exec, 1
            buffer_store_dwordx2 v[{GF}:{GF+1}], v9, {WS}, {sT2} offen sc1
            s_mov_b64 exec, -1
            ''')
            a.vm.pop()
            a.label('L_ok2b')
            a(f'v_mov_b32 v{st+6}, v{SS}')
            rowred('v_max_f32', st+6)
            a(f'''
            v_sub_f32 v{st}, v{SS}, v{st+6}
            v_sub_f32 v{st+7}, {sM}, v{st+6}
            v_mul_f32 v{st}, {f32(L2E)}, v{st}
            v_mul_f32 v{st+7}, {f32(L2E)}, v{st+7}
            v_exp_f32 v{st}, v{st}
            v_exp_f32 v{st+7}, v{st+7}
            v_mul_f32 v{st}, v{st}, v{SS+2}
            ''')
            rowred('v_add_f32', st)
            a(f'''
            v_rcp_f32 v{st}, v{st}
            v_mul_f32 v14, v{st}, v{st+7}          ; factor
            v_and_b32 v{st+5}, 7, v1
            v_lshlrev_b32 v{st+5}, 3, v{st+5}
            v_and_b32 v{st+3}, 1, v3
            v_lshlrev_b32 v{st+3}, 2, v{st+3}
            v_and_b32 v{st+4}, 2, v3
            v_add3_u32 v{st+3}, v{st+3}, v{st+4}, v{st+5}
            s_min_u32 {sT0}, s96, 5056
            v_add_u32 v{st+4}, {sT0}, v{st+3}
            ds_read_u16 v{st+2}, v{st+4} offset:{L_X}
            v_and_b32 v{st+15}, 3, v2
            v_mul_u32_u24 v{st+15}, 0x5555, v{st+15}
            s_mov_b32 s44, 0x0f0f0f0f
            s_mov_b32 s45, 0x0f0f0f0f
            s_mov_b32 s46, 0xf0f0f0f0
            s_mov_b32 s47, 0xf0f0f0f0
            ''')
            a(f'''
            v_lshrrev_b32 v{st+6}, 1, v3
            s_lshl_b32 {sT0}, {sW_}, 1
            v_add_u32 v{st+7}, {sT0}, v{st+6}
            v_mul_u32_u24 v{st+7}, 784, v{st+7}
            v_and_b32 v{st+8}, 1, v3
            v_lshlrev_b32 v{st+11}, 4, v{st+8}
            v_add_u32 v{st+7}, v{st+7}, v{st+11}
            v_lshl_add_u32 v{st+8}, v2, 5, v{st+7}
            v_and_b32 v{st+9}, 7, v2
            v_lshl_add_u32 v{st+9}, v{st+9}, 5, v{st+7}
            v_add_u32 v{st+9}, 512, v{st+9}
            v_lshrrev_b32 v{st+7}, 3, v2
            v_cmp_eq_u32 vcc, v{st+7}, v{st+6}
            v_lshlrev_b32 v{st+7}, 4, v1
            v_add_u32 v{st+7}, {L_DUM}, v{st+7}
            v_cndmask_b32 v{st+9}, v{st+7}, v{st+9}, vcc
            v_mul_u32_u24 v{st+10}, 784, v2
            v_mul_u32_u24 v{st+7}, 24, v3
            s_mul_i32 {sT0}, {sW_}, 96
            v_add3_u32 v{st+10}, v{st+10}, v{st+7}, {sT0}
            s_mul_i32 {sT0}, {sW_}, 3200
            v_mul_u32_u24 v{st+11}, 24, v{st+11}
            v_lshl_add_u32 v{st+11}, v2, 4, v{st+11}
            v_add_u32 v{st+11}, {sT0}, v{st+11}           ; y write: 3200w + 384(g&1) + 16n
            v_and_b32 v{st+13}, 31, v1
            v_lshrrev_b32 v{st+7}, 1, v{st+13}
            v_lshlrev_b32 v{st+13}, 4, v{st+13}
            s_lshl_b32 {sT0}, {sW_}, 9
            v_add_u32 v{st+13}, {sT0}, v{st+13}
            v_mul_u32_u24 v{st+12}, 12800, v{st+6}
            v_lshl_add_u32 v{st+12}, v{st+7}, 4, v{st+12}
            v_and_b32 v{st+7}, 1, v1
            v_mul_u32_u24 v{st+7}, 384, v{st+7}
            s_mul_i32 {sT0}, {sW_}, 640
            v_add3_u32 v{st+12}, v{st+12}, v{st+7}, {sT0}  ; y read: 12800(l>>5) + 640w + 384(l&1) + 16((l&31)>>1)
            v_lshrrev_b32 v{st+14}, 3, v1
            v_mul_u32_u24 v{st+14}, 2560, v{st+14}
            v_lshl_add_u32 v{st+14}, v{st+5}, 1, v{st+14}
            s_mul_i32 s94, {sB}, {64*2560}
            s_lshl_b32 {sT0}, s95, 7
            s_add_u32 s94, s94, {sT0}
            ''')
            for i in range(8): a(f's_add_u32 s{48+i}, s94, {8*2560*i}')
            a('s_movk_i32 s98, 0xff')
            for k in range(2): a(f'v_bfe_u32 v{st+16+k}, s{100+k}, 0, 8')
    assert xiss[0] == nx and sp[0] == len(seq)
    stamp('vend')
    for r in range(4): a(f'v_cndmask_b32 v{OA+r}, v{OA+4+r}, v{OA+r}, {sLO32}')
    for r in range(4): a(f'v_mul_f32 v{OA+r}, v{OA+r}, v14')
    a(f'ds_write_b128 v{st+8}, {v4(OA)}')
    for r in range(4): a(f'v_mul_f32 v{OA+8+r}, v{OA+8+r}, v14')
    a(f'ds_write_b128 v{st+9}, {v4(OA+8)}')
    a('s_waitcnt lgkmcnt(0)\ns_barrier')
    stamp('barC')
    for j in range(3): a(f'ds_read_b64 v[{16+2*j}:{17+2*j}], v{st+10} offset:{8*j}')
    def dpp(regs, steps):
        for s_ in steps:
            for r in regs: a(f'v_add_f32_dpp v{r}, v{r}, v{r} row_ror:{s_} row_mask:0xf bank_mask:0xf')
    if CM != 2:
        a('s_waitcnt lgkmcnt(0)')
        dpp(range(16, 22), (8, 4, 2, 1))
    AT = KB
    def abuild(u):
        for i in range(2):
            a(f'v_cvt_pk_bf16_f32 v{16+2*u+i}, v{16+2*u+i}, 0')
        for i in range(2):
            a(f'v_cndmask_b32 v{AT+4*u+2*i}, 0, v{16+2*u+i}, s[44:45]\nv_cndmask_b32 v{AT+4*u+2*i+1}, 0, v{16+2*u+i}, s[46:47]')
    def smf(u, c):
        n = (c*3 + u)*2
        if n + 1 >= 30 - XL: a.wait_vm(f'wo{n+1}')
        r = KB + 4*(WOT + n)
        a(f'v_smfmac_f32_16x16x64_bf16 {v4(YA+4*c)}, {v4(AT+4*u)}, v[{r}:{r+7}], v{st+15}')
    def ywrite(c):
        a(f's_mov_b64 exec, {sLO32}\nds_write_b128 v{st+11}, {v4(YA+4*c)} offset:{L_YP+640*c}\ns_mov_b64 exec, -1')
    if CM == 2:
        a('s_waitcnt lgkmcnt(0)' if stamps == 3 else 's_waitcnt lgkmcnt(1)')
        dpp((16, 17, 18), (8, 4, 2, 1))
        abuild(0)
        a('s_waitcnt lgkmcnt(0)')
        dpp((19, 20, 21), (8,))
        smf(0, 0); dpp((19, 20, 21), (4,))
        smf(0, 1); dpp((19, 20, 21), (2,))
        smf(0, 2); dpp((19, 20, 21), (1,))
        smf(0, 3); abuild(1)
        smf(1, 0); abuild(2)
        order = [(1,1),(2,0),(1,2),(2,1),(1,3),(0,4),'w0',(2,2),'w1',(1,4),(2,3),(2,4),'w2','w3','w4']
        for o in order:
            if isinstance(o, str): ywrite(int(o[1]))
            else: smf(*o)
        stamp('mm')
        a('s_waitcnt lgkmcnt(0)\ns_barrier')
    elif CM:
        abuild(0); abuild(1)
        smf(0, 0); smf(0, 1)
        abuild(2)
        order = [(1,0),(1,1),(2,0),(2,1),(0,2),(0,3),(1,2),'w0',(1,3),'w1',(2,2),(0,4),(2,3),(1,4),'w2',(2,4),'w3','w4']
        for o in order:
            if isinstance(o, str): ywrite(int(o[1]))
            else: smf(*o)
        stamp('mm')
        a('s_waitcnt lgkmcnt(0)\ns_barrier')
    else:
        abuild(0); abuild(1)
        smf(0, 0); smf(0, 1)
        abuild(2)
        for c in range(2, 5): smf(0, c)
        for c in range(5): smf(1, c)
        for c in range(5): smf(2, c)
        stamp('mm')
        a(f's_mov_b64 exec, {sLO32}')
        for c in range(5): a(f'ds_write_b128 v{st+11}, {v4(YA+4*c)} offset:{L_YP+640*c}')
        a('s_mov_b64 exec, -1\ns_waitcnt lgkmcnt(0)\ns_barrier')
    stamp('barD'); stamp('pub'); stamp('c1')
    a(f's_cmp_ge_u32 {sW_}, 5\ns_cbranch_scc1 L_cons')
    for u in range(4): a(f'ds_read_b128 {v4(16+4*u)}, v{st+12} offset:{L_YP+3200*u}')
    a('s_waitcnt lgkmcnt(0)')
    padd(16, 24, 8); padd(16, 20, 4)
    for r in range(4): a(f'v_mov_b32 v{20+r}, v{16+r}')
    for r in range(4): a(f'v_permlane32_swap_b32 v{16+r}, v{20+r}')
    padd(16, 20, 4)
    for r in range(2): a(f'v_bfi_b32 v{16+2*r}, s98, v{st+16+r}, v{16+2*r}')
    a(f's_mov_b64 exec, {sLO32}')
    a(f'buffer_store_dwordx4 v[16:19], v{st+13}, {WS}, {sYB} offen {POL[YSP]}')
    if stamps:
        a('s_mov_b64 exec, -1\ns_waitcnt lgkmcnt(0)')
        stamp('pub')
        a('s_branch L_fin')
    else:
        a('s_endpgm')
    a.label('L_cons')
    a(f'''
    s_cmp_eq_u32 s97, 0
    s_cbranch_scc1 L_fin
    s_mov_b32 {sT1}, {SPIN}
    ''')
    a.label('L_spin3')
    for i in range(8):
        a(f'buffer_load_dwordx4 {v4(16+4*i)}, v{st+14}, {WS}, s{48+i} offen {POL[YLP]}')
    a(f's_sub_u32 {sT1}, {sT1}, 1')
    for i in range(8):
        r = 16 + 4*i
        a(f's_waitcnt vmcnt({7-i})')
        for k in range(2): a(f'v_xor_b32 v{r+2*k}, v{r+2*k}, v{st+16+k}')
        if i == 0: a(f'v_or_b32 v15, v{r}, v{r+2}')
        else: a(f'v_or3_b32 v15, v15, v{r}, v{r+2}')
    a(f'''
    v_and_b32 v15, s98, v15
    v_cmp_ne_u32 vcc, 0, v15
    s_cbranch_scc1 L_ok3
    s_and_b64 vcc, vcc, vcc
    ''')
    a.raw('  s_cbranch_scc1 L_spin3')
    a.label('L_ok3')
    a('s_mov_b64 exec, -1')
    if stamps: a('s_waitcnt lgkmcnt(0)')
    stamp('c1')
    padd(16, 32, 16); padd(16, 24, 8); padd(16, 20, 4)
    a(f'''
    v_lshlrev_b32 v20, 16, v{st+2}
    v_permlane32_swap_b32 v16, v17
    v_permlane32_swap_b32 v18, v19
    v_add_f32 v16, v16, v17
    v_add_f32 v18, v18, v19
    v_permlane16_swap_b32 v16, v18
    v_add_f32 v16, v16, v18
    v_add_f32_dpp v16, v16, v16 row_ror:8 row_mask:0xf bank_mask:0xf
    v_add_f32 v16, v16, v20
    v_cvt_pk_bf16_f32 v16, v16, v16
    s_mov_b32 exec_lo, 0x00ff00ff
    s_mov_b32 exec_hi, 0x00ff00ff
    buffer_store_short v16, v{st+3}, {OUT}, s96 offen {POL[OPOL]}
    s_mov_b64 exec, -1
    ''')
    if DLY:
        a(f'''
        s_waitcnt vmcnt(0)
        s_memrealtime s[84:85]
        s_waitcnt lgkmcnt(0)
        s_sub_u32 s82, {'s80' if DSEL else 's84'}, s86
        s_mul_i32 s82, s82, {DLY}
        s_add_u32 s82, s82, {6000 if DSEL else 0}
        s_min_u32 s82, s82, 200000
        ''')
        a.label('L_dly')
        a(f'''
        s_memrealtime s[84:85]
        s_waitcnt lgkmcnt(0)
        s_sub_u32 s83, s84, s86
        s_cmp_lt_u32 s83, s82
        s_cbranch_scc1 L_dly
        ''')
    a.label('L_fin')
    if stamps:
        a('s_waitcnt vmcnt(0)')
        stamp('end')
        a('s_waitcnt lgkmcnt(0)')
        for k in range(8): a(f'v_mov_b32 v{16+k}, s{SREG[k]}')
        a(f'''
        s_lshl_b32 {sT0}, s2, 3
        s_add_u32 {sT0}, {sT0}, {sW_}
        s_lshl_b32 {sT0}, {sT0}, 5
        s_add_u32 {sT0}, {sT0}, {WS_T}
        v_mov_b32 v14, 0
        s_mov_b64 exec, 1
        buffer_store_dwordx4 v[16:19], v14, {WS}, {sT0} offen
        buffer_store_dwordx4 v[20:23], v14, {WS}, {sT0} offen offset:16
        ''')
    a.label('L_end')
    a('s_endpgm')
    a.raw(f'''.section .rodata,"a"
.p2align 6
.amdhsa_kernel {name}
  .amdhsa_next_free_vgpr 256
  .amdhsa_next_free_sgpr 102
  .amdhsa_accum_offset 256
  .amdhsa_group_segment_fixed_size 0
  .amdhsa_kernarg_size 96
  .amdhsa_user_sgpr_count 2
  .amdhsa_user_sgpr_kernarg_segment_ptr 1
  .amdhsa_system_sgpr_workgroup_id_x 1
  .amdhsa_float_denorm_mode_32 3
.end_amdhsa_kernel''')
    return a.text()

if __name__ == '__main__':
    out = sys.argv[1]
    kw = {}
    for x in sys.argv[2:]:
        k, v = x.split('='); kw[k] = int(v)
    open(out, 'w').write(gen(**kw))
```

```python
import sys, struct
from asmdsl import Asm

NAME = 'parallel_sum__sliding_block_cached__geglu_ffn__decode_kernel'
def f32(x): return '0x%08x' % struct.unpack('<I', struct.pack('<f', x))[0]
def lanemask(fn):
    m = 0
    for l in range(64):
        if fn(l & 15, l >> 4): m |= 1 << l
    return m

HEADER = open('parallel_sum__sliding_block_cached__geglu_ffn__decode.s.ref').read().split('; Override')[0]

WS_Y  = 0
WS_S  = 0x100000
WS_E  = 0x0F0000
WS_F  = 0x109000
WS_G  = 0x10A000
WS_P  = 0x110000
WS_T  = 0x300000
WS_SZ = 0x400000
L_PART = 0
L_DUM  = 14336
L_Q    = 15360
L_HID  = 15872
L_CNT  = 16000
L_X    = 16128
L_STG  = 21504
L_YP   = L_STG
BIG = 0x40000000
L2E = 1.4426950408889634
POL = {0: '', 1: 'nt', 2: 'sc0 nt', 3: 'sc1 nt', 4: 'sc0', 5: 'sc1', 6: 'sc0 sc1', 7: 'sc0 sc1 nt'}

def gen(KU=3, KW=0, KP0=9, PP=0, PG=2, PI=3, TP=5, XL=4, T=5, TV=6, TVE=12, VE=30, RV=12, ILV=1, XBEG=4, XEND=14, SLI=28, GST=5, PRIO=1, SLP=8, KPOLL=26, W0N=5, WPOL=0, SPOL=0, KVPOL=1, PPOL=0, DLY=0, DSEL=0, NOS=0, BM=0, PRE=0, PSL=0, CM=2, PM=0, OPOL=0, YLP=5, YSP=5, YCP=5, ROT=3,
        NS=17, SEND=44, EXP=0, stamps=0, name=NAME):
    a = Asm()
    SPIN = (1 << 19) if EXP == 0 else 0
    LDS_SZ = L_STG + max(8 * NS * 1024, 25600)
    assert LDS_SZ <= 163840
    SREG = [80, 82, 84, 86, 56, 58, 60, 62]
    SETS = {1: ['start', 'barA', 'sig', 'kiss', 'barB', 'smax', 'vend', 'end'],
            2: ['start', 'bar0', 'ln', 'barA', 'sig', 'poll', 'qrdy', 'end'],
            3: ['start', 'vend', 'barC', 'mm', 'barD', 'pub', 'c1', 'end'],
            5: ['start', 'ki12', 'ki18', 'ki24', 'ki30', 'ki36', 'ki42', 'ki47'],
            6: ['start', 'ki47', 'vc0', 'vc12', 'vc24', 'vc36', 'vc42', 'vc47'],
            7: ['start', 'bar0', 'barA', 'ki12', 'ki24', 'ki47', 'vc24', 'vc47'],
            4: ['start', 'karg', 'iss1', 'iss2', 'pre0', 'bar0', 'barA', 'end']}
    DN = ['end', 'karg', 'iss1', 'bar0', 'barA', 'sig', 'barB', 'vend', 'iss2', 'smax', 'pre', 'preK']
    def stamp(nm):
        if DLY and DSEL and nm == DN[DSEL]: a('s_memrealtime s[80:81]')
        if stamps and nm in SETS[stamps]:
            r = SREG[SETS[stamps].index(nm)]
            a(f's_memrealtime s[{r}:{r+1}]')
    a.raw(HEADER.rstrip())
    a.raw(f'; @launch grid=(256,1,1) block=(512,1,1) lds={LDS_SZ}')
    a.raw('.amdgcn_target "amdgcn-amd-amdhsa--gfx950"\n.text\n.globl %s\n.p2align 8\n.type %s,@function\n%s:' % (name, name, name))
    sW_, sH, sB, sS, sJ, sXCD, sP, sIDX = 's3', 's4', 's5', 's6', 's7', 's68', 's69', 's70'
    K, V, W, WO, WD, X, WS, OUT = 's[8:11]', 's[12:15]', 's[16:19]', 's[20:23]', 's[24:27]', 's[28:31]', 's[32:35]', 's[36:39]'
    sWO0, sWO1, sWDB, sSTG, sWO2, sWO3 = 's40', 's41', 's42', 's43', 's64', 's65'
    sKV, sKV2, sKV0 = 's71', 's72', 's73'
    sT0, sT1, sT2, sT3 = 's74', 's75', 's76', 's77'
    sLO32 = 's[78:79]'
    sM, sSOWN, sYB, sSB = 's88', 's89', 's90', 's91'
    TAG = 's[100:101]'
    KB = 64
    WDT, WOT = 12, 17
    def kt(i): return f'v[{KB+4*i}:{KB+4*i+3}]'
    def v4(r): return f'v[{r}:{r+3}]'
    def srd(d, p, n):
        a(f's_mov_b32 s{d}, s{p}\ns_and_b32 s{d+1}, s{p+1}, 0xffff\ns_mov_b32 s{d+2}, {n}\ns_mov_b32 s{d+3}, 0x20000')
    def rowred(op, r, steps=(8, 4, 2, 1)):
        for s_ in steps: a(f'{op}_dpp v{r}, v{r}, v{r} row_ror:{s_} row_mask:0xf bank_mask:0xf')
    gstep = 6144 * 8 if ILV else 6144
    def grp(g):
        if BM == 1:
            a(f's_add_u32 {sKV}, {sKV0}, {(g>>1)*100663296 + (g&1)*49152}')
        elif BM == 2:
            a(f's_add_u32 {sKV}, s67, {g}\ns_and_b32 {sKV}, {sKV}, 1\ns_mul_i32 {sKV}, {sKV}, 49152\ns_add_u32 {sKV}, {sKV}, {sKV0}\ns_add_u32 {sKV}, {sKV}, {(g>>1)*100663296}')
        elif BM == 3:
            a(f's_add_u32 {sKV}, s67, {g}\ns_and_b32 {sKV}, {sKV}, 3\ns_mul_i32 {sKV}, {sKV}, 49152\ns_add_u32 {sKV}, {sKV}, {sKV0}\ns_add_u32 {sKV}, {sKV}, {(g>>2)*2*100663296}')
        elif ROT:
            a(f's_add_u32 {sKV}, {sJ if ROT == 1 else "s67"}, {g}\ns_and_b32 {sKV}, {sKV}, 7\ns_mul_i32 {sKV}, {sKV}, {gstep}\ns_add_u32 {sKV}, {sKV}, {sKV0}')
        else:
            a(f's_mov_b32 {sKV}, {sKV0}' if g == 0 else f's_add_u32 {sKV}, {sKV}, {gstep}')
    kissued = [0]
    def kload():
        i = kissued[0]; g, e = divmod(i, 6)
        stamp(f'ki{i}')
        if e == 0 and g > 0: grp(g)
        if e < 4: a(f'buffer_load_dwordx4 {kt(i)}, v8, {K}, {sKV} offen offset:{384*e} {POL[KVPOL]}', tag=f'k{i}')
        else:     a(f'buffer_load_dwordx4 {kt(i)}, v9, {K}, {sKV} offen offset:{768*(e-4)} {POL[KVPOL]}', tag=f'k{i}')
        kissued[0] += 1

    assert ILV == 1 and ROT == 3 and 1 <= KU <= 4
    a(f'''
    s_load_dwordx2 s[8:9], s[0:1], 8
    s_load_dwordx16 s[44:59], s[0:1], 0
    s_cmp_ge_u32 s2, 256
    s_cbranch_scc1 L_end''')
    stamp('start')
    if DLY: a('s_memrealtime s[86:87]')
    if PRIO: a('s_setprio 3')
    a(f'''
    v_lshrrev_b32 v14, 6, v0
    v_bfe_u32 v20, v0, 2, 2
    v_readfirstlane_b32 {sW_}, v14
    v_and_b32 v21, 3, v0
    v_lshlrev_b32 v21, 4, v21
    v_mul_u32_u24 v9, 1536, v20
    v_bfe_u32 v3, v0, 4, 2
    v_add_u32 v9, v9, v21
    v_lshl_add_u32 v8, v3, 6, v9       ; vkx = 1536(n>>2)+16(n&3)+64g
    s_and_b32 {sXCD}, s2, 7
    s_lshr_b32 {sT0}, s2, 6
    s_lshl2_add_u32 {sH}, {sXCD}, {sT0}
    s_bfe_u32 {sB}, s2, 0x20004
    s_bfe_u32 {sS}, s2, 0x10003
    s_lshl_b32 {sT0}, {sB}, 5
    s_add_u32 {sSB}, {sT0}, {sH}       ; bh
    s_lshl3_add_u32 {sT0}, {sSB}, {sS}
    s_add_u32 {sT0}, {sT0}, 6
    s_lshl_b32 {sT0}, {sT0}, 6
    s_add_u32 {sT0}, {sT0}, {sW_}
    s_mul_i32 {sKV0}, {sT0}, 6144
    s_mul_i32 s67, s2, 0x9E3779B1
    s_bfe_u32 s67, s67, 0x30014
    s_mul_i32 {sKV}, s67, {gstep}
    s_add_u32 {sKV}, {sKV}, {sKV0}
    s_mov_b32 s10, 402653184
    s_mov_b32 s11, 0x20000
    s_waitcnt lgkmcnt(0)
    ''')
    stamp('karg')
    if PRE:
        srd(12, 48, 402653184)
        a('v_and_b32 v30, 63, v0\nv_lshlrev_b32 v30, 4, v30')
        if PRE == 2:
            a(f's_bfe_u32 {sT0}, s2, 0x30003\ns_lshl_b32 {sT0}, {sT0}, 4\ns_lshl_b32 {sT2}, {sH}, 9\ns_add_u32 {sT0}, {sT0}, {sT2}\ns_add_u32 {sT0}, {sT0}, 384\ns_add_u32 {sT0}, {sT0}, {sW_}\ns_mul_i32 {sT3}, {sT0}, 6144')
        n = 0
        for srd_ in (K, V):
            for g in range(8):
                if PRE == 2: a(f's_add_u32 {sT0}, s67, {g}\ns_and_b32 {sT0}, {sT0}, 1\ns_mul_i32 {sT0}, {sT0}, 49152\ns_add_u32 {sT0}, {sT0}, {sT3}\ns_add_u32 {sT0}, {sT0}, {(g>>1)*100663296}')
                else: a(f's_add_u32 {sT0}, s67, {g}\ns_and_b32 {sT0}, {sT0}, 7\ns_mul_i32 {sT0}, {sT0}, 49152\ns_add_u32 {sT0}, {sT0}, {sKV0}')
                for e in range(6):
                    if n >= 4: a('s_waitcnt vmcnt(3)')
                    if n == 51: stamp('preK')
                    if e == 3: a(f's_add_u32 {sT0}, {sT0}, 3072')
                    a(f'buffer_load_dwordx4 {v4(32+4*(n%4))}, v30, {srd_}, {sT0} offen offset:{1024*(e%3)} nt')
                    n += 1
        a('s_waitcnt vmcnt(0)')
        stamp('pre')
        a.label('L_quiet')
        a('s_sleep 8\ns_memrealtime s[84:85]\ns_waitcnt lgkmcnt(0)\ns_sub_u32 s83, s84, s86\ns_cmp_lt_u32 s83, 4200\ns_cbranch_scc1 L_quiet')
        a.vm.clear()
    if BM in (1, 2):
        a(f's_bfe_u32 {sT0}, s2, 0x30003\ns_lshl_b32 {sT0}, {sT0}, 4\ns_lshl_b32 {sT2}, {sH}, 9\ns_add_u32 {sT0}, {sT0}, {sT2}\ns_add_u32 {sT0}, {sT0}, 384\ns_add_u32 {sT0}, {sT0}, {sW_}\ns_mul_i32 {sKV0}, {sT0}, 6144')
        grp(0)
    if BM == 3:
        a(f's_bfe_u32 {sT0}, s2, 0x20003\ns_lshl_b32 {sT0}, {sT0}, 5\ns_lshl_b32 {sT2}, {sH}, 9\ns_add_u32 {sT0}, {sT0}, {sT2}\ns_bfe_u32 {sT2}, s2, 0x10005\ns_lshl_b32 {sT2}, {sT2}, 14\ns_add_u32 {sT0}, {sT0}, {sT2}\ns_add_u32 {sT0}, {sT0}, 384\ns_add_u32 {sT0}, {sT0}, {sW_}\ns_mul_i32 {sKV0}, {sT0}, 6144')
        grp(0)
    for i in range(KU): kload()
    a(f'''
    s_load_dwordx2 s[24:25], s[0:1], 64
    s_load_dwordx2 s[36:37], s[0:1], 72
    s_load_dwordx2 s[32:33], s[0:1], 88
    v_and_b32 v1, 63, v0
    v_and_b32 v2, 15, v1
    v_lshlrev_b32 v20, 4, v1
    s_lshr_b32 {sJ}, s2, 3
    s_and_b32 {sT1}, {sJ}, 7
    s_mov_b32 s28, s44
    s_mov_b32 s29, s45
    s_movk_i32 s30, 5120
    s_mov_b32 s31, 0x20000
    s_lshl_b32 {sT0}, {sW_}, 10
    s_add_u32 m0, {sT0}, {L_X}
    s_cmp_ge_u32 {sW_}, 5
    s_cbranch_scc1 L_nox
    ''')
    a.role = 'x'
    a(f'buffer_load_dwordx4 v20, {X}, {sT0} offen lds', tag='x')
    a.role = None
    a.label('L_nox')
    stamp('iss1')
    a(f'''
    s_mul_i32 {sT2}, {sXCD}, 27
    s_add_u32 {sT2}, {sT2}, {sJ}
    s_mul_i32 s92, {sT2}, 43691
    s_lshr_b32 s92, s92, 17            ; blk
    s_mul_i32 {sT3}, s92, 3
    s_sub_u32 s93, {sT2}, {sT3}        ; split
    s_mul_i32 s97, s93, 224
    s_lshl_b32 {sT2}, {sW_}, 5
    s_add_u32 s97, s97, {sT2}
    s_sub_u32 {sT2}, s92, 48
    s_sub_u32 {sT3}, s92, 60
    s_cmp_lt_u32 s92, 60
    s_cselect_b32 s16, s56, s58
    s_cselect_b32 s17, s57, s59
    s_cselect_b32 s98, {sT2}, {sT3}
    s_movk_i32 s96, 3072
    s_mov_b32 s18, 1966080
    s_cmp_lt_u32 s92, 48
    s_cselect_b32 s16, s50, s16
    s_cselect_b32 s17, s51, s17
    s_cselect_b32 s18, 7864320, s18
    s_cselect_b32 s96, 12288, s96
    s_cselect_b32 s98, s92, s98
    s_and_b32 s17, s17, 0xffff
    s_mov_b32 s19, 0x20000
    s_mul_i32 s94, s97, s96
    s_lshl_b32 s98, s98, 8
    s_add_u32 s94, s94, s98            ; soffset
    s_cmp_eq_u32 {sW_}, 7
    s_cselect_b32 s94, {BIG}, s94
    s_cmp_ge_u32 {sJ}, {27 if not (EXP & 128) else 0}
    s_cselect_b32 s94, {BIG}, s94
    v_mul_lo_u32 v16, v3, s96
    v_lshl_add_u32 v16, v2, 4, v16     ; g*RS+16n
    s_lshl_b32 s96, s96, 2
    v_lshrrev_b32 v22, 1, v3
    v_mul_u32_u24 v21, 384, v22
    v_add_u32 v9, v9, v21
    v_and_b32 v22, 1, v3
    v_lshlrev_b32 v22, 6, v22
    v_add3_u32 v9, v9, v22, 64
    v_add_u32 v9, 192, v9              ; vky
    ''')
    WT = 224
    wiss = [0]
    def wload():
        t = wiss[0]
        a(f'buffer_load_dwordx4 {v4(WT+4*t)}, v16, {W}, s94 offen {POL[PPOL]}', tag=f'w{t}')
        if t < 7: a(f's_add_u32 s94, s94, s96')
        wiss[0] += 1
    pcnt = [0]
    def pstep(paced=True):
        if paced: a(f's_waitcnt vmcnt({TP-1})')
        pcnt[0] += 1
        if wiss[0] < 8 and pcnt[0] % (PG + 1) != 0: wload()
        else: kload()
    if PP:
        for _ in range(PI): pstep(False)
    else:
        for t in range(8):
            wload()
            if t == 3:
                for _ in range(KW): kload()
        KU = KU + KW
    stamp('iss2')
    if PRIO: a('s_setprio 0')
    def kmore(frac):
        if PP: pstep(); return
        while kissued[0] < KU + int((KP0 - KU) * frac + 0.5): kload()
    def pmore():
        if PP: pstep()
    a(f's_waitcnt lgkmcnt(0)\ns_load_dwordx2 {TAG}, s[32:33], {WS_E}')
    a(f's_mov_b32 s34, {WS_SZ}\ns_mov_b32 s35, 0x20000\ns_mov_b32 s26, 1966080\ns_mov_b32 s27, 0x20000\ns_movk_i32 s38, 5120\ns_mov_b32 s39, 0x20000')
    srd(12, 48, 402653184); srd(20, 52, 7864320)
    a(f'''
    s_lshl_b32 {sP}, {sH}, 1
    s_add_u32 {sP}, {sP}, {sS}
    s_lshl_b32 {sIDX}, {sXCD}, 5
    s_add_u32 {sIDX}, {sIDX}, {sJ}
    s_mov_b32 s78, -1
    s_mov_b32 s79, 0
    s_lshl_b32 {sT0}, {sB}, 6
    s_add_u32 {sT0}, {sT0}, {sP}
    s_mul_i32 {sYB}, {sT0}, 2560
    s_lshl_b32 {sSB}, {sSB}, 8
    s_add_u32 {sSB}, {sSB}, {WS_S}
    s_lshl_b32 {sT2}, {sS}, 3
    s_add_u32 {sT2}, {sT2}, {sW_}
    s_lshl_b32 {sT2}, {sT2}, 4
    s_add_u32 {sSOWN}, {sSB}, {sT2}
    s_mul_i32 {sWDB}, {sP}, 24
    s_mul_i32 {sT0}, {sW_}, 3
    s_add_u32 {sWDB}, {sWDB}, {sT0}
    s_mul_i32 {sWDB}, {sWDB}, 1280
    s_mul_i32 {sWO0}, {sH}, 192
    s_mul_i32 {sT0}, {sW_}, 24
    s_add_u32 {sWO0}, {sWO0}, {sT0}
    s_mul_i32 {sWO0}, {sWO0}, 1280
    s_add_u32 {sWO1}, {sWO0}, 5120
    s_add_u32 {sWO2}, {sWO0}, 15360
    s_add_u32 {sWO3}, {sWO0}, 20480
    s_mul_i32 {sSTG}, {sW_}, {NS*1024}
    s_add_u32 {sSTG}, {sSTG}, {L_STG}
    v_mov_b32 v17, 1280
    v_mul_u32_u24 v18, 1280, v3
    v_lshl_add_u32 v18, v2, 4, v18     ; 1280g+16n
    s_lshl_b32 s97, s97, 1
    s_min_u32 s97, s97, 1216
    v_lshl_add_u32 v19, v3, 1, s97
    v_lshrrev_b32 v14, 3, v2
    v_mad_u32_u24 v19, v14, v17, v19   ; + 1280*(m>>3)
    v_and_b32 v15, 7, v2
    v_lshlrev_b32 v15, 4, v15          ; 16*(n&7)
    v_and_b32 v20, 1, v2
    v_cmp_eq_u32 vcc, 1, v20
    v_mov_b32 v21, 0xffff
    v_mov_b32 v22, 0xffff0000
    v_cndmask_b32 v21, v21, v22, vcc
    v_bfe_u32 v20, v2, 1, 2
    ''')
    for r in range(4):
        a(f'v_cmp_eq_u32 vcc, {r}, v20\nv_cndmask_b32 v{4+r}, 0, v21, vcc')
    a(f'''
    v_mul_u32_u24 v10, 384, v3
    v_lshrrev_b32 v20, 3, v2
    v_mul_u32_u24 v11, 3072, v20
    v_add3_u32 v11, v11, v10, v15
    v_add_u32 v11, 256, v11            ; vvy = (g+8*(n>>3))*384+256+16*(n&7)
    v_lshl_add_u32 v10, v2, 4, v10     ; vvx = g*384+16n
    v_lshrrev_b32 v12, 1, v3
    v_mul_u32_u24 v12, 5120, v12
    v_add_u32 v12, v12, v18            ; vwo = (6(g>>1)+(g&1))*1280+16n
    v_mov_b32 v22, {BIG}
    v_cmp_eq_u32 vcc, 3, v3
    v_cndmask_b32 v13, v18, v22, vcc   ; vwd = g*1280+16n  (g==3 -> out of range)
    v_lshrrev_b32 v20, 1, v3
    v_lshlrev_b32 v20, 9, v20
    v_and_b32 v22, 1, v3
    v_lshl_add_u32 v22, v22, 4, v20
    v_lshl_add_u32 v22, v2, 5, v22
    s_lshl_b32 {sT0}, {sW_}, 11
    v_add_u32 v22, {sT0}, v22
    v_mov_b32 v20, {L_CNT}
    v_mov_b32 v21, 0
    ds_write_b32 v20, v21
    ds_write_b32 v20, v21 offset:4
    ''')
    if EXP & 64: a(f'v_mov_b32 v12, {BIG}\nv_mov_b32 v13, {BIG}')
    stamp('pre0')
    a.role = 'x'; a.wait_vm('x'); a.role = None
    a('s_barrier')
    stamp('bar0')
    XS, XO, U, XN, AB, ACC, XV = 24, 44, 184, 184, 200, 216, 168
    for i in range(5): a(f'ds_read_b128 {v4(XS+4*i)}, v18 offset:{L_X+256*i}')
    for pr in range(2):
        for t in range(8): a(f'ds_read_u16 v{XV+8*pr+t}, v19 offset:{L_X+2560*pr+8*t}')
    kmore(1/6)
    a(f'''
    s_waitcnt lgkmcnt(0)
    s_mul_i32 s100, s100, 0x9E3779B1
    s_add_u32 s100, s100, 0x7F4A7C15
    s_mul_i32 s101, s101, 0x85EBCA69
    s_add_u32 s101, s101, 0xC2B2AE35
    ''')
    for i in range(20):
        a(f'v_lshlrev_b32 v{U+2*i}, 16, v{XS+i}\nv_and_b32 v{U+2*i+1}, 0xffff0000, v{XS+i}')
    pmore()
    a(f'v_pk_add_f32 v[52:53], v[{U}:{U+1}], v[{U+2}:{U+3}]\nv_pk_add_f32 v[54:55], v[{U+4}:{U+5}], v[{U+6}:{U+7}]')
    for i in range(8, 40, 2):
        d = 52 + (i & 2)
        a(f'v_pk_add_f32 v[{d}:{d+1}], v[{d}:{d+1}], v[{U+i}:{U+i+1}]')
    a('v_pk_add_f32 v[52:53], v[52:53], v[54:55]\nv_add_f32 v52, v52, v53')
    rowred('v_add_f32', 52)
    a(f'v_mul_f32 v56, {f32(-1/640)}, v52')
    kmore(2/6)
    for i in range(0, 40, 2): a(f'v_pk_add_f32 v[{U+i}:{U+i+1}], v[{U+i}:{U+i+1}], v[56:57] op_sel_hi:[1,0]')
    a(f'v_pk_mul_f32 v[52:53], v[{U}:{U+1}], v[{U}:{U+1}]\nv_pk_mul_f32 v[54:55], v[{U+2}:{U+3}], v[{U+2}:{U+3}]')
    for i in range(4, 40, 2):
        d = 52 + (i & 2)
        a(f'v_pk_fma_f32 v[{d}:{d+1}], v[{U+i}:{U+i+1}], v[{U+i}:{U+i+1}], v[{d}:{d+1}]')
    a('v_pk_add_f32 v[52:53], v[52:53], v[54:55]\nv_add_f32 v52, v52, v53')
    rowred('v_add_f32', 52)
    a(f'''
    v_mul_f32 v52, {f32(1/640)}, v52
    v_cvt_pk_bf16_f32 v53, v56, v52
    v_lshlrev_b32 v56, 16, v53
    v_and_b32 v52, 0xffff0000, v53
    v_add_f32 v52, {f32(1e-5)}, v52
    v_cvt_pk_bf16_f32 v52, v52, v52
    v_and_b32 v52, 0xffff0000, v52
    v_sqrt_f32 v52, v52
    v_cvt_pk_bf16_f32 v52, v52, v52
    v_and_b32 v52, 0xffff0000, v52
    v_rcp_f32 v52, v52
    v_lshlrev_b32 v53, 6, v14
    v_add_u32 v54, 128, v53
    ds_bpermute_b32 v58, v53, v56
    ds_bpermute_b32 v60, v54, v56
    ds_bpermute_b32 v24, v53, v52
    ds_bpermute_b32 v26, v54, v52
    ''')
    kmore(3/6)
    for k in range(16): a(f'v_lshlrev_b32 v{XN+k}, 16, v{XV+k}')
    a('s_waitcnt lgkmcnt(0)')
    for pr in range(2):
        for k in range(4):
            r = XN + 8*pr + 2*k
            a(f'v_pk_add_f32 v[{r}:{r+1}], v[{r}:{r+1}], v[{58+2*pr}:{59+2*pr}] op_sel_hi:[1,0]')
    for k in range(8): a(f'v_cvt_pk_bf16_f32 v{XO+k}, v{XN+2*k}, v{XN+2*k+1}')
    for k in range(8): a(f'v_lshlrev_b32 v{XN+2*k}, 16, v{XO+k}\nv_and_b32 v{XN+2*k+1}, 0xffff0000, v{XO+k}')
    for pr in range(2):
        for k in range(4):
            r = XN + 8*pr + 2*k
            a(f'v_pk_mul_f32 v[{r}:{r+1}], v[{r}:{r+1}], v[{24+2*pr}:{25+2*pr}] op_sel_hi:[1,0]')
    for k in range(16): a(f'v_cvt_pk_bf16_f32 v{XN+k}, v{XN+k}, v{XN+k}')
    stamp('ln')
    kmore(4/6)
    if PP:
        while wiss[0] < 8: pstep()
    for t in range(8):
        for pr in range(2):
            ab = AB + 4*((2*t + pr) & 3)
            for r in range(4): a(f'v_and_b32 v{ab+r}, v{XN+8*pr+t}, v{4+r}')
        a.wait_vm(f'w{t}')
        for pr in range(2):
            ab = AB + 4*((2*t + pr) & 3); d = v4(ACC + 4*pr)
            a(f'v_mfma_f32_16x16x32_bf16 {d}, {v4(ab)}, {v4(WT+4*t)}, {0 if t == 0 else d}')
        if PP:
            idx = max(k for k, (tg, r) in enumerate(a.vm) if tg == f'w{t}')
            while len(a.vm) - 1 - idx < TP: pstep(False)
        elif t == 3: kmore(5/6)
    stamp('wland')
    kmore(1)
    if PP: KP0 = kissued[0]
    a(f's_cmp_eq_u32 {sW_}, 7\ns_cbranch_scc1 L_nopart')
    for pr in range(2): a(f'ds_write_b128 v22, {v4(ACC+4*pr)} offset:{1024*pr}')
    a.label('L_nopart')
    a('s_waitcnt lgkmcnt(0)\ns_barrier')
    stamp('barA')
    def padd(d, s_, n):
        for r in range(0, n, 2): a(f'v_pk_add_f32 v[{d+r}:{d+r+1}], v[{d+r}:{d+r+1}], v[{s_+r}:{s_+r+1}]')
    a(f'''
    s_cmp_lt_u32 {sW_}, 6
    s_cbranch_scc1 L_nopub
    v_and_b32 v14, 127, v0
    v_lshlrev_b32 v15, 4, v14
    ''')
    for u in range(7): a(f'ds_read_b128 {v4(16+4*u)}, v15 offset:{2048*u}')
    a(f'''
    v_lshrrev_b32 v14, 5, v14
    s_mov_b32 {sT0}, {36864-512}
    v_mad_u32_u24 v14, v14, {sT0}, v15     ; b*36864 + 16*(t&31)
    s_mul_i32 {sT0}, s93, 147456
    s_lshl_b32 {sT2}, s92, 9
    s_add_u32 {sT0}, {sT0}, {sT2}
    s_add_u32 {sT0}, {sT0}, {WS_P}
    s_cmp_ge_u32 {sJ}, {27 if not (EXP & 8) else 0}
    s_cselect_b32 {sT0}, {BIG}, {sT0}
    s_waitcnt lgkmcnt(0)
    ''')
    padd(16, 32, 12); padd(16, 24, 8); padd(16, 20, 4)
    a.role = 'pub'
    a(f'buffer_store_dwordx4 v[16:19], v14, {WS}, {sT0} offen sc1', tag='pub')
    a.role = None
    a.label('L_nopub')
    def wotile(n):
        uc, h = divmod(n, 2); c, u = divmod(uc, 3)
        return [[sWO0, sWO1], [sWO2, sWO3]][h][u == 2], (2560 if u == 1 else 0) + 256*c
    kseq = []
    si = 0
    for i in range(KP0, 48):
        kseq.append('k')
        while si < NS and (si + 1) * (SEND - KP0) <= (i + 1 - KP0) * NS:
            kseq.append('s'); si += 1
    assert si == NS
    kp = [0]; sissued = [0]
    def kstep(paced):
        op = kseq[kp[0]]; kp[0] += 1
        if paced: a(f's_waitcnt vmcnt({T-1})')
        if op == 'k': kload()
        else:
            n = sissued[0]; so, imm = wotile(n)
            a(f's_add_u32 m0, {sSTG}, {1024*n - imm}' if 1024*n >= imm else f's_sub_u32 m0, {sSTG}, {imm - 1024*n}')
            a(f'buffer_load_dwordx4 v12, {WO}, {so} offen offset:{imm} {POL[SPOL]} lds', tag='stg')
            sissued[0] += 1
    for _ in range(T - 1): kstep(True)
    a(f's_cmp_lt_u32 {sW_}, 6\ns_cbranch_scc1 L_nosig')
    a.role = 'pub'; a.wait_vm('pub'); a.role = None
    a(f'''
    v_mov_b32 v14, {L_CNT}
    v_mov_b32 v15, 1
    s_mov_b64 exec, 1
    ds_add_rtn_u32 v20, v14, v15
    s_waitcnt lgkmcnt(0)
    v_readfirstlane_b32 {sT0}, v20
    s_cmp_eq_u32 {sT0}, 1
    s_cbranch_scc0 L_nosig
    s_mov_b64 exec, 3
    s_lshl_b32 {sT0}, s92, 2
    s_add_u32 {sT0}, {sT0}, s93
    s_lshl_b32 {sT0}, {sT0}, 3
    s_add_u32 {sT0}, {sT0}, {WS_F}
    s_cmp_ge_u32 {sJ}, 27
    s_cselect_b32 {sT0}, {BIG}, {sT0}
    s_lshl_b32 {sT2}, {sIDX}, 3
    s_add_u32 {sT2}, {sT2}, {WS_G}
    v_mov_b32 v20, {sT0}
    v_writelane_b32 v20, {sT2}, 1
    v_mov_b32 v14, s100
    v_mov_b32 v15, s101
    ''')
    a(f'buffer_store_dwordx2 v[14:15], v20, {WS}, 0 offen sc1'); a.vm.pop()
    a.label('L_nosig')
    a('s_mov_b64 exec, -1')
    stamp('sig')
    while kissued[0] < KPOLL: kstep(True)
    a(f's_cmp_eq_u32 {sW_}, 0\ns_cbranch_scc1 L_w0')
    fork = (list(a.vm), kissued[0], kp[0], sissued[0])
    while kp[0] < len(kseq): kstep(True)
    stamp('kiss'); stamp('poll'); stamp('qrdy')
    a('s_branch L_join')
    vm_join = list(a.vm)
    a.vm, kissued[0], kp[0], sissued[0] = fork
    a.label('L_w0')
    a(f'''
    v_min_u32 v60, 59, v1
    v_lshlrev_b32 v60, 2, v60
    s_mul_i32 {sT0}, {sH}, 192
    s_mul_i32 {sT2}, {sP}, 24
    s_add_u32 {sT2}, {sT2}, {6144-192}
    s_add_u32 {sT3}, {sT2}, {1536-24}
    v_mov_b32 v61, {sT0}
    v_mov_b32 v62, {sT2}
    v_cmp_le_u32 vcc, 48, v1
    v_cndmask_b32 v61, v61, v62, vcc
    v_mov_b32 v62, {sT3}
    v_cmp_le_u32 vcc, 54, v1
    v_cndmask_b32 v61, v61, v62, vcc
    v_add_u32 v60, v60, v61
    v_lshrrev_b32 v61, 7, v60
    v_lshlrev_b32 v61, 5, v61
    v_lshlrev_b32 v60, 2, v60
    s_mov_b32 {sT2}, {WS_F}
    s_mov_b32 {sT1}, {SPIN}
    ''')
    if EXP & 1: a(f'v_mov_b32 v61, {BIG}')
    a(f'buffer_load_dwordx4 v[16:19], v61, {WS}, {sT2} offen sc1')
    a(f'buffer_load_dwordx2 v[20:21], v61, {WS}, {sT2} offen offset:16 sc1', tag='poll')
    for _ in range(T - 1): kstep(True)
    a.wait_vm('poll')
    a.label('L_spin1')
    a(f'''
    v_cmp_ne_u64 vcc, {TAG}, v[16:17]
    v_cmp_ne_u64 s[44:45], {TAG}, v[18:19]
    v_cmp_ne_u64 s[46:47], {TAG}, v[20:21]
    s_or_b64 vcc, vcc, s[44:45]
    s_or_b64 vcc, vcc, s[46:47]
    s_cbranch_scc0 L_ok1
    s_sub_u32 {sT1}, {sT1}, 1
    s_cbranch_scc1 L_ok1
    s_sleep {SLP}
    buffer_load_dwordx4 v[16:19], v61, {WS}, {sT2} offen sc1
    buffer_load_dwordx2 v[20:21], v61, {WS}, {sT2} offen offset:16 sc1
    s_waitcnt vmcnt(0)
    s_branch L_spin1
    ''')
    a.vm.pop(); a.vm.pop()
    a.label('L_ok1')
    stamp('poll')
    a(f's_mul_i32 {sT0}, {sB}, 36864\ns_add_u32 {sT0}, {sT0}, {WS_P}')
    if EXP & 2: a(f'v_mov_b32 v60, {BIG}')
    for t in range(3):
        a(f'buffer_load_dwordx4 {v4(16+4*t)}, v60, {WS}, {sT0} offen sc1', tag='gq')
        if t < 2: a(f's_add_u32 {sT0}, {sT0}, 147456')
    for _ in range(W0N): kstep(False)
    a.wait_vm('gq')
    padd(16, 20, 4); padd(16, 24, 4)
    a(f'''
    v_cvt_pk_bf16_f32 v16, v16, v17
    v_cvt_pk_bf16_f32 v17, v18, v19
    v_lshlrev_b32 v14, 3, v1
    ds_write_b64 v14, v[16:17] offset:{L_Q}
    v_min_u32 v14, 23, v1
    v_lshlrev_b32 v14, 1, v14
    s_waitcnt lgkmcnt(0)
    ds_read_u16 v20, v14 offset:{L_Q+384}
    ds_read_u16 v21, v14 offset:{L_Q+432}
    s_waitcnt lgkmcnt(0)
    v_lshlrev_b32 v20, 16, v20
    v_lshlrev_b32 v21, 16, v21             ; up
    v_mul_f32 v22, v20, v20
    v_mul_f32 v22, {f32(0.044715)}, v22
    v_fma_f32 v22, v22, v20, v20           ; x + c x^3
    v_mul_f32 v22, {f32(-2*0.7978845608028654*L2E)}, v22
    v_exp_f32 v22, v22
    v_add_f32 v22, 1.0, v22
    v_rcp_f32 v22, v22
    v_mul_f32 v22, v22, v20
    v_cvt_pk_bf16_f32 v22, v22, v22
    v_and_b32 v22, 0xffff0000, v22
    v_mul_f32 v22, v22, v21
    v_cvt_pk_bf16_f32 v22, v22, v22
    v_cmp_gt_u32 vcc, 24, v1
    v_cndmask_b32 v22, 0, v22, vcc
    v_min_u32 v14, 31, v1
    v_lshlrev_b32 v14, 2, v14
    ds_write_b32 v14, v22 offset:{L_HID}
    v_mov_b32 v14, {L_CNT}
    v_mov_b32 v15, 1
    s_waitcnt lgkmcnt(0)
    ds_write_b32 v14, v15 offset:4
    ''')
    def xred8(base, n, tmp):
        for r in range(n): a(f'v_add_f32_dpp v{base+r}, v{base+r}, v{base+r} row_ror:8 row_mask:0xf bank_mask:0xf')
        for sw in ('v_permlane16_swap_b32', 'v_permlane32_swap_b32'):
            for r in range(n): a(f'v_mov_b32 v{tmp+r}, v{base+r}')
            for r in range(n): a(f'{sw} v{base+r}, v{tmp+r}')
            padd(base, tmp, n)
    stamp('qrdy')
    while kp[0] < len(kseq): kstep(True)
    stamp('kiss')
    a.vm = vm_join
    a.label('L_join')
    a(f'v_mov_b32 v14, {L_CNT}\ns_mov_b32 {sT1}, {1<<24}')
    a.label('L_spinq')
    a(f'''
    ds_read_b32 v15, v14 offset:4
    s_waitcnt lgkmcnt(0)
    v_readfirstlane_b32 {sT0}, v15
    s_cmp_lg_u32 {sT0}, 0
    s_cbranch_scc1 L_okq
    s_sub_u32 {sT1}, {sT1}, 1
    s_cbranch_scc1 L_okq
    s_sleep 1
    s_branch L_spinq
    ''')
    a.label('L_okq')
    stamp('barB')
    a(f'''
    v_and_b32 v14, 3, v2
    v_lshl_add_u32 v15, v3, 2, v14
    v_lshlrev_b32 v15, 4, v15
    ds_read_b128 v[56:59], v15 offset:{L_Q}
    v_and_b32 v15, 0x70, v15
    ds_read_b128 v[60:63], v15 offset:{L_Q+256}
    ''')
    mX = [lanemask(lambda m, g, u=u: (m >> 2) == u) for u in range(4)]
    mY = [lanemask(lambda m, g, w=w: (m >> 2) == 2*w + (g >> 1)) for w in range(2)]
    for k, m in enumerate(mX + mY):
        a(f's_mov_b32 s{44+2*k}, {hex(m & 0xffffffff)}\ns_mov_b32 s{45+2*k}, {hex(m >> 32)}')
    a('s_waitcnt lgkmcnt(0)')
    for k in range(6):
        src = 56 if k < 4 else 60
        for r in range(4): a(f'v_cndmask_b32 v{32+4*k+r}, 0, v{src+r}, s[{44+2*k}:{45+2*k}]')
    vissued = [0]
    def vreg(i): return kt(i % RV)
    def vload():
        i = vissued[0]; g, e = divmod(i, 6); c, x = divmod(e, 3)
        if e == 0:
            grp(g)
            a(f's_add_u32 {sKV2}, {sKV}, 3072')
        if x == 0:   a(f'buffer_load_dwordx4 {vreg(i)}, v10, {V}, {sKV} offen offset:{1536*c} {POL[KVPOL]}', tag=f'v{i}')
        elif x == 1: a(f'buffer_load_dwordx4 {vreg(i)}, v10, {V}, {sKV2} offen offset:{1536*c} {POL[KVPOL]}', tag=f'v{i}')
        else:        a(f'buffer_load_dwordx4 {vreg(i)}, v11, {V}, {sKV} offen offset:{1536*c} {POL[KVPOL]}', tag=f'v{i}')
        vissued[0] += 1
    assert RV <= 12
    extras = [('wd', c) for c in range(5)] + [('wo', n) for n in range(NS, 30)]
    xiss = [0]
    def xtile(e): return WDT + e[1] if e[0] == 'wd' else WOT + e[1]
    def xload():
        e = extras[xiss[0]]
        if e[0] == 'wd':
            a(f'buffer_load_dwordx4 {kt(xtile(e))}, v13, {WD}, {sWDB} offen offset:{256*e[1]} {POL[WPOL]}', tag='wd')
        else:
            so, imm = wotile(e[1])
            a(f'buffer_load_dwordx4 {kt(xtile(e))}, v12, {WO}, {so} offen offset:{imm} {POL[WPOL]}', tag=f'wo{e[1]}')
        xiss[0] += 1
    SC = 0.07216878364870322
    def score_post(g):
        d = 24 + 4*(g & 1); s_ = 16 + g
        a(f'''
        v_mov_b32_dpp v{s_}, v{d} quad_perm:[0,0,0,0] row_mask:0xf bank_mask:0xf
        v_add_f32_dpp v{s_}, v{d+1}, v{s_} quad_perm:[1,1,1,1] row_mask:0xf bank_mask:0xf
        v_add_f32_dpp v{s_}, v{d+2}, v{s_} quad_perm:[2,2,2,2] row_mask:0xf bank_mask:0xf
        v_add_f32_dpp v{s_}, v{d+3}, v{s_} quad_perm:[3,3,3,3] row_mask:0xf bank_mask:0xf
        ''')
        if NOS < 1: a(f'v_cvt_pk_bf16_f32 v{s_}, v{s_}, v{s_}\nv_and_b32 v{s_}, 0xffff0000, v{s_}')
        a(f'v_mul_f32 v{s_}, {f32(SC)}, v{s_}')
        if NOS < 2: a(f'v_cvt_pk_bf16_f32 v{s_}, v{s_}, v{s_}\nv_and_b32 v{s_}, 0xffff0000, v{s_}')
    nx = len(extras) - XL
    span = 48 - XBEG - XEND
    seq = []
    xi = 0
    for i in range(48):
        seq.append('v')
        if i == SLI: seq.append('sl')
        if xi < 5 and i >= XBEG:
            seq.append('x'); xi += 1
        while xi < nx and i >= XBEG and (xi + 1) * span <= (i + 1 - XBEG) * nx:
            seq.append('x'); xi += 1
    assert xi == nx
    seq += ['x'] * XL
    nx += XL
    sp = [0]
    did_wd = [False]
    SS = KB + 4*47
    st = KB + 4*WDT
    GF = st + 12
    def statload():
        a(f'''
        v_lshlrev_b32 v8, 4, v2
        s_mul_i32 s95, {sP}, 43691
        s_lshr_b32 s95, s95, 17
        s_mul_i32 {sT0}, {sB}, 1280
        s_lshl_b32 {sT1}, s95, 6
        s_add_u32 s96, {sT0}, {sT1}
        s_mul_i32 {sT0}, s95, 3
        s_mov_b32 s97, 1
        s_cmp_lg_u32 {sT0}, {sP}
        s_cselect_b32 s97, 0, s97
        s_cmp_ge_u32 s95, 20
        s_cselect_b32 s97, 0, s97
        s_cmp_lg_u32 {sW_}, 7
        s_cselect_b32 s97, 0, s97
        v_lshlrev_b32 v9, 4, v1
        s_mov_b32 s98, {WS_G}
        s_cmp_eq_u32 s2, 0
        s_cselect_b32 s99, s97, 0
        s_cmp_eq_u32 s99, 0
        s_cbranch_scc1 L_nogf
        buffer_load_dwordx4 {v4(GF)}, v9, {WS}, s98 offen sc1
        buffer_load_dwordx4 {v4(GF+4)}, v9, {WS}, s98 offen offset:1024 sc1
        ''')
        a.vm.pop(); a.vm.pop()
        a.label('L_nogf')
        a(f'buffer_load_dwordx4 {v4(SS)}, v8, {WS}, {sSB} offen sc1', tag='sl')
    def pump(lasttag, kfree, vcons):
        while sp[0] < len(seq):
            idx = max(k for k, (t, r) in enumerate(a.vm) if t == lasttag)
            if len(a.vm) - 1 - idx >= (TV if vcons < VE else TVE): break
            op = seq[sp[0]]
            if op == 'v':
                i = vissued[0]
                if i < RV:
                    if i >= kfree: break
                elif i - RV >= vcons: break
                vload()
            elif op == 'x':
                if xtile(extras[xiss[0]]) >= kfree: break
                xload()
            else:
                assert did_wd[0]
                statload()
            sp[0] += 1
    done = [t for (t, r) in a.vm[:len(a.vm) - T]]
    known = max(int(t[1:]) for t in done if t and t[0] == 'k' and t[1:].isdigit())
    a.wait_vm(f'k{known}')
    for g in range(8):
        d = v4(24 + 4*(g & 1))
        for e in range(6):
            i = 6*g + e
            if i > known:
                a.wait_vm(f'k{i}'); known = i
            a(f'v_mfma_f32_16x16x32_bf16 {d}, {v4(32+4*e)}, {kt(i)}, {0 if e == 0 else d}')
            if i == known: pump(f'k{known}', i + 1, 0)
        if 6*g + 5 < known and (g & 1) == 0 and known < 47:
            known += 1
            a.wait_vm(f'k{known}')
            pump(f'k{known}', 6*g + 6, 0)
        if g > 0: score_post(g-1)
    score_post(7)
    if NS:
        a.wait_vm('stg')
        a(f'v_lshlrev_b32 v14, 4, v1\nv_add_u32 v14, {sSTG}, v14')
        for n in range(NS): a(f'ds_read_b128 {kt(WOT+n)}, v14 offset:{1024*n}')
    def allred(op, r, t):
        rowred(op, r, (4, 8))
        a(f'v_mov_b32 v{t}, v{r}\nv_permlane16_swap_b32 v{r}, v{t}\n{op} v{r}, v{r}, v{t}')
        a(f'v_mov_b32 v{t}, v{r}\nv_permlane32_swap_b32 v{r}, v{t}\n{op} v{r}, v{r}, v{t}')
    a('v_max3_f32 v28, v16, v17, v18\nv_max3_f32 v15, v19, v20, v21\nv_max3_f32 v28, v28, v22, v23\nv_max_f32 v28, v28, v15')
    allred('v_max_f32', 28, 15)
    for g in range(8): a(f'v_sub_f32 v{16+g}, v{16+g}, v28')
    for g in range(8): a(f'v_mul_f32 v{16+g}, {f32(L2E)}, v{16+g}')
    for g in range(8): a(f'v_exp_f32 v{16+g}, v{16+g}')
    a('v_add_f32 v30, v16, v17\nv_add_f32 v24, v18, v19\nv_add_f32 v25, v20, v21\nv_add_f32 v26, v22, v23\nv_add_f32 v30, v30, v24\nv_add_f32 v25, v25, v26\nv_add_f32 v30, v30, v25')
    allred('v_add_f32', 30, 24)
    for g in range(8): a(f'v_cvt_pk_bf16_f32 v{16+g}, v{16+g}, v{16+g}')
    a(f'''
    v_mov_b32 v29, s100
    v_mov_b32 v31, s101
    v_mov_b32 v24, 0
    v_readfirstlane_b32 {sM}, v28          ; own m
    s_mov_b64 exec, 1
    ''')
    if EXP & 256: a(f's_cmp_eq_u32 {sW_}, 0\ns_cselect_b32 {sSOWN}, {sSOWN}, {BIG}\ns_cselect_b32 {sSB}, {sSB}, {BIG}')
    a(f'buffer_store_dwordx4 v[28:31], v24, {WS}, {sSOWN} offen sc1', tag='stat')
    a('s_mov_b64 exec, -1')
    stamp('smax')
    YA, OA = 44, 32
    a(f'''
    s_mul_i32 {sT0}, {sW_}, 12
    v_lshlrev_b32 v24, 2, v3
    v_add_u32 v24, {sT0}, v24
    v_mov_b32 v25, 124
    v_cmp_eq_u32 vcc, 3, v3
    v_cndmask_b32 v24, v24, v25, vcc
    ds_read_b32 v14, v24 offset:{L_HID}
    s_waitcnt lgkmcnt(0)
    ''')
    for g in range(8):
        for c in range(2):
            A = 24 + 4*c
            if c == 0: a(f'v_mov_b32 v15, v{16+g}\nv_mov_b32_dpp v15, v{16+g} row_shr:4 row_mask:0xf bank_mask:0xa')
            else:      a(f'v_mov_b32 v15, v{16+g}\nv_mov_b32_dpp v15, v{16+g} row_shl:4 row_mask:0xf bank_mask:0x5')
            for r in range(4): a(f'v_and_b32 v{A+r}, v15, v{4+r}')
            for x in range(3):
                i = 6*g + 3*c + x
                d = v4(OA + 4*x)
                a.wait_vm(f'v{i}')
                stamp(f'vc{i}')
                a(f'v_mfma_f32_16x16x32_bf16 {d}, {v4(A)}, {vreg(i)}, {0 if i < 3 else d}')
                pump(f'v{i}', 48, i + 1)
        if g == 2:
            did_wd[0] = True
            assert xiss[0] >= 5
            for r in range(4): a(f'v_and_b32 v{24+r}, v14, v{4+r}')
            a.wait_vm('wd')
            for c in range(5):
                a(f'v_mfma_f32_16x16x32_bf16 {v4(YA+4*c)}, v[24:27], {kt(WDT+c)}, 0')
        if g == GST:
            a(f's_mov_b32 {sT1}, {SPIN}')
            a.wait_vm('sl')
            a.label('L_spin2')
            a(f'''
            v_cmp_ne_u32 vcc, s100, v{SS+1}
            v_cmp_ne_u32 s[44:45], s101, v{SS+3}
            s_or_b64 vcc, vcc, s[44:45]
            s_cbranch_scc0 L_ok2
            s_sub_u32 {sT1}, {sT1}, 1
            s_cbranch_scc1 L_ok2
            s_sleep 4
            buffer_load_dwordx4 {v4(SS)}, v8, {WS}, {sSB} offen sc1
            s_waitcnt vmcnt(0)
            s_branch L_spin2
            ''')
            a.vm.pop()
            a.label('L_ok2')
            a(f'''
            s_cmp_eq_u32 s99, 0
            s_cbranch_scc1 L_ok2b
            s_mov_b32 {sT1}, {SPIN}
            ''')
            a.label('L_spin2b')
            a(f'''
            v_cmp_ne_u64 vcc, {TAG}, v[{GF}:{GF+1}]
            v_cmp_ne_u64 s[44:45], {TAG}, v[{GF+2}:{GF+3}]
            v_cmp_ne_u64 s[46:47], {TAG}, v[{GF+4}:{GF+5}]
            v_cmp_ne_u64 s[48:49], {TAG}, v[{GF+6}:{GF+7}]
            s_or_b64 vcc, vcc, s[44:45]
            s_or_b64 s[46:47], s[46:47], s[48:49]
            s_or_b64 vcc, vcc, s[46:47]
            s_cbranch_scc0 L_ok2c
            s_sub_u32 {sT1}, {sT1}, 1
            s_cbranch_scc1 L_ok2c
            s_sleep {SLP}
            buffer_load_dwordx4 {v4(GF)}, v9, {WS}, s98 offen sc1
            buffer_load_dwordx4 {v4(GF+4)}, v9, {WS}, s98 offen offset:1024 sc1
            s_waitcnt vmcnt(0)
            s_branch L_spin2b
            ''')
            a.vm.pop(); a.vm.pop()
            a.label('L_ok2c')
            a(f'''
            s_mov_b32 {sT2}, {WS_E}
            v_mov_b32 v{GF}, s100
            v_mov_b32 v{GF+1}, s101
            s_mov_b64 exec, 1
            buffer_store_dwordx2 v[{GF}:{GF+1}], v9, {WS}, {sT2} offen sc1
            s_mov_b64 exec, -1
            ''')
            a.vm.pop()
            a.label('L_ok2b')
            a(f'v_mov_b32 v{st+6}, v{SS}')
            rowred('v_max_f32', st+6)
            a(f'''
            v_sub_f32 v{st}, v{SS}, v{st+6}
            v_sub_f32 v{st+7}, {sM}, v{st+6}
            v_mul_f32 v{st}, {f32(L2E)}, v{st}
            v_mul_f32 v{st+7}, {f32(L2E)}, v{st+7}
            v_exp_f32 v{st}, v{st}
            v_exp_f32 v{st+7}, v{st+7}
            v_mul_f32 v{st}, v{st}, v{SS+2}
            ''')
            rowred('v_add_f32', st)
            a(f'''
            v_rcp_f32 v{st}, v{st}
            v_mul_f32 v14, v{st}, v{st+7}          ; factor
            v_and_b32 v{st+5}, 7, v1
            v_lshlrev_b32 v{st+5}, 3, v{st+5}
            v_and_b32 v{st+3}, 1, v3
            v_lshlrev_b32 v{st+3}, 2, v{st+3}
            v_and_b32 v{st+4}, 2, v3
            v_add3_u32 v{st+3}, v{st+3}, v{st+4}, v{st+5}
            s_min_u32 {sT0}, s96, 5056
            v_add_u32 v{st+4}, {sT0}, v{st+3}
            ds_read_u16 v{st+2}, v{st+4} offset:{L_X}
            v_and_b32 v{st+15}, 3, v2
            v_mul_u32_u24 v{st+15}, 0x5555, v{st+15}
            s_mov_b32 s44, 0x0f0f0f0f
            s_mov_b32 s45, 0x0f0f0f0f
            s_mov_b32 s46, 0xf0f0f0f0
            s_mov_b32 s47, 0xf0f0f0f0
            ''')
            a(f'''
            v_lshrrev_b32 v{st+6}, 1, v3
            s_lshl_b32 {sT0}, {sW_}, 1
            v_add_u32 v{st+7}, {sT0}, v{st+6}
            v_mul_u32_u24 v{st+7}, 784, v{st+7}
            v_and_b32 v{st+8}, 1, v3
            v_lshlrev_b32 v{st+11}, 4, v{st+8}
            v_add_u32 v{st+7}, v{st+7}, v{st+11}
            v_lshl_add_u32 v{st+8}, v2, 5, v{st+7}
            v_and_b32 v{st+9}, 7, v2
            v_lshl_add_u32 v{st+9}, v{st+9}, 5, v{st+7}
            v_add_u32 v{st+9}, 512, v{st+9}
            v_lshrrev_b32 v{st+7}, 3, v2
            v_cmp_eq_u32 vcc, v{st+7}, v{st+6}
            v_lshlrev_b32 v{st+7}, 4, v1
            v_add_u32 v{st+7}, {L_DUM}, v{st+7}
            v_cndmask_b32 v{st+9}, v{st+7}, v{st+9}, vcc
            v_mul_u32_u24 v{st+10}, 784, v2
            v_mul_u32_u24 v{st+7}, 24, v3
            s_mul_i32 {sT0}, {sW_}, 96
            v_add3_u32 v{st+10}, v{st+10}, v{st+7}, {sT0}
            s_mul_i32 {sT0}, {sW_}, 3200
            v_mul_u32_u24 v{st+11}, 24, v{st+11}
            v_lshl_add_u32 v{st+11}, v2, 4, v{st+11}
            v_add_u32 v{st+11}, {sT0}, v{st+11}           ; y write: 3200w + 384(g&1) + 16n
            v_and_b32 v{st+13}, 31, v1
            v_lshrrev_b32 v{st+7}, 1, v{st+13}
            v_lshlrev_b32 v{st+13}, 4, v{st+13}
            s_lshl_b32 {sT0}, {sW_}, 9
            v_add_u32 v{st+13}, {sT0}, v{st+13}
            v_mul_u32_u24 v{st+12}, 12800, v{st+6}
            v_lshl_add_u32 v{st+12}, v{st+7}, 4, v{st+12}
            v_and_b32 v{st+7}, 1, v1
            v_mul_u32_u24 v{st+7}, 384, v{st+7}
            s_mul_i32 {sT0}, {sW_}, 640
            v_add3_u32 v{st+12}, v{st+12}, v{st+7}, {sT0}  ; y read: 12800(l>>5) + 640w + 384(l&1) + 16((l&31)>>1)
            v_lshrrev_b32 v{st+14}, 3, v1
            v_mul_u32_u24 v{st+14}, 2560, v{st+14}
            v_lshl_add_u32 v{st+14}, v{st+5}, 1, v{st+14}
            s_mul_i32 s94, {sB}, {64*2560}
            s_lshl_b32 {sT0}, s95, 7
            s_add_u32 s94, s94, {sT0}
            ''')
            for i in range(8): a(f's_add_u32 s{48+i}, s94, {8*2560*i}')
            a('s_movk_i32 s98, 0xff')
            for k in range(2): a(f'v_bfe_u32 v{st+16+k}, s{100+k}, 0, 8')
    assert xiss[0] == nx and sp[0] == len(seq)
    stamp('vend')
    for r in range(4): a(f'v_cndmask_b32 v{OA+r}, v{OA+4+r}, v{OA+r}, {sLO32}')
    for r in range(4): a(f'v_mul_f32 v{OA+r}, v{OA+r}, v14')
    a(f'ds_write_b128 v{st+8}, {v4(OA)}')
    for r in range(4): a(f'v_mul_f32 v{OA+8+r}, v{OA+8+r}, v14')
    a(f'ds_write_b128 v{st+9}, {v4(OA+8)}')
    a('s_waitcnt lgkmcnt(0)\ns_barrier')
    stamp('barC')
    for j in range(3): a(f'ds_read_b64 v[{16+2*j}:{17+2*j}], v{st+10} offset:{8*j}')
    def dpp(regs, steps):
        for s_ in steps:
            for r in regs: a(f'v_add_f32_dpp v{r}, v{r}, v{r} row_ror:{s_} row_mask:0xf bank_mask:0xf')
    if CM != 2:
        a('s_waitcnt lgkmcnt(0)')
        dpp(range(16, 22), (8, 4, 2, 1))
    AT = KB
    def abuild(u):
        for i in range(2):
            a(f'v_cvt_pk_bf16_f32 v{16+2*u+i}, v{16+2*u+i}, 0')
        for i in range(2):
            a(f'v_cndmask_b32 v{AT+4*u+2*i}, 0, v{16+2*u+i}, s[44:45]\nv_cndmask_b32 v{AT+4*u+2*i+1}, 0, v{16+2*u+i}, s[46:47]')
    def smf(u, c):
        n = (c*3 + u)*2
        if n + 1 >= 30 - XL: a.wait_vm(f'wo{n+1}')
        r = KB + 4*(WOT + n)
        a(f'v_smfmac_f32_16x16x64_bf16 {v4(YA+4*c)}, {v4(AT+4*u)}, v[{r}:{r+7}], v{st+15}')
    def ywrite(c):
        a(f's_mov_b64 exec, {sLO32}\nds_write_b128 v{st+11}, {v4(YA+4*c)} offset:{L_YP+640*c}\ns_mov_b64 exec, -1')
    if CM == 2:
        a('s_waitcnt lgkmcnt(0)' if stamps == 3 else 's_waitcnt lgkmcnt(1)')
        dpp((16, 17, 18), (8, 4, 2, 1))
        abuild(0)
        a('s_waitcnt lgkmcnt(0)')
        dpp((19, 20, 21), (8,))
        smf(0, 0); dpp((19, 20, 21), (4,))
        smf(0, 1); dpp((19, 20, 21), (2,))
        smf(0, 2); dpp((19, 20, 21), (1,))
        smf(0, 3); abuild(1)
        smf(1, 0); abuild(2)
        order = [(1,1),(2,0),(1,2),(2,1),(1,3),(0,4),'w0',(2,2),'w1',(1,4),(2,3),(2,4),'w2','w3','w4']
        for o in order:
            if isinstance(o, str): ywrite(int(o[1]))
            else: smf(*o)
        stamp('mm')
        a('s_waitcnt lgkmcnt(0)\ns_barrier')
    elif CM:
        abuild(0); abuild(1)
        smf(0, 0); smf(0, 1)
        abuild(2)
        order = [(1,0),(1,1),(2,0),(2,1),(0,2),(0,3),(1,2),'w0',(1,3),'w1',(2,2),(0,4),(2,3),(1,4),'w2',(2,4),'w3','w4']
        for o in order:
            if isinstance(o, str): ywrite(int(o[1]))
            else: smf(*o)
        stamp('mm')
        a('s_waitcnt lgkmcnt(0)\ns_barrier')
    else:
        abuild(0); abuild(1)
        smf(0, 0); smf(0, 1)
        abuild(2)
        for c in range(2, 5): smf(0, c)
        for c in range(5): smf(1, c)
        for c in range(5): smf(2, c)
        stamp('mm')
        a(f's_mov_b64 exec, {sLO32}')
        for c in range(5): a(f'ds_write_b128 v{st+11}, {v4(YA+4*c)} offset:{L_YP+640*c}')
        a('s_mov_b64 exec, -1\ns_waitcnt lgkmcnt(0)\ns_barrier')
    stamp('barD'); stamp('pub'); stamp('c1')
    a(f's_cmp_ge_u32 {sW_}, 5\ns_cbranch_scc1 L_cons')
    for u in range(4): a(f'ds_read_b128 {v4(16+4*u)}, v{st+12} offset:{L_YP+3200*u}')
    a('s_waitcnt lgkmcnt(0)')
    padd(16, 24, 8); padd(16, 20, 4)
    for r in range(4): a(f'v_mov_b32 v{20+r}, v{16+r}')
    for r in range(4): a(f'v_permlane32_swap_b32 v{16+r}, v{20+r}')
    padd(16, 20, 4)
    for r in range(2): a(f'v_bfi_b32 v{16+2*r}, s98, v{st+16+r}, v{16+2*r}')
    a(f's_mov_b64 exec, {sLO32}')
    a(f'buffer_store_dwordx4 v[16:19], v{st+13}, {WS}, {sYB} offen {POL[YSP]}')
    if stamps:
        a('s_mov_b64 exec, -1\ns_waitcnt lgkmcnt(0)')
        stamp('pub')
        a('s_branch L_fin')
    else:
        a('s_endpgm')
    a.label('L_cons')
    a(f'''
    s_cmp_eq_u32 s97, 0
    s_cbranch_scc1 L_fin
    s_mov_b32 {sT1}, {SPIN}
    ''')
    a.label('L_spin3')
    for i in range(8):
        a(f'buffer_load_dwordx4 {v4(16+4*i)}, v{st+14}, {WS}, s{48+i} offen {POL[YLP]}')
    a(f's_sub_u32 {sT1}, {sT1}, 1')
    for i in range(8):
        r = 16 + 4*i
        a(f's_waitcnt vmcnt({7-i})')
        for k in range(2): a(f'v_xor_b32 v{r+2*k}, v{r+2*k}, v{st+16+k}')
        if i == 0: a(f'v_or_b32 v15, v{r}, v{r+2}')
        else: a(f'v_or3_b32 v15, v15, v{r}, v{r+2}')
    a(f'''
    v_and_b32 v15, s98, v15
    v_cmp_ne_u32 vcc, 0, v15
    s_cbranch_scc1 L_ok3
    s_and_b64 vcc, vcc, vcc
    ''')
    a.raw('  s_cbranch_scc1 L_spin3')
    a.label('L_ok3')
    a('s_mov_b64 exec, -1')
    if stamps: a('s_waitcnt lgkmcnt(0)')
    stamp('c1')
    padd(16, 32, 16); padd(16, 24, 8); padd(16, 20, 4)
    a(f'''
    v_lshlrev_b32 v20, 16, v{st+2}
    v_permlane32_swap_b32 v16, v17
    v_permlane32_swap_b32 v18, v19
    v_add_f32 v16, v16, v17
    v_add_f32 v18, v18, v19
    v_permlane16_swap_b32 v16, v18
    v_add_f32 v16, v16, v18
    v_add_f32_dpp v16, v16, v16 row_ror:8 row_mask:0xf bank_mask:0xf
    v_add_f32 v16, v16, v20
    v_cvt_pk_bf16_f32 v16, v16, v16
    s_mov_b32 exec_lo, 0x00ff00ff
    s_mov_b32 exec_hi, 0x00ff00ff
    buffer_store_short v16, v{st+3}, {OUT}, s96 offen {POL[OPOL]}
    s_mov_b64 exec, -1
    ''')
    if DLY:
        a(f'''
        s_waitcnt vmcnt(0)
        s_memrealtime s[84:85]
        s_waitcnt lgkmcnt(0)
        s_sub_u32 s82, {'s80' if DSEL else 's84'}, s86
        s_mul_i32 s82, s82, {DLY}
        s_add_u32 s82, s82, {(6000 if not PRE else 0) if DSEL else 0}
        s_min_u32 s82, s82, 200000
        ''')
        a.label('L_dly')
        a(f'''
        s_memrealtime s[84:85]
        s_waitcnt lgkmcnt(0)
        s_sub_u32 s83, s84, s86
        s_cmp_lt_u32 s83, s82
        s_cbranch_scc1 L_dly
        ''')
    a.label('L_fin')
    if stamps:
        a('s_waitcnt vmcnt(0)')
        stamp('end')
        a('s_waitcnt lgkmcnt(0)')
        for k in range(8): a(f'v_mov_b32 v{16+k}, s{SREG[k]}')
        a(f'''
        s_lshl_b32 {sT0}, s2, 3
        s_add_u32 {sT0}, {sT0}, {sW_}
        s_lshl_b32 {sT0}, {sT0}, 5
        s_add_u32 {sT0}, {sT0}, {WS_T}
        v_mov_b32 v14, 0
        s_mov_b64 exec, 1
        buffer_store_dwordx4 v[16:19], v14, {WS}, {sT0} offen
        buffer_store_dwordx4 v[20:23], v14, {WS}, {sT0} offen offset:16
        ''')
    a.label('L_end')
    a('s_endpgm')
    a.raw(f'''.section .rodata,"a"
.p2align 6
.amdhsa_kernel {name}
  .amdhsa_next_free_vgpr 256
  .amdhsa_next_free_sgpr 102
  .amdhsa_accum_offset 256
  .amdhsa_group_segment_fixed_size 0
  .amdhsa_kernarg_size 96
  .amdhsa_user_sgpr_count 2
  .amdhsa_user_sgpr_kernarg_segment_ptr 1
  .amdhsa_system_sgpr_workgroup_id_x 1
  .amdhsa_float_denorm_mode_32 3
.end_amdhsa_kernel''')
    return a.text()

if __name__ == '__main__':
    out = sys.argv[1]
    kw = {}
    for x in sys.argv[2:]:
        k, v = x.split('='); kw[k] = int(v)
    open(out, 'w').write(gen(**kw))
```

```python
import sys, struct
from asmdsl import Asm

NAME = 'parallel_sum__sliding_block_cached__geglu_ffn__decode_kernel'
def f32(x): return '0x%08x' % struct.unpack('<I', struct.pack('<f', x))[0]
def lanemask(fn):
    m = 0
    for l in range(64):
        if fn(l & 15, l >> 4): m |= 1 << l
    return m

HEADER = open('parallel_sum__sliding_block_cached__geglu_ffn__decode.s.ref').read().split('; Override')[0]

WS_Y  = 0
WS_S  = 0x100000
WS_E  = 0x0F0000
WS_F  = 0x109000
WS_G  = 0x10A000
WS_P  = 0x110000
WS_T  = 0x300000
WS_SZ = 0x400000
L_PART = 0
L_DUM  = 14336
L_Q    = 15360
L_HID  = 15872
L_CNT  = 16000
L_X    = 16128
L_STG  = 21504
L_YP   = L_STG
BIG = 0x40000000
L2E = 1.4426950408889634
POL = {0: '', 1: 'nt', 2: 'sc0 nt', 3: 'sc1 nt', 4: 'sc0', 5: 'sc1', 6: 'sc0 sc1', 7: 'sc0 sc1 nt'}

def gen(KU=3, KW=0, KP0=9, PP=0, PG=2, PI=3, TP=5, XL=4, T=5, TV=6, TVE=12, VE=30, RV=12, ILV=1, XBEG=4, XEND=14, SLI=28, GST=5, PRIO=1, SLP=8, KPOLL=26, W0N=5, WPOL=0, SPOL=0, KVPOL=1, PPOL=0, DLY=0, DSEL=0, NOS=0, BM=0, PRE=0, SPF=0, PSL=0, CM=2, PM=0, OPOL=0, YLP=5, YSP=5, YCP=5, ROT=3,
        NS=17, SEND=44, EXP=0, stamps=0, name=NAME):
    a = Asm()
    SPIN = (1 << 19) if EXP == 0 else 0
    LDS_SZ = L_STG + max(8 * NS * 1024, 25600)
    assert LDS_SZ <= 163840
    SREG = [80, 82, 84, 86, 56, 58, 60, 62]
    SETS = {1: ['start', 'barA', 'sig', 'kiss', 'barB', 'smax', 'vend', 'end'],
            2: ['start', 'bar0', 'ln', 'barA', 'sig', 'poll', 'qrdy', 'end'],
            3: ['start', 'vend', 'barC', 'mm', 'barD', 'pub', 'c1', 'end'],
            5: ['start', 'ki12', 'ki18', 'ki24', 'ki30', 'ki36', 'ki42', 'ki47'],
            6: ['start', 'ki47', 'vc0', 'vc12', 'vc24', 'vc36', 'vc42', 'vc47'],
            7: ['start', 'bar0', 'barA', 'ki12', 'ki24', 'ki47', 'vc24', 'vc47'],
            4: ['start', 'karg', 'iss1', 'iss2', 'pre0', 'bar0', 'barA', 'end']}
    DN = ['end', 'karg', 'iss1', 'bar0', 'barA', 'sig', 'barB', 'vend', 'iss2', 'smax', 'pre', 'preK']
    def stamp(nm):
        if DLY and DSEL and nm == DN[DSEL]: a('s_memrealtime s[80:81]')
        if stamps and nm in SETS[stamps]:
            r = SREG[SETS[stamps].index(nm)]
            a(f's_memrealtime s[{r}:{r+1}]')
    a.raw(HEADER.rstrip())
    a.raw(f'; @launch grid=(256,1,1) block=(512,1,1) lds={LDS_SZ}')
    a.raw('.amdgcn_target "amdgcn-amd-amdhsa--gfx950"\n.text\n.globl %s\n.p2align 8\n.type %s,@function\n%s:' % (name, name, name))
    sW_, sH, sB, sS, sJ, sXCD, sP, sIDX = 's3', 's4', 's5', 's6', 's7', 's68', 's69', 's70'
    K, V, W, WO, WD, X, WS, OUT = 's[8:11]', 's[12:15]', 's[16:19]', 's[20:23]', 's[24:27]', 's[28:31]', 's[32:35]', 's[36:39]'
    sWO0, sWO1, sWDB, sSTG, sWO2, sWO3 = 's40', 's41', 's42', 's43', 's64', 's65'
    sKV, sKV2, sKV0 = 's71', 's72', 's73'
    sT0, sT1, sT2, sT3 = 's74', 's75', 's76', 's77'
    sLO32 = 's[78:79]'
    sM, sSOWN, sYB, sSB = 's88', 's89', 's90', 's91'
    TAG = 's[100:101]'
    KB = 64
    WDT, WOT = 12, 17
    def kt(i): return f'v[{KB+4*i}:{KB+4*i+3}]'
    def v4(r): return f'v[{r}:{r+3}]'
    def srd(d, p, n):
        a(f's_mov_b32 s{d}, s{p}\ns_and_b32 s{d+1}, s{p+1}, 0xffff\ns_mov_b32 s{d+2}, {n}\ns_mov_b32 s{d+3}, 0x20000')
    def rowred(op, r, steps=(8, 4, 2, 1)):
        for s_ in steps: a(f'{op}_dpp v{r}, v{r}, v{r} row_ror:{s_} row_mask:0xf bank_mask:0xf')
    gstep = 6144 * 8 if ILV else 6144
    def grp(g):
        if BM == 1:
            a(f's_add_u32 {sKV}, {sKV0}, {(g>>1)*100663296 + (g&1)*49152}')
        elif BM == 2:
            a(f's_add_u32 {sKV}, s67, {g}\ns_and_b32 {sKV}, {sKV}, 1\ns_mul_i32 {sKV}, {sKV}, 49152\ns_add_u32 {sKV}, {sKV}, {sKV0}\ns_add_u32 {sKV}, {sKV}, {(g>>1)*100663296}')
        elif BM == 3:
            a(f's_add_u32 {sKV}, s67, {g}\ns_and_b32 {sKV}, {sKV}, 3\ns_mul_i32 {sKV}, {sKV}, 49152\ns_add_u32 {sKV}, {sKV}, {sKV0}\ns_add_u32 {sKV}, {sKV}, {(g>>2)*2*100663296}')
        elif ROT:
            a(f's_add_u32 {sKV}, {sJ if ROT == 1 else "s67"}, {g}\ns_and_b32 {sKV}, {sKV}, 7\ns_mul_i32 {sKV}, {sKV}, {gstep}\ns_add_u32 {sKV}, {sKV}, {sKV0}')
        else:
            a(f's_mov_b32 {sKV}, {sKV0}' if g == 0 else f's_add_u32 {sKV}, {sKV}, {gstep}')
    kissued = [0]
    def kload():
        i = kissued[0]; g, e = divmod(i, 6)
        stamp(f'ki{i}')
        if e == 0 and g > 0: grp(g)
        if e < 4: a(f'buffer_load_dwordx4 {kt(i)}, v8, {K}, {sKV} offen offset:{384*e} {POL[KVPOL]}', tag=f'k{i}')
        else:     a(f'buffer_load_dwordx4 {kt(i)}, v9, {K}, {sKV} offen offset:{768*(e-4)} {POL[KVPOL]}', tag=f'k{i}')
        kissued[0] += 1

    assert ILV == 1 and ROT == 3 and 1 <= KU <= 4
    a(f'''
    s_load_dwordx2 s[8:9], s[0:1], 8
    s_load_dwordx16 s[44:59], s[0:1], 0
    s_cmp_ge_u32 s2, 256
    s_cbranch_scc1 L_end''')
    stamp('start')
    if DLY: a('s_memrealtime s[86:87]')
    if PRIO: a('s_setprio 3')
    a(f'''
    v_lshrrev_b32 v14, 6, v0
    v_bfe_u32 v20, v0, 2, 2
    v_readfirstlane_b32 {sW_}, v14
    v_and_b32 v21, 3, v0
    v_lshlrev_b32 v21, 4, v21
    v_mul_u32_u24 v9, 1536, v20
    v_bfe_u32 v3, v0, 4, 2
    v_add_u32 v9, v9, v21
    v_lshl_add_u32 v8, v3, 6, v9       ; vkx = 1536(n>>2)+16(n&3)+64g
    s_and_b32 {sXCD}, s2, 7
    s_lshr_b32 {sT0}, s2, 6
    s_lshl2_add_u32 {sH}, {sXCD}, {sT0}
    s_bfe_u32 {sB}, s2, 0x20004
    s_bfe_u32 {sS}, s2, 0x10003
    s_lshl_b32 {sT0}, {sB}, 5
    s_add_u32 {sSB}, {sT0}, {sH}       ; bh
    s_lshl3_add_u32 {sT0}, {sSB}, {sS}
    s_add_u32 {sT0}, {sT0}, 6
    s_lshl_b32 {sT0}, {sT0}, 6
    s_add_u32 {sT0}, {sT0}, {sW_}
    s_mul_i32 {sKV0}, {sT0}, 6144
    s_mul_i32 s67, s2, 0x9E3779B1
    s_bfe_u32 s67, s67, 0x30014
    s_mul_i32 {sKV}, s67, {gstep}
    s_add_u32 {sKV}, {sKV}, {sKV0}
    s_mov_b32 s10, 402653184
    s_mov_b32 s11, 0x20000
    s_waitcnt lgkmcnt(0)
    ''')
    stamp('karg')
    if PRE:
        srd(12, 48, 402653184)
        a('v_and_b32 v30, 63, v0\nv_lshlrev_b32 v30, 4, v30')
        if PRE == 2:
            a(f's_bfe_u32 {sT0}, s2, 0x30003\ns_lshl_b32 {sT0}, {sT0}, 4\ns_lshl_b32 {sT2}, {sH}, 9\ns_add_u32 {sT0}, {sT0}, {sT2}\ns_add_u32 {sT0}, {sT0}, 384\ns_add_u32 {sT0}, {sT0}, {sW_}\ns_mul_i32 {sT3}, {sT0}, 6144')
        n = 0
        for srd_ in (K, V):
            for g in range(8):
                if PRE == 2: a(f's_add_u32 {sT0}, s67, {g}\ns_and_b32 {sT0}, {sT0}, 1\ns_mul_i32 {sT0}, {sT0}, 49152\ns_add_u32 {sT0}, {sT0}, {sT3}\ns_add_u32 {sT0}, {sT0}, {(g>>1)*100663296}')
                else: a(f's_add_u32 {sT0}, s67, {g}\ns_and_b32 {sT0}, {sT0}, 7\ns_mul_i32 {sT0}, {sT0}, 49152\ns_add_u32 {sT0}, {sT0}, {sKV0}')
                for e in range(6):
                    if n >= 4: a('s_waitcnt vmcnt(3)')
                    if n == 51: stamp('preK')
                    if e == 3: a(f's_add_u32 {sT0}, {sT0}, 3072')
                    a(f'buffer_load_dwordx4 {v4(32+4*(n%4))}, v30, {srd_}, {sT0} offen offset:{1024*(e%3)} nt')
                    n += 1
        a('s_waitcnt vmcnt(0)')
        stamp('pre')
        a.label('L_quiet')
        a('s_sleep 8\ns_memrealtime s[84:85]\ns_waitcnt lgkmcnt(0)\ns_sub_u32 s83, s84, s86\ns_cmp_lt_u32 s83, 4200\ns_cbranch_scc1 L_quiet')
        a.vm.clear()
    if BM in (1, 2):
        a(f's_bfe_u32 {sT0}, s2, 0x30003\ns_lshl_b32 {sT0}, {sT0}, 4\ns_lshl_b32 {sT2}, {sH}, 9\ns_add_u32 {sT0}, {sT0}, {sT2}\ns_add_u32 {sT0}, {sT0}, 384\ns_add_u32 {sT0}, {sT0}, {sW_}\ns_mul_i32 {sKV0}, {sT0}, 6144')
        grp(0)
    if BM == 3:
        a(f's_bfe_u32 {sT0}, s2, 0x20003\ns_lshl_b32 {sT0}, {sT0}, 5\ns_lshl_b32 {sT2}, {sH}, 9\ns_add_u32 {sT0}, {sT0}, {sT2}\ns_bfe_u32 {sT2}, s2, 0x10005\ns_lshl_b32 {sT2}, {sT2}, 14\ns_add_u32 {sT0}, {sT0}, {sT2}\ns_add_u32 {sT0}, {sT0}, 384\ns_add_u32 {sT0}, {sT0}, {sW_}\ns_mul_i32 {sKV0}, {sT0}, 6144')
        grp(0)
    for i in range(KU): kload()
    a(f'''
    s_load_dwordx2 s[24:25], s[0:1], 64
    s_load_dwordx2 s[36:37], s[0:1], 72
    s_load_dwordx2 s[32:33], s[0:1], 88
    v_and_b32 v1, 63, v0
    v_and_b32 v2, 15, v1
    v_lshlrev_b32 v20, 4, v1
    s_lshr_b32 {sJ}, s2, 3
    s_and_b32 {sT1}, {sJ}, 7
    s_mov_b32 s28, s44
    s_mov_b32 s29, s45
    s_movk_i32 s30, 5120
    s_mov_b32 s31, 0x20000
    s_lshl_b32 {sT0}, {sW_}, 10
    s_add_u32 m0, {sT0}, {L_X}
    s_cmp_ge_u32 {sW_}, 5
    s_cbranch_scc1 L_nox
    ''')
    a.role = 'x'
    a(f'buffer_load_dwordx4 v20, {X}, {sT0} offen lds', tag='x')
    a.role = None
    a.label('L_nox')
    stamp('iss1')
    a(f'''
    s_mul_i32 {sT2}, {sXCD}, 27
    s_add_u32 {sT2}, {sT2}, {sJ}
    s_mul_i32 s92, {sT2}, 43691
    s_lshr_b32 s92, s92, 17            ; blk
    s_mul_i32 {sT3}, s92, 3
    s_sub_u32 s93, {sT2}, {sT3}        ; split
    s_mul_i32 s97, s93, 224
    s_lshl_b32 {sT2}, {sW_}, 5
    s_add_u32 s97, s97, {sT2}
    s_sub_u32 {sT2}, s92, 48
    s_sub_u32 {sT3}, s92, 60
    s_cmp_lt_u32 s92, 60
    s_cselect_b32 s16, s56, s58
    s_cselect_b32 s17, s57, s59
    s_cselect_b32 s98, {sT2}, {sT3}
    s_movk_i32 s96, 3072
    s_mov_b32 s18, 1966080
    s_cmp_lt_u32 s92, 48
    s_cselect_b32 s16, s50, s16
    s_cselect_b32 s17, s51, s17
    s_cselect_b32 s18, 7864320, s18
    s_cselect_b32 s96, 12288, s96
    s_cselect_b32 s98, s92, s98
    s_and_b32 s17, s17, 0xffff
    s_mov_b32 s19, 0x20000
    s_mul_i32 s94, s97, s96
    s_lshl_b32 s98, s98, 8
    s_add_u32 s94, s94, s98            ; soffset
    s_cmp_eq_u32 {sW_}, 7
    s_cselect_b32 s94, {BIG}, s94
    s_cmp_ge_u32 {sJ}, {27 if not (EXP & 128) else 0}
    s_cselect_b32 s94, {BIG}, s94
    v_mul_lo_u32 v16, v3, s96
    v_lshl_add_u32 v16, v2, 4, v16     ; g*RS+16n
    s_lshl_b32 s96, s96, 2
    v_lshrrev_b32 v22, 1, v3
    v_mul_u32_u24 v21, 384, v22
    v_add_u32 v9, v9, v21
    v_and_b32 v22, 1, v3
    v_lshlrev_b32 v22, 6, v22
    v_add3_u32 v9, v9, v22, 64
    v_add_u32 v9, 192, v9              ; vky
    ''')
    WT = 224
    wiss = [0]
    def wload():
        t = wiss[0]
        a(f'buffer_load_dwordx4 {v4(WT+4*t)}, v16, {W}, s94 offen {POL[PPOL]}', tag=f'w{t}')
        if t < 7: a(f's_add_u32 s94, s94, s96')
        wiss[0] += 1
    pcnt = [0]
    def pstep(paced=True):
        if paced: a(f's_waitcnt vmcnt({TP-1})')
        pcnt[0] += 1
        if wiss[0] < 8 and pcnt[0] % (PG + 1) != 0: wload()
        else: kload()
    if PP:
        for _ in range(PI): pstep(False)
    else:
        for t in range(8):
            wload()
            if t == 3:
                for _ in range(KW): kload()
        KU = KU + KW
    stamp('iss2')
    if PRIO: a('s_setprio 0')
    def kmore(frac):
        if PP: pstep(); return
        while kissued[0] < KU + int((KP0 - KU) * frac + 0.5): kload()
    def pmore():
        if PP: pstep()
    a(f's_waitcnt lgkmcnt(0)\ns_load_dwordx2 {TAG}, s[32:33], {WS_E}')
    a(f's_mov_b32 s34, {WS_SZ}\ns_mov_b32 s35, 0x20000\ns_mov_b32 s26, 1966080\ns_mov_b32 s27, 0x20000\ns_movk_i32 s38, 5120\ns_mov_b32 s39, 0x20000')
    srd(12, 48, 402653184); srd(20, 52, 7864320)
    if SPF & 1:
        a(f'''
        s_cmp_lg_u32 {sW_}, 7
        s_cbranch_scc1 L_nospf1
        s_mul_i32 {sT0}, {sH}, {192*1280}
        s_add_u32 {sT2}, {sT0}, {192*1280-64}
        s_buffer_load_dword s60, {WO}, {sT0}
        s_buffer_load_dword s60, {WO}, {sT2}
        s_sub_u32 {sT0}, {sKV0}, {7*6144}
        s_add_u32 {sT2}, {sT0}, {393216-64}
        s_buffer_load_dword s60, {K}, {sT0}
        s_buffer_load_dword s60, {K}, {sT2}
        ''')
        a.label('L_nospf1')
    a(f'''
    s_lshl_b32 {sP}, {sH}, 1
    s_add_u32 {sP}, {sP}, {sS}
    s_lshl_b32 {sIDX}, {sXCD}, 5
    s_add_u32 {sIDX}, {sIDX}, {sJ}
    s_mov_b32 s78, -1
    s_mov_b32 s79, 0
    s_lshl_b32 {sT0}, {sB}, 6
    s_add_u32 {sT0}, {sT0}, {sP}
    s_mul_i32 {sYB}, {sT0}, 2560
    s_lshl_b32 {sSB}, {sSB}, 8
    s_add_u32 {sSB}, {sSB}, {WS_S}
    s_lshl_b32 {sT2}, {sS}, 3
    s_add_u32 {sT2}, {sT2}, {sW_}
    s_lshl_b32 {sT2}, {sT2}, 4
    s_add_u32 {sSOWN}, {sSB}, {sT2}
    s_mul_i32 {sWDB}, {sP}, 24
    s_mul_i32 {sT0}, {sW_}, 3
    s_add_u32 {sWDB}, {sWDB}, {sT0}
    s_mul_i32 {sWDB}, {sWDB}, 1280
    s_mul_i32 {sWO0}, {sH}, 192
    s_mul_i32 {sT0}, {sW_}, 24
    s_add_u32 {sWO0}, {sWO0}, {sT0}
    s_mul_i32 {sWO0}, {sWO0}, 1280
    s_add_u32 {sWO1}, {sWO0}, 5120
    s_add_u32 {sWO2}, {sWO0}, 15360
    s_add_u32 {sWO3}, {sWO0}, 20480
    s_mul_i32 {sSTG}, {sW_}, {NS*1024}
    s_add_u32 {sSTG}, {sSTG}, {L_STG}
    v_mov_b32 v17, 1280
    v_mul_u32_u24 v18, 1280, v3
    v_lshl_add_u32 v18, v2, 4, v18     ; 1280g+16n
    s_lshl_b32 s97, s97, 1
    s_min_u32 s97, s97, 1216
    v_lshl_add_u32 v19, v3, 1, s97
    v_lshrrev_b32 v14, 3, v2
    v_mad_u32_u24 v19, v14, v17, v19   ; + 1280*(m>>3)
    v_and_b32 v15, 7, v2
    v_lshlrev_b32 v15, 4, v15          ; 16*(n&7)
    v_and_b32 v20, 1, v2
    v_cmp_eq_u32 vcc, 1, v20
    v_mov_b32 v21, 0xffff
    v_mov_b32 v22, 0xffff0000
    v_cndmask_b32 v21, v21, v22, vcc
    v_bfe_u32 v20, v2, 1, 2
    ''')
    for r in range(4):
        a(f'v_cmp_eq_u32 vcc, {r}, v20\nv_cndmask_b32 v{4+r}, 0, v21, vcc')
    a(f'''
    v_mul_u32_u24 v10, 384, v3
    v_lshrrev_b32 v20, 3, v2
    v_mul_u32_u24 v11, 3072, v20
    v_add3_u32 v11, v11, v10, v15
    v_add_u32 v11, 256, v11            ; vvy = (g+8*(n>>3))*384+256+16*(n&7)
    v_lshl_add_u32 v10, v2, 4, v10     ; vvx = g*384+16n
    v_lshrrev_b32 v12, 1, v3
    v_mul_u32_u24 v12, 5120, v12
    v_add_u32 v12, v12, v18            ; vwo = (6(g>>1)+(g&1))*1280+16n
    v_mov_b32 v22, {BIG}
    v_cmp_eq_u32 vcc, 3, v3
    v_cndmask_b32 v13, v18, v22, vcc   ; vwd = g*1280+16n  (g==3 -> out of range)
    v_lshrrev_b32 v20, 1, v3
    v_lshlrev_b32 v20, 9, v20
    v_and_b32 v22, 1, v3
    v_lshl_add_u32 v22, v22, 4, v20
    v_lshl_add_u32 v22, v2, 5, v22
    s_lshl_b32 {sT0}, {sW_}, 11
    v_add_u32 v22, {sT0}, v22
    v_mov_b32 v20, {L_CNT}
    v_mov_b32 v21, 0
    ds_write_b32 v20, v21
    ds_write_b32 v20, v21 offset:4
    ''')
    if EXP & 64: a(f'v_mov_b32 v12, {BIG}\nv_mov_b32 v13, {BIG}')
    stamp('pre0')
    a.role = 'x'; a.wait_vm('x'); a.role = None
    a('s_barrier')
    stamp('bar0')
    XS, XO, U, XN, AB, ACC, XV = 24, 44, 184, 184, 200, 216, 168
    for i in range(5): a(f'ds_read_b128 {v4(XS+4*i)}, v18 offset:{L_X+256*i}')
    for pr in range(2):
        for t in range(8): a(f'ds_read_u16 v{XV+8*pr+t}, v19 offset:{L_X+2560*pr+8*t}')
    kmore(1/6)
    a(f'''
    s_waitcnt lgkmcnt(0)
    s_mul_i32 s100, s100, 0x9E3779B1
    s_add_u32 s100, s100, 0x7F4A7C15
    s_mul_i32 s101, s101, 0x85EBCA69
    s_add_u32 s101, s101, 0xC2B2AE35
    ''')
    for i in range(20):
        a(f'v_lshlrev_b32 v{U+2*i}, 16, v{XS+i}\nv_and_b32 v{U+2*i+1}, 0xffff0000, v{XS+i}')
    pmore()
    a(f'v_pk_add_f32 v[52:53], v[{U}:{U+1}], v[{U+2}:{U+3}]\nv_pk_add_f32 v[54:55], v[{U+4}:{U+5}], v[{U+6}:{U+7}]')
    for i in range(8, 40, 2):
        d = 52 + (i & 2)
        a(f'v_pk_add_f32 v[{d}:{d+1}], v[{d}:{d+1}], v[{U+i}:{U+i+1}]')
    a('v_pk_add_f32 v[52:53], v[52:53], v[54:55]\nv_add_f32 v52, v52, v53')
    rowred('v_add_f32', 52)
    a(f'v_mul_f32 v56, {f32(-1/640)}, v52')
    kmore(2/6)
    for i in range(0, 40, 2): a(f'v_pk_add_f32 v[{U+i}:{U+i+1}], v[{U+i}:{U+i+1}], v[56:57] op_sel_hi:[1,0]')
    a(f'v_pk_mul_f32 v[52:53], v[{U}:{U+1}], v[{U}:{U+1}]\nv_pk_mul_f32 v[54:55], v[{U+2}:{U+3}], v[{U+2}:{U+3}]')
    for i in range(4, 40, 2):
        d = 52 + (i & 2)
        a(f'v_pk_fma_f32 v[{d}:{d+1}], v[{U+i}:{U+i+1}], v[{U+i}:{U+i+1}], v[{d}:{d+1}]')
    a('v_pk_add_f32 v[52:53], v[52:53], v[54:55]\nv_add_f32 v52, v52, v53')
    rowred('v_add_f32', 52)
    a(f'''
    v_mul_f32 v52, {f32(1/640)}, v52
    v_cvt_pk_bf16_f32 v53, v56, v52
    v_lshlrev_b32 v56, 16, v53
    v_and_b32 v52, 0xffff0000, v53
    v_add_f32 v52, {f32(1e-5)}, v52
    v_cvt_pk_bf16_f32 v52, v52, v52
    v_and_b32 v52, 0xffff0000, v52
    v_sqrt_f32 v52, v52
    v_cvt_pk_bf16_f32 v52, v52, v52
    v_and_b32 v52, 0xffff0000, v52
    v_rcp_f32 v52, v52
    v_lshlrev_b32 v53, 6, v14
    v_add_u32 v54, 128, v53
    ds_bpermute_b32 v58, v53, v56
    ds_bpermute_b32 v60, v54, v56
    ds_bpermute_b32 v24, v53, v52
    ds_bpermute_b32 v26, v54, v52
    ''')
    kmore(3/6)
    for k in range(16): a(f'v_lshlrev_b32 v{XN+k}, 16, v{XV+k}')
    a('s_waitcnt lgkmcnt(0)')
    for pr in range(2):
        for k in range(4):
            r = XN + 8*pr + 2*k
            a(f'v_pk_add_f32 v[{r}:{r+1}], v[{r}:{r+1}], v[{58+2*pr}:{59+2*pr}] op_sel_hi:[1,0]')
    for k in range(8): a(f'v_cvt_pk_bf16_f32 v{XO+k}, v{XN+2*k}, v{XN+2*k+1}')
    for k in range(8): a(f'v_lshlrev_b32 v{XN+2*k}, 16, v{XO+k}\nv_and_b32 v{XN+2*k+1}, 0xffff0000, v{XO+k}')
    for pr in range(2):
        for k in range(4):
            r = XN + 8*pr + 2*k
            a(f'v_pk_mul_f32 v[{r}:{r+1}], v[{r}:{r+1}], v[{24+2*pr}:{25+2*pr}] op_sel_hi:[1,0]')
    for k in range(16): a(f'v_cvt_pk_bf16_f32 v{XN+k}, v{XN+k}, v{XN+k}')
    stamp('ln')
    kmore(4/6)
    if PP:
        while wiss[0] < 8: pstep()
    for t in range(8):
        for pr in range(2):
            ab = AB + 4*((2*t + pr) & 3)
            for r in range(4): a(f'v_and_b32 v{ab+r}, v{XN+8*pr+t}, v{4+r}')
        a.wait_vm(f'w{t}')
        for pr in range(2):
            ab = AB + 4*((2*t + pr) & 3); d = v4(ACC + 4*pr)
            a(f'v_mfma_f32_16x16x32_bf16 {d}, {v4(ab)}, {v4(WT+4*t)}, {0 if t == 0 else d}')
        if PP:
            idx = max(k for k, (tg, r) in enumerate(a.vm) if tg == f'w{t}')
            while len(a.vm) - 1 - idx < TP: pstep(False)
        elif t == 3: kmore(5/6)
    stamp('wland')
    kmore(1)
    if PP: KP0 = kissued[0]
    a(f's_cmp_eq_u32 {sW_}, 7\ns_cbranch_scc1 L_nopart')
    for pr in range(2): a(f'ds_write_b128 v22, {v4(ACC+4*pr)} offset:{1024*pr}')
    a.label('L_nopart')
    a('s_waitcnt lgkmcnt(0)\ns_barrier')
    stamp('barA')
    def padd(d, s_, n):
        for r in range(0, n, 2): a(f'v_pk_add_f32 v[{d+r}:{d+r+1}], v[{d+r}:{d+r+1}], v[{s_+r}:{s_+r+1}]')
    a(f'''
    s_cmp_lt_u32 {sW_}, 6
    s_cbranch_scc1 L_nopub
    v_and_b32 v14, 127, v0
    v_lshlrev_b32 v15, 4, v14
    ''')
    for u in range(7): a(f'ds_read_b128 {v4(16+4*u)}, v15 offset:{2048*u}')
    a(f'''
    v_lshrrev_b32 v14, 5, v14
    s_mov_b32 {sT0}, {36864-512}
    v_mad_u32_u24 v14, v14, {sT0}, v15     ; b*36864 + 16*(t&31)
    s_mul_i32 {sT0}, s93, 147456
    s_lshl_b32 {sT2}, s92, 9
    s_add_u32 {sT0}, {sT0}, {sT2}
    s_add_u32 {sT0}, {sT0}, {WS_P}
    s_cmp_ge_u32 {sJ}, {27 if not (EXP & 8) else 0}
    s_cselect_b32 {sT0}, {BIG}, {sT0}
    s_waitcnt lgkmcnt(0)
    ''')
    padd(16, 32, 12); padd(16, 24, 8); padd(16, 20, 4)
    a.role = 'pub'
    a(f'buffer_store_dwordx4 v[16:19], v14, {WS}, {sT0} offen sc1', tag='pub')
    a.role = None
    a.label('L_nopub')
    if SPF & 2:
        a(f'''
        s_cmp_lg_u32 {sW_}, 5
        s_cbranch_scc1 L_nospf2
        s_sub_u32 {sT0}, {sKV0}, {5*6144}
        s_add_u32 {sT2}, {sT0}, {393216-64}
        s_buffer_load_dword s60, {V}, {sT0}
        s_buffer_load_dword s60, {V}, {sT2}
        s_buffer_load_dword s60, {WD}, {sWDB}
        s_buffer_load_dword s60, {OUT}, 0
        ''')
        a.label('L_nospf2')
    def wotile(n):
        uc, h = divmod(n, 2); c, u = divmod(uc, 3)
        return [[sWO0, sWO1], [sWO2, sWO3]][h][u == 2], (2560 if u == 1 else 0) + 256*c
    kseq = []
    si = 0
    for i in range(KP0, 48):
        kseq.append('k')
        while si < NS and (si + 1) * (SEND - KP0) <= (i + 1 - KP0) * NS:
            kseq.append('s'); si += 1
    assert si == NS
    kp = [0]; sissued = [0]
    def kstep(paced):
        op = kseq[kp[0]]; kp[0] += 1
        if paced: a(f's_waitcnt vmcnt({T-1})')
        if op == 'k': kload()
        else:
            n = sissued[0]; so, imm = wotile(n)
            a(f's_add_u32 m0, {sSTG}, {1024*n - imm}' if 1024*n >= imm else f's_sub_u32 m0, {sSTG}, {imm - 1024*n}')
            a(f'buffer_load_dwordx4 v12, {WO}, {so} offen offset:{imm} {POL[SPOL]} lds', tag='stg')
            sissued[0] += 1
    for _ in range(T - 1): kstep(True)
    a(f's_cmp_lt_u32 {sW_}, 6\ns_cbranch_scc1 L_nosig')
    a.role = 'pub'; a.wait_vm('pub'); a.role = None
    a(f'''
    v_mov_b32 v14, {L_CNT}
    v_mov_b32 v15, 1
    s_mov_b64 exec, 1
    ds_add_rtn_u32 v20, v14, v15
    s_waitcnt lgkmcnt(0)
    v_readfirstlane_b32 {sT0}, v20
    s_cmp_eq_u32 {sT0}, 1
    s_cbranch_scc0 L_nosig
    s_mov_b64 exec, 3
    s_lshl_b32 {sT0}, s92, 2
    s_add_u32 {sT0}, {sT0}, s93
    s_lshl_b32 {sT0}, {sT0}, 3
    s_add_u32 {sT0}, {sT0}, {WS_F}
    s_cmp_ge_u32 {sJ}, 27
    s_cselect_b32 {sT0}, {BIG}, {sT0}
    s_lshl_b32 {sT2}, {sIDX}, 3
    s_add_u32 {sT2}, {sT2}, {WS_G}
    v_mov_b32 v20, {sT0}
    v_writelane_b32 v20, {sT2}, 1
    v_mov_b32 v14, s100
    v_mov_b32 v15, s101
    ''')
    a(f'buffer_store_dwordx2 v[14:15], v20, {WS}, 0 offen sc1'); a.vm.pop()
    a.label('L_nosig')
    a('s_mov_b64 exec, -1')
    stamp('sig')
    while kissued[0] < KPOLL: kstep(True)
    a(f's_cmp_eq_u32 {sW_}, 0\ns_cbranch_scc1 L_w0')
    fork = (list(a.vm), kissued[0], kp[0], sissued[0])
    while kp[0] < len(kseq): kstep(True)
    stamp('kiss'); stamp('poll'); stamp('qrdy')
    a('s_branch L_join')
    vm_join = list(a.vm)
    a.vm, kissued[0], kp[0], sissued[0] = fork
    a.label('L_w0')
    a(f'''
    v_min_u32 v60, 59, v1
    v_lshlrev_b32 v60, 2, v60
    s_mul_i32 {sT0}, {sH}, 192
    s_mul_i32 {sT2}, {sP}, 24
    s_add_u32 {sT2}, {sT2}, {6144-192}
    s_add_u32 {sT3}, {sT2}, {1536-24}
    v_mov_b32 v61, {sT0}
    v_mov_b32 v62, {sT2}
    v_cmp_le_u32 vcc, 48, v1
    v_cndmask_b32 v61, v61, v62, vcc
    v_mov_b32 v62, {sT3}
    v_cmp_le_u32 vcc, 54, v1
    v_cndmask_b32 v61, v61, v62, vcc
    v_add_u32 v60, v60, v61
    v_lshrrev_b32 v61, 7, v60
    v_lshlrev_b32 v61, 5, v61
    v_lshlrev_b32 v60, 2, v60
    s_mov_b32 {sT2}, {WS_F}
    s_mov_b32 {sT1}, {SPIN}
    ''')
    if EXP & 1: a(f'v_mov_b32 v61, {BIG}')
    a(f'buffer_load_dwordx4 v[16:19], v61, {WS}, {sT2} offen sc1')
    a(f'buffer_load_dwordx2 v[20:21], v61, {WS}, {sT2} offen offset:16 sc1', tag='poll')
    for _ in range(T - 1): kstep(True)
    a.wait_vm('poll')
    a.label('L_spin1')
    a(f'''
    v_cmp_ne_u64 vcc, {TAG}, v[16:17]
    v_cmp_ne_u64 s[44:45], {TAG}, v[18:19]
    v_cmp_ne_u64 s[46:47], {TAG}, v[20:21]
    s_or_b64 vcc, vcc, s[44:45]
    s_or_b64 vcc, vcc, s[46:47]
    s_cbranch_scc0 L_ok1
    s_sub_u32 {sT1}, {sT1}, 1
    s_cbranch_scc1 L_ok1
    s_sleep {SLP}
    buffer_load_dwordx4 v[16:19], v61, {WS}, {sT2} offen sc1
    buffer_load_dwordx2 v[20:21], v61, {WS}, {sT2} offen offset:16 sc1
    s_waitcnt vmcnt(0)
    s_branch L_spin1
    ''')
    a.vm.pop(); a.vm.pop()
    a.label('L_ok1')
    stamp('poll')
    a(f's_mul_i32 {sT0}, {sB}, 36864\ns_add_u32 {sT0}, {sT0}, {WS_P}')
    if EXP & 2: a(f'v_mov_b32 v60, {BIG}')
    for t in range(3):
        a(f'buffer_load_dwordx4 {v4(16+4*t)}, v60, {WS}, {sT0} offen sc1', tag='gq')
        if t < 2: a(f's_add_u32 {sT0}, {sT0}, 147456')
    for _ in range(W0N): kstep(False)
    a.wait_vm('gq')
    padd(16, 20, 4); padd(16, 24, 4)
    a(f'''
    v_cvt_pk_bf16_f32 v16, v16, v17
    v_cvt_pk_bf16_f32 v17, v18, v19
    v_lshlrev_b32 v14, 3, v1
    ds_write_b64 v14, v[16:17] offset:{L_Q}
    v_min_u32 v14, 23, v1
    v_lshlrev_b32 v14, 1, v14
    s_waitcnt lgkmcnt(0)
    ds_read_u16 v20, v14 offset:{L_Q+384}
    ds_read_u16 v21, v14 offset:{L_Q+432}
    s_waitcnt lgkmcnt(0)
    v_lshlrev_b32 v20, 16, v20
    v_lshlrev_b32 v21, 16, v21             ; up
    v_mul_f32 v22, v20, v20
    v_mul_f32 v22, {f32(0.044715)}, v22
    v_fma_f32 v22, v22, v20, v20           ; x + c x^3
    v_mul_f32 v22, {f32(-2*0.7978845608028654*L2E)}, v22
    v_exp_f32 v22, v22
    v_add_f32 v22, 1.0, v22
    v_rcp_f32 v22, v22
    v_mul_f32 v22, v22, v20
    v_cvt_pk_bf16_f32 v22, v22, v22
    v_and_b32 v22, 0xffff0000, v22
    v_mul_f32 v22, v22, v21
    v_cvt_pk_bf16_f32 v22, v22, v22
    v_cmp_gt_u32 vcc, 24, v1
    v_cndmask_b32 v22, 0, v22, vcc
    v_min_u32 v14, 31, v1
    v_lshlrev_b32 v14, 2, v14
    ds_write_b32 v14, v22 offset:{L_HID}
    v_mov_b32 v14, {L_CNT}
    v_mov_b32 v15, 1
    s_waitcnt lgkmcnt(0)
    ds_write_b32 v14, v15 offset:4
    ''')
    def xred8(base, n, tmp):
        for r in range(n): a(f'v_add_f32_dpp v{base+r}, v{base+r}, v{base+r} row_ror:8 row_mask:0xf bank_mask:0xf')
        for sw in ('v_permlane16_swap_b32', 'v_permlane32_swap_b32'):
            for r in range(n): a(f'v_mov_b32 v{tmp+r}, v{base+r}')
            for r in range(n): a(f'{sw} v{base+r}, v{tmp+r}')
            padd(base, tmp, n)
    stamp('qrdy')
    while kp[0] < len(kseq): kstep(True)
    stamp('kiss')
    a.vm = vm_join
    a.label('L_join')
    a(f'v_mov_b32 v14, {L_CNT}\ns_mov_b32 {sT1}, {1<<24}')
    a.label('L_spinq')
    a(f'''
    ds_read_b32 v15, v14 offset:4
    s_waitcnt lgkmcnt(0)
    v_readfirstlane_b32 {sT0}, v15
    s_cmp_lg_u32 {sT0}, 0
    s_cbranch_scc1 L_okq
    s_sub_u32 {sT1}, {sT1}, 1
    s_cbranch_scc1 L_okq
    s_sleep 1
    s_branch L_spinq
    ''')
    a.label('L_okq')
    stamp('barB')
    a(f'''
    v_and_b32 v14, 3, v2
    v_lshl_add_u32 v15, v3, 2, v14
    v_lshlrev_b32 v15, 4, v15
    ds_read_b128 v[56:59], v15 offset:{L_Q}
    v_and_b32 v15, 0x70, v15
    ds_read_b128 v[60:63], v15 offset:{L_Q+256}
    ''')
    mX = [lanemask(lambda m, g, u=u: (m >> 2) == u) for u in range(4)]
    mY = [lanemask(lambda m, g, w=w: (m >> 2) == 2*w + (g >> 1)) for w in range(2)]
    for k, m in enumerate(mX + mY):
        a(f's_mov_b32 s{44+2*k}, {hex(m & 0xffffffff)}\ns_mov_b32 s{45+2*k}, {hex(m >> 32)}')
    a('s_waitcnt lgkmcnt(0)')
    for k in range(6):
        src = 56 if k < 4 else 60
        for r in range(4): a(f'v_cndmask_b32 v{32+4*k+r}, 0, v{src+r}, s[{44+2*k}:{45+2*k}]')
    vissued = [0]
    def vreg(i): return kt(i % RV)
    def vload():
        i = vissued[0]; g, e = divmod(i, 6); c, x = divmod(e, 3)
        if e == 0:
            grp(g)
            a(f's_add_u32 {sKV2}, {sKV}, 3072')
        if x == 0:   a(f'buffer_load_dwordx4 {vreg(i)}, v10, {V}, {sKV} offen offset:{1536*c} {POL[KVPOL]}', tag=f'v{i}')
        elif x == 1: a(f'buffer_load_dwordx4 {vreg(i)}, v10, {V}, {sKV2} offen offset:{1536*c} {POL[KVPOL]}', tag=f'v{i}')
        else:        a(f'buffer_load_dwordx4 {vreg(i)}, v11, {V}, {sKV} offen offset:{1536*c} {POL[KVPOL]}', tag=f'v{i}')
        vissued[0] += 1
    assert RV <= 12
    extras = [('wd', c) for c in range(5)] + [('wo', n) for n in range(NS, 30)]
    xiss = [0]
    def xtile(e): return WDT + e[1] if e[0] == 'wd' else WOT + e[1]
    def xload():
        e = extras[xiss[0]]
        if e[0] == 'wd':
            a(f'buffer_load_dwordx4 {kt(xtile(e))}, v13, {WD}, {sWDB} offen offset:{256*e[1]} {POL[WPOL]}', tag='wd')
        else:
            so, imm = wotile(e[1])
            a(f'buffer_load_dwordx4 {kt(xtile(e))}, v12, {WO}, {so} offen offset:{imm} {POL[WPOL]}', tag=f'wo{e[1]}')
        xiss[0] += 1
    SC = 0.07216878364870322
    def score_post(g):
        d = 24 + 4*(g & 1); s_ = 16 + g
        a(f'''
        v_mov_b32_dpp v{s_}, v{d} quad_perm:[0,0,0,0] row_mask:0xf bank_mask:0xf
        v_add_f32_dpp v{s_}, v{d+1}, v{s_} quad_perm:[1,1,1,1] row_mask:0xf bank_mask:0xf
        v_add_f32_dpp v{s_}, v{d+2}, v{s_} quad_perm:[2,2,2,2] row_mask:0xf bank_mask:0xf
        v_add_f32_dpp v{s_}, v{d+3}, v{s_} quad_perm:[3,3,3,3] row_mask:0xf bank_mask:0xf
        ''')
        if NOS < 1: a(f'v_cvt_pk_bf16_f32 v{s_}, v{s_}, v{s_}\nv_and_b32 v{s_}, 0xffff0000, v{s_}')
        a(f'v_mul_f32 v{s_}, {f32(SC)}, v{s_}')
        if NOS < 2: a(f'v_cvt_pk_bf16_f32 v{s_}, v{s_}, v{s_}\nv_and_b32 v{s_}, 0xffff0000, v{s_}')
    nx = len(extras) - XL
    span = 48 - XBEG - XEND
    seq = []
    xi = 0
    for i in range(48):
        seq.append('v')
        if i == SLI: seq.append('sl')
        if xi < 5 and i >= XBEG:
            seq.append('x'); xi += 1
        while xi < nx and i >= XBEG and (xi + 1) * span <= (i + 1 - XBEG) * nx:
            seq.append('x'); xi += 1
    assert xi == nx
    seq += ['x'] * XL
    nx += XL
    sp = [0]
    did_wd = [False]
    SS = KB + 4*47
    st = KB + 4*WDT
    GF = st + 12
    def statload():
        a(f'''
        v_lshlrev_b32 v8, 4, v2
        s_mul_i32 s95, {sP}, 43691
        s_lshr_b32 s95, s95, 17
        s_mul_i32 {sT0}, {sB}, 1280
        s_lshl_b32 {sT1}, s95, 6
        s_add_u32 s96, {sT0}, {sT1}
        s_mul_i32 {sT0}, s95, 3
        s_mov_b32 s97, 1
        s_cmp_lg_u32 {sT0}, {sP}
        s_cselect_b32 s97, 0, s97
        s_cmp_ge_u32 s95, 20
        s_cselect_b32 s97, 0, s97
        s_cmp_lg_u32 {sW_}, 7
        s_cselect_b32 s97, 0, s97
        v_lshlrev_b32 v9, 4, v1
        s_mov_b32 s98, {WS_G}
        s_cmp_eq_u32 s2, 0
        s_cselect_b32 s99, s97, 0
        s_cmp_eq_u32 s99, 0
        s_cbranch_scc1 L_nogf
        buffer_load_dwordx4 {v4(GF)}, v9, {WS}, s98 offen sc1
        buffer_load_dwordx4 {v4(GF+4)}, v9, {WS}, s98 offen offset:1024 sc1
        ''')
        a.vm.pop(); a.vm.pop()
        a.label('L_nogf')
        a(f'buffer_load_dwordx4 {v4(SS)}, v8, {WS}, {sSB} offen sc1', tag='sl')
    def pump(lasttag, kfree, vcons):
        while sp[0] < len(seq):
            idx = max(k for k, (t, r) in enumerate(a.vm) if t == lasttag)
            if len(a.vm) - 1 - idx >= (TV if vcons < VE else TVE): break
            op = seq[sp[0]]
            if op == 'v':
                i = vissued[0]
                if i < RV:
                    if i >= kfree: break
                elif i - RV >= vcons: break
                vload()
            elif op == 'x':
                if xtile(extras[xiss[0]]) >= kfree: break
                xload()
            else:
                assert did_wd[0]
                statload()
            sp[0] += 1
    done = [t for (t, r) in a.vm[:len(a.vm) - T]]
    known = max(int(t[1:]) for t in done if t and t[0] == 'k' and t[1:].isdigit())
    a.wait_vm(f'k{known}')
    for g in range(8):
        d = v4(24 + 4*(g & 1))
        for e in range(6):
            i = 6*g + e
            if i > known:
                a.wait_vm(f'k{i}'); known = i
            a(f'v_mfma_f32_16x16x32_bf16 {d}, {v4(32+4*e)}, {kt(i)}, {0 if e == 0 else d}')
            if i == known: pump(f'k{known}', i + 1, 0)
        if 6*g + 5 < known and (g & 1) == 0 and known < 47:
            known += 1
            a.wait_vm(f'k{known}')
            pump(f'k{known}', 6*g + 6, 0)
        if g > 0: score_post(g-1)
    score_post(7)
    if NS:
        a.wait_vm('stg')
        a(f'v_lshlrev_b32 v14, 4, v1\nv_add_u32 v14, {sSTG}, v14')
        for n in range(NS): a(f'ds_read_b128 {kt(WOT+n)}, v14 offset:{1024*n}')
    def allred(op, r, t):
        rowred(op, r, (4, 8))
        a(f'v_mov_b32 v{t}, v{r}\nv_permlane16_swap_b32 v{r}, v{t}\n{op} v{r}, v{r}, v{t}')
        a(f'v_mov_b32 v{t}, v{r}\nv_permlane32_swap_b32 v{r}, v{t}\n{op} v{r}, v{r}, v{t}')
    a('v_max3_f32 v28, v16, v17, v18\nv_max3_f32 v15, v19, v20, v21\nv_max3_f32 v28, v28, v22, v23\nv_max_f32 v28, v28, v15')
    allred('v_max_f32', 28, 15)
    for g in range(8): a(f'v_sub_f32 v{16+g}, v{16+g}, v28')
    for g in range(8): a(f'v_mul_f32 v{16+g}, {f32(L2E)}, v{16+g}')
    for g in range(8): a(f'v_exp_f32 v{16+g}, v{16+g}')
    a('v_add_f32 v30, v16, v17\nv_add_f32 v24, v18, v19\nv_add_f32 v25, v20, v21\nv_add_f32 v26, v22, v23\nv_add_f32 v30, v30, v24\nv_add_f32 v25, v25, v26\nv_add_f32 v30, v30, v25')
    allred('v_add_f32', 30, 24)
    for g in range(8): a(f'v_cvt_pk_bf16_f32 v{16+g}, v{16+g}, v{16+g}')
    a(f'''
    v_mov_b32 v29, s100
    v_mov_b32 v31, s101
    v_mov_b32 v24, 0
    v_readfirstlane_b32 {sM}, v28          ; own m
    s_mov_b64 exec, 1
    ''')
    if EXP & 256: a(f's_cmp_eq_u32 {sW_}, 0\ns_cselect_b32 {sSOWN}, {sSOWN}, {BIG}\ns_cselect_b32 {sSB}, {sSB}, {BIG}')
    a(f'buffer_store_dwordx4 v[28:31], v24, {WS}, {sSOWN} offen sc1', tag='stat')
    a('s_mov_b64 exec, -1')
    stamp('smax')
    YA, OA = 44, 32
    a(f'''
    s_mul_i32 {sT0}, {sW_}, 12
    v_lshlrev_b32 v24, 2, v3
    v_add_u32 v24, {sT0}, v24
    v_mov_b32 v25, 124
    v_cmp_eq_u32 vcc, 3, v3
    v_cndmask_b32 v24, v24, v25, vcc
    ds_read_b32 v14, v24 offset:{L_HID}
    s_waitcnt lgkmcnt(0)
    ''')
    for g in range(8):
        for c in range(2):
            A = 24 + 4*c
            if c == 0: a(f'v_mov_b32 v15, v{16+g}\nv_mov_b32_dpp v15, v{16+g} row_shr:4 row_mask:0xf bank_mask:0xa')
            else:      a(f'v_mov_b32 v15, v{16+g}\nv_mov_b32_dpp v15, v{16+g} row_shl:4 row_mask:0xf bank_mask:0x5')
            for r in range(4): a(f'v_and_b32 v{A+r}, v15, v{4+r}')
            for x in range(3):
                i = 6*g + 3*c + x
                d = v4(OA + 4*x)
                a.wait_vm(f'v{i}')
                stamp(f'vc{i}')
                a(f'v_mfma_f32_16x16x32_bf16 {d}, {v4(A)}, {vreg(i)}, {0 if i < 3 else d}')
                pump(f'v{i}', 48, i + 1)
        if g == 2:
            did_wd[0] = True
            assert xiss[0] >= 5
            for r in range(4): a(f'v_and_b32 v{24+r}, v14, v{4+r}')
            a.wait_vm('wd')
            for c in range(5):
                a(f'v_mfma_f32_16x16x32_bf16 {v4(YA+4*c)}, v[24:27], {kt(WDT+c)}, 0')
        if g == GST:
            a(f's_mov_b32 {sT1}, {SPIN}')
            a.wait_vm('sl')
            a.label('L_spin2')
            a(f'''
            v_cmp_ne_u32 vcc, s100, v{SS+1}
            v_cmp_ne_u32 s[44:45], s101, v{SS+3}
            s_or_b64 vcc, vcc, s[44:45]
            s_cbranch_scc0 L_ok2
            s_sub_u32 {sT1}, {sT1}, 1
            s_cbranch_scc1 L_ok2
            s_sleep 4
            buffer_load_dwordx4 {v4(SS)}, v8, {WS}, {sSB} offen sc1
            s_waitcnt vmcnt(0)
            s_branch L_spin2
            ''')
            a.vm.pop()
            a.label('L_ok2')
            a(f'''
            s_cmp_eq_u32 s99, 0
            s_cbranch_scc1 L_ok2b
            s_mov_b32 {sT1}, {SPIN}
            ''')
            a.label('L_spin2b')
            a(f'''
            v_cmp_ne_u64 vcc, {TAG}, v[{GF}:{GF+1}]
            v_cmp_ne_u64 s[44:45], {TAG}, v[{GF+2}:{GF+3}]
            v_cmp_ne_u64 s[46:47], {TAG}, v[{GF+4}:{GF+5}]
            v_cmp_ne_u64 s[48:49], {TAG}, v[{GF+6}:{GF+7}]
            s_or_b64 vcc, vcc, s[44:45]
            s_or_b64 s[46:47], s[46:47], s[48:49]
            s_or_b64 vcc, vcc, s[46:47]
            s_cbranch_scc0 L_ok2c
            s_sub_u32 {sT1}, {sT1}, 1
            s_cbranch_scc1 L_ok2c
            s_sleep {SLP}
            buffer_load_dwordx4 {v4(GF)}, v9, {WS}, s98 offen sc1
            buffer_load_dwordx4 {v4(GF+4)}, v9, {WS}, s98 offen offset:1024 sc1
            s_waitcnt vmcnt(0)
            s_branch L_spin2b
            ''')
            a.vm.pop(); a.vm.pop()
            a.label('L_ok2c')
            a(f'''
            s_mov_b32 {sT2}, {WS_E}
            v_mov_b32 v{GF}, s100
            v_mov_b32 v{GF+1}, s101
            s_mov_b64 exec, 1
            buffer_store_dwordx2 v[{GF}:{GF+1}], v9, {WS}, {sT2} offen sc1
            s_mov_b64 exec, -1
            ''')
            a.vm.pop()
            a.label('L_ok2b')
            a(f'v_mov_b32 v{st+6}, v{SS}')
            rowred('v_max_f32', st+6)
            a(f'''
            v_sub_f32 v{st}, v{SS}, v{st+6}
            v_sub_f32 v{st+7}, {sM}, v{st+6}
            v_mul_f32 v{st}, {f32(L2E)}, v{st}
            v_mul_f32 v{st+7}, {f32(L2E)}, v{st+7}
            v_exp_f32 v{st}, v{st}
            v_exp_f32 v{st+7}, v{st+7}
            v_mul_f32 v{st}, v{st}, v{SS+2}
            ''')
            rowred('v_add_f32', st)
            a(f'''
            v_rcp_f32 v{st}, v{st}
            v_mul_f32 v14, v{st}, v{st+7}          ; factor
            v_and_b32 v{st+5}, 7, v1
            v_lshlrev_b32 v{st+5}, 3, v{st+5}
            v_and_b32 v{st+3}, 1, v3
            v_lshlrev_b32 v{st+3}, 2, v{st+3}
            v_and_b32 v{st+4}, 2, v3
            v_add3_u32 v{st+3}, v{st+3}, v{st+4}, v{st+5}
            s_min_u32 {sT0}, s96, 5056
            v_add_u32 v{st+4}, {sT0}, v{st+3}
            ds_read_u16 v{st+2}, v{st+4} offset:{L_X}
            v_and_b32 v{st+15}, 3, v2
            v_mul_u32_u24 v{st+15}, 0x5555, v{st+15}
            s_mov_b32 s44, 0x0f0f0f0f
            s_mov_b32 s45, 0x0f0f0f0f
            s_mov_b32 s46, 0xf0f0f0f0
            s_mov_b32 s47, 0xf0f0f0f0
            ''')
            a(f'''
            v_lshrrev_b32 v{st+6}, 1, v3
            s_lshl_b32 {sT0}, {sW_}, 1
            v_add_u32 v{st+7}, {sT0}, v{st+6}
            v_mul_u32_u24 v{st+7}, 784, v{st+7}
            v_and_b32 v{st+8}, 1, v3
            v_lshlrev_b32 v{st+11}, 4, v{st+8}
            v_add_u32 v{st+7}, v{st+7}, v{st+11}
            v_lshl_add_u32 v{st+8}, v2, 5, v{st+7}
            v_and_b32 v{st+9}, 7, v2
            v_lshl_add_u32 v{st+9}, v{st+9}, 5, v{st+7}
            v_add_u32 v{st+9}, 512, v{st+9}
            v_lshrrev_b32 v{st+7}, 3, v2
            v_cmp_eq_u32 vcc, v{st+7}, v{st+6}
            v_lshlrev_b32 v{st+7}, 4, v1
            v_add_u32 v{st+7}, {L_DUM}, v{st+7}
            v_cndmask_b32 v{st+9}, v{st+7}, v{st+9}, vcc
            v_mul_u32_u24 v{st+10}, 784, v2
            v_mul_u32_u24 v{st+7}, 24, v3
            s_mul_i32 {sT0}, {sW_}, 96
            v_add3_u32 v{st+10}, v{st+10}, v{st+7}, {sT0}
            s_mul_i32 {sT0}, {sW_}, 3200
            v_mul_u32_u24 v{st+11}, 24, v{st+11}
            v_lshl_add_u32 v{st+11}, v2, 4, v{st+11}
            v_add_u32 v{st+11}, {sT0}, v{st+11}           ; y write: 3200w + 384(g&1) + 16n
            v_and_b32 v{st+13}, 31, v1
            v_lshrrev_b32 v{st+7}, 1, v{st+13}
            v_lshlrev_b32 v{st+13}, 4, v{st+13}
            s_lshl_b32 {sT0}, {sW_}, 9
            v_add_u32 v{st+13}, {sT0}, v{st+13}
            v_mul_u32_u24 v{st+12}, 12800, v{st+6}
            v_lshl_add_u32 v{st+12}, v{st+7}, 4, v{st+12}
            v_and_b32 v{st+7}, 1, v1
            v_mul_u32_u24 v{st+7}, 384, v{st+7}
            s_mul_i32 {sT0}, {sW_}, 640
            v_add3_u32 v{st+12}, v{st+12}, v{st+7}, {sT0}  ; y read: 12800(l>>5) + 640w + 384(l&1) + 16((l&31)>>1)
            v_lshrrev_b32 v{st+14}, 3, v1
            v_mul_u32_u24 v{st+14}, 2560, v{st+14}
            v_lshl_add_u32 v{st+14}, v{st+5}, 1, v{st+14}
            s_mul_i32 s94, {sB}, {64*2560}
            s_lshl_b32 {sT0}, s95, 7
            s_add_u32 s94, s94, {sT0}
            ''')
            for i in range(8): a(f's_add_u32 s{48+i}, s94, {8*2560*i}')
            a('s_movk_i32 s98, 0xff')
            for k in range(2): a(f'v_bfe_u32 v{st+16+k}, s{100+k}, 0, 8')
    assert xiss[0] == nx and sp[0] == len(seq)
    stamp('vend')
    for r in range(4): a(f'v_cndmask_b32 v{OA+r}, v{OA+4+r}, v{OA+r}, {sLO32}')
    for r in range(4): a(f'v_mul_f32 v{OA+r}, v{OA+r}, v14')
    a(f'ds_write_b128 v{st+8}, {v4(OA)}')
    for r in range(4): a(f'v_mul_f32 v{OA+8+r}, v{OA+8+r}, v14')
    a(f'ds_write_b128 v{st+9}, {v4(OA+8)}')
    a('s_waitcnt lgkmcnt(0)\ns_barrier')
    stamp('barC')
    for j in range(3): a(f'ds_read_b64 v[{16+2*j}:{17+2*j}], v{st+10} offset:{8*j}')
    def dpp(regs, steps):
        for s_ in steps:
            for r in regs: a(f'v_add_f32_dpp v{r}, v{r}, v{r} row_ror:{s_} row_mask:0xf bank_mask:0xf')
    if CM != 2:
        a('s_waitcnt lgkmcnt(0)')
        dpp(range(16, 22), (8, 4, 2, 1))
    AT = KB
    def abuild(u):
        for i in range(2):
            a(f'v_cvt_pk_bf16_f32 v{16+2*u+i}, v{16+2*u+i}, 0')
        for i in range(2):
            a(f'v_cndmask_b32 v{AT+4*u+2*i}, 0, v{16+2*u+i}, s[44:45]\nv_cndmask_b32 v{AT+4*u+2*i+1}, 0, v{16+2*u+i}, s[46:47]')
    def smf(u, c):
        n = (c*3 + u)*2
        if n + 1 >= 30 - XL: a.wait_vm(f'wo{n+1}')
        r = KB + 4*(WOT + n)
        a(f'v_smfmac_f32_16x16x64_bf16 {v4(YA+4*c)}, {v4(AT+4*u)}, v[{r}:{r+7}], v{st+15}')
    def ywrite(c):
        a(f's_mov_b64 exec, {sLO32}\nds_write_b128 v{st+11}, {v4(YA+4*c)} offset:{L_YP+640*c}\ns_mov_b64 exec, -1')
    if CM == 2:
        a('s_waitcnt lgkmcnt(0)' if stamps == 3 else 's_waitcnt lgkmcnt(1)')
        dpp((16, 17, 18), (8, 4, 2, 1))
        abuild(0)
        a('s_waitcnt lgkmcnt(0)')
        dpp((19, 20, 21), (8,))
        smf(0, 0); dpp((19, 20, 21), (4,))
        smf(0, 1); dpp((19, 20, 21), (2,))
        smf(0, 2); dpp((19, 20, 21), (1,))
        smf(0, 3); abuild(1)
        smf(1, 0); abuild(2)
        order = [(1,1),(2,0),(1,2),(2,1),(1,3),(0,4),'w0',(2,2),'w1',(1,4),(2,3),(2,4),'w2','w3','w4']
        for o in order:
            if isinstance(o, str): ywrite(int(o[1]))
            else: smf(*o)
        stamp('mm')
        a('s_waitcnt lgkmcnt(0)\ns_barrier')
    elif CM:
        abuild(0); abuild(1)
        smf(0, 0); smf(0, 1)
        abuild(2)
        order = [(1,0),(1,1),(2,0),(2,1),(0,2),(0,3),(1,2),'w0',(1,3),'w1',(2,2),(0,4),(2,3),(1,4),'w2',(2,4),'w3','w4']
        for o in order:
            if isinstance(o, str): ywrite(int(o[1]))
            else: smf(*o)
        stamp('mm')
        a('s_waitcnt lgkmcnt(0)\ns_barrier')
    else:
        abuild(0); abuild(1)
        smf(0, 0); smf(0, 1)
        abuild(2)
        for c in range(2, 5): smf(0, c)
        for c in range(5): smf(1, c)
        for c in range(5): smf(2, c)
        stamp('mm')
        a(f's_mov_b64 exec, {sLO32}')
        for c in range(5): a(f'ds_write_b128 v{st+11}, {v4(YA+4*c)} offset:{L_YP+640*c}')
        a('s_mov_b64 exec, -1\ns_waitcnt lgkmcnt(0)\ns_barrier')
    stamp('barD'); stamp('pub'); stamp('c1')
    a(f's_cmp_ge_u32 {sW_}, 5\ns_cbranch_scc1 L_cons')
    for u in range(4): a(f'ds_read_b128 {v4(16+4*u)}, v{st+12} offset:{L_YP+3200*u}')
    a('s_waitcnt lgkmcnt(0)')
    padd(16, 24, 8); padd(16, 20, 4)
    for r in range(4): a(f'v_mov_b32 v{20+r}, v{16+r}')
    for r in range(4): a(f'v_permlane32_swap_b32 v{16+r}, v{20+r}')
    padd(16, 20, 4)
    for r in range(2): a(f'v_bfi_b32 v{16+2*r}, s98, v{st+16+r}, v{16+2*r}')
    a(f's_mov_b64 exec, {sLO32}')
    a(f'buffer_store_dwordx4 v[16:19], v{st+13}, {WS}, {sYB} offen {POL[YSP]}')
    if stamps:
        a('s_mov_b64 exec, -1\ns_waitcnt lgkmcnt(0)')
        stamp('pub')
        a('s_branch L_fin')
    else:
        a('s_endpgm')
    a.label('L_cons')
    a(f'''
    s_cmp_eq_u32 s97, 0
    s_cbranch_scc1 L_fin
    s_mov_b32 {sT1}, {SPIN}
    ''')
    a.label('L_spin3')
    for i in range(8):
        a(f'buffer_load_dwordx4 {v4(16+4*i)}, v{st+14}, {WS}, s{48+i} offen {POL[YLP]}')
    a(f's_sub_u32 {sT1}, {sT1}, 1')
    for i in range(8):
        r = 16 + 4*i
        a(f's_waitcnt vmcnt({7-i})')
        for k in range(2): a(f'v_xor_b32 v{r+2*k}, v{r+2*k}, v{st+16+k}')
        if i == 0: a(f'v_or_b32 v15, v{r}, v{r+2}')
        else: a(f'v_or3_b32 v15, v15, v{r}, v{r+2}')
    a(f'''
    v_and_b32 v15, s98, v15
    v_cmp_ne_u32 vcc, 0, v15
    s_cbranch_scc1 L_ok3
    s_and_b64 vcc, vcc, vcc
    ''')
    a.raw('  s_cbranch_scc1 L_spin3')
    a.label('L_ok3')
    a('s_mov_b64 exec, -1')
    if stamps: a('s_waitcnt lgkmcnt(0)')
    stamp('c1')
    padd(16, 32, 16); padd(16, 24, 8); padd(16, 20, 4)
    a(f'''
    v_lshlrev_b32 v20, 16, v{st+2}
    v_permlane32_swap_b32 v16, v17
    v_permlane32_swap_b32 v18, v19
    v_add_f32 v16, v16, v17
    v_add_f32 v18, v18, v19
    v_permlane16_swap_b32 v16, v18
    v_add_f32 v16, v16, v18
    v_add_f32_dpp v16, v16, v16 row_ror:8 row_mask:0xf bank_mask:0xf
    v_add_f32 v16, v16, v20
    v_cvt_pk_bf16_f32 v16, v16, v16
    s_mov_b32 exec_lo, 0x00ff00ff
    s_mov_b32 exec_hi, 0x00ff00ff
    buffer_store_short v16, v{st+3}, {OUT}, s96 offen {POL[OPOL]}
    s_mov_b64 exec, -1
    ''')
    if DLY:
        a(f'''
        s_waitcnt vmcnt(0)
        s_memrealtime s[84:85]
        s_waitcnt lgkmcnt(0)
        s_sub_u32 s82, {'s80' if DSEL else 's84'}, s86
        s_mul_i32 s82, s82, {DLY}
        s_add_u32 s82, s82, {(6000 if not PRE else 0) if DSEL else 0}
        s_min_u32 s82, s82, 200000
        ''')
        a.label('L_dly')
        a(f'''
        s_memrealtime s[84:85]
        s_waitcnt lgkmcnt(0)
        s_sub_u32 s83, s84, s86
        s_cmp_lt_u32 s83, s82
        s_cbranch_scc1 L_dly
        ''')
    a.label('L_fin')
    if stamps:
        a('s_waitcnt vmcnt(0)')
        stamp('end')
        a('s_waitcnt lgkmcnt(0)')
        for k in range(8): a(f'v_mov_b32 v{16+k}, s{SREG[k]}')
        a(f'''
        s_lshl_b32 {sT0}, s2, 3
        s_add_u32 {sT0}, {sT0}, {sW_}
        s_lshl_b32 {sT0}, {sT0}, 5
        s_add_u32 {sT0}, {sT0}, {WS_T}
        v_mov_b32 v14, 0
        s_mov_b64 exec, 1
        buffer_store_dwordx4 v[16:19], v14, {WS}, {sT0} offen
        buffer_store_dwordx4 v[20:23], v14, {WS}, {sT0} offen offset:16
        ''')
    a.label('L_end')
    a('s_endpgm')
    a.raw(f'''.section .rodata,"a"
.p2align 6
.amdhsa_kernel {name}
  .amdhsa_next_free_vgpr 256
  .amdhsa_next_free_sgpr 102
  .amdhsa_accum_offset 256
  .amdhsa_group_segment_fixed_size 0
  .amdhsa_kernarg_size 96
  .amdhsa_user_sgpr_count 2
  .amdhsa_user_sgpr_kernarg_segment_ptr 1
  .amdhsa_system_sgpr_workgroup_id_x 1
  .amdhsa_float_denorm_mode_32 3
.end_amdhsa_kernel''')
    return a.text()

if __name__ == '__main__':
    out = sys.argv[1]
    kw = {}
    for x in sys.argv[2:]:
        k, v = x.split('='); kw[k] = int(v)
    open(out, 'w').write(gen(**kw))
```

```python
import sys, struct
from asmdsl import Asm

NAME = 'parallel_sum__sliding_block_cached__geglu_ffn__decode_kernel'
def f32(x): return '0x%08x' % struct.unpack('<I', struct.pack('<f', x))[0]
def lanemask(fn):
    m = 0
    for l in range(64):
        if fn(l & 15, l >> 4): m |= 1 << l
    return m

HEADER = open('parallel_sum__sliding_block_cached__geglu_ffn__decode.s.ref').read().split('; Override')[0]

WS_Y  = 0
WS_S  = 0x100000
WS_E  = 0x0F0000
WS_F  = 0x109000
WS_G  = 0x10A000
WS_P  = 0x110000
WS_T  = 0x300000
WS_SZ = 0x400000
L_PART = 0
L_DUM  = 14336
L_Q    = 15360
L_HID  = 15872
L_CNT  = 16000
L_X    = 16128
L_STG  = 21504
L_YP   = L_STG
BIG = 0x40000000
L2E = 1.4426950408889634
POL = {0: '', 1: 'nt', 2: 'sc0 nt', 3: 'sc1 nt', 4: 'sc0', 5: 'sc1', 6: 'sc0 sc1', 7: 'sc0 sc1 nt'}

def gen(KU=3, KW=0, KP0=9, PP=0, PG=2, PI=3, TP=5, XL=4, T=5, TV=6, TVE=12, VE=30, RV=12, ILV=1, XBEG=4, XEND=14, SLI=28, GST=5, PRIO=1, SLP=8, KPOLL=26, W0N=5, WPOL=0, SPOL=0, KVPOL=1, PPOL=0, DLY=0, DSEL=0, NOS=0, DREL=0, BM=0, PRE=0, SPF=0, PSL=0, CM=2, PM=0, OPOL=0, YLP=5, YSP=5, YCP=5, ROT=3,
        NS=17, SEND=44, EXP=0, stamps=0, name=NAME):
    a = Asm()
    SPIN = (1 << 19) if EXP == 0 else 0
    LDS_SZ = L_STG + max(8 * NS * 1024, 25600)
    assert LDS_SZ <= 163840
    SREG = [80, 82, 84, 86, 56, 58, 60, 62]
    SETS = {1: ['start', 'barA', 'sig', 'kiss', 'barB', 'smax', 'vend', 'end'],
            2: ['start', 'bar0', 'ln', 'barA', 'sig', 'poll', 'qrdy', 'end'],
            3: ['start', 'vend', 'barC', 'mm', 'barD', 'pub', 'c1', 'end'],
            5: ['start', 'ki12', 'ki18', 'ki24', 'ki30', 'ki36', 'ki42', 'ki47'],
            6: ['start', 'ki47', 'vc0', 'vc12', 'vc24', 'vc36', 'vc42', 'vc47'],
            7: ['start', 'bar0', 'barA', 'ki12', 'ki24', 'ki47', 'vc24', 'vc47'],
            4: ['start', 'karg', 'iss1', 'iss2', 'pre0', 'bar0', 'barA', 'end']}
    DN = ['end', 'karg', 'iss1', 'bar0', 'barA', 'sig', 'barB', 'vend', 'iss2', 'smax', 'pre', 'preK', 'c1x', 'barC', 'barDx']
    def stamp(nm):
        if DLY and DSEL and nm == DN[DSEL]: a('s_memrealtime s[80:81]')
        if stamps and nm in SETS[stamps]:
            r = SREG[SETS[stamps].index(nm)]
            a(f's_memrealtime s[{r}:{r+1}]')
    a.raw(HEADER.rstrip())
    a.raw(f'; @launch grid=(256,1,1) block=(512,1,1) lds={LDS_SZ}')
    a.raw('.amdgcn_target "amdgcn-amd-amdhsa--gfx950"\n.text\n.globl %s\n.p2align 8\n.type %s,@function\n%s:' % (name, name, name))
    sW_, sH, sB, sS, sJ, sXCD, sP, sIDX = 's3', 's4', 's5', 's6', 's7', 's68', 's69', 's70'
    K, V, W, WO, WD, X, WS, OUT = 's[8:11]', 's[12:15]', 's[16:19]', 's[20:23]', 's[24:27]', 's[28:31]', 's[32:35]', 's[36:39]'
    sWO0, sWO1, sWDB, sSTG, sWO2, sWO3 = 's40', 's41', 's42', 's43', 's64', 's65'
    sKV, sKV2, sKV0 = 's71', 's72', 's73'
    sT0, sT1, sT2, sT3 = 's74', 's75', 's76', 's77'
    sLO32 = 's[78:79]'
    sM, sSOWN, sYB, sSB = 's88', 's89', 's90', 's91'
    TAG = 's[100:101]'
    KB = 64
    WDT, WOT = 12, 17
    def kt(i): return f'v[{KB+4*i}:{KB+4*i+3}]'
    def v4(r): return f'v[{r}:{r+3}]'
    def srd(d, p, n):
        a(f's_mov_b32 s{d}, s{p}\ns_and_b32 s{d+1}, s{p+1}, 0xffff\ns_mov_b32 s{d+2}, {n}\ns_mov_b32 s{d+3}, 0x20000')
    def rowred(op, r, steps=(8, 4, 2, 1)):
        for s_ in steps: a(f'{op}_dpp v{r}, v{r}, v{r} row_ror:{s_} row_mask:0xf bank_mask:0xf')
    gstep = 6144 * 8 if ILV else 6144
    def grp(g):
        if BM == 1:
            a(f's_add_u32 {sKV}, {sKV0}, {(g>>1)*100663296 + (g&1)*49152}')
        elif BM == 2:
            a(f's_add_u32 {sKV}, s67, {g}\ns_and_b32 {sKV}, {sKV}, 1\ns_mul_i32 {sKV}, {sKV}, 49152\ns_add_u32 {sKV}, {sKV}, {sKV0}\ns_add_u32 {sKV}, {sKV}, {(g>>1)*100663296}')
        elif BM == 3:
            a(f's_add_u32 {sKV}, s67, {g}\ns_and_b32 {sKV}, {sKV}, 3\ns_mul_i32 {sKV}, {sKV}, 49152\ns_add_u32 {sKV}, {sKV}, {sKV0}\ns_add_u32 {sKV}, {sKV}, {(g>>2)*2*100663296}')
        elif ROT:
            a(f's_add_u32 {sKV}, {sJ if ROT == 1 else "s67"}, {g}\ns_and_b32 {sKV}, {sKV}, 7\ns_mul_i32 {sKV}, {sKV}, {gstep}\ns_add_u32 {sKV}, {sKV}, {sKV0}')
        else:
            a(f's_mov_b32 {sKV}, {sKV0}' if g == 0 else f's_add_u32 {sKV}, {sKV}, {gstep}')
    kissued = [0]
    def kload():
        i = kissued[0]; g, e = divmod(i, 6)
        stamp(f'ki{i}')
        if e == 0 and g > 0: grp(g)
        if e < 4: a(f'buffer_load_dwordx4 {kt(i)}, v8, {K}, {sKV} offen offset:{384*e} {POL[KVPOL]}', tag=f'k{i}')
        else:     a(f'buffer_load_dwordx4 {kt(i)}, v9, {K}, {sKV} offen offset:{768*(e-4)} {POL[KVPOL]}', tag=f'k{i}')
        kissued[0] += 1

    assert ILV == 1 and ROT == 3 and 1 <= KU <= 4
    a(f'''
    s_load_dwordx2 s[8:9], s[0:1], 8
    s_load_dwordx16 s[44:59], s[0:1], 0
    s_cmp_ge_u32 s2, 256
    s_cbranch_scc1 L_end''')
    stamp('start')
    if DLY: a('s_memrealtime s[86:87]')
    if PRIO: a('s_setprio 3')
    a(f'''
    v_lshrrev_b32 v14, 6, v0
    v_bfe_u32 v20, v0, 2, 2
    v_readfirstlane_b32 {sW_}, v14
    v_and_b32 v21, 3, v0
    v_lshlrev_b32 v21, 4, v21
    v_mul_u32_u24 v9, 1536, v20
    v_bfe_u32 v3, v0, 4, 2
    v_add_u32 v9, v9, v21
    v_lshl_add_u32 v8, v3, 6, v9       ; vkx = 1536(n>>2)+16(n&3)+64g
    s_and_b32 {sXCD}, s2, 7
    s_lshr_b32 {sT0}, s2, 6
    s_lshl2_add_u32 {sH}, {sXCD}, {sT0}
    s_bfe_u32 {sB}, s2, 0x20004
    s_bfe_u32 {sS}, s2, 0x10003
    s_lshl_b32 {sT0}, {sB}, 5
    s_add_u32 {sSB}, {sT0}, {sH}       ; bh
    s_lshl3_add_u32 {sT0}, {sSB}, {sS}
    s_add_u32 {sT0}, {sT0}, 6
    s_lshl_b32 {sT0}, {sT0}, 6
    s_add_u32 {sT0}, {sT0}, {sW_}
    s_mul_i32 {sKV0}, {sT0}, 6144
    s_mul_i32 s67, s2, 0x9E3779B1
    s_bfe_u32 s67, s67, 0x30014
    s_mul_i32 {sKV}, s67, {gstep}
    s_add_u32 {sKV}, {sKV}, {sKV0}
    s_mov_b32 s10, 402653184
    s_mov_b32 s11, 0x20000
    s_waitcnt lgkmcnt(0)
    ''')
    stamp('karg')
    if PRE:
        srd(12, 48, 402653184)
        a('v_and_b32 v30, 63, v0\nv_lshlrev_b32 v30, 4, v30')
        if PRE == 2:
            a(f's_bfe_u32 {sT0}, s2, 0x30003\ns_lshl_b32 {sT0}, {sT0}, 4\ns_lshl_b32 {sT2}, {sH}, 9\ns_add_u32 {sT0}, {sT0}, {sT2}\ns_add_u32 {sT0}, {sT0}, 384\ns_add_u32 {sT0}, {sT0}, {sW_}\ns_mul_i32 {sT3}, {sT0}, 6144')
        n = 0
        for srd_ in (K, V):
            for g in range(8):
                if PRE == 2: a(f's_add_u32 {sT0}, s67, {g}\ns_and_b32 {sT0}, {sT0}, 1\ns_mul_i32 {sT0}, {sT0}, 49152\ns_add_u32 {sT0}, {sT0}, {sT3}\ns_add_u32 {sT0}, {sT0}, {(g>>1)*100663296}')
                else: a(f's_add_u32 {sT0}, s67, {g}\ns_and_b32 {sT0}, {sT0}, 7\ns_mul_i32 {sT0}, {sT0}, 49152\ns_add_u32 {sT0}, {sT0}, {sKV0}')
                for e in range(6):
                    if n >= 4: a('s_waitcnt vmcnt(3)')
                    if n == 51: stamp('preK')
                    if e == 3: a(f's_add_u32 {sT0}, {sT0}, 3072')
                    a(f'buffer_load_dwordx4 {v4(32+4*(n%4))}, v30, {srd_}, {sT0} offen offset:{1024*(e%3)} nt')
                    n += 1
        a('s_waitcnt vmcnt(0)')
        stamp('pre')
        a.label('L_quiet')
        a('s_sleep 8\ns_memrealtime s[84:85]\ns_waitcnt lgkmcnt(0)\ns_sub_u32 s83, s84, s86\ns_cmp_lt_u32 s83, 4200\ns_cbranch_scc1 L_quiet')
        a.vm.clear()
    if BM in (1, 2):
        a(f's_bfe_u32 {sT0}, s2, 0x30003\ns_lshl_b32 {sT0}, {sT0}, 4\ns_lshl_b32 {sT2}, {sH}, 9\ns_add_u32 {sT0}, {sT0}, {sT2}\ns_add_u32 {sT0}, {sT0}, 384\ns_add_u32 {sT0}, {sT0}, {sW_}\ns_mul_i32 {sKV0}, {sT0}, 6144')
        grp(0)
    if BM == 3:
        a(f's_bfe_u32 {sT0}, s2, 0x20003\ns_lshl_b32 {sT0}, {sT0}, 5\ns_lshl_b32 {sT2}, {sH}, 9\ns_add_u32 {sT0}, {sT0}, {sT2}\ns_bfe_u32 {sT2}, s2, 0x10005\ns_lshl_b32 {sT2}, {sT2}, 14\ns_add_u32 {sT0}, {sT0}, {sT2}\ns_add_u32 {sT0}, {sT0}, 384\ns_add_u32 {sT0}, {sT0}, {sW_}\ns_mul_i32 {sKV0}, {sT0}, 6144')
        grp(0)
    for i in range(KU): kload()
    a(f'''
    s_load_dwordx2 s[24:25], s[0:1], 64
    s_load_dwordx2 s[36:37], s[0:1], 72
    s_load_dwordx2 s[32:33], s[0:1], 88
    v_and_b32 v1, 63, v0
    v_and_b32 v2, 15, v1
    v_lshlrev_b32 v20, 4, v1
    s_lshr_b32 {sJ}, s2, 3
    s_and_b32 {sT1}, {sJ}, 7
    s_mov_b32 s28, s44
    s_mov_b32 s29, s45
    s_movk_i32 s30, 5120
    s_mov_b32 s31, 0x20000
    s_lshl_b32 {sT0}, {sW_}, 10
    s_add_u32 m0, {sT0}, {L_X}
    s_cmp_ge_u32 {sW_}, 5
    s_cbranch_scc1 L_nox
    ''')
    a.role = 'x'
    a(f'buffer_load_dwordx4 v20, {X}, {sT0} offen lds', tag='x')
    a.role = None
    a.label('L_nox')
    stamp('iss1')
    a(f'''
    s_mul_i32 {sT2}, {sXCD}, 27
    s_add_u32 {sT2}, {sT2}, {sJ}
    s_mul_i32 s92, {sT2}, 43691
    s_lshr_b32 s92, s92, 17            ; blk
    s_mul_i32 {sT3}, s92, 3
    s_sub_u32 s93, {sT2}, {sT3}        ; split
    s_mul_i32 s97, s93, 224
    s_lshl_b32 {sT2}, {sW_}, 5
    s_add_u32 s97, s97, {sT2}
    s_sub_u32 {sT2}, s92, 48
    s_sub_u32 {sT3}, s92, 60
    s_cmp_lt_u32 s92, 60
    s_cselect_b32 s16, s56, s58
    s_cselect_b32 s17, s57, s59
    s_cselect_b32 s98, {sT2}, {sT3}
    s_movk_i32 s96, 3072
    s_mov_b32 s18, 1966080
    s_cmp_lt_u32 s92, 48
    s_cselect_b32 s16, s50, s16
    s_cselect_b32 s17, s51, s17
    s_cselect_b32 s18, 7864320, s18
    s_cselect_b32 s96, 12288, s96
    s_cselect_b32 s98, s92, s98
    s_and_b32 s17, s17, 0xffff
    s_mov_b32 s19, 0x20000
    s_mul_i32 s94, s97, s96
    s_lshl_b32 s98, s98, 8
    s_add_u32 s94, s94, s98            ; soffset
    s_cmp_eq_u32 {sW_}, 7
    s_cselect_b32 s94, {BIG}, s94
    s_cmp_ge_u32 {sJ}, {27 if not (EXP & 128) else 0}
    s_cselect_b32 s94, {BIG}, s94
    v_mul_lo_u32 v16, v3, s96
    v_lshl_add_u32 v16, v2, 4, v16     ; g*RS+16n
    s_lshl_b32 s96, s96, 2
    v_lshrrev_b32 v22, 1, v3
    v_mul_u32_u24 v21, 384, v22
    v_add_u32 v9, v9, v21
    v_and_b32 v22, 1, v3
    v_lshlrev_b32 v22, 6, v22
    v_add3_u32 v9, v9, v22, 64
    v_add_u32 v9, 192, v9              ; vky
    ''')
    WT = 224
    wiss = [0]
    def wload():
        t = wiss[0]
        a(f'buffer_load_dwordx4 {v4(WT+4*t)}, v16, {W}, s94 offen {POL[PPOL]}', tag=f'w{t}')
        if t < 7: a(f's_add_u32 s94, s94, s96')
        wiss[0] += 1
    pcnt = [0]
    def pstep(paced=True):
        if paced: a(f's_waitcnt vmcnt({TP-1})')
        pcnt[0] += 1
        if wiss[0] < 8 and pcnt[0] % (PG + 1) != 0: wload()
        else: kload()
    if PP:
        for _ in range(PI): pstep(False)
    else:
        for t in range(8):
            wload()
            if t == 3:
                for _ in range(KW): kload()
        KU = KU + KW
    stamp('iss2')
    if PRIO: a('s_setprio 0')
    def kmore(frac):
        if PP: pstep(); return
        while kissued[0] < KU + int((KP0 - KU) * frac + 0.5): kload()
    def pmore():
        if PP: pstep()
    a(f's_waitcnt lgkmcnt(0)\ns_load_dwordx2 {TAG}, s[32:33], {WS_E}')
    a(f's_mov_b32 s34, {WS_SZ}\ns_mov_b32 s35, 0x20000\ns_mov_b32 s26, 1966080\ns_mov_b32 s27, 0x20000\ns_movk_i32 s38, 5120\ns_mov_b32 s39, 0x20000')
    srd(12, 48, 402653184); srd(20, 52, 7864320)
    if SPF & 1:
        a(f'''
        s_cmp_lg_u32 {sW_}, 7
        s_cbranch_scc1 L_nospf1
        s_mul_i32 {sT0}, {sH}, {192*1280}
        s_add_u32 {sT2}, {sT0}, {192*1280-64}
        s_buffer_load_dword s60, {WO}, {sT0}
        s_buffer_load_dword s60, {WO}, {sT2}
        s_sub_u32 {sT0}, {sKV0}, {7*6144}
        s_add_u32 {sT2}, {sT0}, {393216-64}
        s_buffer_load_dword s60, {K}, {sT0}
        s_buffer_load_dword s60, {K}, {sT2}
        ''')
        a.label('L_nospf1')
    a(f'''
    s_lshl_b32 {sP}, {sH}, 1
    s_add_u32 {sP}, {sP}, {sS}
    s_lshl_b32 {sIDX}, {sXCD}, 5
    s_add_u32 {sIDX}, {sIDX}, {sJ}
    s_mov_b32 s78, -1
    s_mov_b32 s79, 0
    s_lshl_b32 {sT0}, {sB}, 6
    s_add_u32 {sT0}, {sT0}, {sP}
    s_mul_i32 {sYB}, {sT0}, 2560
    s_lshl_b32 {sSB}, {sSB}, 8
    s_add_u32 {sSB}, {sSB}, {WS_S}
    s_lshl_b32 {sT2}, {sS}, 3
    s_add_u32 {sT2}, {sT2}, {sW_}
    s_lshl_b32 {sT2}, {sT2}, 4
    s_add_u32 {sSOWN}, {sSB}, {sT2}
    s_mul_i32 {sWDB}, {sP}, 24
    s_mul_i32 {sT0}, {sW_}, 3
    s_add_u32 {sWDB}, {sWDB}, {sT0}
    s_mul_i32 {sWDB}, {sWDB}, 1280
    s_mul_i32 {sWO0}, {sH}, 192
    s_mul_i32 {sT0}, {sW_}, 24
    s_add_u32 {sWO0}, {sWO0}, {sT0}
    s_mul_i32 {sWO0}, {sWO0}, 1280
    s_add_u32 {sWO1}, {sWO0}, 5120
    s_add_u32 {sWO2}, {sWO0}, 15360
    s_add_u32 {sWO3}, {sWO0}, 20480
    s_mul_i32 {sSTG}, {sW_}, {NS*1024}
    s_add_u32 {sSTG}, {sSTG}, {L_STG}
    v_mov_b32 v17, 1280
    v_mul_u32_u24 v18, 1280, v3
    v_lshl_add_u32 v18, v2, 4, v18     ; 1280g+16n
    s_lshl_b32 s97, s97, 1
    s_min_u32 s97, s97, 1216
    v_lshl_add_u32 v19, v3, 1, s97
    v_lshrrev_b32 v14, 3, v2
    v_mad_u32_u24 v19, v14, v17, v19   ; + 1280*(m>>3)
    v_and_b32 v15, 7, v2
    v_lshlrev_b32 v15, 4, v15          ; 16*(n&7)
    v_and_b32 v20, 1, v2
    v_cmp_eq_u32 vcc, 1, v20
    v_mov_b32 v21, 0xffff
    v_mov_b32 v22, 0xffff0000
    v_cndmask_b32 v21, v21, v22, vcc
    v_bfe_u32 v20, v2, 1, 2
    ''')
    for r in range(4):
        a(f'v_cmp_eq_u32 vcc, {r}, v20\nv_cndmask_b32 v{4+r}, 0, v21, vcc')
    a(f'''
    v_mul_u32_u24 v10, 384, v3
    v_lshrrev_b32 v20, 3, v2
    v_mul_u32_u24 v11, 3072, v20
    v_add3_u32 v11, v11, v10, v15
    v_add_u32 v11, 256, v11            ; vvy = (g+8*(n>>3))*384+256+16*(n&7)
    v_lshl_add_u32 v10, v2, 4, v10     ; vvx = g*384+16n
    v_lshrrev_b32 v12, 1, v3
    v_mul_u32_u24 v12, 5120, v12
    v_add_u32 v12, v12, v18            ; vwo = (6(g>>1)+(g&1))*1280+16n
    v_mov_b32 v22, {BIG}
    v_cmp_eq_u32 vcc, 3, v3
    v_cndmask_b32 v13, v18, v22, vcc   ; vwd = g*1280+16n  (g==3 -> out of range)
    v_lshrrev_b32 v20, 1, v3
    v_lshlrev_b32 v20, 9, v20
    v_and_b32 v22, 1, v3
    v_lshl_add_u32 v22, v22, 4, v20
    v_lshl_add_u32 v22, v2, 5, v22
    s_lshl_b32 {sT0}, {sW_}, 11
    v_add_u32 v22, {sT0}, v22
    v_mov_b32 v20, {L_CNT}
    v_mov_b32 v21, 0
    ds_write_b32 v20, v21
    ds_write_b32 v20, v21 offset:4
    ''')
    if EXP & 64: a(f'v_mov_b32 v12, {BIG}\nv_mov_b32 v13, {BIG}')
    stamp('pre0')
    a.role = 'x'; a.wait_vm('x'); a.role = None
    a('s_barrier')
    stamp('bar0')
    XS, XO, U, XN, AB, ACC, XV = 24, 44, 184, 184, 200, 216, 168
    for i in range(5): a(f'ds_read_b128 {v4(XS+4*i)}, v18 offset:{L_X+256*i}')
    for pr in range(2):
        for t in range(8): a(f'ds_read_u16 v{XV+8*pr+t}, v19 offset:{L_X+2560*pr+8*t}')
    kmore(1/6)
    a(f'''
    s_waitcnt lgkmcnt(0)
    s_mul_i32 s100, s100, 0x9E3779B1
    s_add_u32 s100, s100, 0x7F4A7C15
    s_mul_i32 s101, s101, 0x85EBCA69
    s_add_u32 s101, s101, 0xC2B2AE35
    ''')
    for i in range(20):
        a(f'v_lshlrev_b32 v{U+2*i}, 16, v{XS+i}\nv_and_b32 v{U+2*i+1}, 0xffff0000, v{XS+i}')
    pmore()
    a(f'v_pk_add_f32 v[52:53], v[{U}:{U+1}], v[{U+2}:{U+3}]\nv_pk_add_f32 v[54:55], v[{U+4}:{U+5}], v[{U+6}:{U+7}]')
    for i in range(8, 40, 2):
        d = 52 + (i & 2)
        a(f'v_pk_add_f32 v[{d}:{d+1}], v[{d}:{d+1}], v[{U+i}:{U+i+1}]')
    a('v_pk_add_f32 v[52:53], v[52:53], v[54:55]\nv_add_f32 v52, v52, v53')
    rowred('v_add_f32', 52)
    a(f'v_mul_f32 v56, {f32(-1/640)}, v52')
    kmore(2/6)
    for i in range(0, 40, 2): a(f'v_pk_add_f32 v[{U+i}:{U+i+1}], v[{U+i}:{U+i+1}], v[56:57] op_sel_hi:[1,0]')
    a(f'v_pk_mul_f32 v[52:53], v[{U}:{U+1}], v[{U}:{U+1}]\nv_pk_mul_f32 v[54:55], v[{U+2}:{U+3}], v[{U+2}:{U+3}]')
    for i in range(4, 40, 2):
        d = 52 + (i & 2)
        a(f'v_pk_fma_f32 v[{d}:{d+1}], v[{U+i}:{U+i+1}], v[{U+i}:{U+i+1}], v[{d}:{d+1}]')
    a('v_pk_add_f32 v[52:53], v[52:53], v[54:55]\nv_add_f32 v52, v52, v53')
    rowred('v_add_f32', 52)
    a(f'''
    v_mul_f32 v52, {f32(1/640)}, v52
    v_cvt_pk_bf16_f32 v53, v56, v52
    v_lshlrev_b32 v56, 16, v53
    v_and_b32 v52, 0xffff0000, v53
    v_add_f32 v52, {f32(1e-5)}, v52
    v_cvt_pk_bf16_f32 v52, v52, v52
    v_and_b32 v52, 0xffff0000, v52
    v_sqrt_f32 v52, v52
    v_cvt_pk_bf16_f32 v52, v52, v52
    v_and_b32 v52, 0xffff0000, v52
    v_rcp_f32 v52, v52
    v_lshlrev_b32 v53, 6, v14
    v_add_u32 v54, 128, v53
    ds_bpermute_b32 v58, v53, v56
    ds_bpermute_b32 v60, v54, v56
    ds_bpermute_b32 v24, v53, v52
    ds_bpermute_b32 v26, v54, v52
    ''')
    kmore(3/6)
    for k in range(16): a(f'v_lshlrev_b32 v{XN+k}, 16, v{XV+k}')
    a('s_waitcnt lgkmcnt(0)')
    for pr in range(2):
        for k in range(4):
            r = XN + 8*pr + 2*k
            a(f'v_pk_add_f32 v[{r}:{r+1}], v[{r}:{r+1}], v[{58+2*pr}:{59+2*pr}] op_sel_hi:[1,0]')
    for k in range(8): a(f'v_cvt_pk_bf16_f32 v{XO+k}, v{XN+2*k}, v{XN+2*k+1}')
    for k in range(8): a(f'v_lshlrev_b32 v{XN+2*k}, 16, v{XO+k}\nv_and_b32 v{XN+2*k+1}, 0xffff0000, v{XO+k}')
    for pr in range(2):
        for k in range(4):
            r = XN + 8*pr + 2*k
            a(f'v_pk_mul_f32 v[{r}:{r+1}], v[{r}:{r+1}], v[{24+2*pr}:{25+2*pr}] op_sel_hi:[1,0]')
    for k in range(16): a(f'v_cvt_pk_bf16_f32 v{XN+k}, v{XN+k}, v{XN+k}')
    stamp('ln')
    kmore(4/6)
    if PP:
        while wiss[0] < 8: pstep()
    for t in range(8):
        for pr in range(2):
            ab = AB + 4*((2*t + pr) & 3)
            for r in range(4): a(f'v_and_b32 v{ab+r}, v{XN+8*pr+t}, v{4+r}')
        a.wait_vm(f'w{t}')
        for pr in range(2):
            ab = AB + 4*((2*t + pr) & 3); d = v4(ACC + 4*pr)
            a(f'v_mfma_f32_16x16x32_bf16 {d}, {v4(ab)}, {v4(WT+4*t)}, {0 if t == 0 else d}')
        if PP:
            idx = max(k for k, (tg, r) in enumerate(a.vm) if tg == f'w{t}')
            while len(a.vm) - 1 - idx < TP: pstep(False)
        elif t == 3: kmore(5/6)
    stamp('wland')
    kmore(1)
    if PP: KP0 = kissued[0]
    a(f's_cmp_eq_u32 {sW_}, 7\ns_cbranch_scc1 L_nopart')
    for pr in range(2): a(f'ds_write_b128 v22, {v4(ACC+4*pr)} offset:{1024*pr}')
    a.label('L_nopart')
    a('s_waitcnt lgkmcnt(0)\ns_barrier')
    stamp('barA')
    def padd(d, s_, n):
        for r in range(0, n, 2): a(f'v_pk_add_f32 v[{d+r}:{d+r+1}], v[{d+r}:{d+r+1}], v[{s_+r}:{s_+r+1}]')
    a(f'''
    s_cmp_lt_u32 {sW_}, 6
    s_cbranch_scc1 L_nopub
    v_and_b32 v14, 127, v0
    v_lshlrev_b32 v15, 4, v14
    ''')
    for u in range(7): a(f'ds_read_b128 {v4(16+4*u)}, v15 offset:{2048*u}')
    a(f'''
    v_lshrrev_b32 v14, 5, v14
    s_mov_b32 {sT0}, {36864-512}
    v_mad_u32_u24 v14, v14, {sT0}, v15     ; b*36864 + 16*(t&31)
    s_mul_i32 {sT0}, s93, 147456
    s_lshl_b32 {sT2}, s92, 9
    s_add_u32 {sT0}, {sT0}, {sT2}
    s_add_u32 {sT0}, {sT0}, {WS_P}
    s_cmp_ge_u32 {sJ}, {27 if not (EXP & 8) else 0}
    s_cselect_b32 {sT0}, {BIG}, {sT0}
    s_waitcnt lgkmcnt(0)
    ''')
    padd(16, 32, 12); padd(16, 24, 8); padd(16, 20, 4)
    a.role = 'pub'
    a(f'buffer_store_dwordx4 v[16:19], v14, {WS}, {sT0} offen sc1', tag='pub')
    a.role = None
    a.label('L_nopub')
    if SPF & 2:
        a(f'''
        s_cmp_lg_u32 {sW_}, 5
        s_cbranch_scc1 L_nospf2
        s_sub_u32 {sT0}, {sKV0}, {5*6144}
        s_add_u32 {sT2}, {sT0}, {393216-64}
        s_buffer_load_dword s60, {V}, {sT0}
        s_buffer_load_dword s60, {V}, {sT2}
        s_buffer_load_dword s60, {WD}, {sWDB}
        s_buffer_load_dword s60, {OUT}, 0
        ''')
        a.label('L_nospf2')
    def wotile(n):
        uc, h = divmod(n, 2); c, u = divmod(uc, 3)
        return [[sWO0, sWO1], [sWO2, sWO3]][h][u == 2], (2560 if u == 1 else 0) + 256*c
    kseq = []
    si = 0
    for i in range(KP0, 48):
        kseq.append('k')
        while si < NS and (si + 1) * (SEND - KP0) <= (i + 1 - KP0) * NS:
            kseq.append('s'); si += 1
    assert si == NS
    kp = [0]; sissued = [0]
    def kstep(paced):
        op = kseq[kp[0]]; kp[0] += 1
        if paced: a(f's_waitcnt vmcnt({T-1})')
        if op == 'k': kload()
        else:
            n = sissued[0]; so, imm = wotile(n)
            a(f's_add_u32 m0, {sSTG}, {1024*n - imm}' if 1024*n >= imm else f's_sub_u32 m0, {sSTG}, {imm - 1024*n}')
            a(f'buffer_load_dwordx4 v12, {WO}, {so} offen offset:{imm} {POL[SPOL]} lds', tag='stg')
            sissued[0] += 1
    for _ in range(T - 1): kstep(True)
    a(f's_cmp_lt_u32 {sW_}, 6\ns_cbranch_scc1 L_nosig')
    a.role = 'pub'; a.wait_vm('pub'); a.role = None
    a(f'''
    v_mov_b32 v14, {L_CNT}
    v_mov_b32 v15, 1
    s_mov_b64 exec, 1
    ds_add_rtn_u32 v20, v14, v15
    s_waitcnt lgkmcnt(0)
    v_readfirstlane_b32 {sT0}, v20
    s_cmp_eq_u32 {sT0}, 1
    s_cbranch_scc0 L_nosig
    s_mov_b64 exec, 3
    s_lshl_b32 {sT0}, s92, 2
    s_add_u32 {sT0}, {sT0}, s93
    s_lshl_b32 {sT0}, {sT0}, 3
    s_add_u32 {sT0}, {sT0}, {WS_F}
    s_cmp_ge_u32 {sJ}, 27
    s_cselect_b32 {sT0}, {BIG}, {sT0}
    s_lshl_b32 {sT2}, {sIDX}, 3
    s_add_u32 {sT2}, {sT2}, {WS_G}
    v_mov_b32 v20, {sT0}
    v_writelane_b32 v20, {sT2}, 1
    v_mov_b32 v14, s100
    v_mov_b32 v15, s101
    ''')
    a(f'buffer_store_dwordx2 v[14:15], v20, {WS}, 0 offen sc1'); a.vm.pop()
    a.label('L_nosig')
    a('s_mov_b64 exec, -1')
    stamp('sig')
    while kissued[0] < KPOLL: kstep(True)
    a(f's_cmp_eq_u32 {sW_}, 0\ns_cbranch_scc1 L_w0')
    fork = (list(a.vm), kissued[0], kp[0], sissued[0])
    while kp[0] < len(kseq): kstep(True)
    stamp('kiss'); stamp('poll'); stamp('qrdy')
    a('s_branch L_join')
    vm_join = list(a.vm)
    a.vm, kissued[0], kp[0], sissued[0] = fork
    a.label('L_w0')
    a(f'''
    v_min_u32 v60, 59, v1
    v_lshlrev_b32 v60, 2, v60
    s_mul_i32 {sT0}, {sH}, 192
    s_mul_i32 {sT2}, {sP}, 24
    s_add_u32 {sT2}, {sT2}, {6144-192}
    s_add_u32 {sT3}, {sT2}, {1536-24}
    v_mov_b32 v61, {sT0}
    v_mov_b32 v62, {sT2}
    v_cmp_le_u32 vcc, 48, v1
    v_cndmask_b32 v61, v61, v62, vcc
    v_mov_b32 v62, {sT3}
    v_cmp_le_u32 vcc, 54, v1
    v_cndmask_b32 v61, v61, v62, vcc
    v_add_u32 v60, v60, v61
    v_lshrrev_b32 v61, 7, v60
    v_lshlrev_b32 v61, 5, v61
    v_lshlrev_b32 v60, 2, v60
    s_mov_b32 {sT2}, {WS_F}
    s_mov_b32 {sT1}, {SPIN}
    ''')
    if EXP & 1: a(f'v_mov_b32 v61, {BIG}')
    a(f'buffer_load_dwordx4 v[16:19], v61, {WS}, {sT2} offen sc1')
    a(f'buffer_load_dwordx2 v[20:21], v61, {WS}, {sT2} offen offset:16 sc1', tag='poll')
    for _ in range(T - 1): kstep(True)
    a.wait_vm('poll')
    a.label('L_spin1')
    a(f'''
    v_cmp_ne_u64 vcc, {TAG}, v[16:17]
    v_cmp_ne_u64 s[44:45], {TAG}, v[18:19]
    v_cmp_ne_u64 s[46:47], {TAG}, v[20:21]
    s_or_b64 vcc, vcc, s[44:45]
    s_or_b64 vcc, vcc, s[46:47]
    s_cbranch_scc0 L_ok1
    s_sub_u32 {sT1}, {sT1}, 1
    s_cbranch_scc1 L_ok1
    s_sleep {SLP}
    buffer_load_dwordx4 v[16:19], v61, {WS}, {sT2} offen sc1
    buffer_load_dwordx2 v[20:21], v61, {WS}, {sT2} offen offset:16 sc1
    s_waitcnt vmcnt(0)
    s_branch L_spin1
    ''')
    a.vm.pop(); a.vm.pop()
    a.label('L_ok1')
    stamp('poll')
    a(f's_mul_i32 {sT0}, {sB}, 36864\ns_add_u32 {sT0}, {sT0}, {WS_P}')
    if EXP & 2: a(f'v_mov_b32 v60, {BIG}')
    for t in range(3):
        a(f'buffer_load_dwordx4 {v4(16+4*t)}, v60, {WS}, {sT0} offen sc1', tag='gq')
        if t < 2: a(f's_add_u32 {sT0}, {sT0}, 147456')
    for _ in range(W0N): kstep(False)
    a.wait_vm('gq')
    padd(16, 20, 4); padd(16, 24, 4)
    a(f'''
    v_cvt_pk_bf16_f32 v16, v16, v17
    v_cvt_pk_bf16_f32 v17, v18, v19
    v_lshlrev_b32 v14, 3, v1
    ds_write_b64 v14, v[16:17] offset:{L_Q}
    v_min_u32 v14, 23, v1
    v_lshlrev_b32 v14, 1, v14
    s_waitcnt lgkmcnt(0)
    ds_read_u16 v20, v14 offset:{L_Q+384}
    ds_read_u16 v21, v14 offset:{L_Q+432}
    s_waitcnt lgkmcnt(0)
    v_lshlrev_b32 v20, 16, v20
    v_lshlrev_b32 v21, 16, v21             ; up
    v_mul_f32 v22, v20, v20
    v_mul_f32 v22, {f32(0.044715)}, v22
    v_fma_f32 v22, v22, v20, v20           ; x + c x^3
    v_mul_f32 v22, {f32(-2*0.7978845608028654*L2E)}, v22
    v_exp_f32 v22, v22
    v_add_f32 v22, 1.0, v22
    v_rcp_f32 v22, v22
    v_mul_f32 v22, v22, v20
    v_cvt_pk_bf16_f32 v22, v22, v22
    v_and_b32 v22, 0xffff0000, v22
    v_mul_f32 v22, v22, v21
    v_cvt_pk_bf16_f32 v22, v22, v22
    v_cmp_gt_u32 vcc, 24, v1
    v_cndmask_b32 v22, 0, v22, vcc
    v_min_u32 v14, 31, v1
    v_lshlrev_b32 v14, 2, v14
    ds_write_b32 v14, v22 offset:{L_HID}
    v_mov_b32 v14, {L_CNT}
    v_mov_b32 v15, 1
    s_waitcnt lgkmcnt(0)
    ds_write_b32 v14, v15 offset:4
    ''')
    def xred8(base, n, tmp):
        for r in range(n): a(f'v_add_f32_dpp v{base+r}, v{base+r}, v{base+r} row_ror:8 row_mask:0xf bank_mask:0xf')
        for sw in ('v_permlane16_swap_b32', 'v_permlane32_swap_b32'):
            for r in range(n): a(f'v_mov_b32 v{tmp+r}, v{base+r}')
            for r in range(n): a(f'{sw} v{base+r}, v{tmp+r}')
            padd(base, tmp, n)
    stamp('qrdy')
    while kp[0] < len(kseq): kstep(True)
    stamp('kiss')
    a.vm = vm_join
    a.label('L_join')
    a(f'v_mov_b32 v14, {L_CNT}\ns_mov_b32 {sT1}, {1<<24}')
    a.label('L_spinq')
    a(f'''
    ds_read_b32 v15, v14 offset:4
    s_waitcnt lgkmcnt(0)
    v_readfirstlane_b32 {sT0}, v15
    s_cmp_lg_u32 {sT0}, 0
    s_cbranch_scc1 L_okq
    s_sub_u32 {sT1}, {sT1}, 1
    s_cbranch_scc1 L_okq
    s_sleep 1
    s_branch L_spinq
    ''')
    a.label('L_okq')
    stamp('barB')
    a(f'''
    v_and_b32 v14, 3, v2
    v_lshl_add_u32 v15, v3, 2, v14
    v_lshlrev_b32 v15, 4, v15
    ds_read_b128 v[56:59], v15 offset:{L_Q}
    v_and_b32 v15, 0x70, v15
    ds_read_b128 v[60:63], v15 offset:{L_Q+256}
    ''')
    mX = [lanemask(lambda m, g, u=u: (m >> 2) == u) for u in range(4)]
    mY = [lanemask(lambda m, g, w=w: (m >> 2) == 2*w + (g >> 1)) for w in range(2)]
    for k, m in enumerate(mX + mY):
        a(f's_mov_b32 s{44+2*k}, {hex(m & 0xffffffff)}\ns_mov_b32 s{45+2*k}, {hex(m >> 32)}')
    a('s_waitcnt lgkmcnt(0)')
    for k in range(6):
        src = 56 if k < 4 else 60
        for r in range(4): a(f'v_cndmask_b32 v{32+4*k+r}, 0, v{src+r}, s[{44+2*k}:{45+2*k}]')
    vissued = [0]
    def vreg(i): return kt(i % RV)
    def vload():
        i = vissued[0]; g, e = divmod(i, 6); c, x = divmod(e, 3)
        if e == 0:
            grp(g)
            a(f's_add_u32 {sKV2}, {sKV}, 3072')
        if x == 0:   a(f'buffer_load_dwordx4 {vreg(i)}, v10, {V}, {sKV} offen offset:{1536*c} {POL[KVPOL]}', tag=f'v{i}')
        elif x == 1: a(f'buffer_load_dwordx4 {vreg(i)}, v10, {V}, {sKV2} offen offset:{1536*c} {POL[KVPOL]}', tag=f'v{i}')
        else:        a(f'buffer_load_dwordx4 {vreg(i)}, v11, {V}, {sKV} offen offset:{1536*c} {POL[KVPOL]}', tag=f'v{i}')
        vissued[0] += 1
    assert RV <= 12
    extras = [('wd', c) for c in range(5)] + [('wo', n) for n in range(NS, 30)]
    xiss = [0]
    def xtile(e): return WDT + e[1] if e[0] == 'wd' else WOT + e[1]
    def xload():
        e = extras[xiss[0]]
        if e[0] == 'wd':
            a(f'buffer_load_dwordx4 {kt(xtile(e))}, v13, {WD}, {sWDB} offen offset:{256*e[1]} {POL[WPOL]}', tag='wd')
        else:
            so, imm = wotile(e[1])
            a(f'buffer_load_dwordx4 {kt(xtile(e))}, v12, {WO}, {so} offen offset:{imm} {POL[WPOL]}', tag=f'wo{e[1]}')
        xiss[0] += 1
    SC = 0.07216878364870322
    def score_post(g):
        d = 24 + 4*(g & 1); s_ = 16 + g
        a(f'''
        v_mov_b32_dpp v{s_}, v{d} quad_perm:[0,0,0,0] row_mask:0xf bank_mask:0xf
        v_add_f32_dpp v{s_}, v{d+1}, v{s_} quad_perm:[1,1,1,1] row_mask:0xf bank_mask:0xf
        v_add_f32_dpp v{s_}, v{d+2}, v{s_} quad_perm:[2,2,2,2] row_mask:0xf bank_mask:0xf
        v_add_f32_dpp v{s_}, v{d+3}, v{s_} quad_perm:[3,3,3,3] row_mask:0xf bank_mask:0xf
        ''')
        if NOS < 1: a(f'v_cvt_pk_bf16_f32 v{s_}, v{s_}, v{s_}\nv_and_b32 v{s_}, 0xffff0000, v{s_}')
        a(f'v_mul_f32 v{s_}, {f32(SC)}, v{s_}')
        if NOS < 2: a(f'v_cvt_pk_bf16_f32 v{s_}, v{s_}, v{s_}\nv_and_b32 v{s_}, 0xffff0000, v{s_}')
    nx = len(extras) - XL
    span = 48 - XBEG - XEND
    seq = []
    xi = 0
    for i in range(48):
        seq.append('v')
        if i == SLI: seq.append('sl')
        if xi < 5 and i >= XBEG:
            seq.append('x'); xi += 1
        while xi < nx and i >= XBEG and (xi + 1) * span <= (i + 1 - XBEG) * nx:
            seq.append('x'); xi += 1
    assert xi == nx
    seq += ['x'] * XL
    nx += XL
    sp = [0]
    did_wd = [False]
    SS = KB + 4*47
    st = KB + 4*WDT
    GF = st + 12
    def statload():
        a(f'''
        v_lshlrev_b32 v8, 4, v2
        s_mul_i32 s95, {sP}, 43691
        s_lshr_b32 s95, s95, 17
        s_mul_i32 {sT0}, {sB}, 1280
        s_lshl_b32 {sT1}, s95, 6
        s_add_u32 s96, {sT0}, {sT1}
        s_mul_i32 {sT0}, s95, 3
        s_mov_b32 s97, 1
        s_cmp_lg_u32 {sT0}, {sP}
        s_cselect_b32 s97, 0, s97
        s_cmp_ge_u32 s95, 20
        s_cselect_b32 s97, 0, s97
        s_cmp_lg_u32 {sW_}, 7
        s_cselect_b32 s97, 0, s97
        v_lshlrev_b32 v9, 4, v1
        s_mov_b32 s98, {WS_G}
        s_cmp_eq_u32 s2, 0
        s_cselect_b32 s99, s97, 0
        s_cmp_eq_u32 s99, 0
        s_cbranch_scc1 L_nogf
        buffer_load_dwordx4 {v4(GF)}, v9, {WS}, s98 offen sc1
        buffer_load_dwordx4 {v4(GF+4)}, v9, {WS}, s98 offen offset:1024 sc1
        ''')
        a.vm.pop(); a.vm.pop()
        a.label('L_nogf')
        a(f'buffer_load_dwordx4 {v4(SS)}, v8, {WS}, {sSB} offen sc1', tag='sl')
    def pump(lasttag, kfree, vcons):
        while sp[0] < len(seq):
            idx = max(k for k, (t, r) in enumerate(a.vm) if t == lasttag)
            if len(a.vm) - 1 - idx >= (TV if vcons < VE else TVE): break
            op = seq[sp[0]]
            if op == 'v':
                i = vissued[0]
                if i < RV:
                    if i >= kfree: break
                elif i - RV >= vcons: break
                vload()
            elif op == 'x':
                if xtile(extras[xiss[0]]) >= kfree: break
                xload()
            else:
                assert did_wd[0]
                statload()
            sp[0] += 1
    done = [t for (t, r) in a.vm[:len(a.vm) - T]]
    known = max(int(t[1:]) for t in done if t and t[0] == 'k' and t[1:].isdigit())
    a.wait_vm(f'k{known}')
    for g in range(8):
        d = v4(24 + 4*(g & 1))
        for e in range(6):
            i = 6*g + e
            if i > known:
                a.wait_vm(f'k{i}'); known = i
            a(f'v_mfma_f32_16x16x32_bf16 {d}, {v4(32+4*e)}, {kt(i)}, {0 if e == 0 else d}')
            if i == known: pump(f'k{known}', i + 1, 0)
        if 6*g + 5 < known and (g & 1) == 0 and known < 47:
            known += 1
            a.wait_vm(f'k{known}')
            pump(f'k{known}', 6*g + 6, 0)
        if g > 0: score_post(g-1)
    score_post(7)
    if NS:
        a.wait_vm('stg')
        a(f'v_lshlrev_b32 v14, 4, v1\nv_add_u32 v14, {sSTG}, v14')
        for n in range(NS): a(f'ds_read_b128 {kt(WOT+n)}, v14 offset:{1024*n}')
    def allred(op, r, t):
        rowred(op, r, (4, 8))
        a(f'v_mov_b32 v{t}, v{r}\nv_permlane16_swap_b32 v{r}, v{t}\n{op} v{r}, v{r}, v{t}')
        a(f'v_mov_b32 v{t}, v{r}\nv_permlane32_swap_b32 v{r}, v{t}\n{op} v{r}, v{r}, v{t}')
    a('v_max3_f32 v28, v16, v17, v18\nv_max3_f32 v15, v19, v20, v21\nv_max3_f32 v28, v28, v22, v23\nv_max_f32 v28, v28, v15')
    allred('v_max_f32', 28, 15)
    for g in range(8): a(f'v_sub_f32 v{16+g}, v{16+g}, v28')
    for g in range(8): a(f'v_mul_f32 v{16+g}, {f32(L2E)}, v{16+g}')
    for g in range(8): a(f'v_exp_f32 v{16+g}, v{16+g}')
    a('v_add_f32 v30, v16, v17\nv_add_f32 v24, v18, v19\nv_add_f32 v25, v20, v21\nv_add_f32 v26, v22, v23\nv_add_f32 v30, v30, v24\nv_add_f32 v25, v25, v26\nv_add_f32 v30, v30, v25')
    allred('v_add_f32', 30, 24)
    for g in range(8): a(f'v_cvt_pk_bf16_f32 v{16+g}, v{16+g}, v{16+g}')
    a(f'''
    v_mov_b32 v29, s100
    v_mov_b32 v31, s101
    v_mov_b32 v24, 0
    v_readfirstlane_b32 {sM}, v28          ; own m
    s_mov_b64 exec, 1
    ''')
    if EXP & 256: a(f's_cmp_eq_u32 {sW_}, 0\ns_cselect_b32 {sSOWN}, {sSOWN}, {BIG}\ns_cselect_b32 {sSB}, {sSB}, {BIG}')
    a(f'buffer_store_dwordx4 v[28:31], v24, {WS}, {sSOWN} offen sc1', tag='stat')
    a('s_mov_b64 exec, -1')
    stamp('smax')
    YA, OA = 44, 32
    a(f'''
    s_mul_i32 {sT0}, {sW_}, 12
    v_lshlrev_b32 v24, 2, v3
    v_add_u32 v24, {sT0}, v24
    v_mov_b32 v25, 124
    v_cmp_eq_u32 vcc, 3, v3
    v_cndmask_b32 v24, v24, v25, vcc
    ds_read_b32 v14, v24 offset:{L_HID}
    s_waitcnt lgkmcnt(0)
    ''')
    for g in range(8):
        for c in range(2):
            A = 24 + 4*c
            if c == 0: a(f'v_mov_b32 v15, v{16+g}\nv_mov_b32_dpp v15, v{16+g} row_shr:4 row_mask:0xf bank_mask:0xa')
            else:      a(f'v_mov_b32 v15, v{16+g}\nv_mov_b32_dpp v15, v{16+g} row_shl:4 row_mask:0xf bank_mask:0x5')
            for r in range(4): a(f'v_and_b32 v{A+r}, v15, v{4+r}')
            for x in range(3):
                i = 6*g + 3*c + x
                d = v4(OA + 4*x)
                a.wait_vm(f'v{i}')
                stamp(f'vc{i}')
                a(f'v_mfma_f32_16x16x32_bf16 {d}, {v4(A)}, {vreg(i)}, {0 if i < 3 else d}')
                pump(f'v{i}', 48, i + 1)
        if g == 2:
            did_wd[0] = True
            assert xiss[0] >= 5
            for r in range(4): a(f'v_and_b32 v{24+r}, v14, v{4+r}')
            a.wait_vm('wd')
            for c in range(5):
                a(f'v_mfma_f32_16x16x32_bf16 {v4(YA+4*c)}, v[24:27], {kt(WDT+c)}, 0')
        if g == GST:
            a(f's_mov_b32 {sT1}, {SPIN}')
            a.wait_vm('sl')
            a.label('L_spin2')
            a(f'''
            v_cmp_ne_u32 vcc, s100, v{SS+1}
            v_cmp_ne_u32 s[44:45], s101, v{SS+3}
            s_or_b64 vcc, vcc, s[44:45]
            s_cbranch_scc0 L_ok2
            s_sub_u32 {sT1}, {sT1}, 1
            s_cbranch_scc1 L_ok2
            s_sleep 4
            buffer_load_dwordx4 {v4(SS)}, v8, {WS}, {sSB} offen sc1
            s_waitcnt vmcnt(0)
            s_branch L_spin2
            ''')
            a.vm.pop()
            a.label('L_ok2')
            a(f'''
            s_cmp_eq_u32 s99, 0
            s_cbranch_scc1 L_ok2b
            s_mov_b32 {sT1}, {SPIN}
            ''')
            a.label('L_spin2b')
            a(f'''
            v_cmp_ne_u64 vcc, {TAG}, v[{GF}:{GF+1}]
            v_cmp_ne_u64 s[44:45], {TAG}, v[{GF+2}:{GF+3}]
            v_cmp_ne_u64 s[46:47], {TAG}, v[{GF+4}:{GF+5}]
            v_cmp_ne_u64 s[48:49], {TAG}, v[{GF+6}:{GF+7}]
            s_or_b64 vcc, vcc, s[44:45]
            s_or_b64 s[46:47], s[46:47], s[48:49]
            s_or_b64 vcc, vcc, s[46:47]
            s_cbranch_scc0 L_ok2c
            s_sub_u32 {sT1}, {sT1}, 1
            s_cbranch_scc1 L_ok2c
            s_sleep {SLP}
            buffer_load_dwordx4 {v4(GF)}, v9, {WS}, s98 offen sc1
            buffer_load_dwordx4 {v4(GF+4)}, v9, {WS}, s98 offen offset:1024 sc1
            s_waitcnt vmcnt(0)
            s_branch L_spin2b
            ''')
            a.vm.pop(); a.vm.pop()
            a.label('L_ok2c')
            a(f'''
            s_mov_b32 {sT2}, {WS_E}
            v_mov_b32 v{GF}, s100
            v_mov_b32 v{GF+1}, s101
            s_mov_b64 exec, 1
            buffer_store_dwordx2 v[{GF}:{GF+1}], v9, {WS}, {sT2} offen sc1
            s_mov_b64 exec, -1
            ''')
            a.vm.pop()
            a.label('L_ok2b')
            a(f'v_mov_b32 v{st+6}, v{SS}')
            rowred('v_max_f32', st+6)
            a(f'''
            v_sub_f32 v{st}, v{SS}, v{st+6}
            v_sub_f32 v{st+7}, {sM}, v{st+6}
            v_mul_f32 v{st}, {f32(L2E)}, v{st}
            v_mul_f32 v{st+7}, {f32(L2E)}, v{st+7}
            v_exp_f32 v{st}, v{st}
            v_exp_f32 v{st+7}, v{st+7}
            v_mul_f32 v{st}, v{st}, v{SS+2}
            ''')
            rowred('v_add_f32', st)
            a(f'''
            v_rcp_f32 v{st}, v{st}
            v_mul_f32 v14, v{st}, v{st+7}          ; factor
            v_and_b32 v{st+5}, 7, v1
            v_lshlrev_b32 v{st+5}, 3, v{st+5}
            v_and_b32 v{st+3}, 1, v3
            v_lshlrev_b32 v{st+3}, 2, v{st+3}
            v_and_b32 v{st+4}, 2, v3
            v_add3_u32 v{st+3}, v{st+3}, v{st+4}, v{st+5}
            s_min_u32 {sT0}, s96, 5056
            v_add_u32 v{st+4}, {sT0}, v{st+3}
            ds_read_u16 v{st+2}, v{st+4} offset:{L_X}
            v_and_b32 v{st+15}, 3, v2
            v_mul_u32_u24 v{st+15}, 0x5555, v{st+15}
            s_mov_b32 s44, 0x0f0f0f0f
            s_mov_b32 s45, 0x0f0f0f0f
            s_mov_b32 s46, 0xf0f0f0f0
            s_mov_b32 s47, 0xf0f0f0f0
            ''')
            a(f'''
            v_lshrrev_b32 v{st+6}, 1, v3
            s_lshl_b32 {sT0}, {sW_}, 1
            v_add_u32 v{st+7}, {sT0}, v{st+6}
            v_mul_u32_u24 v{st+7}, 784, v{st+7}
            v_and_b32 v{st+8}, 1, v3
            v_lshlrev_b32 v{st+11}, 4, v{st+8}
            v_add_u32 v{st+7}, v{st+7}, v{st+11}
            v_lshl_add_u32 v{st+8}, v2, 5, v{st+7}
            v_and_b32 v{st+9}, 7, v2
            v_lshl_add_u32 v{st+9}, v{st+9}, 5, v{st+7}
            v_add_u32 v{st+9}, 512, v{st+9}
            v_lshrrev_b32 v{st+7}, 3, v2
            v_cmp_eq_u32 vcc, v{st+7}, v{st+6}
            v_lshlrev_b32 v{st+7}, 4, v1
            v_add_u32 v{st+7}, {L_DUM}, v{st+7}
            v_cndmask_b32 v{st+9}, v{st+7}, v{st+9}, vcc
            v_mul_u32_u24 v{st+10}, 784, v2
            v_mul_u32_u24 v{st+7}, 24, v3
            s_mul_i32 {sT0}, {sW_}, 96
            v_add3_u32 v{st+10}, v{st+10}, v{st+7}, {sT0}
            s_mul_i32 {sT0}, {sW_}, 3200
            v_mul_u32_u24 v{st+11}, 24, v{st+11}
            v_lshl_add_u32 v{st+11}, v2, 4, v{st+11}
            v_add_u32 v{st+11}, {sT0}, v{st+11}           ; y write: 3200w + 384(g&1) + 16n
            v_and_b32 v{st+13}, 31, v1
            v_lshrrev_b32 v{st+7}, 1, v{st+13}
            v_lshlrev_b32 v{st+13}, 4, v{st+13}
            s_lshl_b32 {sT0}, {sW_}, 9
            v_add_u32 v{st+13}, {sT0}, v{st+13}
            v_mul_u32_u24 v{st+12}, 12800, v{st+6}
            v_lshl_add_u32 v{st+12}, v{st+7}, 4, v{st+12}
            v_and_b32 v{st+7}, 1, v1
            v_mul_u32_u24 v{st+7}, 384, v{st+7}
            s_mul_i32 {sT0}, {sW_}, 640
            v_add3_u32 v{st+12}, v{st+12}, v{st+7}, {sT0}  ; y read: 12800(l>>5) + 640w + 384(l&1) + 16((l&31)>>1)
            v_lshrrev_b32 v{st+14}, 3, v1
            v_mul_u32_u24 v{st+14}, 2560, v{st+14}
            v_lshl_add_u32 v{st+14}, v{st+5}, 1, v{st+14}
            s_mul_i32 s94, {sB}, {64*2560}
            s_lshl_b32 {sT0}, s95, 7
            s_add_u32 s94, s94, {sT0}
            ''')
            for i in range(8): a(f's_add_u32 s{48+i}, s94, {8*2560*i}')
            a('s_movk_i32 s98, 0xff')
            for k in range(2): a(f'v_bfe_u32 v{st+16+k}, s{100+k}, 0, 8')
    assert xiss[0] == nx and sp[0] == len(seq)
    stamp('vend')
    for r in range(4): a(f'v_cndmask_b32 v{OA+r}, v{OA+4+r}, v{OA+r}, {sLO32}')
    for r in range(4): a(f'v_mul_f32 v{OA+r}, v{OA+r}, v14')
    a(f'ds_write_b128 v{st+8}, {v4(OA)}')
    for r in range(4): a(f'v_mul_f32 v{OA+8+r}, v{OA+8+r}, v14')
    a(f'ds_write_b128 v{st+9}, {v4(OA+8)}')
    a('s_waitcnt lgkmcnt(0)\ns_barrier')
    stamp('barC')
    for j in range(3): a(f'ds_read_b64 v[{16+2*j}:{17+2*j}], v{st+10} offset:{8*j}')
    def dpp(regs, steps):
        for s_ in steps:
            for r in regs: a(f'v_add_f32_dpp v{r}, v{r}, v{r} row_ror:{s_} row_mask:0xf bank_mask:0xf')
    if CM != 2:
        a('s_waitcnt lgkmcnt(0)')
        dpp(range(16, 22), (8, 4, 2, 1))
    AT = KB
    def abuild(u):
        for i in range(2):
            a(f'v_cvt_pk_bf16_f32 v{16+2*u+i}, v{16+2*u+i}, 0')
        for i in range(2):
            a(f'v_cndmask_b32 v{AT+4*u+2*i}, 0, v{16+2*u+i}, s[44:45]\nv_cndmask_b32 v{AT+4*u+2*i+1}, 0, v{16+2*u+i}, s[46:47]')
    def smf(u, c):
        n = (c*3 + u)*2
        if n + 1 >= 30 - XL: a.wait_vm(f'wo{n+1}')
        r = KB + 4*(WOT + n)
        a(f'v_smfmac_f32_16x16x64_bf16 {v4(YA+4*c)}, {v4(AT+4*u)}, v[{r}:{r+7}], v{st+15}')
    def ywrite(c):
        a(f's_mov_b64 exec, {sLO32}\nds_write_b128 v{st+11}, {v4(YA+4*c)} offset:{L_YP+640*c}\ns_mov_b64 exec, -1')
    if CM == 2:
        a('s_waitcnt lgkmcnt(0)' if stamps == 3 else 's_waitcnt lgkmcnt(1)')
        dpp((16, 17, 18), (8, 4, 2, 1))
        abuild(0)
        a('s_waitcnt lgkmcnt(0)')
        dpp((19, 20, 21), (8,))
        smf(0, 0); dpp((19, 20, 21), (4,))
        smf(0, 1); dpp((19, 20, 21), (2,))
        smf(0, 2); dpp((19, 20, 21), (1,))
        smf(0, 3); abuild(1)
        smf(1, 0); abuild(2)
        order = [(1,1),(2,0),(1,2),(2,1),(1,3),(0,4),'w0',(2,2),'w1',(1,4),(2,3),(2,4),'w2','w3','w4']
        for o in order:
            if isinstance(o, str): ywrite(int(o[1]))
            else: smf(*o)
        stamp('mm')
        a('s_waitcnt lgkmcnt(0)\ns_barrier')
    elif CM:
        abuild(0); abuild(1)
        smf(0, 0); smf(0, 1)
        abuild(2)
        order = [(1,0),(1,1),(2,0),(2,1),(0,2),(0,3),(1,2),'w0',(1,3),'w1',(2,2),(0,4),(2,3),(1,4),'w2',(2,4),'w3','w4']
        for o in order:
            if isinstance(o, str): ywrite(int(o[1]))
            else: smf(*o)
        stamp('mm')
        a('s_waitcnt lgkmcnt(0)\ns_barrier')
    else:
        abuild(0); abuild(1)
        smf(0, 0); smf(0, 1)
        abuild(2)
        for c in range(2, 5): smf(0, c)
        for c in range(5): smf(1, c)
        for c in range(5): smf(2, c)
        stamp('mm')
        a(f's_mov_b64 exec, {sLO32}')
        for c in range(5): a(f'ds_write_b128 v{st+11}, {v4(YA+4*c)} offset:{L_YP+640*c}')
        a('s_mov_b64 exec, -1\ns_waitcnt lgkmcnt(0)\ns_barrier')
    stamp('barD'); stamp('pub'); stamp('c1')
    if DREL == 2: a('s_memrealtime s[60:61]')
    a(f's_cmp_ge_u32 {sW_}, 5\ns_cbranch_scc1 L_cons')
    for u in range(4): a(f'ds_read_b128 {v4(16+4*u)}, v{st+12} offset:{L_YP+3200*u}')
    a('s_waitcnt lgkmcnt(0)')
    padd(16, 24, 8); padd(16, 20, 4)
    for r in range(4): a(f'v_mov_b32 v{20+r}, v{16+r}')
    for r in range(4): a(f'v_permlane32_swap_b32 v{16+r}, v{20+r}')
    padd(16, 20, 4)
    for r in range(2): a(f'v_bfi_b32 v{16+2*r}, s98, v{st+16+r}, v{16+2*r}')
    a(f's_mov_b64 exec, {sLO32}')
    a(f'buffer_store_dwordx4 v[16:19], v{st+13}, {WS}, {sYB} offen {POL[YSP]}')
    if stamps:
        a('s_mov_b64 exec, -1\ns_waitcnt lgkmcnt(0)')
        stamp('pub')
        a('s_branch L_fin')
    else:
        a('s_endpgm')
    a.label('L_cons')
    a(f'''
    s_cmp_eq_u32 s97, 0
    s_cbranch_scc1 L_fin
    s_mov_b32 {sT1}, {SPIN}
    ''')
    a.label('L_spin3')
    for i in range(8):
        a(f'buffer_load_dwordx4 {v4(16+4*i)}, v{st+14}, {WS}, s{48+i} offen {POL[YLP]}')
    a(f's_sub_u32 {sT1}, {sT1}, 1')
    for i in range(8):
        r = 16 + 4*i
        a(f's_waitcnt vmcnt({7-i})')
        for k in range(2): a(f'v_xor_b32 v{r+2*k}, v{r+2*k}, v{st+16+k}')
        if i == 0: a(f'v_or_b32 v15, v{r}, v{r+2}')
        else: a(f'v_or3_b32 v15, v15, v{r}, v{r+2}')
    a(f'''
    v_and_b32 v15, s98, v15
    v_cmp_ne_u32 vcc, 0, v15
    s_cbranch_scc1 L_ok3
    s_and_b64 vcc, vcc, vcc
    ''')
    a.raw('  s_cbranch_scc1 L_spin3')
    a.label('L_ok3')
    a('s_mov_b64 exec, -1')
    if stamps: a('s_waitcnt lgkmcnt(0)')
    stamp('c1'); stamp('c1x')
    padd(16, 32, 16); padd(16, 24, 8); padd(16, 20, 4)
    a(f'''
    v_lshlrev_b32 v20, 16, v{st+2}
    v_permlane32_swap_b32 v16, v17
    v_permlane32_swap_b32 v18, v19
    v_add_f32 v16, v16, v17
    v_add_f32 v18, v18, v19
    v_permlane16_swap_b32 v16, v18
    v_add_f32 v16, v16, v18
    v_add_f32_dpp v16, v16, v16 row_ror:8 row_mask:0xf bank_mask:0xf
    v_add_f32 v16, v16, v20
    v_cvt_pk_bf16_f32 v16, v16, v16
    s_mov_b32 exec_lo, 0x00ff00ff
    s_mov_b32 exec_hi, 0x00ff00ff
    buffer_store_short v16, v{st+3}, {OUT}, s96 offen {POL[OPOL]}
    s_mov_b64 exec, -1
    ''')
    if DLY:
        a(f'''
        s_waitcnt vmcnt(0)
        s_memrealtime s[84:85]
        s_waitcnt lgkmcnt(0)
        s_sub_u32 s82, {'s84, s80' if DREL == 1 else ('s60, s80' if DREL == 2 else (('s80' if DSEL else 's84') + ', s86'))}
        s_mul_i32 s82, s82, {DLY}
        s_add_u32 s82, s82, {(6000 if not PRE else 0) if DSEL else 0}
        s_min_u32 s82, s82, 200000
        ''')
        a.label('L_dly')
        a(f'''
        s_memrealtime s[84:85]
        s_waitcnt lgkmcnt(0)
        s_sub_u32 s83, s84, s86
        s_cmp_lt_u32 s83, s82
        s_cbranch_scc1 L_dly
        ''')
    a.label('L_fin')
    if stamps:
        a('s_waitcnt vmcnt(0)')
        stamp('end')
        a('s_waitcnt lgkmcnt(0)')
        for k in range(8): a(f'v_mov_b32 v{16+k}, s{SREG[k]}')
        a(f'''
        s_lshl_b32 {sT0}, s2, 3
        s_add_u32 {sT0}, {sT0}, {sW_}
        s_lshl_b32 {sT0}, {sT0}, 5
        s_add_u32 {sT0}, {sT0}, {WS_T}
        v_mov_b32 v14, 0
        s_mov_b64 exec, 1
        buffer_store_dwordx4 v[16:19], v14, {WS}, {sT0} offen
        buffer_store_dwordx4 v[20:23], v14, {WS}, {sT0} offen offset:16
        ''')
    a.label('L_end')
    a('s_endpgm')
    a.raw(f'''.section .rodata,"a"
.p2align 6
.amdhsa_kernel {name}
  .amdhsa_next_free_vgpr 256
  .amdhsa_next_free_sgpr 102
  .amdhsa_accum_offset 256
  .amdhsa_group_segment_fixed_size 0
  .amdhsa_kernarg_size 96
  .amdhsa_user_sgpr_count 2
  .amdhsa_user_sgpr_kernarg_segment_ptr 1
  .amdhsa_system_sgpr_workgroup_id_x 1
  .amdhsa_float_denorm_mode_32 3
.end_amdhsa_kernel''')
    return a.text()

if __name__ == '__main__':
    out = sys.argv[1]
    kw = {}
    for x in sys.argv[2:]:
        k, v = x.split('='); kw[k] = int(v)
    open(out, 'w').write(gen(**kw))
```

```python
import sys, struct
from asmdsl import Asm

NAME = 'parallel_sum__sliding_block_cached__geglu_ffn__decode_kernel'
def f32(x): return '0x%08x' % struct.unpack('<I', struct.pack('<f', x))[0]
def lanemask(fn):
    m = 0
    for l in range(64):
        if fn(l & 15, l >> 4): m |= 1 << l
    return m

HEADER = open('parallel_sum__sliding_block_cached__geglu_ffn__decode.s.ref').read().split('; Override')[0]

WS_Y  = 0
WS_S  = 0x100000
WS_E  = 0x0F0000
WS_F  = 0x109000
WS_G  = 0x10A000
WS_P  = 0x110000
WS_T  = 0x300000
WS_SZ = 0x400000
L_PART = 0
L_DUM  = 14336
L_Q    = 15360
L_HID  = 15872
L_CNT  = 16000
L_X    = 16128
L_STG  = 21504
L_YP   = L_STG
BIG = 0x40000000
L2E = 1.4426950408889634
POL = {0: '', 1: 'nt', 2: 'sc0 nt', 3: 'sc1 nt', 4: 'sc0', 5: 'sc1', 6: 'sc0 sc1', 7: 'sc0 sc1 nt'}

def gen(KU=2, KW=0, KP0=11, PP=0, PG=2, PI=3, TP=5, XL=0, T=6, TV=6, TVE=12, VE=30, RV=12, ILV=1, XBEG=4, XEND=14, SLI=28, GST=5, PRIO=1, SLP=8, KPOLL=26, W0N=5, WPOL=0, SPOL=0, KVPOL=1, PPOL=0, DLY=0, DSEL=0, NOS=0, DREL=0, BM=0, PRE=0, SPF=0, RA=853, RB=0, RC=341, ALPHA=1, BETA=8, PSL=0, CM=2, PM=2, UM=2, OPOL=0, YLP=5, YSP=5, YCP=5, ROT=8,
        NS=17, SEND=40, EXP=0, stamps=0, name=NAME):
    a = Asm()
    SPIN = (1 << 19) if EXP == 0 else 0
    LDS_SZ = L_STG + max(8 * NS * 1024, 25600)
    assert LDS_SZ <= 163840
    SREG = [80, 82, 84, 86, 56, 58, 60, 62]
    SETS = {1: ['start', 'barA', 'sig', 'kiss', 'barB', 'smax', 'vend', 'end'],
            2: ['start', 'bar0', 'ln', 'barA', 'sig', 'poll', 'qrdy', 'end'],
            3: ['start', 'vend', 'barC', 'mm', 'barD', 'pub', 'c1', 'end'],
            5: ['start', 'ki12', 'ki18', 'ki24', 'ki30', 'ki36', 'ki42', 'ki47'],
            6: ['start', 'ki47', 'vc0', 'vc12', 'vc24', 'vc36', 'vc42', 'vc47'],
            7: ['start', 'bar0', 'barA', 'ki12', 'ki24', 'ki47', 'vc24', 'vc47'],
            4: ['start', 'karg', 'iss1', 'iss2', 'pre0', 'bar0', 'barA', 'end']}
    DN = ['end', 'karg', 'iss1', 'bar0', 'barA', 'sig', 'barB', 'vend', 'iss2', 'smax', 'pre', 'preK', 'c1x', 'barC', 'barDx']
    def stamp(nm):
        if DLY and DSEL and nm == DN[DSEL]: a('s_memrealtime s[80:81]')
        if stamps and nm in SETS[stamps]:
            r = SREG[SETS[stamps].index(nm)]
            a(f's_memrealtime s[{r}:{r+1}]')
    a.raw(HEADER.rstrip())
    a.raw(f'; @launch grid=(256,1,1) block=(512,1,1) lds={LDS_SZ}')
    a.raw('.amdgcn_target "amdgcn-amd-amdhsa--gfx950"\n.text\n.globl %s\n.p2align 8\n.type %s,@function\n%s:' % (name, name, name))
    sW_, sH, sB, sS, sJ, sXCD, sP, sIDX = 's3', 's4', 's5', 's6', 's7', 's68', 's69', 's70'
    K, V, W, WO, WD, X, WS, OUT = 's[8:11]', 's[12:15]', 's[16:19]', 's[20:23]', 's[24:27]', 's[28:31]', 's[32:35]', 's[36:39]'
    sWO0, sWO1, sWDB, sSTG, sWO2, sWO3 = 's40', 's41', 's42', 's43', 's64', 's65'
    sKV, sKV2, sKV0 = 's71', 's72', 's73'
    sT0, sT1, sT2, sT3 = 's74', 's75', 's76', 's77'
    sLO32 = 's[78:79]'
    sM, sSOWN, sYB, sSB = 's88', 's89', 's90', 's91'
    TAG = 's[100:101]'
    KB = 64
    WDT, WOT = 12, 17
    def kt(i): return f'v[{KB+4*i}:{KB+4*i+3}]'
    def v4(r): return f'v[{r}:{r+3}]'
    def srd(d, p, n):
        a(f's_mov_b32 s{d}, s{p}\ns_and_b32 s{d+1}, s{p+1}, 0xffff\ns_mov_b32 s{d+2}, {n}\ns_mov_b32 s{d+3}, 0x20000')
    def rowred(op, r, steps=(8, 4, 2, 1)):
        for s_ in steps: a(f'{op}_dpp v{r}, v{r}, v{r} row_ror:{s_} row_mask:0xf bank_mask:0xf')
    gstep = 6144 * 8 if ILV else 6144
    def grp(g):
        if BM == 1:
            a(f's_add_u32 {sKV}, {sKV0}, {(g>>1)*100663296 + (g&1)*49152}')
        elif BM == 2:
            a(f's_add_u32 {sKV}, s67, {g}\ns_and_b32 {sKV}, {sKV}, 1\ns_mul_i32 {sKV}, {sKV}, 49152\ns_add_u32 {sKV}, {sKV}, {sKV0}\ns_add_u32 {sKV}, {sKV}, {(g>>1)*100663296}')
        elif BM == 3:
            a(f's_add_u32 {sKV}, s67, {g}\ns_and_b32 {sKV}, {sKV}, 3\ns_mul_i32 {sKV}, {sKV}, 49152\ns_add_u32 {sKV}, {sKV}, {sKV0}\ns_add_u32 {sKV}, {sKV}, {(g>>2)*2*100663296}')
        elif ROT == 7:
            a(f's_lshr_b32 {sKV}, s67, 16\ns_mul_i32 {sKV}, {sKV}, {g}\ns_add_u32 {sKV}, {sKV}, s67\ns_and_b32 {sKV}, {sKV}, 63\ns_mul_i32 {sKV}, {sKV}, 6144\ns_add_u32 {sKV}, {sKV}, {sKV0}')
        elif ROT == 8:
            a(f's_add_u32 {sKV}, s67, {(BETA*g)&63}\ns_and_b32 {sKV}, {sKV}, 63\ns_mul_i32 {sKV}, {sKV}, 6144\ns_add_u32 {sKV}, {sKV}, {sKV0}')
        elif ROT:
            a(f's_add_u32 {sKV}, {sJ if ROT == 1 else "s67"}, {g}\ns_and_b32 {sKV}, {sKV}, 7\ns_mul_i32 {sKV}, {sKV}, {gstep}\ns_add_u32 {sKV}, {sKV}, {sKV0}')
        else:
            a(f's_mov_b32 {sKV}, {sKV0}' if g == 0 else f's_add_u32 {sKV}, {sKV}, {gstep}')
    kissued = [0]
    def kload():
        i = kissued[0]; g, e = divmod(i, 6)
        stamp(f'ki{i}')
        if e == 0 and g > 0: grp(g)
        if e < 4: a(f'buffer_load_dwordx4 {kt(i)}, v8, {K}, {sKV} offen offset:{384*e} {POL[KVPOL]}', tag=f'k{i}')
        else:     a(f'buffer_load_dwordx4 {kt(i)}, v9, {K}, {sKV} offen offset:{768*(e-4)} {POL[KVPOL]}', tag=f'k{i}')
        kissued[0] += 1

    assert ILV == 1 and ROT in (3, 7, 8) and 1 <= KU <= 4
    a(f'''
    s_load_dwordx2 s[8:9], s[0:1], 8
    s_load_dwordx16 s[44:59], s[0:1], 0
    s_cmp_ge_u32 s2, 256
    s_cbranch_scc1 L_end''')
    stamp('start')
    if DLY: a('s_memrealtime s[86:87]')
    if PRIO: a('s_setprio 3')
    a(f'''
    v_lshrrev_b32 v14, 6, v0
    v_bfe_u32 v20, v0, 2, 2
    v_readfirstlane_b32 {sW_}, v14
    v_and_b32 v21, 3, v0
    v_lshlrev_b32 v21, 4, v21
    v_mul_u32_u24 v9, 1536, v20
    v_bfe_u32 v3, v0, 4, 2
    v_add_u32 v9, v9, v21
    v_lshl_add_u32 v8, v3, 6, v9       ; vkx = 1536(n>>2)+16(n&3)+64g
    s_and_b32 {sXCD}, s2, 7
    s_lshr_b32 {sT0}, s2, 6
    s_lshl2_add_u32 {sH}, {sXCD}, {sT0}
    s_bfe_u32 {sB}, s2, 0x20004
    s_bfe_u32 {sS}, s2, 0x10003
    s_lshl_b32 {sT0}, {sB}, 5
    s_add_u32 {sSB}, {sT0}, {sH}       ; bh
    s_lshl3_add_u32 {sT0}, {sSB}, {sS}
    s_add_u32 {sT0}, {sT0}, 6
    s_lshl_b32 {sT0}, {sT0}, 6
    ''')
    if ROT == 8:
        a(f'''
        s_mul_i32 {sKV0}, {sT0}, 6144
        s_mul_i32 s67, {sH}, {RA}
        {f's_mul_i32 {sT0}, {sB}, {RB}' if RB else ''}
        {f's_add_u32 s67, s67, {sT0}' if RB else ''}
        s_mul_i32 {sT0}, {sS}, {RC}
        s_add_u32 s67, s67, {sT0}
        s_lshr_b32 s67, s67, 4
        ''')
        if ALPHA == 1: a(f's_add_u32 s67, s67, {sW_}')
        else: a(f's_mul_i32 {sT0}, {sW_}, {ALPHA}\ns_add_u32 s67, s67, {sT0}')
        a(f's_and_b32 s67, s67, 63\ns_mul_i32 {sKV}, s67, 6144\ns_add_u32 {sKV}, {sKV}, {sKV0}')
    else:
        a(f'''
        s_add_u32 {sT0}, {sT0}, {sW_}
        s_mul_i32 {sKV0}, {sT0}, 6144
        s_mul_i32 s67, s2, 0x9E3779B1
        s_bfe_u32 s67, s67, 0x30014
        s_mul_i32 {sKV}, s67, {gstep}
        s_add_u32 {sKV}, {sKV}, {sKV0}
        ''')
    a(f'''
    s_mov_b32 s10, 402653184
    s_mov_b32 s11, 0x20000
    s_waitcnt lgkmcnt(0)
    ''')
    stamp('karg')
    if ROT == 7:
        a(f's_lshl_b32 {sT0}, s2, 2\ns_load_dword s67, s[54:55], {sT0}\ns_mul_i32 {sT0}, {sW_}, 6144\ns_sub_u32 {sKV0}, {sKV0}, {sT0}\ns_waitcnt lgkmcnt(0)\ns_bfe_u32 {sT0}, s67, 0x60008\ns_mul_i32 {sT0}, {sT0}, {sW_}\ns_and_b32 {sT0}, {sT0}, 63\ns_add_u32 s67, s67, {sT0}')
        grp(0)
    if PRE:
        srd(12, 48, 402653184)
        a('v_and_b32 v30, 63, v0\nv_lshlrev_b32 v30, 4, v30')
        if PRE == 2:
            a(f's_bfe_u32 {sT0}, s2, 0x30003\ns_lshl_b32 {sT0}, {sT0}, 4\ns_lshl_b32 {sT2}, {sH}, 9\ns_add_u32 {sT0}, {sT0}, {sT2}\ns_add_u32 {sT0}, {sT0}, 384\ns_add_u32 {sT0}, {sT0}, {sW_}\ns_mul_i32 {sT3}, {sT0}, 6144')
        n = 0
        for srd_ in (K, V):
            for g in range(8):
                if PRE == 2: a(f's_add_u32 {sT0}, s67, {g}\ns_and_b32 {sT0}, {sT0}, 1\ns_mul_i32 {sT0}, {sT0}, 49152\ns_add_u32 {sT0}, {sT0}, {sT3}\ns_add_u32 {sT0}, {sT0}, {(g>>1)*100663296}')
                else: a(f's_add_u32 {sT0}, s67, {g}\ns_and_b32 {sT0}, {sT0}, 7\ns_mul_i32 {sT0}, {sT0}, 49152\ns_add_u32 {sT0}, {sT0}, {sKV0}')
                for e in range(6):
                    if n >= 4: a('s_waitcnt vmcnt(3)')
                    if n == 51: stamp('preK')
                    if e == 3: a(f's_add_u32 {sT0}, {sT0}, 3072')
                    a(f'buffer_load_dwordx4 {v4(32+4*(n%4))}, v30, {srd_}, {sT0} offen offset:{1024*(e%3)} nt')
                    n += 1
        a('s_waitcnt vmcnt(0)')
        stamp('pre')
        a.label('L_quiet')
        a('s_sleep 8\ns_memrealtime s[84:85]\ns_waitcnt lgkmcnt(0)\ns_sub_u32 s83, s84, s86\ns_cmp_lt_u32 s83, 4200\ns_cbranch_scc1 L_quiet')
        a.vm.clear()
    if BM in (1, 2):
        a(f's_bfe_u32 {sT0}, s2, 0x30003\ns_lshl_b32 {sT0}, {sT0}, 4\ns_lshl_b32 {sT2}, {sH}, 9\ns_add_u32 {sT0}, {sT0}, {sT2}\ns_add_u32 {sT0}, {sT0}, 384\ns_add_u32 {sT0}, {sT0}, {sW_}\ns_mul_i32 {sKV0}, {sT0}, 6144')
        grp(0)
    if BM == 3:
        a(f's_bfe_u32 {sT0}, s2, 0x20003\ns_lshl_b32 {sT0}, {sT0}, 5\ns_lshl_b32 {sT2}, {sH}, 9\ns_add_u32 {sT0}, {sT0}, {sT2}\ns_bfe_u32 {sT2}, s2, 0x10005\ns_lshl_b32 {sT2}, {sT2}, 14\ns_add_u32 {sT0}, {sT0}, {sT2}\ns_add_u32 {sT0}, {sT0}, 384\ns_add_u32 {sT0}, {sT0}, {sW_}\ns_mul_i32 {sKV0}, {sT0}, 6144')
        grp(0)
    for i in range(KU): kload()
    a(f'''
    s_load_dwordx2 s[24:25], s[0:1], 64
    s_load_dwordx2 s[36:37], s[0:1], 72
    s_load_dwordx2 s[32:33], s[0:1], 88
    v_and_b32 v1, 63, v0
    v_and_b32 v2, 15, v1
    v_lshlrev_b32 v20, 4, v1
    s_lshr_b32 {sJ}, s2, 3
    s_and_b32 {sT1}, {sJ}, 7
    s_mov_b32 s28, s44
    s_mov_b32 s29, s45
    s_movk_i32 s30, 5120
    s_mov_b32 s31, 0x20000
    s_lshl_b32 {sT0}, {sW_}, 10
    s_add_u32 m0, {sT0}, {L_X}
    s_cmp_ge_u32 {sW_}, 5
    s_cbranch_scc1 L_nox
    ''')
    a.role = 'x'
    a(f'buffer_load_dwordx4 v20, {X}, {sT0} offen lds', tag='x')
    a.role = None
    a.label('L_nox')
    stamp('iss1')
    if UM == 1:
        a(f'''
        s_mov_b32 s66, s2
        s_mul_i32 s92, s66, 43691
        s_lshr_b32 s92, s92, 17            ; blk
        s_mul_i32 {sT3}, s92, 3
        s_sub_u32 s93, s66, {sT3}          ; split
        ''')
    else:
        a(f'''
        s_lshr_b32 {sT2}, s2, 6
        s_lshl2_add_u32 {sT2}, {sB}, {sT2}
        s_and_b32 {sT3}, s2, 15
        s_lshl4_add_u32 s66, {sT2}, {sT3}
        s_mul_i32 s93, s66, 911
        s_lshr_b32 s93, s93, 16
        s_mul_i32 {sT3}, s93, 72
        s_sub_u32 s92, s66, {sT3}          ; blk
        ''')
    a(f'''
    s_mul_i32 s97, s93, 224
    s_lshl_b32 {sT2}, {sW_}, 5
    s_add_u32 s97, s97, {sT2}
    s_sub_u32 {sT2}, s92, 48
    s_sub_u32 {sT3}, s92, 60
    s_cmp_lt_u32 s92, 60
    s_cselect_b32 s16, s56, s58
    s_cselect_b32 s17, s57, s59
    s_cselect_b32 s98, {sT2}, {sT3}
    s_movk_i32 s96, 3072
    s_mov_b32 s18, 1966080
    s_cmp_lt_u32 s92, 48
    s_cselect_b32 s16, s50, s16
    s_cselect_b32 s17, s51, s17
    s_cselect_b32 s18, 7864320, s18
    s_cselect_b32 s96, 12288, s96
    s_cselect_b32 s98, s92, s98
    s_and_b32 s17, s17, 0xffff
    s_mov_b32 s19, 0x20000
    s_mul_i32 s94, s97, s96
    s_lshl_b32 s98, s98, 8
    s_add_u32 s94, s94, s98            ; soffset
    s_cmp_eq_u32 {sW_}, 7
    s_cselect_b32 s94, {BIG}, s94
    s_cmp_ge_u32 s66, {216 if not (EXP & 128) else 0}
    s_cselect_b32 s94, {BIG}, s94
    v_mul_lo_u32 v16, v3, s96
    v_lshl_add_u32 v16, v2, 4, v16     ; g*RS+16n
    s_lshl_b32 s96, s96, 2
    v_lshrrev_b32 v22, 1, v3
    v_mul_u32_u24 v21, 384, v22
    v_add_u32 v9, v9, v21
    v_and_b32 v22, 1, v3
    v_lshlrev_b32 v22, 6, v22
    v_add3_u32 v9, v9, v22, 64
    v_add_u32 v9, 192, v9              ; vky
    ''')
    WT = 224
    wiss = [0]
    def wload():
        t = wiss[0]
        a(f'buffer_load_dwordx4 {v4(WT+4*t)}, v16, {W}, s94 offen {POL[PPOL]}', tag=f'w{t}')
        if t < 7: a(f's_add_u32 s94, s94, s96')
        wiss[0] += 1
    pcnt = [0]
    def pstep(paced=True):
        if paced: a(f's_waitcnt vmcnt({TP-1})')
        pcnt[0] += 1
        if wiss[0] < 8 and pcnt[0] % (PG + 1) != 0: wload()
        else: kload()
    if PP:
        for _ in range(PI): pstep(False)
    else:
        for t in range(8):
            wload()
            if t == 3:
                for _ in range(KW): kload()
        KU = KU + KW
    stamp('iss2')
    if PRIO: a('s_setprio 0')
    def kmore(frac):
        if PP: pstep(); return
        while kissued[0] < KU + int((KP0 - KU) * frac + 0.5): kload()
    def pmore():
        if PP: pstep()
    a(f's_waitcnt lgkmcnt(0)\ns_load_dwordx2 {TAG}, s[32:33], {WS_E}')
    a(f's_mov_b32 s34, {WS_SZ}\ns_mov_b32 s35, 0x20000\ns_mov_b32 s26, 1966080\ns_mov_b32 s27, 0x20000\ns_movk_i32 s38, 5120\ns_mov_b32 s39, 0x20000')
    srd(12, 48, 402653184); srd(20, 52, 7864320)
    if SPF & 1:
        a(f'''
        s_cmp_lg_u32 {sW_}, 7
        s_cbranch_scc1 L_nospf1
        s_mul_i32 {sT0}, {sH}, {192*1280}
        s_add_u32 {sT2}, {sT0}, {192*1280-64}
        s_buffer_load_dword s60, {WO}, {sT0}
        s_buffer_load_dword s60, {WO}, {sT2}
        s_sub_u32 {sT0}, {sKV0}, {7*6144}
        s_add_u32 {sT2}, {sT0}, {393216-64}
        s_buffer_load_dword s60, {K}, {sT0}
        s_buffer_load_dword s60, {K}, {sT2}
        ''')
        a.label('L_nospf1')
    a(f'''
    s_lshl_b32 {sP}, {sH}, 1
    s_add_u32 {sP}, {sP}, {sS}
    s_lshl_b32 {sIDX}, {sXCD}, 5
    s_add_u32 {sIDX}, {sIDX}, {sJ}
    s_mov_b32 s78, -1
    s_mov_b32 s79, 0
    s_lshl_b32 {sT0}, {sB}, 6
    s_add_u32 {sT0}, {sT0}, {sP}
    s_mul_i32 {sYB}, {sT0}, 2560
    s_lshl_b32 {sSB}, {sSB}, 8
    s_add_u32 {sSB}, {sSB}, {WS_S}
    s_lshl_b32 {sT2}, {sS}, 3
    s_add_u32 {sT2}, {sT2}, {sW_}
    s_lshl_b32 {sT2}, {sT2}, 4
    s_add_u32 {sSOWN}, {sSB}, {sT2}
    s_mul_i32 {sWDB}, {sP}, 24
    s_mul_i32 {sT0}, {sW_}, 3
    s_add_u32 {sWDB}, {sWDB}, {sT0}
    s_mul_i32 {sWDB}, {sWDB}, 1280
    s_mul_i32 {sWO0}, {sH}, 192
    s_mul_i32 {sT0}, {sW_}, 24
    s_add_u32 {sWO0}, {sWO0}, {sT0}
    s_mul_i32 {sWO0}, {sWO0}, 1280
    s_add_u32 {sWO1}, {sWO0}, 5120
    s_add_u32 {sWO2}, {sWO0}, 15360
    s_add_u32 {sWO3}, {sWO0}, 20480
    s_mul_i32 {sSTG}, {sW_}, {NS*1024}
    s_add_u32 {sSTG}, {sSTG}, {L_STG}
    v_mov_b32 v17, 1280
    v_mul_u32_u24 v18, 1280, v3
    v_lshl_add_u32 v18, v2, 4, v18     ; 1280g+16n
    s_lshl_b32 s97, s97, 1
    s_min_u32 s97, s97, 1216
    v_lshl_add_u32 v19, v3, 1, s97
    v_lshrrev_b32 v14, 3, v2
    v_mad_u32_u24 v19, v14, v17, v19   ; + 1280*(m>>3)
    v_and_b32 v15, 7, v2
    v_lshlrev_b32 v15, 4, v15          ; 16*(n&7)
    v_and_b32 v20, 1, v2
    v_cmp_eq_u32 vcc, 1, v20
    v_mov_b32 v21, 0xffff
    v_mov_b32 v22, 0xffff0000
    v_cndmask_b32 v21, v21, v22, vcc
    v_bfe_u32 v20, v2, 1, 2
    ''')
    for r in range(4):
        a(f'v_cmp_eq_u32 vcc, {r}, v20\nv_cndmask_b32 v{4+r}, 0, v21, vcc')
    a(f'''
    v_mul_u32_u24 v10, 384, v3
    v_lshrrev_b32 v20, 3, v2
    v_mul_u32_u24 v11, 3072, v20
    v_add3_u32 v11, v11, v10, v15
    v_add_u32 v11, 256, v11            ; vvy = (g+8*(n>>3))*384+256+16*(n&7)
    v_lshl_add_u32 v10, v2, 4, v10     ; vvx = g*384+16n
    v_lshrrev_b32 v12, 1, v3
    v_mul_u32_u24 v12, 5120, v12
    v_add_u32 v12, v12, v18            ; vwo = (6(g>>1)+(g&1))*1280+16n
    v_mov_b32 v22, {BIG}
    v_cmp_eq_u32 vcc, 3, v3
    v_cndmask_b32 v13, v18, v22, vcc   ; vwd = g*1280+16n  (g==3 -> out of range)
    v_lshrrev_b32 v20, 1, v3
    v_lshlrev_b32 v20, 9, v20
    v_and_b32 v22, 1, v3
    v_lshl_add_u32 v22, v22, 4, v20
    v_lshl_add_u32 v22, v2, 5, v22
    s_lshl_b32 {sT0}, {sW_}, 11
    v_add_u32 v22, {sT0}, v22
    v_mov_b32 v20, {L_CNT}
    v_mov_b32 v21, 0
    ds_write_b32 v20, v21
    ds_write_b32 v20, v21 offset:4
    ''')
    if EXP & 64: a(f'v_mov_b32 v12, {BIG}\nv_mov_b32 v13, {BIG}')
    stamp('pre0')
    a.role = 'x'; a.wait_vm('x'); a.role = None
    a('s_barrier')
    stamp('bar0')
    XS, XO, U, XN, AB, ACC, XV = 24, 44, 184, 184, 200, 216, 168
    for i in range(5): a(f'ds_read_b128 {v4(XS+4*i)}, v18 offset:{L_X+256*i}')
    for pr in range(2):
        for t in range(8): a(f'ds_read_u16 v{XV+8*pr+t}, v19 offset:{L_X+2560*pr+8*t}')
    kmore(1/6)
    a(f'''
    s_waitcnt lgkmcnt(0)
    s_mul_i32 s100, s100, 0x9E3779B1
    s_add_u32 s100, s100, 0x7F4A7C15
    s_mul_i32 s101, s101, 0x85EBCA69
    s_add_u32 s101, s101, 0xC2B2AE35
    ''')
    for i in range(20):
        a(f'v_lshlrev_b32 v{U+2*i}, 16, v{XS+i}\nv_and_b32 v{U+2*i+1}, 0xffff0000, v{XS+i}')
    pmore()
    a(f'v_pk_add_f32 v[52:53], v[{U}:{U+1}], v[{U+2}:{U+3}]\nv_pk_add_f32 v[54:55], v[{U+4}:{U+5}], v[{U+6}:{U+7}]')
    for i in range(8, 40, 2):
        d = 52 + (i & 2)
        a(f'v_pk_add_f32 v[{d}:{d+1}], v[{d}:{d+1}], v[{U+i}:{U+i+1}]')
    a('v_pk_add_f32 v[52:53], v[52:53], v[54:55]\nv_add_f32 v52, v52, v53')
    rowred('v_add_f32', 52)
    a(f'v_mul_f32 v56, {f32(-1/640)}, v52')
    kmore(2/6)
    for i in range(0, 40, 2): a(f'v_pk_add_f32 v[{U+i}:{U+i+1}], v[{U+i}:{U+i+1}], v[56:57] op_sel_hi:[1,0]')
    a(f'v_pk_mul_f32 v[52:53], v[{U}:{U+1}], v[{U}:{U+1}]\nv_pk_mul_f32 v[54:55], v[{U+2}:{U+3}], v[{U+2}:{U+3}]')
    for i in range(4, 40, 2):
        d = 52 + (i & 2)
        a(f'v_pk_fma_f32 v[{d}:{d+1}], v[{U+i}:{U+i+1}], v[{U+i}:{U+i+1}], v[{d}:{d+1}]')
    a('v_pk_add_f32 v[52:53], v[52:53], v[54:55]\nv_add_f32 v52, v52, v53')
    rowred('v_add_f32', 52)
    a(f'''
    v_mul_f32 v52, {f32(1/640)}, v52
    v_cvt_pk_bf16_f32 v53, v56, v52
    v_lshlrev_b32 v56, 16, v53
    v_and_b32 v52, 0xffff0000, v53
    v_add_f32 v52, {f32(1e-5)}, v52
    v_cvt_pk_bf16_f32 v52, v52, v52
    v_and_b32 v52, 0xffff0000, v52
    v_sqrt_f32 v52, v52
    v_cvt_pk_bf16_f32 v52, v52, v52
    v_and_b32 v52, 0xffff0000, v52
    v_rcp_f32 v52, v52
    v_lshlrev_b32 v53, 6, v14
    v_add_u32 v54, 128, v53
    ds_bpermute_b32 v58, v53, v56
    ds_bpermute_b32 v60, v54, v56
    ds_bpermute_b32 v24, v53, v52
    ds_bpermute_b32 v26, v54, v52
    ''')
    kmore(3/6)
    for k in range(16): a(f'v_lshlrev_b32 v{XN+k}, 16, v{XV+k}')
    a('s_waitcnt lgkmcnt(0)')
    for pr in range(2):
        for k in range(4):
            r = XN + 8*pr + 2*k
            a(f'v_pk_add_f32 v[{r}:{r+1}], v[{r}:{r+1}], v[{58+2*pr}:{59+2*pr}] op_sel_hi:[1,0]')
    for k in range(8): a(f'v_cvt_pk_bf16_f32 v{XO+k}, v{XN+2*k}, v{XN+2*k+1}')
    for k in range(8): a(f'v_lshlrev_b32 v{XN+2*k}, 16, v{XO+k}\nv_and_b32 v{XN+2*k+1}, 0xffff0000, v{XO+k}')
    for pr in range(2):
        for k in range(4):
            r = XN + 8*pr + 2*k
            a(f'v_pk_mul_f32 v[{r}:{r+1}], v[{r}:{r+1}], v[{24+2*pr}:{25+2*pr}] op_sel_hi:[1,0]')
    for k in range(16): a(f'v_cvt_pk_bf16_f32 v{XN+k}, v{XN+k}, v{XN+k}')
    stamp('ln')
    kmore(4/6)
    if PP:
        while wiss[0] < 8: pstep()
    for t in range(8):
        for pr in range(2):
            ab = AB + 4*((2*t + pr) & 3)
            for r in range(4): a(f'v_and_b32 v{ab+r}, v{XN+8*pr+t}, v{4+r}')
        a.wait_vm(f'w{t}')
        for pr in range(2):
            ab = AB + 4*((2*t + pr) & 3); d = v4(ACC + 4*pr)
            a(f'v_mfma_f32_16x16x32_bf16 {d}, {v4(ab)}, {v4(WT+4*t)}, {0 if t == 0 else d}')
        if PP:
            idx = max(k for k, (tg, r) in enumerate(a.vm) if tg == f'w{t}')
            while len(a.vm) - 1 - idx < TP: pstep(False)
        elif t == 3: kmore(5/6)
    stamp('wland')
    kmore(1)
    if PP: KP0 = kissued[0]
    a(f's_cmp_eq_u32 {sW_}, 7\ns_cbranch_scc1 L_nopart')
    for pr in range(2): a(f'ds_write_b128 v22, {v4(ACC+4*pr)} offset:{1024*pr}')
    a.label('L_nopart')
    a('s_waitcnt lgkmcnt(0)\ns_barrier')
    stamp('barA')
    def padd(d, s_, n):
        for r in range(0, n, 2): a(f'v_pk_add_f32 v[{d+r}:{d+r+1}], v[{d+r}:{d+r+1}], v[{s_+r}:{s_+r+1}]')
    a(f'''
    s_cmp_lt_u32 {sW_}, 6
    s_cbranch_scc1 L_nopub
    v_and_b32 v14, 127, v0
    v_lshlrev_b32 v15, 4, v14
    ''')
    for u in range(7): a(f'ds_read_b128 {v4(16+4*u)}, v15 offset:{2048*u}')
    a(f'''
    v_lshrrev_b32 v14, 5, v14
    s_mov_b32 {sT0}, {36864-512}
    v_mad_u32_u24 v14, v14, {sT0}, v15     ; b*36864 + 16*(t&31)
    s_mul_i32 {sT0}, s93, 147456
    s_lshl_b32 {sT2}, s92, 9
    s_add_u32 {sT0}, {sT0}, {sT2}
    s_add_u32 {sT0}, {sT0}, {WS_P}
    s_cmp_ge_u32 s66, {216 if not (EXP & 8) else 0}
    s_cselect_b32 {sT0}, {BIG}, {sT0}
    s_waitcnt lgkmcnt(0)
    ''')
    padd(16, 32, 12); padd(16, 24, 8); padd(16, 20, 4)
    a.role = 'pub'
    a(f'buffer_store_dwordx4 v[16:19], v14, {WS}, {sT0} offen sc1', tag='pub')
    a.role = None
    a.label('L_nopub')
    if SPF & 2:
        a(f'''
        s_cmp_lg_u32 {sW_}, 5
        s_cbranch_scc1 L_nospf2
        s_sub_u32 {sT0}, {sKV0}, {5*6144}
        s_add_u32 {sT2}, {sT0}, {393216-64}
        s_buffer_load_dword s60, {V}, {sT0}
        s_buffer_load_dword s60, {V}, {sT2}
        s_buffer_load_dword s60, {WD}, {sWDB}
        s_buffer_load_dword s60, {OUT}, 0
        ''')
        a.label('L_nospf2')
    def wotile(n):
        uc, h = divmod(n, 2); c, u = divmod(uc, 3)
        return [[sWO0, sWO1], [sWO2, sWO3]][h][u == 2], (2560 if u == 1 else 0) + 256*c
    kseq = []
    si = 0
    for i in range(KP0, 48):
        kseq.append('k')
        while si < NS and (si + 1) * (SEND - KP0) <= (i + 1 - KP0) * NS:
            kseq.append('s'); si += 1
    assert si == NS
    kp = [0]; sissued = [0]
    def kstep(paced):
        op = kseq[kp[0]]; kp[0] += 1
        if paced: a(f's_waitcnt vmcnt({T-1})')
        if op == 'k': kload()
        else:
            n = sissued[0]; so, imm = wotile(n)
            a(f's_add_u32 m0, {sSTG}, {1024*n - imm}' if 1024*n >= imm else f's_sub_u32 m0, {sSTG}, {imm - 1024*n}')
            a(f'buffer_load_dwordx4 v12, {WO}, {so} offen offset:{imm} {POL[SPOL]} lds', tag='stg')
            sissued[0] += 1
    for _ in range(T - 1): kstep(True)
    a(f's_cmp_lt_u32 {sW_}, 6\ns_cbranch_scc1 L_nosig')
    a.role = 'pub'; a.wait_vm('pub'); a.role = None
    a(f'''
    v_mov_b32 v14, {L_CNT}
    v_mov_b32 v15, 1
    s_mov_b64 exec, 1
    ds_add_rtn_u32 v20, v14, v15
    s_waitcnt lgkmcnt(0)
    v_readfirstlane_b32 {sT0}, v20
    s_cmp_eq_u32 {sT0}, 1
    s_cbranch_scc0 L_nosig
    s_mov_b64 exec, 3
    s_lshl_b32 {sT0}, s92, 2
    s_add_u32 {sT0}, {sT0}, s93
    s_lshl_b32 {sT0}, {sT0}, 3
    s_add_u32 {sT0}, {sT0}, {WS_F}
    s_cmp_ge_u32 s66, 216
    s_cselect_b32 {sT0}, {BIG}, {sT0}
    s_lshl_b32 {sT2}, {sIDX}, 3
    s_add_u32 {sT2}, {sT2}, {WS_G}
    v_mov_b32 v20, {sT0}
    v_writelane_b32 v20, {sT2}, 1
    v_mov_b32 v14, s100
    v_mov_b32 v15, s101
    ''')
    a(f'buffer_store_dwordx2 v[14:15], v20, {WS}, 0 offen sc1'); a.vm.pop()
    a.label('L_nosig')
    a('s_mov_b64 exec, -1')
    stamp('sig')
    while kissued[0] < KPOLL: kstep(True)
    a(f's_cmp_eq_u32 {sW_}, 0\ns_cbranch_scc1 L_w0')
    fork = (list(a.vm), kissued[0], kp[0], sissued[0])
    while kp[0] < len(kseq): kstep(True)
    stamp('kiss'); stamp('poll'); stamp('qrdy')
    a('s_branch L_join')
    vm_join = list(a.vm)
    a.vm, kissued[0], kp[0], sissued[0] = fork
    a.label('L_w0')
    a(f'''
    v_min_u32 v60, 59, v1
    v_lshlrev_b32 v60, 2, v60
    s_mul_i32 {sT0}, {sH}, 192
    s_mul_i32 {sT2}, {sP}, 24
    s_add_u32 {sT2}, {sT2}, {6144-192}
    s_add_u32 {sT3}, {sT2}, {1536-24}
    v_mov_b32 v61, {sT0}
    v_mov_b32 v62, {sT2}
    v_cmp_le_u32 vcc, 48, v1
    v_cndmask_b32 v61, v61, v62, vcc
    v_mov_b32 v62, {sT3}
    v_cmp_le_u32 vcc, 54, v1
    v_cndmask_b32 v61, v61, v62, vcc
    v_add_u32 v60, v60, v61
    v_lshrrev_b32 v61, 7, v60
    v_lshlrev_b32 v61, 5, v61
    v_lshlrev_b32 v60, 2, v60
    s_mov_b32 {sT2}, {WS_F}
    s_mov_b32 {sT1}, {SPIN}
    ''')
    if EXP & 1: a(f'v_mov_b32 v61, {BIG}')
    a(f'buffer_load_dwordx4 v[16:19], v61, {WS}, {sT2} offen sc1')
    a(f'buffer_load_dwordx2 v[20:21], v61, {WS}, {sT2} offen offset:16 sc1', tag='poll')
    for _ in range(T - 1): kstep(True)
    a.wait_vm('poll')
    a.label('L_spin1')
    a(f'''
    v_cmp_ne_u64 vcc, {TAG}, v[16:17]
    v_cmp_ne_u64 s[44:45], {TAG}, v[18:19]
    v_cmp_ne_u64 s[46:47], {TAG}, v[20:21]
    s_or_b64 vcc, vcc, s[44:45]
    s_or_b64 vcc, vcc, s[46:47]
    s_cbranch_scc0 L_ok1
    s_sub_u32 {sT1}, {sT1}, 1
    s_cbranch_scc1 L_ok1
    s_sleep {SLP}
    buffer_load_dwordx4 v[16:19], v61, {WS}, {sT2} offen sc1
    buffer_load_dwordx2 v[20:21], v61, {WS}, {sT2} offen offset:16 sc1
    s_waitcnt vmcnt(0)
    s_branch L_spin1
    ''')
    a.vm.pop(); a.vm.pop()
    a.label('L_ok1')
    stamp('poll')
    a(f's_mul_i32 {sT0}, {sB}, 36864\ns_add_u32 {sT0}, {sT0}, {WS_P}')
    if EXP & 2: a(f'v_mov_b32 v60, {BIG}')
    for t in range(3):
        a(f'buffer_load_dwordx4 {v4(16+4*t)}, v60, {WS}, {sT0} offen sc1', tag='gq')
        if t < 2: a(f's_add_u32 {sT0}, {sT0}, 147456')
    for _ in range(W0N): kstep(False)
    a.wait_vm('gq')
    padd(16, 20, 4); padd(16, 24, 4)
    a(f'''
    v_cvt_pk_bf16_f32 v16, v16, v17
    v_cvt_pk_bf16_f32 v17, v18, v19
    v_lshlrev_b32 v14, 3, v1
    ds_write_b64 v14, v[16:17] offset:{L_Q}
    v_min_u32 v14, 23, v1
    v_lshlrev_b32 v14, 1, v14
    s_waitcnt lgkmcnt(0)
    ds_read_u16 v20, v14 offset:{L_Q+384}
    ds_read_u16 v21, v14 offset:{L_Q+432}
    s_waitcnt lgkmcnt(0)
    v_lshlrev_b32 v20, 16, v20
    v_lshlrev_b32 v21, 16, v21             ; up
    v_mul_f32 v22, v20, v20
    v_mul_f32 v22, {f32(0.044715)}, v22
    v_fma_f32 v22, v22, v20, v20           ; x + c x^3
    v_mul_f32 v22, {f32(-2*0.7978845608028654*L2E)}, v22
    v_exp_f32 v22, v22
    v_add_f32 v22, 1.0, v22
    v_rcp_f32 v22, v22
    v_mul_f32 v22, v22, v20
    v_cvt_pk_bf16_f32 v22, v22, v22
    v_and_b32 v22, 0xffff0000, v22
    v_mul_f32 v22, v22, v21
    v_cvt_pk_bf16_f32 v22, v22, v22
    v_cmp_gt_u32 vcc, 24, v1
    v_cndmask_b32 v22, 0, v22, vcc
    v_min_u32 v14, 31, v1
    v_lshlrev_b32 v14, 2, v14
    ds_write_b32 v14, v22 offset:{L_HID}
    v_mov_b32 v14, {L_CNT}
    v_mov_b32 v15, 1
    s_waitcnt lgkmcnt(0)
    ds_write_b32 v14, v15 offset:4
    ''')
    def xred8(base, n, tmp):
        for r in range(n): a(f'v_add_f32_dpp v{base+r}, v{base+r}, v{base+r} row_ror:8 row_mask:0xf bank_mask:0xf')
        for sw in ('v_permlane16_swap_b32', 'v_permlane32_swap_b32'):
            for r in range(n): a(f'v_mov_b32 v{tmp+r}, v{base+r}')
            for r in range(n): a(f'{sw} v{base+r}, v{tmp+r}')
            padd(base, tmp, n)
    stamp('qrdy')
    while kp[0] < len(kseq): kstep(True)
    stamp('kiss')
    a.vm = vm_join
    a.label('L_join')
    a(f'v_mov_b32 v14, {L_CNT}\ns_mov_b32 {sT1}, {1<<24}')
    a.label('L_spinq')
    a(f'''
    ds_read_b32 v15, v14 offset:4
    s_waitcnt lgkmcnt(0)
    v_readfirstlane_b32 {sT0}, v15
    s_cmp_lg_u32 {sT0}, 0
    s_cbranch_scc1 L_okq
    s_sub_u32 {sT1}, {sT1}, 1
    s_cbranch_scc1 L_okq
    s_sleep 1
    s_branch L_spinq
    ''')
    a.label('L_okq')
    stamp('barB')
    a(f'''
    v_and_b32 v14, 3, v2
    v_lshl_add_u32 v15, v3, 2, v14
    v_lshlrev_b32 v15, 4, v15
    ds_read_b128 v[56:59], v15 offset:{L_Q}
    v_and_b32 v15, 0x70, v15
    ds_read_b128 v[60:63], v15 offset:{L_Q+256}
    ''')
    mX = [lanemask(lambda m, g, u=u: (m >> 2) == u) for u in range(4)]
    mY = [lanemask(lambda m, g, w=w: (m >> 2) == 2*w + (g >> 1)) for w in range(2)]
    for k, m in enumerate(mX + mY):
        a(f's_mov_b32 s{44+2*k}, {hex(m & 0xffffffff)}\ns_mov_b32 s{45+2*k}, {hex(m >> 32)}')
    a('s_waitcnt lgkmcnt(0)')
    for k in range(6):
        src = 56 if k < 4 else 60
        for r in range(4): a(f'v_cndmask_b32 v{32+4*k+r}, 0, v{src+r}, s[{44+2*k}:{45+2*k}]')
    vissued = [0]
    def vreg(i): return kt(i % RV)
    def vload():
        i = vissued[0]; g, e = divmod(i, 6); c, x = divmod(e, 3)
        if e == 0:
            grp(g)
            a(f's_add_u32 {sKV2}, {sKV}, 3072')
        if x == 0:   a(f'buffer_load_dwordx4 {vreg(i)}, v10, {V}, {sKV} offen offset:{1536*c} {POL[KVPOL]}', tag=f'v{i}')
        elif x == 1: a(f'buffer_load_dwordx4 {vreg(i)}, v10, {V}, {sKV2} offen offset:{1536*c} {POL[KVPOL]}', tag=f'v{i}')
        else:        a(f'buffer_load_dwordx4 {vreg(i)}, v11, {V}, {sKV} offen offset:{1536*c} {POL[KVPOL]}', tag=f'v{i}')
        vissued[0] += 1
    assert RV <= 12
    extras = [('wd', c) for c in range(5)] + [('wo', n) for n in range(NS, 30)]
    xiss = [0]
    def xtile(e): return WDT + e[1] if e[0] == 'wd' else WOT + e[1]
    def xload():
        e = extras[xiss[0]]
        if e[0] == 'wd':
            a(f'buffer_load_dwordx4 {kt(xtile(e))}, v13, {WD}, {sWDB} offen offset:{256*e[1]} {POL[WPOL]}', tag='wd')
        else:
            so, imm = wotile(e[1])
            a(f'buffer_load_dwordx4 {kt(xtile(e))}, v12, {WO}, {so} offen offset:{imm} {POL[WPOL]}', tag=f'wo{e[1]}')
        xiss[0] += 1
    SC = 0.07216878364870322
    def score_post(g):
        d = 24 + 4*(g & 1); s_ = 16 + g
        a(f'''
        v_mov_b32_dpp v{s_}, v{d} quad_perm:[0,0,0,0] row_mask:0xf bank_mask:0xf
        v_add_f32_dpp v{s_}, v{d+1}, v{s_} quad_perm:[1,1,1,1] row_mask:0xf bank_mask:0xf
        v_add_f32_dpp v{s_}, v{d+2}, v{s_} quad_perm:[2,2,2,2] row_mask:0xf bank_mask:0xf
        v_add_f32_dpp v{s_}, v{d+3}, v{s_} quad_perm:[3,3,3,3] row_mask:0xf bank_mask:0xf
        ''')
        if NOS < 1: a(f'v_cvt_pk_bf16_f32 v{s_}, v{s_}, v{s_}\nv_and_b32 v{s_}, 0xffff0000, v{s_}')
        a(f'v_mul_f32 v{s_}, {f32(SC)}, v{s_}')
        if NOS < 2: a(f'v_cvt_pk_bf16_f32 v{s_}, v{s_}, v{s_}\nv_and_b32 v{s_}, 0xffff0000, v{s_}')
    nx = len(extras) - XL
    span = 48 - XBEG - XEND
    seq = []
    xi = 0
    for i in range(48):
        seq.append('v')
        if i == SLI: seq.append('sl')
        if xi < 5 and i >= XBEG:
            seq.append('x'); xi += 1
        while xi < nx and i >= XBEG and (xi + 1) * span <= (i + 1 - XBEG) * nx:
            seq.append('x'); xi += 1
    assert xi == nx
    seq += ['x'] * XL
    nx += XL
    sp = [0]
    did_wd = [False]
    SS = KB + 4*47
    st = KB + 4*WDT
    GF = st + 12
    def statload():
        a(f'''
        v_lshlrev_b32 v8, 4, v2
        s_mul_i32 s95, {sP}, 43691
        s_lshr_b32 s95, s95, 17
        s_mul_i32 {sT0}, {sB}, 1280
        s_lshl_b32 {sT1}, s95, 6
        s_add_u32 s96, {sT0}, {sT1}
        s_mul_i32 {sT0}, s95, 3
        s_mov_b32 s97, 1
        s_cmp_lg_u32 {sT0}, {sP}
        s_cselect_b32 s97, 0, s97
        s_cmp_ge_u32 s95, 20
        s_cselect_b32 s97, 0, s97
        s_cmp_lg_u32 {sW_}, 7
        s_cselect_b32 s97, 0, s97
        v_lshlrev_b32 v9, 4, v1
        s_mov_b32 s98, {WS_G}
        s_cmp_eq_u32 s2, 0
        s_cselect_b32 s99, s97, 0
        s_cmp_eq_u32 s99, 0
        s_cbranch_scc1 L_nogf
        buffer_load_dwordx4 {v4(GF)}, v9, {WS}, s98 offen sc1
        buffer_load_dwordx4 {v4(GF+4)}, v9, {WS}, s98 offen offset:1024 sc1
        ''')
        a.vm.pop(); a.vm.pop()
        a.label('L_nogf')
        a(f'buffer_load_dwordx4 {v4(SS)}, v8, {WS}, {sSB} offen sc1', tag='sl')
    def pump(lasttag, kfree, vcons):
        while sp[0] < len(seq):
            idx = max(k for k, (t, r) in enumerate(a.vm) if t == lasttag)
            if len(a.vm) - 1 - idx >= (TV if vcons < VE else TVE): break
            op = seq[sp[0]]
            if op == 'v':
                i = vissued[0]
                if i < RV:
                    if i >= kfree: break
                elif i - RV >= vcons: break
                vload()
            elif op == 'x':
                if xtile(extras[xiss[0]]) >= kfree: break
                xload()
            else:
                assert did_wd[0]
                statload()
            sp[0] += 1
    done = [t for (t, r) in a.vm[:len(a.vm) - T]]
    known = max(int(t[1:]) for t in done if t and t[0] == 'k' and t[1:].isdigit())
    a.wait_vm(f'k{known}')
    for g in range(8):
        d = v4(24 + 4*(g & 1))
        for e in range(6):
            i = 6*g + e
            if i > known:
                a.wait_vm(f'k{i}'); known = i
            a(f'v_mfma_f32_16x16x32_bf16 {d}, {v4(32+4*e)}, {kt(i)}, {0 if e == 0 else d}')
            if i == known: pump(f'k{known}', i + 1, 0)
        if 6*g + 5 < known and (g & 1) == 0 and known < 47:
            known += 1
            a.wait_vm(f'k{known}')
            pump(f'k{known}', 6*g + 6, 0)
        if g > 0: score_post(g-1)
    score_post(7)
    if NS:
        a.wait_vm('stg')
        a(f'v_lshlrev_b32 v14, 4, v1\nv_add_u32 v14, {sSTG}, v14')
        for n in range(NS): a(f'ds_read_b128 {kt(WOT+n)}, v14 offset:{1024*n}')
    def allred(op, r, t):
        rowred(op, r, (4, 8))
        a(f'v_mov_b32 v{t}, v{r}\nv_permlane16_swap_b32 v{r}, v{t}\n{op} v{r}, v{r}, v{t}')
        a(f'v_mov_b32 v{t}, v{r}\nv_permlane32_swap_b32 v{r}, v{t}\n{op} v{r}, v{r}, v{t}')
    a('v_max3_f32 v28, v16, v17, v18\nv_max3_f32 v15, v19, v20, v21\nv_max3_f32 v28, v28, v22, v23\nv_max_f32 v28, v28, v15')
    allred('v_max_f32', 28, 15)
    for g in range(8): a(f'v_sub_f32 v{16+g}, v{16+g}, v28')
    for g in range(8): a(f'v_mul_f32 v{16+g}, {f32(L2E)}, v{16+g}')
    for g in range(8): a(f'v_exp_f32 v{16+g}, v{16+g}')
    a('v_add_f32 v30, v16, v17\nv_add_f32 v24, v18, v19\nv_add_f32 v25, v20, v21\nv_add_f32 v26, v22, v23\nv_add_f32 v30, v30, v24\nv_add_f32 v25, v25, v26\nv_add_f32 v30, v30, v25')
    allred('v_add_f32', 30, 24)
    for g in range(8): a(f'v_cvt_pk_bf16_f32 v{16+g}, v{16+g}, v{16+g}')
    a(f'''
    v_mov_b32 v29, s100
    v_mov_b32 v31, s101
    v_mov_b32 v24, 0
    v_readfirstlane_b32 {sM}, v28          ; own m
    s_mov_b64 exec, 1
    ''')
    if EXP & 256: a(f's_cmp_eq_u32 {sW_}, 0\ns_cselect_b32 {sSOWN}, {sSOWN}, {BIG}\ns_cselect_b32 {sSB}, {sSB}, {BIG}')
    a(f'buffer_store_dwordx4 v[28:31], v24, {WS}, {sSOWN} offen sc1', tag='stat')
    a('s_mov_b64 exec, -1')
    stamp('smax')
    YA, OA = 44, 32
    a(f'''
    s_mul_i32 {sT0}, {sW_}, 12
    v_lshlrev_b32 v24, 2, v3
    v_add_u32 v24, {sT0}, v24
    v_mov_b32 v25, 124
    v_cmp_eq_u32 vcc, 3, v3
    v_cndmask_b32 v24, v24, v25, vcc
    ds_read_b32 v14, v24 offset:{L_HID}
    s_waitcnt lgkmcnt(0)
    ''')
    for g in range(8):
        for c in range(2):
            A = 24 + 4*c
            if c == 0: a(f'v_mov_b32 v15, v{16+g}\nv_mov_b32_dpp v15, v{16+g} row_shr:4 row_mask:0xf bank_mask:0xa')
            else:      a(f'v_mov_b32 v15, v{16+g}\nv_mov_b32_dpp v15, v{16+g} row_shl:4 row_mask:0xf bank_mask:0x5')
            for r in range(4): a(f'v_and_b32 v{A+r}, v15, v{4+r}')
            for x in range(3):
                i = 6*g + 3*c + x
                d = v4(OA + 4*x)
                a.wait_vm(f'v{i}')
                stamp(f'vc{i}')
                a(f'v_mfma_f32_16x16x32_bf16 {d}, {v4(A)}, {vreg(i)}, {0 if i < 3 else d}')
                pump(f'v{i}', 48, i + 1)
        if g == 2:
            did_wd[0] = True
            assert xiss[0] >= 5
            for r in range(4): a(f'v_and_b32 v{24+r}, v14, v{4+r}')
            a.wait_vm('wd')
            for c in range(5):
                a(f'v_mfma_f32_16x16x32_bf16 {v4(YA+4*c)}, v[24:27], {kt(WDT+c)}, 0')
        if g == GST:
            a(f's_mov_b32 {sT1}, {SPIN}')
            a.wait_vm('sl')
            a.label('L_spin2')
            a(f'''
            v_cmp_ne_u32 vcc, s100, v{SS+1}
            v_cmp_ne_u32 s[44:45], s101, v{SS+3}
            s_or_b64 vcc, vcc, s[44:45]
            s_cbranch_scc0 L_ok2
            s_sub_u32 {sT1}, {sT1}, 1
            s_cbranch_scc1 L_ok2
            s_sleep 4
            buffer_load_dwordx4 {v4(SS)}, v8, {WS}, {sSB} offen sc1
            s_waitcnt vmcnt(0)
            s_branch L_spin2
            ''')
            a.vm.pop()
            a.label('L_ok2')
            a(f'''
            s_cmp_eq_u32 s99, 0
            s_cbranch_scc1 L_ok2b
            s_mov_b32 {sT1}, {SPIN}
            ''')
            a.label('L_spin2b')
            a(f'''
            v_cmp_ne_u64 vcc, {TAG}, v[{GF}:{GF+1}]
            v_cmp_ne_u64 s[44:45], {TAG}, v[{GF+2}:{GF+3}]
            v_cmp_ne_u64 s[46:47], {TAG}, v[{GF+4}:{GF+5}]
            v_cmp_ne_u64 s[48:49], {TAG}, v[{GF+6}:{GF+7}]
            s_or_b64 vcc, vcc, s[44:45]
            s_or_b64 s[46:47], s[46:47], s[48:49]
            s_or_b64 vcc, vcc, s[46:47]
            s_cbranch_scc0 L_ok2c
            s_sub_u32 {sT1}, {sT1}, 1
            s_cbranch_scc1 L_ok2c
            s_sleep {SLP}
            buffer_load_dwordx4 {v4(GF)}, v9, {WS}, s98 offen sc1
            buffer_load_dwordx4 {v4(GF+4)}, v9, {WS}, s98 offen offset:1024 sc1
            s_waitcnt vmcnt(0)
            s_branch L_spin2b
            ''')
            a.vm.pop(); a.vm.pop()
            a.label('L_ok2c')
            a(f'''
            s_mov_b32 {sT2}, {WS_E}
            v_mov_b32 v{GF}, s100
            v_mov_b32 v{GF+1}, s101
            s_mov_b64 exec, 1
            buffer_store_dwordx2 v[{GF}:{GF+1}], v9, {WS}, {sT2} offen sc1
            s_mov_b64 exec, -1
            ''')
            a.vm.pop()
            a.label('L_ok2b')
            a(f'v_mov_b32 v{st+6}, v{SS}')
            rowred('v_max_f32', st+6)
            a(f'''
            v_sub_f32 v{st}, v{SS}, v{st+6}
            v_sub_f32 v{st+7}, {sM}, v{st+6}
            v_mul_f32 v{st}, {f32(L2E)}, v{st}
            v_mul_f32 v{st+7}, {f32(L2E)}, v{st+7}
            v_exp_f32 v{st}, v{st}
            v_exp_f32 v{st+7}, v{st+7}
            v_mul_f32 v{st}, v{st}, v{SS+2}
            ''')
            rowred('v_add_f32', st)
            a(f'''
            v_rcp_f32 v{st}, v{st}
            v_mul_f32 v14, v{st}, v{st+7}          ; factor
            v_and_b32 v{st+5}, 7, v1
            v_lshlrev_b32 v{st+5}, 3, v{st+5}
            v_and_b32 v{st+3}, 1, v3
            v_lshlrev_b32 v{st+3}, 2, v{st+3}
            v_and_b32 v{st+4}, 2, v3
            v_add3_u32 v{st+3}, v{st+3}, v{st+4}, v{st+5}
            s_min_u32 {sT0}, s96, 5056
            v_add_u32 v{st+4}, {sT0}, v{st+3}
            ds_read_u16 v{st+2}, v{st+4} offset:{L_X}
            v_and_b32 v{st+15}, 3, v2
            v_mul_u32_u24 v{st+15}, 0x5555, v{st+15}
            s_mov_b32 s44, 0x0f0f0f0f
            s_mov_b32 s45, 0x0f0f0f0f
            s_mov_b32 s46, 0xf0f0f0f0
            s_mov_b32 s47, 0xf0f0f0f0
            ''')
            a(f'''
            v_lshrrev_b32 v{st+6}, 1, v3
            s_lshl_b32 {sT0}, {sW_}, 1
            v_add_u32 v{st+7}, {sT0}, v{st+6}
            v_mul_u32_u24 v{st+7}, 784, v{st+7}
            v_and_b32 v{st+8}, 1, v3
            v_lshlrev_b32 v{st+11}, 4, v{st+8}
            v_add_u32 v{st+7}, v{st+7}, v{st+11}
            v_lshl_add_u32 v{st+8}, v2, 5, v{st+7}
            v_and_b32 v{st+9}, 7, v2
            v_lshl_add_u32 v{st+9}, v{st+9}, 5, v{st+7}
            v_add_u32 v{st+9}, 512, v{st+9}
            v_lshrrev_b32 v{st+7}, 3, v2
            v_cmp_eq_u32 vcc, v{st+7}, v{st+6}
            v_lshlrev_b32 v{st+7}, 4, v1
            v_add_u32 v{st+7}, {L_DUM}, v{st+7}
            v_cndmask_b32 v{st+9}, v{st+7}, v{st+9}, vcc
            v_mul_u32_u24 v{st+10}, 784, v2
            v_mul_u32_u24 v{st+7}, 24, v3
            s_mul_i32 {sT0}, {sW_}, 96
            v_add3_u32 v{st+10}, v{st+10}, v{st+7}, {sT0}
            s_mul_i32 {sT0}, {sW_}, 3200
            v_mul_u32_u24 v{st+11}, 24, v{st+11}
            v_lshl_add_u32 v{st+11}, v2, 4, v{st+11}
            v_add_u32 v{st+11}, {sT0}, v{st+11}           ; y write: 3200w + 384(g&1) + 16n
            v_and_b32 v{st+13}, 31, v1
            v_lshrrev_b32 v{st+7}, 1, v{st+13}
            v_lshlrev_b32 v{st+13}, 4, v{st+13}
            s_lshl_b32 {sT0}, {sW_}, 9
            v_add_u32 v{st+13}, {sT0}, v{st+13}
            v_mul_u32_u24 v{st+12}, 12800, v{st+6}
            v_lshl_add_u32 v{st+12}, v{st+7}, 4, v{st+12}
            v_and_b32 v{st+7}, 1, v1
            v_mul_u32_u24 v{st+7}, 384, v{st+7}
            s_mul_i32 {sT0}, {sW_}, 640
            v_add3_u32 v{st+12}, v{st+12}, v{st+7}, {sT0}  ; y read: 12800(l>>5) + 640w + 384(l&1) + 16((l&31)>>1)
            v_lshrrev_b32 v{st+14}, 3, v1
            v_mul_u32_u24 v{st+14}, 2560, v{st+14}
            v_lshl_add_u32 v{st+14}, v{st+5}, 1, v{st+14}
            s_mul_i32 s94, {sB}, {64*2560}
            s_lshl_b32 {sT0}, s95, 7
            s_add_u32 s94, s94, {sT0}
            ''')
            for i in range(8): a(f's_add_u32 s{48+i}, s94, {8*2560*i}')
            a('s_movk_i32 s98, 0xff')
            for k in range(2): a(f'v_bfe_u32 v{st+16+k}, s{100+k}, 0, 8')
    assert xiss[0] == nx and sp[0] == len(seq)
    stamp('vend')
    for r in range(4): a(f'v_cndmask_b32 v{OA+r}, v{OA+4+r}, v{OA+r}, {sLO32}')
    for r in range(4): a(f'v_mul_f32 v{OA+r}, v{OA+r}, v14')
    a(f'ds_write_b128 v{st+8}, {v4(OA)}')
    for r in range(4): a(f'v_mul_f32 v{OA+8+r}, v{OA+8+r}, v14')
    a(f'ds_write_b128 v{st+9}, {v4(OA+8)}')
    a('s_waitcnt lgkmcnt(0)\ns_barrier')
    stamp('barC')
    for j in range(3): a(f'ds_read_b64 v[{16+2*j}:{17+2*j}], v{st+10} offset:{8*j}')
    def dpp(regs, steps):
        for s_ in steps:
            for r in regs: a(f'v_add_f32_dpp v{r}, v{r}, v{r} row_ror:{s_} row_mask:0xf bank_mask:0xf')
    if CM != 2:
        a('s_waitcnt lgkmcnt(0)')
        dpp(range(16, 22), (8, 4, 2, 1))
    AT = KB
    def abuild(u):
        for i in range(2):
            a(f'v_cvt_pk_bf16_f32 v{16+2*u+i}, v{16+2*u+i}, 0')
        for i in range(2):
            a(f'v_cndmask_b32 v{AT+4*u+2*i}, 0, v{16+2*u+i}, s[44:45]\nv_cndmask_b32 v{AT+4*u+2*i+1}, 0, v{16+2*u+i}, s[46:47]')
    def smf(u, c):
        n = (c*3 + u)*2
        if n + 1 >= 30 - XL: a.wait_vm(f'wo{n+1}')
        r = KB + 4*(WOT + n)
        a(f'v_smfmac_f32_16x16x64_bf16 {v4(YA+4*c)}, {v4(AT+4*u)}, v[{r}:{r+7}], v{st+15}')
    def ywrite(c):
        a(f's_mov_b64 exec, {sLO32}\nds_write_b128 v{st+11}, {v4(YA+4*c)} offset:{L_YP+640*c}\ns_mov_b64 exec, -1')
    if CM == 2:
        a('s_waitcnt lgkmcnt(0)' if stamps == 3 else 's_waitcnt lgkmcnt(1)')
        dpp((16, 17, 18), (8, 4, 2, 1))
        abuild(0)
        a('s_waitcnt lgkmcnt(0)')
        dpp((19, 20, 21), (8,))
        smf(0, 0); dpp((19, 20, 21), (4,))
        smf(0, 1); dpp((19, 20, 21), (2,))
        smf(0, 2); dpp((19, 20, 21), (1,))
        smf(0, 3); abuild(1)
        smf(1, 0); abuild(2)
        order = [(1,1),(2,0),(1,2),(2,1),(1,3),(0,4),'w0',(2,2),'w1',(1,4),(2,3),(2,4),'w2','w3','w4']
        for o in order:
            if isinstance(o, str): ywrite(int(o[1]))
            else: smf(*o)
        stamp('mm')
        a('s_waitcnt lgkmcnt(0)\ns_barrier')
    elif CM:
        abuild(0); abuild(1)
        smf(0, 0); smf(0, 1)
        abuild(2)
        order = [(1,0),(1,1),(2,0),(2,1),(0,2),(0,3),(1,2),'w0',(1,3),'w1',(2,2),(0,4),(2,3),(1,4),'w2',(2,4),'w3','w4']
        for o in order:
            if isinstance(o, str): ywrite(int(o[1]))
            else: smf(*o)
        stamp('mm')
        a('s_waitcnt lgkmcnt(0)\ns_barrier')
    else:
        abuild(0); abuild(1)
        smf(0, 0); smf(0, 1)
        abuild(2)
        for c in range(2, 5): smf(0, c)
        for c in range(5): smf(1, c)
        for c in range(5): smf(2, c)
        stamp('mm')
        a(f's_mov_b64 exec, {sLO32}')
        for c in range(5): a(f'ds_write_b128 v{st+11}, {v4(YA+4*c)} offset:{L_YP+640*c}')
        a('s_mov_b64 exec, -1\ns_waitcnt lgkmcnt(0)\ns_barrier')
    stamp('barD'); stamp('pub'); stamp('c1')
    if DREL == 2: a('s_memrealtime s[60:61]')
    a(f's_cmp_ge_u32 {sW_}, 5\ns_cbranch_scc1 L_cons')
    for u in range(4): a(f'ds_read_b128 {v4(16+4*u)}, v{st+12} offset:{L_YP+3200*u}')
    a('s_waitcnt lgkmcnt(0)')
    padd(16, 24, 8); padd(16, 20, 4)
    for r in range(4): a(f'v_mov_b32 v{20+r}, v{16+r}')
    for r in range(4): a(f'v_permlane32_swap_b32 v{16+r}, v{20+r}')
    padd(16, 20, 4)
    for r in range(2): a(f'v_bfi_b32 v{16+2*r}, s98, v{st+16+r}, v{16+2*r}')
    a(f's_mov_b64 exec, {sLO32}')
    a(f'buffer_store_dwordx4 v[16:19], v{st+13}, {WS}, {sYB} offen {POL[YSP]}')
    if stamps:
        a('s_mov_b64 exec, -1\ns_waitcnt lgkmcnt(0)')
        stamp('pub')
        a('s_branch L_fin')
    else:
        a('s_endpgm')
    a.label('L_cons')
    a(f'''
    s_cmp_eq_u32 s97, 0
    s_cbranch_scc1 L_fin
    s_mov_b32 {sT1}, {SPIN}
    ''')
    def pissue(b):
        for i in range(8):
            a(f'buffer_load_dwordx4 {v4(b+4*i)}, v{st+14}, {WS}, s{48+i} offen {POL[YLP]}')
    def pcheck(b, extra):
        for i in range(8):
            r = b + 4*i
            a(f's_waitcnt vmcnt({7-i+extra})')
            for k in range(2): a(f'v_xor_b32 v{r+2*k}, v{r+2*k}, v{st+16+k}')
            if i == 0: a(f'v_or_b32 v15, v{r}, v{r+2}')
            else: a(f'v_or3_b32 v15, v15, v{r}, v{r+2}')
        a('v_and_b32 v15, s98, v15\nv_cmp_ne_u32 vcc, 0, v15')
    def pfinish(b):
        if stamps: a('s_waitcnt lgkmcnt(0)')
        stamp('c1'); stamp('c1x')
        padd(b, b+16, 16); padd(b, b+8, 8); padd(b, b+4, 4)
        a(f'''
        v_lshlrev_b32 v14, 16, v{st+2}
        v_permlane32_swap_b32 v{b}, v{b+1}
        v_permlane32_swap_b32 v{b+2}, v{b+3}
        v_add_f32 v{b}, v{b}, v{b+1}
        v_add_f32 v{b+2}, v{b+2}, v{b+3}
        v_permlane16_swap_b32 v{b}, v{b+2}
        v_add_f32 v{b}, v{b}, v{b+2}
        v_add_f32_dpp v{b}, v{b}, v{b} row_ror:8 row_mask:0xf bank_mask:0xf
        v_add_f32 v{b}, v{b}, v14
        v_cvt_pk_bf16_f32 v{b}, v{b}, v{b}
        s_mov_b32 exec_lo, 0x00ff00ff
        s_mov_b32 exec_hi, 0x00ff00ff
        buffer_store_short v{b}, v{st+3}, {OUT}, s96 offen {POL[OPOL]}
        s_mov_b64 exec, -1
        ''')
    if PM == 2:
        pissue(16)
        a.label('L_spin3')
        pissue(68)
        pcheck(16, 8)
        a('s_cbranch_vccz L_ok3')
        pissue(16)
        a(f's_sub_u32 {sT1}, {sT1}, 1')
        pcheck(68, 8)
        a('s_cbranch_scc1 L_ok3b\ns_and_b64 vcc, vcc, vcc')
        a.raw('  s_cbranch_scc1 L_spin3')
        a.label('L_ok3b')
        pfinish(68)
        a('s_branch L_ok3c')
        a.label('L_ok3')
        pfinish(16)
        a.label('L_ok3c')
    else:
        a.label('L_spin3')
        pissue(16)
        a(f's_sub_u32 {sT1}, {sT1}, 1')
        pcheck(16, 0)
        a('s_cbranch_scc1 L_ok3\ns_and_b64 vcc, vcc, vcc')
        a.raw('  s_cbranch_scc1 L_spin3')
        a.label('L_ok3')
        pfinish(16)
    if DLY:
        a(f'''
        s_waitcnt vmcnt(0)
        s_memrealtime s[84:85]
        s_waitcnt lgkmcnt(0)
        s_sub_u32 s82, {'s84, s80' if DREL == 1 else ('s60, s80' if DREL == 2 else (('s80' if DSEL else 's84') + ', s86'))}
        s_mul_i32 s82, s82, {DLY}
        s_add_u32 s82, s82, {(6000 if not PRE else 0) if DSEL else 0}
        s_min_u32 s82, s82, 200000
        ''')
        a.label('L_dly')
        a(f'''
        s_memrealtime s[84:85]
        s_waitcnt lgkmcnt(0)
        s_sub_u32 s83, s84, s86
        s_cmp_lt_u32 s83, s82
        s_cbranch_scc1 L_dly
        ''')
    a.label('L_fin')
    if stamps:
        a('s_waitcnt vmcnt(0)')
        stamp('end')
        a('s_waitcnt lgkmcnt(0)')
        for k in range(8): a(f'v_mov_b32 v{16+k}, s{SREG[k]}')
        a(f'''
        s_lshl_b32 {sT0}, s2, 3
        s_add_u32 {sT0}, {sT0}, {sW_}
        s_lshl_b32 {sT0}, {sT0}, 5
        s_add_u32 {sT0}, {sT0}, {WS_T}
        v_mov_b32 v14, 0
        s_mov_b64 exec, 1
        buffer_store_dwordx4 v[16:19], v14, {WS}, {sT0} offen
        buffer_store_dwordx4 v[20:23], v14, {WS}, {sT0} offen offset:16
        ''')
    a.label('L_end')
    a('s_endpgm')
    a.raw(f'''.section .rodata,"a"
.p2align 6
.amdhsa_kernel {name}
  .amdhsa_next_free_vgpr 256
  .amdhsa_next_free_sgpr 102
  .amdhsa_accum_offset 256
  .amdhsa_group_segment_fixed_size 0
  .amdhsa_kernarg_size 96
  .amdhsa_user_sgpr_count 2
  .amdhsa_user_sgpr_kernarg_segment_ptr 1
  .amdhsa_system_sgpr_workgroup_id_x 1
  .amdhsa_float_denorm_mode_32 3
.end_amdhsa_kernel''')
    return a.text()

if __name__ == '__main__':
    out = sys.argv[1]
    kw = {}
    for x in sys.argv[2:]:
        k, v = x.split('='); kw[k] = int(v)
    open(out, 'w').write(gen(**kw))
```

```python
import sys, struct
from asmdsl import Asm

NAME = 'parallel_sum__sliding_block_cached__geglu_ffn__decode_kernel'
def f32(x): return '0x%08x' % struct.unpack('<I', struct.pack('<f', x))[0]
def lanemask(fn):
    m = 0
    for l in range(64):
        if fn(l & 15, l >> 4): m |= 1 << l
    return m

HEADER = open('parallel_sum__sliding_block_cached__geglu_ffn__decode.s.ref').read().split('; Override')[0]

WS_Y  = 0
WS_S  = 0x100000
WS_E  = 0x0F0000
WS_P  = 0x110000
WS_T  = 0x300000
WS_SZ = 0x400000
L_PART = 0
L_DUM  = 14336
L_Q    = 15360
L_HID  = 15872
L_CNT  = 16000
L_X    = 16128
L_STG  = 21504
L_YP   = L_STG
BIG = 0x40000000
L2E = 1.4426950408889634
POL = {0: '', 1: 'nt', 2: 'sc0 nt', 3: 'sc1 nt', 4: 'sc0', 5: 'sc1', 6: 'sc0 sc1', 7: 'sc0 sc1 nt'}

def gen(KU=2, KW=0, KP0=10, PP=0, PG=2, PI=3, TP=5, XL=0, T=6, TV=6, TVE=12, VE=30, RV=12, ILV=1, XBEG=4, XEND=14, SLI=28, GST=5, PRIO=1, SLP=8, KPOLL=28, W0N=3, W0P=2, GLP=5, WDB=1, GWD=2, SB0=2, SLN=8, WPOL=5, SPOL=5, KVPOL=1, PPOL=1, DLY=0, DSEL=0, NOS=0, DREL=0, PRD=2, PRP=5, PUBP=3, STP=3, KORD=1, IDL=0, PK=0, WPF=3, WFP=0, WFG=7, TBO=0, TB0=0, KE=2, YR=1, YP=0, YPG=0, RA=845, RB=64, RC=366, ALPHA=1, BETA=8, CM=2, PM=2, UM=2, OPOL=0, YLP=5, YSP=5, ROT=8,
        NS=17, SEND=46, EXP=0, stamps=0, name=NAME):
    a = Asm()
    SPIN = (1 << 19) if EXP == 0 else 0
    LDS_SZ = L_STG + max(8 * NS * 1024, 25600)
    assert LDS_SZ <= 163840
    SREG = [80, 82, 84, 86, 56, 58, 60, 62]
    SETS = {1: ['start', 'barA', 'sig', 'kiss', 'barB', 'smax', 'vend', 'end'],
            2: ['start', 'bar0', 'ln', 'barA', 'sig', 'poll', 'qrdy', 'end'],
            3: ['start', 'vend', 'barC', 'mm', 'barD', 'pub', 'c1', 'end'],
            5: ['start', 'ki12', 'ki18', 'ki24', 'ki30', 'ki36', 'ki42', 'ki47'],
            6: ['start', 'ki47', 'vc0', 'vc12', 'vc24', 'vc36', 'vc42', 'vc47'],
            7: ['start', 'bar0', 'barA', 'ki12', 'ki24', 'ki47', 'vc24', 'vc47'],
            4: ['start', 'karg', 'iss1', 'iss2', 'pre0', 'bar0', 'barA', 'end']}
    DN = ['end', 'karg', 'iss1', 'bar0', 'barA', 'sig', 'barB', 'vend', 'iss2', 'smax', 'pre', 'preK', 'c1x', 'barC', 'barDx']
    def stamp(nm):
        if DLY and DSEL and nm == DN[DSEL]: a('s_memrealtime s[80:81]')
        if stamps and nm in SETS[stamps]:
            r = SREG[SETS[stamps].index(nm)]
            a(f's_memrealtime s[{r}:{r+1}]')
    a.raw(HEADER.rstrip())
    a.raw(f'; @launch grid=(256,1,1) block=(512,1,1) lds={LDS_SZ}')
    a.raw('.amdgcn_target "amdgcn-amd-amdhsa--gfx950"\n.text\n.globl %s\n.p2align 8\n.type %s,@function\n%s:' % (name, name, name))
    sW_, sH, sB, sS, sXCD, sP = 's3', 's4', 's5', 's6', 's68', 's69'
    K, V, W, WO, WD, X, WS, OUT = 's[8:11]', 's[12:15]', 's[16:19]', 's[20:23]', 's[24:27]', 's[28:31]', 's[32:35]', 's[36:39]'
    sWO0, sWO1, sWDB, sSTG, sWO2, sWO3 = 's40', 's41', 's42', 's43', 's64', 's65'
    sKV, sKV2, sKV0 = 's71', 's72', 's73'
    sT0, sT1, sT2, sT3 = 's74', 's75', 's76', 's77'
    sLO32 = 's[78:79]'
    sM, sSOWN, sYB, sSB = 's88', 's89', 's90', 's91'
    TAG = 's[100:101]'
    sTG0, sTG1 = 's70', 's7'
    KB = 64
    WDT, WOT = 12, 17
    def kt(i): return f'v[{KB+4*i}:{KB+4*i+3}]'
    def v4(r): return f'v[{r}:{r+3}]'
    def srd(d, p, n):
        a(f's_mov_b32 s{d}, s{p}\ns_and_b32 s{d+1}, s{p+1}, 0xffff\ns_mov_b32 s{d+2}, {n}\ns_mov_b32 s{d+3}, 0x20000')
    def rowred(op, r, steps=(8, 4, 2, 1)):
        for s_ in steps: a(f'{op}_dpp v{r}, v{r}, v{r} row_ror:{s_} row_mask:0xf bank_mask:0xf')
    gstep = 6144 * 8 if ILV else 6144
    def grp(g):
        if ROT == 7:
            a(f's_lshr_b32 {sKV}, s67, 16\ns_mul_i32 {sKV}, {sKV}, {g}\ns_add_u32 {sKV}, {sKV}, s67\ns_and_b32 {sKV}, {sKV}, 63\ns_mul_i32 {sKV}, {sKV}, 6144\ns_add_u32 {sKV}, {sKV}, {sKV0}')
        elif ROT == 8:
            a(f's_add_u32 {sKV}, s67, {(BETA*g)&63}\ns_and_b32 {sKV}, {sKV}, 63\ns_mul_i32 {sKV}, {sKV}, 6144\ns_add_u32 {sKV}, {sKV}, {sKV0}')
        elif ROT:
            a(f's_add_u32 {sKV}, s67, {g}\ns_and_b32 {sKV}, {sKV}, 7\ns_mul_i32 {sKV}, {sKV}, {gstep}\ns_add_u32 {sKV}, {sKV}, {sKV0}')
        else:
            a(f's_mov_b32 {sKV}, {sKV0}' if g == 0 else f's_add_u32 {sKV}, {sKV}, {gstep}')
    kissued = [0]
    KO = [[0,1,2,3,4,5],[0,1,4,2,3,5],[0,4,1,2,5,3]][KORD]
    assert all(KO[e] < 4 for e in range(KU))
    def kload():
        i = kissued[0]; g, e = divmod(i, 6)
        stamp(f'ki{i}')
        if e == 0 and g > 0: grp(g)
        e = KO[e]
        if e < 4: a(f'buffer_load_dwordx4 {kt(i)}, v8, {K}, {sKV} offen offset:{384*e} {POL[KVPOL]}', tag=f'k{i}')
        else:     a(f'buffer_load_dwordx4 {kt(i)}, v9, {K}, {sKV} offen offset:{768*(e-4)} {POL[KVPOL]}', tag=f'k{i}')
        kissued[0] += 1

    assert ILV == 1 and ROT in (3, 7, 8) and 1 <= KU <= 4
    a(f'''
    s_load_dwordx2 s[8:9], s[0:1], 8
    s_load_dwordx16 s[44:59], s[0:1], 0
    s_cmp_ge_u32 s2, 256
    s_cbranch_scc1 L_end''')
    stamp('start')
    if DLY: a('s_memrealtime s[86:87]')
    if PRIO: a('s_setprio 3')
    a(f'''
    v_lshrrev_b32 v14, 6, v0
    v_bfe_u32 v20, v0, 2, 2
    v_readfirstlane_b32 {sW_}, v14
    v_and_b32 v21, 3, v0
    v_lshlrev_b32 v21, 4, v21
    v_mul_u32_u24 v9, 1536, v20
    v_bfe_u32 v3, v0, 4, 2
    v_add_u32 v9, v9, v21
    v_lshl_add_u32 v8, v3, 6, v9       ; vkx = 1536(n>>2)+16(n&3)+64g
    s_and_b32 {sXCD}, s2, 7
    s_lshr_b32 {sT0}, s2, 6
    s_lshl2_add_u32 {sH}, {sXCD}, {sT0}
    s_bfe_u32 {sB}, s2, 0x20004
    s_bfe_u32 {sS}, s2, 0x10003
    s_lshl_b32 {sT0}, {sB}, 5
    s_add_u32 {sSB}, {sT0}, {sH}       ; bh
    s_lshl3_add_u32 {sT0}, {sSB}, {sS}
    s_add_u32 {sT0}, {sT0}, 6
    s_lshl_b32 {sT0}, {sT0}, 6
    ''')
    if ROT == 8:
        a(f'''
        s_mul_i32 {sKV0}, {sT0}, 6144
        s_mul_i32 s67, {sH}, {RA}
        {f's_mul_i32 {sT0}, {sB}, {RB}' if RB else ''}
        {f's_add_u32 s67, s67, {sT0}' if RB else ''}
        s_mul_i32 {sT0}, {sS}, {RC}
        s_add_u32 s67, s67, {sT0}
        s_lshr_b32 s67, s67, 4
        ''')
        if ALPHA == 1: a(f's_add_u32 s67, s67, {sW_}')
        else: a(f's_mul_i32 {sT0}, {sW_}, {ALPHA}\ns_add_u32 s67, s67, {sT0}')
        a(f's_and_b32 s67, s67, 63\ns_mul_i32 {sKV}, s67, 6144\ns_add_u32 {sKV}, {sKV}, {sKV0}')
    else:
        a(f'''
        s_add_u32 {sT0}, {sT0}, {sW_}
        s_mul_i32 {sKV0}, {sT0}, 6144
        s_mul_i32 s67, s2, 0x9E3779B1
        s_bfe_u32 s67, s67, 0x30014
        s_mul_i32 {sKV}, s67, {gstep}
        s_add_u32 {sKV}, {sKV}, {sKV0}
        ''')
    a(f'''
    s_mov_b32 s10, 402653184
    s_mov_b32 s11, 0x20000
    s_waitcnt lgkmcnt(0)
    ''')
    stamp('karg')
    if ROT == 7:
        a(f's_lshl_b32 {sT0}, s2, 2\ns_load_dword s67, s[54:55], {sT0}\ns_mul_i32 {sT0}, {sW_}, 6144\ns_sub_u32 {sKV0}, {sKV0}, {sT0}\ns_waitcnt lgkmcnt(0)\ns_bfe_u32 {sT0}, s67, 0x60008\ns_mul_i32 {sT0}, {sT0}, {sW_}\ns_and_b32 {sT0}, {sT0}, 63\ns_add_u32 s67, s67, {sT0}')
        grp(0)
    for i in range(KU): kload()
    a(f'''
    s_load_dwordx2 s[24:25], s[0:1], 64
    s_load_dwordx2 s[36:37], s[0:1], 72
    s_load_dwordx2 s[32:33], s[0:1], 88
    v_and_b32 v1, 63, v0
    v_and_b32 v2, 15, v1
    v_lshlrev_b32 v20, 4, v1
    s_mov_b32 s28, s44
    s_mov_b32 s29, s45
    s_movk_i32 s30, 5120
    s_mov_b32 s31, 0x20000
    s_lshl_b32 {sT0}, {sW_}, 10
    s_add_u32 m0, {sT0}, {L_X}
    s_cmp_ge_u32 {sW_}, 5
    s_cbranch_scc1 L_nox
    ''')
    a.role = 'x'
    a(f'buffer_load_dwordx4 v20, {X}, {sT0} offen lds', tag='x')
    a.role = None
    a.label('L_nox')
    stamp('iss1')
    if UM == 1:
        a(f'''
        s_mov_b32 s66, s2
        s_mul_i32 s92, s66, 43691
        s_lshr_b32 s92, s92, 17            ; blk
        s_mul_i32 {sT3}, s92, 3
        s_sub_u32 s93, s66, {sT3}          ; split
        ''')
    else:
        if UM == 2: a(f'''
        s_lshr_b32 {sT2}, s2, 6
        s_lshl2_add_u32 {sT2}, {sB}, {sT2}
        s_and_b32 {sT3}, s2, 15
        s_lshl4_add_u32 s66, {sT2}, {sT3}
        ''')
        else: a(f'''
        s_lshr_b32 {sT2}, s2, 6
        s_bfe_u32 {sT3}, s2, 0x30003
        s_lshl2_add_u32 {sT2}, {sT3}, {sT2}
        s_lshl3_add_u32 s66, {sT2}, {sXCD}
        ''')
        a(f'''
        s_mul_i32 s93, s66, 911
        s_lshr_b32 s93, s93, 16
        s_mul_i32 {sT3}, s93, 72
        s_sub_u32 s92, s66, {sT3}          ; blk
        ''')
    a(f'''
    s_mul_i32 s97, s93, 224
    s_lshl_b32 {sT2}, {sW_}, 5
    s_add_u32 s97, s97, {sT2}
    s_sub_u32 {sT2}, s92, 48
    s_sub_u32 {sT3}, s92, 60
    s_cmp_lt_u32 s92, 60
    s_cselect_b32 s16, s56, s58
    s_cselect_b32 s17, s57, s59
    s_cselect_b32 s98, {sT2}, {sT3}
    s_movk_i32 s96, 3072
    s_mov_b32 s18, 1966080
    s_cmp_lt_u32 s92, 48
    s_cselect_b32 s16, s50, s16
    s_cselect_b32 s17, s51, s17
    s_cselect_b32 s18, 7864320, s18
    s_cselect_b32 s96, 12288, s96
    s_cselect_b32 s98, s92, s98
    s_and_b32 s17, s17, 0xffff
    s_mov_b32 s19, 0x20000
    s_mul_i32 s94, s97, s96
    s_lshl_b32 s98, s98, 8
    s_add_u32 s94, s94, s98            ; soffset
    s_cmp_eq_u32 {sW_}, 7
    s_cselect_b32 s94, {BIG}, s94
    s_cmp_ge_u32 s66, {216 if not (EXP & 128) else 0}
    s_cselect_b32 s94, {BIG}, s94
    v_mul_lo_u32 v16, v3, s96
    v_lshl_add_u32 v16, v2, 4, v16     ; g*RS+16n
    s_lshl_b32 s96, s96, 2
    v_lshrrev_b32 v22, 1, v3
    v_mul_u32_u24 v21, 384, v22
    v_add_u32 v9, v9, v21
    v_and_b32 v22, 1, v3
    v_lshlrev_b32 v22, 6, v22
    v_add3_u32 v9, v9, v22, 64
    v_add_u32 v9, 192, v9              ; vky
    ''')
    WT = 224
    wiss = [0]
    def wload():
        t = wiss[0]
        a(f'buffer_load_dwordx4 {v4(WT+4*t)}, v16, {W}, s94 offen {POL[PPOL]}', tag=f'w{t}')
        if t < 7: a(f's_add_u32 s94, s94, s96')
        wiss[0] += 1
    pcnt = [0]
    def pstep(paced=True):
        if paced: a(f's_waitcnt vmcnt({TP-1})')
        pcnt[0] += 1
        if wiss[0] < 8 and pcnt[0] % (PG + 1) != 0: wload()
        else: kload()
    if PP:
        for _ in range(PI): pstep(False)
    else:
        for t in range(8):
            wload()
            if t == 3:
                for _ in range(KW): kload()
        KU = KU + KW
    stamp('iss2')
    if PRIO: a('s_setprio 0')
    def wotile(n):
        uc, h = divmod(n, 2); c, u = divmod(uc, 3)
        return [[sWO0, sWO1], [sWO2, sWO3]][h][u == 2], (2560 if u == 1 else 0) + 256*c
    sissued = [0]
    def sload():
        n = sissued[0]; so, imm = wotile(n)
        a(f's_add_u32 m0, {sSTG}, {1024*n - imm}' if 1024*n >= imm else f's_sub_u32 m0, {sSTG}, {imm - 1024*n}')
        a(f'buffer_load_dwordx4 v12, {WO}, {so} offen offset:{imm} {POL[SPOL]} lds', tag='stg')
        sissued[0] += 1
    def kmore(frac):
        if PP: pstep(); return
        while kissued[0] < KU + int((KP0 - KU) * frac + 0.5): kload()
        while sissued[0] < int(SB0 * frac + 0.5): sload()
    def pmore():
        if PP: pstep()
    a(f's_waitcnt lgkmcnt(0)\ns_load_dwordx2 {TAG}, s[32:33], {WS_E}')
    a(f's_mov_b32 s34, {WS_SZ}\ns_mov_b32 s35, 0x20000\ns_mov_b32 s26, 1966080\ns_mov_b32 s27, 0x20000\ns_movk_i32 s38, 5120\ns_mov_b32 s39, 0x20000')
    srd(12, 48, 402653184); srd(20, 52, 7864320)
    if WPF:
        a(f'''
        s_bfe_u32 {sT3}, s2, 0x30003
        s_lshl3_add_u32 {sT2}, {sH}, {sT3}
        s_mul_i32 {sT0}, {sT2}, 30720
        s_mul_i32 {sT3}, {sW_}, 3840
        s_add_u32 {sT0}, {sT0}, {sT3}
        s_mul_i32 {sT2}, {sT2}, 7680
        s_mul_i32 {sT3}, {sW_}, 960
        s_add_u32 {sT2}, {sT2}, {sT3}
        v_lshlrev_b32 v62, {WFG}, v1
        ''')
        a('s_mov_b32 exec_hi, 0x0fffffff' if WFG == 6 else 's_mov_b64 exec, 0x3fffffff')
        if WPF & 1: a(f'buffer_load_dword v63, v62, {WO}, {sT0} offen {POL[WFP]}')
        a('s_mov_b64 exec, 0x7fff' if WFG == 6 else 's_mov_b64 exec, 0xff')
        if WPF & 2: a(f'buffer_load_dword v63, v62, {WD}, {sT2} offen {POL[WFP]}')
        a('s_mov_b64 exec, -1')
    a(f'''
    s_lshl_b32 {sP}, {sH}, 1
    s_add_u32 {sP}, {sP}, {sS}
    s_mov_b32 s78, -1
    s_mov_b32 s79, 0
    s_lshl_b32 {sT0}, {sB}, 6
    s_add_u32 {sT0}, {sT0}, {sP}
    s_mul_i32 {sYB}, {sT0}, 2560
    s_lshl_b32 {sSB}, {sSB}, 8
    s_add_u32 {sSB}, {sSB}, {WS_S}
    s_lshl_b32 {sT2}, {sS}, 7
    s_add_u32 {sSOWN}, {sSB}, {sT2}
    s_mul_i32 {sWDB}, {sP}, 24
    s_mul_i32 {sT0}, {sW_}, 3
    s_add_u32 {sWDB}, {sWDB}, {sT0}
    s_mul_i32 {sWDB}, {sWDB}, 1280
    s_mul_i32 {sWO0}, {sH}, 192
    s_mul_i32 {sT0}, {sW_}, 24
    s_add_u32 {sWO0}, {sWO0}, {sT0}
    s_mul_i32 {sWO0}, {sWO0}, 1280
    s_add_u32 {sWO1}, {sWO0}, 5120
    s_add_u32 {sWO2}, {sWO0}, 15360
    s_add_u32 {sWO3}, {sWO0}, 20480
    s_mul_i32 {sSTG}, {sW_}, {NS*1024}
    s_add_u32 {sSTG}, {sSTG}, {L_STG}
    v_mov_b32 v17, 1280
    v_mul_u32_u24 v18, 1280, v3
    v_lshl_add_u32 v18, v2, 4, v18     ; 1280g+16n
    s_lshl_b32 s97, s97, 1
    s_min_u32 s97, s97, 1216
    v_lshl_add_u32 v19, v3, 1, s97
    v_lshrrev_b32 v14, 3, v2
    v_mad_u32_u24 v19, v14, v17, v19   ; + 1280*(m>>3)
    v_and_b32 v15, 7, v2
    v_lshlrev_b32 v15, 4, v15          ; 16*(n&7)
    v_and_b32 v20, 1, v2
    v_cmp_eq_u32 vcc, 1, v20
    v_mov_b32 v21, 0xffff
    v_mov_b32 v22, 0xffff0000
    v_cndmask_b32 v21, v21, v22, vcc
    v_bfe_u32 v20, v2, 1, 2
    ''')
    for r in range(4):
        a(f'v_cmp_eq_u32 vcc, {r}, v20\nv_cndmask_b32 v{4+r}, 0, v21, vcc')
    a(f'''
    v_mul_u32_u24 v10, 384, v3
    v_lshrrev_b32 v20, 3, v2
    v_mul_u32_u24 v11, 3072, v20
    v_add3_u32 v11, v11, v10, v15
    v_add_u32 v11, 256, v11            ; vvy = (g+8*(n>>3))*384+256+16*(n&7)
    v_lshl_add_u32 v10, v2, 4, v10     ; vvx = g*384+16n
    v_lshrrev_b32 v12, 1, v3
    v_mul_u32_u24 v12, 5120, v12
    v_add_u32 v12, v12, v18            ; vwo = (6(g>>1)+(g&1))*1280+16n
    v_mov_b32 v22, {BIG}
    v_cmp_eq_u32 vcc, 3, v3
    v_cndmask_b32 v13, v18, v22, vcc   ; vwd = g*1280+16n  (g==3 -> out of range)
    v_lshrrev_b32 v20, 1, v3
    v_lshlrev_b32 v20, 9, v20
    v_and_b32 v22, 1, v3
    v_lshl_add_u32 v22, v22, 4, v20
    v_lshl_add_u32 v22, v2, 5, v22
    s_lshl_b32 {sT0}, {sW_}, 11
    v_add_u32 v22, {sT0}, v22
    v_mov_b32 v20, {L_CNT}
    v_mov_b32 v21, 0
    ds_write_b32 v20, v21
    ds_write_b32 v20, v21 offset:4
    ''')
    if EXP & 64: a(f'v_mov_b32 v12, {BIG}\nv_mov_b32 v13, {BIG}')
    stamp('pre0')
    tagcode = f'''
    s_waitcnt lgkmcnt(0)
    s_mul_i32 s100, s100, 0x9E3779B1
    s_add_u32 s100, s100, 0x7F4A7C15
    s_mul_i32 s101, s101, 0x85EBCA69
    s_add_u32 s101, s101, 0xC2B2AE35
    s_and_b32 {sTG0}, s100, 0xff
    s_and_b32 {sTG1}, s101, 0xff
    '''
    a(tagcode)
    a.role = 'x'; a.wait_vm('x'); a.role = None
    a('s_barrier')
    stamp('bar0')
    if IDL:
        a('s_cmp_lt_u32 s66, 216\ns_cbranch_scc1 L_act')
        fk = (list(a.vm), kissued[0], sissued[0])
        for n_ in range(1, 7):
            while kissued[0] < KU + int((KP0 - KU) * n_ / 6 + 0.5):
                a(f's_waitcnt vmcnt({T-1})'); kload()
            while sissued[0] < int(SB0 * n_ / 6 + 0.5):
                a(f's_waitcnt vmcnt({T-1})'); sload()
        stamp('barA')
        a('s_branch L_nopub')
        a.vm, kissued[0], sissued[0] = fk
        a.label('L_act')
    XS, XO, U, XN, AB, ACC, XV = 24, 44, 184, 184, 200, 216, 168
    for i in range(5): a(f'ds_read_b128 {v4(XS+4*i)}, v18 offset:{L_X+256*i}')
    for pr in range(2):
        for t in range(8): a(f'ds_read_u16 v{XV+8*pr+t}, v19 offset:{L_X+2560*pr+8*t}')
    kmore(1/6)
    a('s_waitcnt lgkmcnt(0)')
    for i in range(20):
        a(f'v_lshlrev_b32 v{U+2*i}, 16, v{XS+i}\nv_and_b32 v{U+2*i+1}, 0xffff0000, v{XS+i}')
    pmore()
    a(f'v_pk_add_f32 v[52:53], v[{U}:{U+1}], v[{U+2}:{U+3}]\nv_pk_add_f32 v[54:55], v[{U+4}:{U+5}], v[{U+6}:{U+7}]')
    for i in range(8, 40, 2):
        d = 52 + (i & 2)
        a(f'v_pk_add_f32 v[{d}:{d+1}], v[{d}:{d+1}], v[{U+i}:{U+i+1}]')
    a('v_pk_add_f32 v[52:53], v[52:53], v[54:55]\nv_add_f32 v52, v52, v53')
    rowred('v_add_f32', 52)
    a(f'v_mul_f32 v56, {f32(-1/640)}, v52')
    kmore(2/6)
    for i in range(0, 40, 2): a(f'v_pk_add_f32 v[{U+i}:{U+i+1}], v[{U+i}:{U+i+1}], v[56:57] op_sel_hi:[1,0]')
    a(f'v_pk_mul_f32 v[52:53], v[{U}:{U+1}], v[{U}:{U+1}]\nv_pk_mul_f32 v[54:55], v[{U+2}:{U+3}], v[{U+2}:{U+3}]')
    for i in range(4, 40, 2):
        d = 52 + (i & 2)
        a(f'v_pk_fma_f32 v[{d}:{d+1}], v[{U+i}:{U+i+1}], v[{U+i}:{U+i+1}], v[{d}:{d+1}]')
    a('v_pk_add_f32 v[52:53], v[52:53], v[54:55]\nv_add_f32 v52, v52, v53')
    rowred('v_add_f32', 52)
    a(f'''
    v_mul_f32 v52, {f32(1/640)}, v52
    v_cvt_pk_bf16_f32 v53, v56, v52
    v_lshlrev_b32 v56, 16, v53
    v_and_b32 v52, 0xffff0000, v53
    v_add_f32 v52, {f32(1e-5)}, v52
    v_cvt_pk_bf16_f32 v52, v52, v52
    v_and_b32 v52, 0xffff0000, v52
    v_sqrt_f32 v52, v52
    v_cvt_pk_bf16_f32 v52, v52, v52
    v_and_b32 v52, 0xffff0000, v52
    v_rcp_f32 v52, v52
    v_lshlrev_b32 v53, 6, v14
    v_add_u32 v54, 128, v53
    ds_bpermute_b32 v58, v53, v56
    ds_bpermute_b32 v60, v54, v56
    ds_bpermute_b32 v24, v53, v52
    ds_bpermute_b32 v26, v54, v52
    ''')
    kmore(3/6)
    for k in range(16): a(f'v_lshlrev_b32 v{XN+k}, 16, v{XV+k}')
    a('s_waitcnt lgkmcnt(0)')
    for pr in range(2):
        for k in range(4):
            r = XN + 8*pr + 2*k
            a(f'v_pk_add_f32 v[{r}:{r+1}], v[{r}:{r+1}], v[{58+2*pr}:{59+2*pr}] op_sel_hi:[1,0]')
    for k in range(8): a(f'v_cvt_pk_bf16_f32 v{XO+k}, v{XN+2*k}, v{XN+2*k+1}')
    for k in range(8): a(f'v_lshlrev_b32 v{XN+2*k}, 16, v{XO+k}\nv_and_b32 v{XN+2*k+1}, 0xffff0000, v{XO+k}')
    for pr in range(2):
        for k in range(4):
            r = XN + 8*pr + 2*k
            a(f'v_pk_mul_f32 v[{r}:{r+1}], v[{r}:{r+1}], v[{24+2*pr}:{25+2*pr}] op_sel_hi:[1,0]')
    for k in range(16): a(f'v_cvt_pk_bf16_f32 v{XN+k}, v{XN+k}, v{XN+k}')
    stamp('ln')
    kmore(4/6)
    if PP:
        while wiss[0] < 8: pstep()
    for t in range(8):
        for pr in range(2):
            ab = AB + 4*((2*t + pr) & 3)
            for r in range(4): a(f'v_and_b32 v{ab+r}, v{XN+8*pr+t}, v{4+r}')
        a.wait_vm(f'w{t}')
        for pr in range(2):
            ab = AB + 4*((2*t + pr) & 3); d = v4(ACC + 4*pr)
            a(f'v_mfma_f32_16x16x32_bf16 {d}, {v4(ab)}, {v4(WT+4*t)}, {0 if t == 0 else d}')
        if PP:
            idx = max(k for k, (tg, r) in enumerate(a.vm) if tg == f'w{t}')
            while len(a.vm) - 1 - idx < TP: pstep(False)
        elif t == 3: kmore(5/6)
    stamp('wland')
    kmore(1)
    if PP: KP0 = kissued[0]
    a(f's_cmp_eq_u32 {sW_}, 7\ns_cbranch_scc1 L_nopart')
    for pr in range(2): a(f'ds_write_b128 v22, {v4(ACC+4*pr)} offset:{1024*pr}')
    a.label('L_nopart')
    a('s_waitcnt lgkmcnt(0)\ns_barrier')
    stamp('barA')
    def padd(d, s_, n):
        for r in range(0, n, 2): a(f'v_pk_add_f32 v[{d+r}:{d+r+1}], v[{d+r}:{d+r+1}], v[{s_+r}:{s_+r+1}]')
    a(f'''
    s_cmp_lt_u32 {sW_}, 6
    s_cbranch_scc1 L_nopub
    v_and_b32 v14, 127, v0
    v_lshlrev_b32 v15, 4, v14
    ''')
    for u in range(7): a(f'ds_read_b128 {v4(16+4*u)}, v15 offset:{2048*u}')
    a(f'''
    v_lshrrev_b32 v14, 5, v14
    s_mov_b32 {sT0}, {36864-512}
    v_mad_u32_u24 v14, v14, {sT0}, v15     ; b*36864 + 16*(t&31)
    s_mul_i32 {sT0}, s93, 147456
    s_lshl_b32 {sT2}, s92, 9
    s_add_u32 {sT0}, {sT0}, {sT2}
    s_add_u32 {sT0}, {sT0}, {WS_P}
    s_cmp_ge_u32 s66, {216 if not (EXP & 8) else 0}
    s_cselect_b32 {sT0}, {BIG}, {sT0}
    s_waitcnt lgkmcnt(0)
    ''')
    padd(16, 32, 12); padd(16, 24, 8); padd(16, 20, 4)
    a(f'''
    v_add_u32 v16, 0x80, v16
    v_add_u32 v18, 0x80, v18
    v_and_b32 v16, 0xffffff00, v16
    v_and_b32 v18, 0xffffff00, v18
    v_or_b32 v16, {sTG0}, v16
    v_or_b32 v18, {sTG1}, v18
    ''')
    a(f'buffer_store_dwordx4 v[16:19], v14, {WS}, {sT0} offen {POL[PUBP]}'); a.vm.pop()
    a.label('L_nopub')
    kseq = []
    si = 0
    NR_ = NS - sissued[0]
    for i in range(KP0, 48):
        kseq.append('k')
        while si < NR_ and (si + 1) * (SEND - KP0) <= (i + 1 - KP0) * NR_:
            kseq.append('s'); si += 1
    assert si == NR_
    kp = [0]
    def kstep(paced):
        op = kseq[kp[0]]; kp[0] += 1
        if paced: a(f's_waitcnt vmcnt({T-1})')
        if op == 'k': kload()
        else: sload()
    if YP == 2:
        a(f's_cmp_lt_u32 {sW_}, 4\ns_cbranch_scc1 L_noyp\ns_setprio 1'); a.label('L_noyp')
    for _ in range(T - 1): kstep(True)
    stamp('sig')
    if PRD & 6:
        a(f's_cmp_lg_u32 {sW_}, 3\ns_cbranch_scc1 L_noprd2\nv_lshlrev_b32 v62, 6, v1')
        if PRD & 2:
            a(f's_mov_b32 exec_hi, 0xff\nbuffer_load_dword v63, v62, {WS}, {sYB} offen {POL[PRP]}'); a.vm.pop()
        if PRD & 4:
            a(f's_mov_b64 exec, 3\nbuffer_load_dword v63, v62, {WS}, {sSOWN} offen {POL[PRP]}'); a.vm.pop()
        a('s_mov_b64 exec, -1')
        a.label('L_noprd2')
    while kissued[0] < KPOLL: kstep(True)
    a(f's_cmp_eq_u32 {sW_}, 0\ns_cbranch_scc1 L_w0')
    fork = (list(a.vm), kissued[0], kp[0], sissued[0])
    while kp[0] < len(kseq): kstep(True)
    stamp('kiss'); stamp('poll'); stamp('qrdy')
    a('s_branch L_join')
    vm_join = list(a.vm)
    a.vm, kissued[0], kp[0], sissued[0] = fork
    a.label('L_w0')
    a(f'''
    v_min_u32 v60, 59, v1
    v_lshlrev_b32 v60, 2, v60
    s_mul_i32 {sT0}, {sH}, 192
    s_mul_i32 {sT2}, {sP}, 24
    s_add_u32 {sT2}, {sT2}, {6144-192}
    s_add_u32 {sT3}, {sT2}, {1536-24}
    v_mov_b32 v61, {sT0}
    v_mov_b32 v62, {sT2}
    v_cmp_le_u32 vcc, 48, v1
    v_cndmask_b32 v61, v61, v62, vcc
    v_mov_b32 v62, {sT3}
    v_cmp_le_u32 vcc, 54, v1
    v_cndmask_b32 v61, v61, v62, vcc
    v_add_u32 v60, v60, v61
    v_lshlrev_b32 v60, 2, v60
    s_mul_i32 s44, {sB}, 36864
    s_add_u32 s44, s44, {WS_P}
    s_add_u32 s45, s44, 147456
    s_add_u32 s46, s44, 294912
    s_mov_b32 {sT1}, {SPIN}
    ''')
    if EXP & 2: a(f'v_mov_b32 v60, {BIG}')
    for t in range(3): a(f'buffer_load_dwordx4 {v4(16+4*t)}, v60, {WS}, s{44+t} offen {POL[GLP]}', tag='gq')
    for _ in range(W0N): kstep(False)
    for _ in range(W0P): kstep(True)
    a.wait_vm('gq')
    a.label('L_spin1')
    for t in range(3): a(f'v_xor_b32 v{16+4*t}, {sTG0}, v{16+4*t}\nv_xor_b32 v{18+4*t}, {sTG1}, v{18+4*t}')
    a(f'''
    v_or3_b32 v14, v16, v18, v20
    v_or3_b32 v15, v22, v24, v26
    v_or_b32 v14, v14, v15
    v_and_b32 v14, 0xff, v14
    v_cmp_ne_u32 vcc, 0, v14
    s_cbranch_vccz L_ok1
    s_sub_u32 {sT1}, {sT1}, 1
    s_cbranch_scc1 L_ok1
    s_sleep {SLP}
    ''')
    for t in range(3):
        a(f'buffer_load_dwordx4 {v4(16+4*t)}, v60, {WS}, s{44+t} offen {POL[GLP]}'); a.vm.pop()
    a('s_waitcnt vmcnt(0)\ns_branch L_spin1')
    a.label('L_ok1')
    stamp('poll')
    padd(16, 20, 4); padd(16, 24, 4)
    a(f'''
    v_cvt_pk_bf16_f32 v16, v16, v17
    v_cvt_pk_bf16_f32 v17, v18, v19
    v_lshlrev_b32 v14, 3, v1
    ds_write_b64 v14, v[16:17] offset:{L_Q}
    v_min_u32 v14, 23, v1
    v_lshlrev_b32 v14, 1, v14
    s_waitcnt lgkmcnt(0)
    ds_read_u16 v20, v14 offset:{L_Q+384}
    ds_read_u16 v21, v14 offset:{L_Q+432}
    s_waitcnt lgkmcnt(0)
    v_lshlrev_b32 v20, 16, v20
    v_lshlrev_b32 v21, 16, v21             ; up
    v_mul_f32 v22, v20, v20
    v_mul_f32 v22, {f32(0.044715)}, v22
    v_fma_f32 v22, v22, v20, v20           ; x + c x^3
    v_mul_f32 v22, {f32(-2*0.7978845608028654*L2E)}, v22
    v_exp_f32 v22, v22
    v_add_f32 v22, 1.0, v22
    v_rcp_f32 v22, v22
    v_mul_f32 v22, v22, v20
    v_cvt_pk_bf16_f32 v22, v22, v22
    v_and_b32 v22, 0xffff0000, v22
    v_mul_f32 v22, v22, v21
    v_cvt_pk_bf16_f32 v22, v22, v22
    v_cmp_gt_u32 vcc, 24, v1
    v_cndmask_b32 v22, 0, v22, vcc
    v_min_u32 v14, 31, v1
    v_lshlrev_b32 v14, 2, v14
    ds_write_b32 v14, v22 offset:{L_HID}
    v_mov_b32 v14, {L_CNT}
    v_mov_b32 v15, 1
    s_waitcnt lgkmcnt(0)
    ds_write_b32 v14, v15 offset:4
    ''')
    def xred8(base, n, tmp):
        for r in range(n): a(f'v_add_f32_dpp v{base+r}, v{base+r}, v{base+r} row_ror:8 row_mask:0xf bank_mask:0xf')
        for sw in ('v_permlane16_swap_b32', 'v_permlane32_swap_b32'):
            for r in range(n): a(f'v_mov_b32 v{tmp+r}, v{base+r}')
            for r in range(n): a(f'{sw} v{base+r}, v{tmp+r}')
            padd(base, tmp, n)
    stamp('qrdy')
    while kp[0] < len(kseq): kstep(True)
    stamp('kiss')
    a.vm = vm_join
    a.label('L_join')
    a(f'v_mov_b32 v14, {L_CNT}\ns_mov_b32 {sT1}, {1<<24}')
    a.label('L_spinq')
    a(f'''
    ds_read_b32 v15, v14 offset:4
    s_waitcnt lgkmcnt(0)
    v_readfirstlane_b32 {sT0}, v15
    s_cmp_lg_u32 {sT0}, 0
    s_cbranch_scc1 L_okq
    s_sub_u32 {sT1}, {sT1}, 1
    s_cbranch_scc1 L_okq
    s_sleep 1
    s_branch L_spinq
    ''')
    a.label('L_okq')
    stamp('barB')
    a(f'''
    v_and_b32 v14, 3, v2
    v_lshl_add_u32 v15, v3, 2, v14
    v_lshlrev_b32 v15, 4, v15
    ds_read_b128 v[56:59], v15 offset:{L_Q}
    v_and_b32 v15, 0x70, v15
    ds_read_b128 v[60:63], v15 offset:{L_Q+256}
    ''')
    mX = [lanemask(lambda m, g, u=u: (m >> 2) == u) for u in range(4)]
    mY = [lanemask(lambda m, g, w=w: (m >> 2) == 2*w + (g >> 1)) for w in range(2)]
    for k, m in enumerate(mX + mY):
        a(f's_mov_b32 s{44+2*k}, {hex(m & 0xffffffff)}\ns_mov_b32 s{45+2*k}, {hex(m >> 32)}')
    a('s_waitcnt lgkmcnt(0)')
    for k in range(6):
        src = 56 if k < 4 else 60
        for r in range(4): a(f'v_cndmask_b32 v{32+4*k+r}, 0, v{src+r}, s[{44+2*k}:{45+2*k}]')
    vissued = [0]
    def vreg(i): return kt(i % RV)
    def vload():
        i = vissued[0]; g, e = divmod(i, 6); c, x = divmod(e, 3)
        if e == 0:
            grp(g)
            a(f's_add_u32 {sKV2}, {sKV}, 3072')
        if x == 0:   a(f'buffer_load_dwordx4 {vreg(i)}, v10, {V}, {sKV} offen offset:{1536*c} {POL[KVPOL]}', tag=f'v{i}')
        elif x == 1: a(f'buffer_load_dwordx4 {vreg(i)}, v10, {V}, {sKV2} offen offset:{1536*c} {POL[KVPOL]}', tag=f'v{i}')
        else:        a(f'buffer_load_dwordx4 {vreg(i)}, v11, {V}, {sKV} offen offset:{1536*c} {POL[KVPOL]}', tag=f'v{i}')
        vissued[0] += 1
    assert RV <= 12
    extras = [('wd', c) for c in range(5)] + [('wo', n) for n in range(NS, 30)]
    xiss = [0]
    def xtile(e): return WDT + e[1] if e[0] == 'wd' else WOT + e[1]
    def xload():
        e = extras[xiss[0]]
        if e[0] == 'wd':
            a(f'buffer_load_dwordx4 {kt(xtile(e))}, v13, {WD}, {sWDB} offen offset:{256*e[1]} {POL[WPOL]}', tag='wd')
        else:
            so, imm = wotile(e[1])
            a(f'buffer_load_dwordx4 {kt(xtile(e))}, v12, {WO}, {so} offen offset:{imm} {POL[WPOL]}', tag=f'wo{e[1]}')
        xiss[0] += 1
    SC = 0.07216878364870322
    def score_post(g):
        d = 24 + 4*(g & 1); s_ = 16 + g
        a(f'''
        v_mov_b32_dpp v{s_}, v{d} quad_perm:[0,0,0,0] row_mask:0xf bank_mask:0xf
        v_add_f32_dpp v{s_}, v{d+1}, v{s_} quad_perm:[1,1,1,1] row_mask:0xf bank_mask:0xf
        v_add_f32_dpp v{s_}, v{d+2}, v{s_} quad_perm:[2,2,2,2] row_mask:0xf bank_mask:0xf
        v_add_f32_dpp v{s_}, v{d+3}, v{s_} quad_perm:[3,3,3,3] row_mask:0xf bank_mask:0xf
        ''')
        if NOS < 1: a(f'v_cvt_pk_bf16_f32 v{s_}, v{s_}, v{s_}\nv_and_b32 v{s_}, 0xffff0000, v{s_}')
        a(f'v_mul_f32 v{s_}, {f32(SC)}, v{s_}')
        if NOS < 2: a(f'v_cvt_pk_bf16_f32 v{s_}, v{s_}, v{s_}\nv_and_b32 v{s_}, 0xffff0000, v{s_}')
    nx = len(extras) - XL
    span = 48 - XBEG - XEND
    seq = []
    xi = 0
    for i in range(48):
        seq.append('v')
        if i == SLI: seq.append('sl')
        if WDB and xi < 5 and i >= XBEG:
            seq.append('x'); xi += 1
        while xi < nx and i >= XBEG and (xi + 1) * span <= (i + 1 - XBEG) * nx:
            seq.append('x'); xi += 1
    assert xi == nx
    seq += ['x'] * XL
    nx += XL
    sp = [0]
    did_wd = [False]
    SS = KB + 4*47
    st = KB + 4*WDT
    GF = st + 12
    def statload():
        a(f'''
        v_and_b32 v8, 1, v1
        v_lshlrev_b32 v8, 7, v8
        s_mul_i32 s95, {sP}, 43691
        s_lshr_b32 s95, s95, 17
        s_mul_i32 {sT0}, {sB}, 1280
        s_lshl_b32 {sT1}, s95, 6
        s_add_u32 s96, {sT0}, {sT1}
        s_mul_i32 {sT0}, s95, 3
        s_mov_b32 s97, 1
        s_cmp_lg_u32 {sT0}, {sP}
        s_cselect_b32 s97, 0, s97
        s_cmp_ge_u32 s95, 20
        s_cselect_b32 s97, 0, s97
        s_cmp_lg_u32 {sW_}, 7
        s_cselect_b32 s97, 0, s97
        v_lshlrev_b32 v9, 9, v1
        s_mov_b32 s98, {WS_S}
        s_cmp_eq_u32 s2, 0
        s_cselect_b32 s99, s97, 0
        s_cmp_eq_u32 s99, 0
        s_cbranch_scc1 L_nogf
        ''')
        for k in range(4):
            a(f'buffer_load_dword v{GF+k}, v9, {WS}, s98 offen offset:{128*k+4} sc1'); a.vm.pop()
        a.label('L_nogf')
        a(f'buffer_load_dwordx4 {v4(SS)}, v8, {WS}, {sSB} offen sc1', tag='sl')
    def pump(lasttag, kfree, vcons, boost=0):
        while sp[0] < len(seq):
            idx = max(k for k, (t, r) in enumerate(a.vm) if t == lasttag)
            if len(a.vm) - 1 - idx >= (TV if vcons < VE else TVE) + boost: break
            op = seq[sp[0]]
            if op == 'v':
                i = vissued[0]
                if i < RV:
                    if i >= kfree: break
                elif i - RV >= vcons: break
                vload()
            elif op == 'x':
                if xtile(extras[xiss[0]]) >= kfree: break
                xload()
            else:
                assert did_wd[0]
                statload()
            sp[0] += 1
    done = [t for (t, r) in a.vm[:len(a.vm) - T]]
    known = max(int(t[1:]) for t in done if t and t[0] == 'k' and t[1:].isdigit())
    a.wait_vm(f'k{known}')
    for g in range(8):
        d = v4(24 + 4*(g & 1))
        for e in range(6):
            i = 6*g + e
            if i > known:
                a.wait_vm(f'k{i}'); known = i
            a(f'v_mfma_f32_16x16x32_bf16 {d}, {v4(32+4*KO[e])}, {kt(i)}, {0 if e == 0 else d}')
            if i == known: pump(f'k{known}', i + 1, 0, TBO if i == 47 else TB0)
        if 6*g + 5 < known and (g % KE) == 0 and known < 47:
            known += 1
            a.wait_vm(f'k{known}')
            pump(f'k{known}', 6*g + 6, 0, TB0)
        if g > 0: score_post(g-1)
    score_post(7)
    if NS:
        a.wait_vm('stg')
        a(f'v_lshlrev_b32 v14, 4, v1\nv_add_u32 v14, {sSTG}, v14')
        for n in range(NS): a(f'ds_read_b128 {kt(WOT+n)}, v14 offset:{1024*n}')
    def allred(op, r, t):
        rowred(op, r, (4, 8))
        a(f'v_mov_b32 v{t}, v{r}\nv_permlane16_swap_b32 v{r}, v{t}\n{op} v{r}, v{r}, v{t}')
        a(f'v_mov_b32 v{t}, v{r}\nv_permlane32_swap_b32 v{r}, v{t}\n{op} v{r}, v{r}, v{t}')
    a('v_max3_f32 v28, v16, v17, v18\nv_max3_f32 v15, v19, v20, v21\nv_max3_f32 v28, v28, v22, v23\nv_max_f32 v28, v28, v15')
    allred('v_max_f32', 28, 15)
    for g in range(8): a(f'v_sub_f32 v{16+g}, v{16+g}, v28')
    for g in range(8): a(f'v_mul_f32 v{16+g}, {f32(L2E)}, v{16+g}')
    for g in range(8): a(f'v_exp_f32 v{16+g}, v{16+g}')
    a('v_add_f32 v30, v16, v17\nv_add_f32 v24, v18, v19\nv_add_f32 v25, v20, v21\nv_add_f32 v26, v22, v23\nv_add_f32 v30, v30, v24\nv_add_f32 v25, v25, v26\nv_add_f32 v30, v30, v25')
    allred('v_add_f32', 30, 24)
    for g in range(8): a(f'v_cvt_pk_bf16_f32 v{16+g}, v{16+g}, v{16+g}')
    a(f'''
    v_readfirstlane_b32 {sM}, v28          ; own m
    v_mov_b32 v29, v30
    s_lshl_b32 {sT0}, {sW_}, 3
    v_mov_b32 v24, {sT0}
    v_mov_b32 v25, 0
    v_mov_b32 v26, 1
    s_mov_b64 exec, 1
    ds_write_b64 v24, v[28:29] offset:{L_CNT+64}
    ds_add_rtn_u32 v27, v25, v26 offset:{L_CNT}
    s_mov_b64 exec, -1
    s_waitcnt lgkmcnt(0)
    v_readfirstlane_b32 {sT0}, v27
    s_cmp_lg_u32 {sT0}, 7
    s_cbranch_scc1 L_nostat
    v_and_b32 v24, 7, v1
    v_lshlrev_b32 v25, 3, v24
    ds_read_b64 v[26:27], v25 offset:{L_CNT+64}
    v_lshlrev_b32 v24, 4, v24
    s_waitcnt lgkmcnt(0)
    v_mov_b32 v28, v26
    ''')
    rowred('v_max_f32', 28, (4, 2, 1))
    a(f'v_sub_f32 v26, v26, v28\nv_mul_f32 v26, {f32(L2E)}, v26\nv_exp_f32 v26, v26\nv_mul_f32 v30, v26, v27')
    rowred('v_add_f32', 30, (4, 2, 1))
    a(f'''
    v_mov_b32 v29, s100
    v_mov_b32 v31, s101
    s_mov_b64 exec, {(1 << SLN) - 1}
    buffer_store_dwordx4 v[28:31], v24, {WS}, {sSOWN} offen {POL[STP]}
    s_mov_b64 exec, -1
    ''')
    a.vm.pop()
    a.label('L_nostat')
    stamp('smax')
    YA, OA = 44, 32
    a(f'''
    s_mul_i32 {sT0}, {sW_}, 12
    v_lshlrev_b32 v24, 2, v3
    v_add_u32 v24, {sT0}, v24
    v_mov_b32 v25, 124
    v_cmp_eq_u32 vcc, 3, v3
    v_cndmask_b32 v24, v24, v25, vcc
    ds_read_b32 v14, v24 offset:{L_HID}
    s_waitcnt lgkmcnt(0)
    ''')
    for g in range(8):
        if YP == 1 and g == YPG:
            a(f's_cmp_lt_u32 {sW_}, 4\ns_cbranch_scc1 L_noyp\ns_setprio 1'); a.label('L_noyp')
        for c in range(2):
            A = 24 + 4*c
            if c == 0: a(f'v_mov_b32 v15, v{16+g}\nv_mov_b32_dpp v15, v{16+g} row_shr:4 row_mask:0xf bank_mask:0xa')
            else:      a(f'v_mov_b32 v15, v{16+g}\nv_mov_b32_dpp v15, v{16+g} row_shl:4 row_mask:0xf bank_mask:0x5')
            for r in range(4): a(f'v_and_b32 v{A+r}, v15, v{4+r}')
            for x in range(3):
                i = 6*g + 3*c + x
                d = v4(OA + 4*x)
                a.wait_vm(f'v{i}')
                stamp(f'vc{i}')
                a(f'v_mfma_f32_16x16x32_bf16 {d}, {v4(A)}, {vreg(i)}, {0 if i < 3 else d}')
                pump(f'v{i}', 48, i + 1)
        if g == GWD:
            did_wd[0] = True
            assert xiss[0] >= 5
            if PK:
                a('s_mov_b32 s44, 0x00ff00ff\ns_mov_b32 s45, 0x00ff00ff\nv_cndmask_b32 v15, 0, v14, s[44:45]\nv_cndmask_b32 v14, v14, 0, s[44:45]')
                for r in range(4): a(f'v_and_b32 v{24+r}, v15, v{4+r}')
                for r in range(4): a(f'v_and_b32 v{28+r}, v14, v{4+r}')
                a.wait_vm('wd')
                for c in (0, 2, 4, 1, 3):
                    d = v4(YA+4*(c>>1))
                    a(f'v_mfma_f32_16x16x32_bf16 {d}, {v4(24+4*(c&1))}, {kt(WDT+c)}, {d if c & 1 else 0}')
            else:
                for r in range(4): a(f'v_and_b32 v{24+r}, v14, v{4+r}')
                a.wait_vm('wd')
                for c in range(5):
                    a(f'v_mfma_f32_16x16x32_bf16 {v4(YA+4*c)}, v[24:27], {kt(WDT+c)}, 0')
        if g == GST:
            a(f's_mov_b32 {sT1}, {SPIN}')
            a.wait_vm('sl')
            a.label('L_spin2')
            a(f'''
            v_cmp_ne_u32 vcc, s100, v{SS+1}
            v_cmp_ne_u32 s[44:45], s101, v{SS+3}
            s_or_b64 vcc, vcc, s[44:45]
            s_cbranch_scc0 L_ok2
            s_sub_u32 {sT1}, {sT1}, 1
            s_cbranch_scc1 L_ok2
            s_sleep 4
            buffer_load_dwordx4 {v4(SS)}, v8, {WS}, {sSB} offen sc1
            s_waitcnt vmcnt(0)
            s_branch L_spin2
            ''')
            a.vm.pop()
            a.label('L_ok2')
            a(f'''
            s_cmp_eq_u32 s99, 0
            s_cbranch_scc1 L_ok2b
            s_mov_b32 {sT1}, {SPIN}
            ''')
            a.label('L_spin2b')
            a(f'''
            v_cmp_ne_u32 vcc, s100, v{GF}
            v_cmp_ne_u32 s[44:45], s100, v{GF+1}
            v_cmp_ne_u32 s[46:47], s100, v{GF+2}
            v_cmp_ne_u32 s[48:49], s100, v{GF+3}
            s_or_b64 vcc, vcc, s[44:45]
            s_or_b64 s[46:47], s[46:47], s[48:49]
            s_or_b64 vcc, vcc, s[46:47]
            s_cbranch_scc0 L_ok2c
            s_sub_u32 {sT1}, {sT1}, 1
            s_cbranch_scc1 L_ok2c
            s_sleep {SLP}
            ''')
            for k in range(4):
                a(f'buffer_load_dword v{GF+k}, v9, {WS}, s98 offen offset:{128*k+4} sc1'); a.vm.pop()
            a('s_waitcnt vmcnt(0)\ns_branch L_spin2b')
            a.label('L_ok2c')
            a(f'''
            s_mov_b32 {sT2}, {WS_E}
            v_mov_b32 v{GF}, s100
            v_mov_b32 v{GF+1}, s101
            s_mov_b64 exec, 1
            buffer_store_dwordx2 v[{GF}:{GF+1}], v9, {WS}, {sT2} offen sc1
            s_mov_b64 exec, -1
            ''')
            a.vm.pop()
            a.label('L_ok2b')
            a(f'v_mov_b32 v{st+6}, v{SS}')
            rowred('v_max_f32', st+6, (1,))
            a(f'''
            v_sub_f32 v{st}, v{SS}, v{st+6}
            v_sub_f32 v{st+7}, {sM}, v{st+6}
            v_mul_f32 v{st}, {f32(L2E)}, v{st}
            v_mul_f32 v{st+7}, {f32(L2E)}, v{st+7}
            v_exp_f32 v{st}, v{st}
            v_exp_f32 v{st+7}, v{st+7}
            v_mul_f32 v{st}, v{st}, v{SS+2}
            ''')
            rowred('v_add_f32', st, (1,))
            a(f'''
            v_rcp_f32 v{st}, v{st}
            v_mul_f32 v14, v{st}, v{st+7}          ; factor
            v_and_b32 v{st+5}, 7, v1
            v_lshlrev_b32 v{st+5}, 3, v{st+5}
            v_and_b32 v{st+3}, 1, v3
            v_lshlrev_b32 v{st+3}, 2, v{st+3}
            v_and_b32 v{st+4}, 2, v3
            v_add3_u32 v{st+3}, v{st+3}, v{st+4}, v{st+5}
            s_min_u32 {sT0}, s96, 5056
            v_add_u32 v{st+4}, {sT0}, v{st+3}
            ds_read_u16 v{st+2}, v{st+4} offset:{L_X}
            v_and_b32 v{st+15}, 3, v2
            v_mul_u32_u24 v{st+15}, 0x5555, v{st+15}
            s_mov_b32 s44, 0x0f0f0f0f
            s_mov_b32 s45, 0x0f0f0f0f
            s_mov_b32 s46, 0xf0f0f0f0
            s_mov_b32 s47, 0xf0f0f0f0
            ''')
            a(f'''
            v_lshrrev_b32 v{st+6}, 1, v3
            s_lshl_b32 {sT0}, {sW_}, 1
            v_add_u32 v{st+7}, {sT0}, v{st+6}
            v_mul_u32_u24 v{st+7}, 784, v{st+7}
            v_and_b32 v{st+8}, 1, v3
            v_lshlrev_b32 v{st+11}, 4, v{st+8}
            v_add_u32 v{st+7}, v{st+7}, v{st+11}
            v_lshl_add_u32 v{st+8}, v2, 5, v{st+7}
            v_and_b32 v{st+9}, 7, v2
            v_lshl_add_u32 v{st+9}, v{st+9}, 5, v{st+7}
            v_add_u32 v{st+9}, 512, v{st+9}
            v_lshrrev_b32 v{st+7}, 3, v2
            v_cmp_eq_u32 vcc, v{st+7}, v{st+6}
            v_lshlrev_b32 v{st+7}, 4, v1
            v_add_u32 v{st+7}, {L_DUM}, v{st+7}
            v_cndmask_b32 v{st+9}, v{st+7}, v{st+9}, vcc
            v_mul_u32_u24 v{st+10}, 784, v2
            v_mul_u32_u24 v{st+7}, 24, v3
            s_mul_i32 {sT0}, {sW_}, 96
            v_add3_u32 v{st+10}, v{st+10}, v{st+7}, {sT0}
            s_mul_i32 {sT0}, {sW_}, 3200
            v_mul_u32_u24 v{st+11}, 24, v{st+11}
            v_lshl_add_u32 v{st+11}, v2, 4, v{st+11}
            v_add_u32 v{st+11}, {sT0}, v{st+11}           ; y write: 3200w + 384(g&1) + 16n
            v_and_b32 v{st+13}, 31, v1
            v_lshrrev_b32 v{st+7}, 1, v{st+13}
            v_lshlrev_b32 v{st+13}, 4, v{st+13}
            s_lshl_b32 {sT0}, {sW_}, 9
            v_add_u32 v{st+13}, {sT0}, v{st+13}
            v_mul_u32_u24 v{st+12}, 12800, v{st+6}
            v_lshl_add_u32 v{st+12}, v{st+7}, 4, v{st+12}
            v_and_b32 v{st+7}, 1, v1
            v_mul_u32_u24 v{st+7}, 384, v{st+7}
            s_mul_i32 {sT0}, {sW_}, 640
            v_add3_u32 v{st+12}, v{st+12}, v{st+7}, {sT0}  ; y read: 12800(l>>5) + 640w + 384(l&1) + 16((l&31)>>1)
            v_lshrrev_b32 v{st+14}, 3, v1
            v_mul_u32_u24 v{st+14}, 2560, v{st+14}
            v_lshl_add_u32 v{st+14}, v{st+5}, 1, v{st+14}
            s_mul_i32 s94, {sB}, {64*2560}
            s_lshl_b32 {sT0}, s95, 7
            s_add_u32 s94, s94, {sT0}
            ''')
            for i in range(8): a(f's_add_u32 s{48+i}, s94, {8*2560*i}')
            if PK:
                for k, (r_, m_) in enumerate(((44, 0x000f000f), (46, 0x00f000f0), (16, 0x0f000f00), (18, 0xf000f000))):
                    a(f's_mov_b32 s{r_}, {hex(m_)}\ns_mov_b32 s{r_+1}, {hex(m_)}')
                a(f'v_mul_u32_u24 v{st+7}, 640, v{st+6}\nv_add_u32 v{st+11}, v{st+11}, v{st+7}')
            if YR == 1:
                a(f'''
                v_lshrrev_b32 v{st+7}, 2, v1
                v_lshlrev_b32 v{st+12}, 4, v{st+7}
                v_bfe_u32 v{st+7}, v1, 1, 1
                v_mul_u32_u24 v{st+7}, 384, v{st+7}
                s_mul_i32 {sT0}, {sW_}, 640
                v_add3_u32 v{st+12}, v{st+12}, v{st+7}, {sT0}
                v_and_b32 v{st+7}, 1, v1
                v_lshl_add_u32 v{st+12}, v{st+7}, 3, v{st+12}
                s_lshl_b32 {sT0}, {sW_}, 9
                v_lshl_add_u32 v{st+13}, v1, 3, {sT0}
                v_cmp_eq_u32 vcc, 1, v{st+7}
                v_mov_b32 v{st+18}, {sTG0}
                v_mov_b32 v{st+7}, {sTG1}
                v_cndmask_b32 v{st+18}, v{st+18}, v{st+7}, vcc
                ''')
            a('s_movk_i32 s98, 0xff')
            a(f'v_mov_b32 v{st+16}, {sTG0}\nv_mov_b32 v{st+17}, {sTG1}')
    assert xiss[0] == nx and sp[0] == len(seq)
    stamp('vend')
    for r in range(4): a(f'v_cndmask_b32 v{OA+r}, v{OA+4+r}, v{OA+r}, {sLO32}')
    for r in range(4): a(f'v_mul_f32 v{OA+r}, v{OA+r}, v14')
    a(f'ds_write_b128 v{st+8}, {v4(OA)}')
    for r in range(4): a(f'v_mul_f32 v{OA+8+r}, v{OA+8+r}, v14')
    a(f'ds_write_b128 v{st+9}, {v4(OA+8)}')
    a('s_waitcnt lgkmcnt(0)\ns_barrier')
    stamp('barC')
    for j in range(3): a(f'ds_read_b64 v[{16+2*j}:{17+2*j}], v{st+10} offset:{8*j}')
    def dpp(regs, steps):
        for s_ in steps:
            for r in regs: a(f'v_add_f32_dpp v{r}, v{r}, v{r} row_ror:{s_} row_mask:0xf bank_mask:0xf')
    if CM != 2:
        a('s_waitcnt lgkmcnt(0)')
        dpp(range(16, 22), (8, 4, 2, 1))
    AT = KB
    def abuild(u):
        for i in range(2):
            a(f'v_cvt_pk_bf16_f32 v{16+2*u+i}, v{16+2*u+i}, 0')
        for i in range(2):
            a(f'v_cndmask_b32 v{AT+4*u+2*i}, 0, v{16+2*u+i}, s[44:45]\nv_cndmask_b32 v{AT+4*u+2*i+1}, 0, v{16+2*u+i}, s[46:47]')
    def smf(u, c):
        n = (c*3 + u)*2
        if n + 1 >= 30 - XL: a.wait_vm(f'wo{n+1}')
        r = KB + 4*(WOT + n)
        a(f'v_smfmac_f32_16x16x64_bf16 {v4(YA+4*c)}, {v4(AT+4*u)}, v[{r}:{r+7}], v{st+15}')
    def ywrite(c):
        a(f's_mov_b64 exec, {sLO32}\nds_write_b128 v{st+11}, {v4(YA+4*c)} offset:{L_YP+640*c}\ns_mov_b64 exec, -1')
    if PK:
        def cv(u):
            for i in range(2): a(f'v_cvt_pk_bf16_f32 v{16+2*u+i}, v{16+2*u+i}, 0')
        def ab(u, hi):
            m0, m1 = ('s[44:45]', 's[46:47]') if not hi else ('s[16:17]', 's[18:19]')
            for i in range(2):
                a(f'v_cndmask_b32 v{AT+8*u+4*hi+2*i}, 0, v{16+2*u+i}, {m0}\nv_cndmask_b32 v{AT+8*u+4*hi+2*i+1}, 0, v{16+2*u+i}, {m1}')
        def sm(u, c):
            r = KB + 4*(WOT + (c*3 + u)*2)
            a(f'v_smfmac_f32_16x16x64_bf16 {v4(YA+4*(c>>1))}, {v4(AT+8*u+4*(c&1))}, v[{r}:{r+7}], v{st+15}')
        assert XL == 0
        a('s_waitcnt lgkmcnt(0)' if stamps == 3 else 's_waitcnt lgkmcnt(1)')
        dpp((16, 17, 18), (8, 4, 2, 1))
        cv(0); ab(0, 0)
        a('s_waitcnt lgkmcnt(0)')
        dpp((19, 20, 21), (8,))
        sm(0, 4); ab(0, 1)
        sm(0, 0); dpp((19, 20, 21), (4,))
        sm(0, 2); dpp((19, 20, 21), (2,))
        sm(0, 1); dpp((19, 20, 21), (1,))
        sm(0, 3); cv(1); ab(1, 0); cv(2)
        sm(1, 4); ab(2, 0)
        sm(1, 0); ab(1, 1)
        sm(2, 4); ab(2, 1)
        sm(2, 0); sm(1, 2); sm(1, 1); sm(2, 2)
        a(f's_mov_b64 exec, {sLO32}\nds_write_b128 v{st+11}, {v4(YA+8)} offset:{L_YP+2560}\ns_mov_b64 exec, -1')
        sm(2, 1); sm(1, 3); sm(2, 3)
        a(f'ds_write_b128 v{st+11}, {v4(YA)} offset:{L_YP}')
        a(f'ds_write_b128 v{st+11}, {v4(YA+4)} offset:{L_YP+1280}')
        stamp('mm')
        a('s_waitcnt lgkmcnt(0)\ns_barrier')
    elif CM == 2:
        a('s_waitcnt lgkmcnt(0)' if stamps == 3 else 's_waitcnt lgkmcnt(1)')
        dpp((16, 17, 18), (8, 4, 2, 1))
        abuild(0)
        a('s_waitcnt lgkmcnt(0)')
        dpp((19, 20, 21), (8,))
        smf(0, 0); dpp((19, 20, 21), (4,))
        smf(0, 1); dpp((19, 20, 21), (2,))
        smf(0, 2); dpp((19, 20, 21), (1,))
        smf(0, 3); abuild(1)
        smf(1, 0); abuild(2)
        order = [(1,1),(2,0),(1,2),(2,1),(1,3),(0,4),'w0',(2,2),'w1',(1,4),(2,3),(2,4),'w2','w3','w4']
        for o in order:
            if isinstance(o, str): ywrite(int(o[1]))
            else: smf(*o)
        stamp('mm')
        a('s_waitcnt lgkmcnt(0)\ns_barrier')
    elif CM:
        abuild(0); abuild(1)
        smf(0, 0); smf(0, 1)
        abuild(2)
        order = [(1,0),(1,1),(2,0),(2,1),(0,2),(0,3),(1,2),'w0',(1,3),'w1',(2,2),(0,4),(2,3),(1,4),'w2',(2,4),'w3','w4']
        for o in order:
            if isinstance(o, str): ywrite(int(o[1]))
            else: smf(*o)
        stamp('mm')
        a('s_waitcnt lgkmcnt(0)\ns_barrier')
    else:
        abuild(0); abuild(1)
        smf(0, 0); smf(0, 1)
        abuild(2)
        for c in range(2, 5): smf(0, c)
        for c in range(5): smf(1, c)
        for c in range(5): smf(2, c)
        stamp('mm')
        a(f's_mov_b64 exec, {sLO32}')
        for c in range(5): a(f'ds_write_b128 v{st+11}, {v4(YA+4*c)} offset:{L_YP+640*c}')
        a('s_mov_b64 exec, -1\ns_waitcnt lgkmcnt(0)\ns_barrier')
    stamp('barD'); stamp('pub'); stamp('c1')
    if DREL == 2: a('s_memrealtime s[60:61]')
    a(f's_cmp_ge_u32 {sW_}, 5\ns_cbranch_scc1 L_cons')
    if YR == 1:
        for u in range(8): a(f'ds_read_b64 v[{16+2*u}:{17+2*u}], v{st+12} offset:{L_YP+3200*u}')
        if stamps == 3: a('s_waitcnt lgkmcnt(0)')
        for u in range(4):
            a(f's_waitcnt lgkmcnt({6-2*u})\nv_pk_add_f32 v[{16+4*u}:{17+4*u}], v[{16+4*u}:{17+4*u}], v[{18+4*u}:{19+4*u}]')
            if u == 1: a('v_pk_add_f32 v[16:17], v[16:17], v[20:21]')
        a('v_pk_add_f32 v[24:25], v[24:25], v[28:29]\nv_pk_add_f32 v[16:17], v[16:17], v[24:25]')
        a(f'v_bfi_b32 v16, s98, v{st+18}, v16')
        a(f'buffer_store_dwordx2 v[16:17], v{st+13}, {WS}, {sYB} offen {POL[YSP]}')
    else:
        for u in range(4): a(f'ds_read_b128 {v4(16+4*u)}, v{st+12} offset:{L_YP+3200*u}')
        a('s_waitcnt lgkmcnt(0)')
        padd(16, 24, 8); padd(16, 20, 4)
        for r in range(4): a(f'v_mov_b32 v{20+r}, v{16+r}')
        for r in range(4): a(f'v_permlane32_swap_b32 v{16+r}, v{20+r}')
        padd(16, 20, 4)
        for r in range(2): a(f'v_bfi_b32 v{16+2*r}, s98, v{st+16+r}, v{16+2*r}')
        a(f's_mov_b64 exec, {sLO32}')
        if EXP & 512: a(f's_mov_b32 {sYB}, {BIG}')
        a(f'buffer_store_dwordx4 v[16:19], v{st+13}, {WS}, {sYB} offen {POL[YSP]}')
    if stamps:
        a('s_mov_b64 exec, -1\ns_waitcnt lgkmcnt(0)')
        stamp('pub')
        a('s_branch L_fin')
    else:
        a('s_endpgm')
    a.label('L_cons')
    a(f'''
    s_cmp_eq_u32 s97, 0
    s_cbranch_scc1 L_fin
    s_mov_b32 {sT1}, {SPIN}
    ''')
    def pissue(b):
        for i in range(8):
            a(f'buffer_load_dwordx4 {v4(b+4*i)}, v{st+14}, {WS}, s{48+i} offen {POL[YLP]}')
    def pcheck(b, extra):
        for i in range(8):
            r = b + 4*i
            a(f's_waitcnt vmcnt({7-i+extra})')
            for k in range(2): a(f'v_xor_b32 v{r+2*k}, v{r+2*k}, v{st+16+k}')
            if i == 0: a(f'v_or_b32 v15, v{r}, v{r+2}')
            else: a(f'v_or3_b32 v15, v15, v{r}, v{r+2}')
        a('v_and_b32 v15, s98, v15\nv_cmp_ne_u32 vcc, 0, v15')
    def pfinish(b):
        if stamps: a('s_waitcnt lgkmcnt(0)')
        stamp('c1'); stamp('c1x')
        padd(b, b+16, 16); padd(b, b+8, 8); padd(b, b+4, 4)
        a(f'''
        v_lshlrev_b32 v14, 16, v{st+2}
        v_permlane32_swap_b32 v{b}, v{b+1}
        v_permlane32_swap_b32 v{b+2}, v{b+3}
        v_add_f32 v{b}, v{b}, v{b+1}
        v_add_f32 v{b+2}, v{b+2}, v{b+3}
        v_permlane16_swap_b32 v{b}, v{b+2}
        v_add_f32 v{b}, v{b}, v{b+2}
        v_add_f32_dpp v{b}, v{b}, v{b} row_ror:8 row_mask:0xf bank_mask:0xf
        v_add_f32 v{b}, v{b}, v14
        v_cvt_pk_bf16_f32 v{b}, v{b}, v{b}
        s_mov_b32 exec_lo, 0x00ff00ff
        s_mov_b32 exec_hi, 0x00ff00ff
        buffer_store_short v{b}, v{st+3}, {OUT}, s96 offen {POL[OPOL]}
        s_mov_b64 exec, -1
        ''')
    if PM == 2:
        pissue(16)
        a.label('L_spin3')
        pissue(68)
        pcheck(16, 8)
        a('s_cbranch_vccz L_ok3')
        pissue(16)
        a(f's_sub_u32 {sT1}, {sT1}, 1')
        pcheck(68, 8)
        a('s_cbranch_scc1 L_ok3b\ns_and_b64 vcc, vcc, vcc')
        a.raw('  s_cbranch_scc1 L_spin3')
        a.label('L_ok3b')
        pfinish(68)
        a('s_branch L_ok3c')
        a.label('L_ok3')
        pfinish(16)
        a.label('L_ok3c')
    else:
        a.label('L_spin3')
        pissue(16)
        a(f's_sub_u32 {sT1}, {sT1}, 1')
        pcheck(16, 0)
        a('s_cbranch_scc1 L_ok3\ns_and_b64 vcc, vcc, vcc')
        a.raw('  s_cbranch_scc1 L_spin3')
        a.label('L_ok3')
        pfinish(16)
    if DLY:
        a(f'''
        s_waitcnt vmcnt(0)
        s_memrealtime s[84:85]
        s_waitcnt lgkmcnt(0)
        s_sub_u32 s82, {'s84, s80' if DREL == 1 else ('s60, s80' if DREL == 2 else (('s80' if DSEL else 's84') + ', s86'))}
        s_mul_i32 s82, s82, {DLY}
        s_add_u32 s82, s82, {(6000 if not PRE else 0) if DSEL else 0}
        s_min_u32 s82, s82, 200000
        ''')
        a.label('L_dly')
        a(f'''
        s_memrealtime s[84:85]
        s_waitcnt lgkmcnt(0)
        s_sub_u32 s83, s84, s86
        s_cmp_lt_u32 s83, s82
        s_cbranch_scc1 L_dly
        ''')
    a.label('L_fin')
    if stamps:
        a('s_waitcnt vmcnt(0)')
        stamp('end')
        a('s_waitcnt lgkmcnt(0)')
        for k in range(8): a(f'v_mov_b32 v{16+k}, s{SREG[k]}')
        a(f'''
        s_lshl_b32 {sT0}, s2, 3
        s_add_u32 {sT0}, {sT0}, {sW_}
        s_lshl_b32 {sT0}, {sT0}, 5
        s_add_u32 {sT0}, {sT0}, {WS_T}
        v_mov_b32 v14, 0
        s_mov_b64 exec, 1
        buffer_store_dwordx4 v[16:19], v14, {WS}, {sT0} offen
        buffer_store_dwordx4 v[20:23], v14, {WS}, {sT0} offen offset:16
        ''')
    a.label('L_end')
    a('s_endpgm')
    a.raw(f'''.section .rodata,"a"
.p2align 6
.amdhsa_kernel {name}
  .amdhsa_next_free_vgpr 256
  .amdhsa_next_free_sgpr 102
  .amdhsa_accum_offset 256
  .amdhsa_group_segment_fixed_size 0
  .amdhsa_kernarg_size 96
  .amdhsa_user_sgpr_count 2
  .amdhsa_user_sgpr_kernarg_segment_ptr 1
  .amdhsa_system_sgpr_workgroup_id_x 1
  .amdhsa_float_denorm_mode_32 3
.end_amdhsa_kernel''')
    return a.text()

if __name__ == '__main__':
    out = sys.argv[1]
    kw = {}
    for x in sys.argv[2:]:
        k, v = x.split('='); kw[k] = int(v)
    open(out, 'w').write(gen(**kw))
```

```python
import sys, struct
from asmdsl import Asm

NAME = 'parallel_sum__sliding_block_cached__geglu_ffn__decode_kernel'
def f32(x): return '0x%08x' % struct.unpack('<I', struct.pack('<f', x))[0]
def lanemask(fn):
    m = 0
    for l in range(64):
        if fn(l & 15, l >> 4): m |= 1 << l
    return m

HEADER = open('parallel_sum__sliding_block_cached__geglu_ffn__decode.s.ref').read().split('; Override')[0]

WS_Y  = 0
WS_S  = 0x100000
WS_E  = 0x0F0000
WS_P  = 0x110000
WS_T  = 0x300000
WS_SZ = 0x400000
L_PART = 0
L_DUM  = 14336
L_Q    = 15360
L_HID  = 15872
L_CNT  = 16000
L_X    = 16128
L_STG  = 21504
L_YP   = L_STG
BIG = 0x40000000
L2E = 1.4426950408889634
POL = {0: '', 1: 'nt', 2: 'sc0 nt', 3: 'sc1 nt', 4: 'sc0', 5: 'sc1', 6: 'sc0 sc1', 7: 'sc0 sc1 nt'}

DESC = r'''
'''

def gen(KU=2, KW=0, KP0=10, PP=0, PG=2, PI=3, TP=5, XL=0, T=6, TV=6, TVE=12, VE=30, RV=12, ILV=1, XBEG=4, XEND=14, SLI=28, GST=5, PRIO=0, SLP=8, KPOLL=28, W0N=3, W0P=2, GLP=5, WDB=1, GWD=2, SB0=2, SLN=8, WPOL=5, SPOL=5, KVPOL=1, PPOL=1, DLY=0, DSEL=0, NOS=0, DREL=0, PRD=2, PRP=5, PUBP=3, STP=3, KORD=1, IDL=0, PK=0, DBGS=0, XID=0, WPF=3, WFP=0, WFE=0, TBO=0, TB0=0, KE=2, YR=1, YP=0, YPG=0, RA=845, RB=64, RC=366, ALPHA=1, BETA=8, CM=2, PM=2, UM=2, OPOL=0, YLP=5, YSP=5, ROT=8,
        NS=17, SEND=46, EXP=0, stamps=0, name=NAME):
    a = Asm()
    SPIN = (1 << 19) if EXP == 0 else 0
    LDS_SZ = L_STG + max(8 * NS * 1024, 25600)
    assert LDS_SZ <= 163840
    SREG = [80, 82, 84, 86, 56, 58, 60, 62]
    SETS = {1: ['start', 'barA', 'sig', 'kiss', 'barB', 'smax', 'vend', 'end'],
            2: ['start', 'bar0', 'ln', 'barA', 'sig', 'poll', 'qrdy', 'end'],
            3: ['start', 'vend', 'barC', 'mm', 'barD', 'pub', 'c1', 'end'],
            5: ['start', 'ki12', 'ki18', 'ki24', 'ki30', 'ki36', 'ki42', 'ki47'],
            6: ['start', 'ki47', 'vc0', 'vc12', 'vc24', 'vc36', 'vc42', 'vc47'],
            7: ['start', 'bar0', 'barA', 'ki12', 'ki24', 'ki47', 'vc24', 'vc47'],
            4: ['start', 'karg', 'iss1', 'iss2', 'pre0', 'bar0', 'barA', 'end']}
    DN = ['end', 'karg', 'iss1', 'bar0', 'barA', 'sig', 'barB', 'vend', 'iss2', 'smax', 'pre', 'preK', 'c1x', 'barC', 'barDx']
    def stamp(nm):
        if DLY and DSEL and nm == DN[DSEL]: a('s_memrealtime s[80:81]')
        if stamps and nm in SETS[stamps]:
            r = SREG[SETS[stamps].index(nm)]
            a(f's_memrealtime s[{r}:{r+1}]')
    a.raw(HEADER.rstrip())
    a.raw(f'; @launch grid=(256,1,1) block=(512,1,1) lds={LDS_SZ}')
    a.raw('.amdgcn_target "amdgcn-amd-amdhsa--gfx950"\n.text' + DESC + '.globl %s\n.p2align 8\n.type %s,@function\n%s:' % (name, name, name))
    sW_, sH, sB, sS, sXCD, sP = 's3', 's4', 's5', 's6', 's68', 's69'
    K, V, W, WO, WD, X, WS, OUT = 's[8:11]', 's[12:15]', 's[16:19]', 's[20:23]', 's[24:27]', 's[28:31]', 's[32:35]', 's[36:39]'
    sWO0, sWO1, sWDB, sSTG, sWO2, sWO3 = 's40', 's41', 's42', 's43', 's64', 's65'
    sKV, sKV2, sKV0 = 's71', 's72', 's73'
    sT0, sT1, sT2, sT3 = 's74', 's75', 's76', 's77'
    sLO32 = 's[78:79]'
    sM, sSOWN, sYB, sSB = 's88', 's89', 's90', 's91'
    TAG = 's[100:101]'
    sTG0, sTG1 = 's70', 's7'
    KB = 64
    WDT, WOT = 12, 17
    def kt(i): return f'v[{KB+4*i}:{KB+4*i+3}]'
    def v4(r): return f'v[{r}:{r+3}]'
    def srd(d, p, n):
        a(f's_mov_b32 s{d}, s{p}\ns_and_b32 s{d+1}, s{p+1}, 0xffff\ns_mov_b32 s{d+2}, {n}\ns_mov_b32 s{d+3}, 0x20000')
    def rowred(op, r, steps=(8, 4, 2, 1)):
        for s_ in steps: a(f'{op}_dpp v{r}, v{r}, v{r} row_ror:{s_} row_mask:0xf bank_mask:0xf')
    gstep = 6144 * 8 if ILV else 6144
    def grp(g):
        if ROT == 7:
            a(f's_lshr_b32 {sKV}, s67, 16\ns_mul_i32 {sKV}, {sKV}, {g}\ns_add_u32 {sKV}, {sKV}, s67\ns_and_b32 {sKV}, {sKV}, 63\ns_mul_i32 {sKV}, {sKV}, 6144\ns_add_u32 {sKV}, {sKV}, {sKV0}')
        elif ROT == 8:
            a(f's_add_u32 {sKV}, s67, {(BETA*g)&63}\ns_and_b32 {sKV}, {sKV}, 63\ns_mul_i32 {sKV}, {sKV}, 6144\ns_add_u32 {sKV}, {sKV}, {sKV0}')
        elif ROT:
            a(f's_add_u32 {sKV}, s67, {g}\ns_and_b32 {sKV}, {sKV}, 7\ns_mul_i32 {sKV}, {sKV}, {gstep}\ns_add_u32 {sKV}, {sKV}, {sKV0}')
        else:
            a(f's_mov_b32 {sKV}, {sKV0}' if g == 0 else f's_add_u32 {sKV}, {sKV}, {gstep}')
    kissued = [0]
    KO = [[0,1,2,3,4,5],[0,1,4,2,3,5],[0,4,1,2,5,3]][KORD]
    assert all(KO[e] < 4 for e in range(KU))
    def kload():
        i = kissued[0]; g, e = divmod(i, 6)
        stamp(f'ki{i}')
        if e == 0 and g > 0: grp(g)
        e = KO[e]
        if e < 4: a(f'buffer_load_dwordx4 {kt(i)}, v8, {K}, {sKV} offen offset:{384*e} {POL[KVPOL]}', tag=f'k{i}')
        else:     a(f'buffer_load_dwordx4 {kt(i)}, v9, {K}, {sKV} offen offset:{768*(e-4)} {POL[KVPOL]}', tag=f'k{i}')
        kissued[0] += 1

    assert ILV == 1 and ROT in (3, 7, 8) and 1 <= KU <= 4
    a(f'''
    s_load_dwordx2 s[8:9], s[0:1], 8
    s_load_dwordx16 s[44:59], s[0:1], 0
    s_cmp_ge_u32 s2, 256
    s_cbranch_scc1 L_end''')
    stamp('start')
    if DBGS:
        a(f's_mul_i32 s74, s2, 0x9E3779B1\ns_lshr_b32 s74, s74, 29\ns_cmp_lg_u32 s74, {DBGS & 7}\ns_cbranch_scc1 L_nodbg')
        for _ in range(DBGS >> 3): a('s_sleep 127')
        a.label('L_nodbg')
    if DLY: a('s_memrealtime s[86:87]')
    if PRIO: a('s_setprio 3')
    a(f'''
    v_lshrrev_b32 v14, 6, v0
    v_bfe_u32 v20, v0, 2, 2
    v_readfirstlane_b32 {sW_}, v14
    v_and_b32 v21, 3, v0
    v_lshlrev_b32 v21, 4, v21
    v_mul_u32_u24 v9, 1536, v20
    v_bfe_u32 v3, v0, 4, 2
    v_add_u32 v9, v9, v21
    v_lshl_add_u32 v8, v3, 6, v9       ; vkx = 1536(n>>2)+16(n&3)+64g
    s_and_b32 {sXCD}, s2, 7
    s_lshr_b32 {sT0}, s2, 6
    s_lshl2_add_u32 {sH}, {sXCD}, {sT0}
    s_bfe_u32 {sB}, s2, 0x20004
    s_bfe_u32 {sS}, s2, 0x10003
    s_lshl_b32 {sT0}, {sB}, 5
    s_add_u32 {sSB}, {sT0}, {sH}       ; bh
    s_lshl3_add_u32 {sT0}, {sSB}, {sS}
    s_add_u32 {sT0}, {sT0}, 6
    s_lshl_b32 {sT0}, {sT0}, 6
    ''')
    if ROT == 8:
        a(f'''
        s_mul_i32 {sKV0}, {sT0}, 6144
        s_mul_i32 s67, {sH}, {RA}
        {f's_mul_i32 {sT0}, {sB}, {RB}' if RB else ''}
        {f's_add_u32 s67, s67, {sT0}' if RB else ''}
        s_mul_i32 {sT0}, {sS}, {RC}
        s_add_u32 s67, s67, {sT0}
        s_lshr_b32 s67, s67, 4
        ''')
        if ALPHA == 1: a(f's_add_u32 s67, s67, {sW_}')
        else: a(f's_mul_i32 {sT0}, {sW_}, {ALPHA}\ns_add_u32 s67, s67, {sT0}')
        a(f's_and_b32 s67, s67, 63\ns_mul_i32 {sKV}, s67, 6144\ns_add_u32 {sKV}, {sKV}, {sKV0}')
    else:
        a(f'''
        s_add_u32 {sT0}, {sT0}, {sW_}
        s_mul_i32 {sKV0}, {sT0}, 6144
        s_mul_i32 s67, s2, 0x9E3779B1
        s_bfe_u32 s67, s67, 0x30014
        s_mul_i32 {sKV}, s67, {gstep}
        s_add_u32 {sKV}, {sKV}, {sKV0}
        ''')
    a(f'''
    s_mov_b32 s10, 402653184
    s_mov_b32 s11, 0x20000
    s_waitcnt lgkmcnt(0)
    ''')
    stamp('karg')
    if ROT == 7:
        a(f's_lshl_b32 {sT0}, s2, 2\ns_load_dword s67, s[54:55], {sT0}\ns_mul_i32 {sT0}, {sW_}, 6144\ns_sub_u32 {sKV0}, {sKV0}, {sT0}\ns_waitcnt lgkmcnt(0)\ns_bfe_u32 {sT0}, s67, 0x60008\ns_mul_i32 {sT0}, {sT0}, {sW_}\ns_and_b32 {sT0}, {sT0}, 63\ns_add_u32 s67, s67, {sT0}')
        grp(0)
    for i in range(KU): kload()
    a(f'''
    s_load_dwordx2 s[24:25], s[0:1], 64
    s_load_dwordx2 s[36:37], s[0:1], 72
    s_load_dwordx2 s[32:33], s[0:1], 88
    v_and_b32 v1, 63, v0
    v_and_b32 v2, 15, v1
    v_lshlrev_b32 v20, 4, v1
    s_mov_b32 s28, s44
    s_mov_b32 s29, s45
    s_movk_i32 s30, 5120
    s_mov_b32 s31, 0x20000
    s_lshl_b32 {sT0}, {sW_}, 10
    s_add_u32 m0, {sT0}, {L_X}
    s_cmp_ge_u32 {sW_}, 5
    s_cbranch_scc1 L_nox
    ''')
    a.role = 'x'
    a(f'buffer_load_dwordx4 v20, {X}, {sT0} offen lds', tag='x')
    a.role = None
    a.label('L_nox')
    stamp('iss1')
    def touch(srd_, per_wg, per_wave, mask):
        a.comment("pull this WG's eighth of the rows its team shares into L2 now (one word per line)")
        a(f'''
        s_bfe_u32 {sT3}, s2, 0x30003
        s_lshl3_add_u32 {sT2}, {sH}, {sT3}
        s_mul_i32 {sT0}, {sT2}, {per_wg}
        s_mul_i32 {sT3}, {sW_}, {per_wave}
        s_add_u32 {sT0}, {sT0}, {sT3}
        v_lshlrev_b32 v62, 7, v1
        s_mov_b64 exec, {hex(mask)}
        buffer_load_dword v63, v62, {srd_}, {sT0} offen {POL[WFP]}
        s_mov_b64 exec, -1
        ''')
    if WPF and WFE == 1:
        srd(20, 52, 7864320); touch(WO, 30720, 3840, 0x3fffffff)
    if UM == 1:
        a(f'''
        s_mov_b32 s66, s2
        s_mul_i32 s92, s66, 43691
        s_lshr_b32 s92, s92, 17            ; blk
        s_mul_i32 {sT3}, s92, 3
        s_sub_u32 s93, s66, {sT3}          ; split
        ''')
    else:
        if UM == 2: a(f'''
        s_lshr_b32 {sT2}, s2, 6
        s_lshl2_add_u32 {sT2}, {sB}, {sT2}
        s_and_b32 {sT3}, s2, 15
        s_lshl4_add_u32 s66, {sT2}, {sT3}
        ''')
        else: a(f'''
        s_lshr_b32 {sT2}, s2, 6
        s_bfe_u32 {sT3}, s2, 0x30003
        s_lshl2_add_u32 {sT2}, {sT3}, {sT2}
        s_lshl3_add_u32 s66, {sT2}, {sXCD}
        ''')
        a(f'''
        s_mul_i32 s93, s66, 911
        s_lshr_b32 s93, s93, 16
        s_mul_i32 {sT3}, s93, 72
        s_sub_u32 s92, s66, {sT3}          ; blk
        ''')
    a(f'''
    s_mul_i32 s97, s93, 224
    s_lshl_b32 {sT2}, {sW_}, 5
    s_add_u32 s97, s97, {sT2}
    s_sub_u32 {sT2}, s92, 48
    s_sub_u32 {sT3}, s92, 60
    s_cmp_lt_u32 s92, 60
    s_cselect_b32 s16, s56, s58
    s_cselect_b32 s17, s57, s59
    s_cselect_b32 s98, {sT2}, {sT3}
    s_movk_i32 s96, 3072
    s_mov_b32 s18, 1966080
    s_cmp_lt_u32 s92, 48
    s_cselect_b32 s16, s50, s16
    s_cselect_b32 s17, s51, s17
    s_cselect_b32 s18, 7864320, s18
    s_cselect_b32 s96, 12288, s96
    s_cselect_b32 s98, s92, s98
    s_and_b32 s17, s17, 0xffff
    s_mov_b32 s19, 0x20000
    s_mul_i32 s94, s97, s96
    s_lshl_b32 s98, s98, 8
    s_add_u32 s94, s94, s98            ; soffset
    s_cmp_eq_u32 {sW_}, 7
    s_cselect_b32 s94, {BIG}, s94
    s_cmp_ge_u32 s66, {216 if not (EXP & 128) else 0}
    s_cselect_b32 s94, {BIG}, s94
    v_mul_lo_u32 v16, v3, s96
    v_lshl_add_u32 v16, v2, 4, v16     ; g*RS+16n
    s_lshl_b32 s96, s96, 2
    v_lshrrev_b32 v22, 1, v3
    v_mul_u32_u24 v21, 384, v22
    v_add_u32 v9, v9, v21
    v_and_b32 v22, 1, v3
    v_lshlrev_b32 v22, 6, v22
    v_add3_u32 v9, v9, v22, 64
    v_add_u32 v9, 192, v9              ; vky
    ''')
    WT = 224
    wiss = [0]
    def wload():
        t = wiss[0]
        a(f'buffer_load_dwordx4 {v4(WT+4*t)}, v16, {W}, s94 offen {POL[PPOL]}', tag=f'w{t}')
        if t < 7: a(f's_add_u32 s94, s94, s96')
        wiss[0] += 1
    pcnt = [0]
    def pstep(paced=True):
        if paced: a(f's_waitcnt vmcnt({TP-1})')
        pcnt[0] += 1
        if wiss[0] < 8 and pcnt[0] % (PG + 1) != 0: wload()
        else: kload()
    if PP:
        for _ in range(PI): pstep(False)
    else:
        for t in range(8):
            wload()
            if t == 3:
                for _ in range(KW): kload()
                if WPF and WFE == 2:
                    srd(20, 52, 7864320); touch(WO, 30720, 3840, 0x3fffffff)
        KU = KU + KW
    stamp('iss2')
    if PRIO: a('s_setprio 0')
    def wotile(n):
        uc, h = divmod(n, 2); c, u = divmod(uc, 3)
        return [[sWO0, sWO1], [sWO2, sWO3]][h][u == 2], (2560 if u == 1 else 0) + 256*c
    sissued = [0]
    def sload():
        n = sissued[0]; so, imm = wotile(n)
        a(f's_add_u32 m0, {sSTG}, {1024*n - imm}' if 1024*n >= imm else f's_sub_u32 m0, {sSTG}, {imm - 1024*n}')
        a(f'buffer_load_dwordx4 v12, {WO}, {so} offen offset:{imm} {POL[SPOL]} lds', tag='stg')
        sissued[0] += 1
    def kmore(frac):
        if PP: pstep(); return
        while kissued[0] < KU + int((KP0 - KU) * frac + 0.5): kload()
        while sissued[0] < int(SB0 * frac + 0.5): sload()
    def pmore():
        if PP: pstep()
    a(f's_waitcnt lgkmcnt(0)\ns_load_dwordx2 {TAG}, s[32:33], {WS_E}')
    a(f's_mov_b32 s34, {WS_SZ}\ns_mov_b32 s35, 0x20000\ns_mov_b32 s26, 1966080\ns_mov_b32 s27, 0x20000\ns_movk_i32 s38, 5120\ns_mov_b32 s39, 0x20000')
    srd(12, 48, 402653184); srd(20, 52, 7864320)
    if WPF:
        if not WFE: touch(WO, 30720, 3840, 0x3fffffff)
        touch(WD, 7680, 960, 0xff)
    a(f'''
    s_lshl_b32 {sP}, {sH}, 1
    s_add_u32 {sP}, {sP}, {sS}
    s_mov_b32 s78, -1
    s_mov_b32 s79, 0
    s_lshl_b32 {sT0}, {sB}, 6
    s_add_u32 {sT0}, {sT0}, {sP}
    s_mul_i32 {sYB}, {sT0}, 2560
    s_lshl_b32 {sSB}, {sSB}, 8
    s_add_u32 {sSB}, {sSB}, {WS_S}
    s_lshl_b32 {sT2}, {sS}, 7
    s_add_u32 {sSOWN}, {sSB}, {sT2}
    s_mul_i32 {sWDB}, {sP}, 24
    s_mul_i32 {sT0}, {sW_}, 3
    s_add_u32 {sWDB}, {sWDB}, {sT0}
    s_mul_i32 {sWDB}, {sWDB}, 1280
    s_mul_i32 {sWO0}, {sH}, 192
    s_mul_i32 {sT0}, {sW_}, 24
    s_add_u32 {sWO0}, {sWO0}, {sT0}
    s_mul_i32 {sWO0}, {sWO0}, 1280
    s_add_u32 {sWO1}, {sWO0}, 5120
    s_add_u32 {sWO2}, {sWO0}, 15360
    s_add_u32 {sWO3}, {sWO0}, 20480
    s_mul_i32 {sSTG}, {sW_}, {NS*1024}
    s_add_u32 {sSTG}, {sSTG}, {L_STG}
    v_mov_b32 v17, 1280
    v_mul_u32_u24 v18, 1280, v3
    v_lshl_add_u32 v18, v2, 4, v18     ; 1280g+16n
    s_lshl_b32 s97, s97, 1
    s_min_u32 s97, s97, 1216
    v_lshl_add_u32 v19, v3, 1, s97
    v_lshrrev_b32 v14, 3, v2
    v_mad_u32_u24 v19, v14, v17, v19   ; + 1280*(m>>3)
    v_and_b32 v15, 7, v2
    v_lshlrev_b32 v15, 4, v15          ; 16*(n&7)
    v_and_b32 v20, 1, v2
    v_cmp_eq_u32 vcc, 1, v20
    v_mov_b32 v21, 0xffff
    v_mov_b32 v22, 0xffff0000
    v_cndmask_b32 v21, v21, v22, vcc
    v_bfe_u32 v20, v2, 1, 2
    ''')
    for r in range(4):
        a(f'v_cmp_eq_u32 vcc, {r}, v20\nv_cndmask_b32 v{4+r}, 0, v21, vcc')
    a(f'''
    v_mul_u32_u24 v10, 384, v3
    v_lshrrev_b32 v20, 3, v2
    v_mul_u32_u24 v11, 3072, v20
    v_add3_u32 v11, v11, v10, v15
    v_add_u32 v11, 256, v11            ; vvy = (g+8*(n>>3))*384+256+16*(n&7)
    v_lshl_add_u32 v10, v2, 4, v10     ; vvx = g*384+16n
    v_lshrrev_b32 v12, 1, v3
    v_mul_u32_u24 v12, 5120, v12
    v_add_u32 v12, v12, v18            ; vwo = (6(g>>1)+(g&1))*1280+16n
    v_mov_b32 v22, {BIG}
    v_cmp_eq_u32 vcc, 3, v3
    v_cndmask_b32 v13, v18, v22, vcc   ; vwd = g*1280+16n  (g==3 -> out of range)
    v_lshrrev_b32 v20, 1, v3
    v_lshlrev_b32 v20, 9, v20
    v_and_b32 v22, 1, v3
    v_lshl_add_u32 v22, v22, 4, v20
    v_lshl_add_u32 v22, v2, 5, v22
    s_lshl_b32 {sT0}, {sW_}, 11
    v_add_u32 v22, {sT0}, v22
    v_mov_b32 v20, {L_CNT}
    v_mov_b32 v21, 0
    ds_write_b32 v20, v21
    ds_write_b32 v20, v21 offset:4
    ''')
    if EXP & 64: a(f'v_mov_b32 v12, {BIG}\nv_mov_b32 v13, {BIG}')
    stamp('pre0')
    tagcode = f'''
    s_waitcnt lgkmcnt(0)
    s_mul_i32 s100, s100, 0x9E3779B1
    s_add_u32 s100, s100, 0x7F4A7C15
    s_mul_i32 s101, s101, 0x85EBCA69
    s_add_u32 s101, s101, 0xC2B2AE35
    s_and_b32 {sTG0}, s100, 0xff
    s_and_b32 {sTG1}, s101, 0xff
    '''
    a(tagcode)
    a.role = 'x'; a.wait_vm('x'); a.role = None
    a('s_barrier')
    stamp('bar0')
    if IDL:
        a('s_cmp_lt_u32 s66, 216\ns_cbranch_scc1 L_act')
        fk = (list(a.vm), kissued[0], sissued[0])
        for n_ in range(1, 7):
            while kissued[0] < KU + int((KP0 - KU) * n_ / 6 + 0.5):
                a(f's_waitcnt vmcnt({T-1})'); kload()
            while sissued[0] < int(SB0 * n_ / 6 + 0.5):
                a(f's_waitcnt vmcnt({T-1})'); sload()
        stamp('barA')
        a('s_branch L_nopub')
        a.vm, kissued[0], sissued[0] = fk
        a.label('L_act')
    XS, XO, U, XN, AB, ACC, XV = 24, 44, 184, 184, 200, 216, 168
    for i in range(5): a(f'ds_read_b128 {v4(XS+4*i)}, v18 offset:{L_X+256*i}')
    for pr in range(2):
        for t in range(8): a(f'ds_read_u16 v{XV+8*pr+t}, v19 offset:{L_X+2560*pr+8*t}')
    kmore(1/6)
    a('s_waitcnt lgkmcnt(0)')
    for i in range(20):
        a(f'v_lshlrev_b32 v{U+2*i}, 16, v{XS+i}\nv_and_b32 v{U+2*i+1}, 0xffff0000, v{XS+i}')
    pmore()
    a(f'v_pk_add_f32 v[52:53], v[{U}:{U+1}], v[{U+2}:{U+3}]\nv_pk_add_f32 v[54:55], v[{U+4}:{U+5}], v[{U+6}:{U+7}]')
    for i in range(8, 40, 2):
        d = 52 + (i & 2)
        a(f'v_pk_add_f32 v[{d}:{d+1}], v[{d}:{d+1}], v[{U+i}:{U+i+1}]')
    a('v_pk_add_f32 v[52:53], v[52:53], v[54:55]\nv_add_f32 v52, v52, v53')
    rowred('v_add_f32', 52)
    a(f'v_mul_f32 v56, {f32(-1/640)}, v52')
    kmore(2/6)
    for i in range(0, 40, 2): a(f'v_pk_add_f32 v[{U+i}:{U+i+1}], v[{U+i}:{U+i+1}], v[56:57] op_sel_hi:[1,0]')
    a(f'v_pk_mul_f32 v[52:53], v[{U}:{U+1}], v[{U}:{U+1}]\nv_pk_mul_f32 v[54:55], v[{U+2}:{U+3}], v[{U+2}:{U+3}]')
    for i in range(4, 40, 2):
        d = 52 + (i & 2)
        a(f'v_pk_fma_f32 v[{d}:{d+1}], v[{U+i}:{U+i+1}], v[{U+i}:{U+i+1}], v[{d}:{d+1}]')
    a('v_pk_add_f32 v[52:53], v[52:53], v[54:55]\nv_add_f32 v52, v52, v53')
    rowred('v_add_f32', 52)
    a(f'''
    v_mul_f32 v52, {f32(1/640)}, v52
    v_cvt_pk_bf16_f32 v53, v56, v52
    v_lshlrev_b32 v56, 16, v53
    v_and_b32 v52, 0xffff0000, v53
    v_add_f32 v52, {f32(1e-5)}, v52
    v_cvt_pk_bf16_f32 v52, v52, v52
    v_and_b32 v52, 0xffff0000, v52
    v_sqrt_f32 v52, v52
    v_cvt_pk_bf16_f32 v52, v52, v52
    v_and_b32 v52, 0xffff0000, v52
    v_rcp_f32 v52, v52
    v_lshlrev_b32 v53, 6, v14
    v_add_u32 v54, 128, v53
    ds_bpermute_b32 v58, v53, v56
    ds_bpermute_b32 v60, v54, v56
    ds_bpermute_b32 v24, v53, v52
    ds_bpermute_b32 v26, v54, v52
    ''')
    kmore(3/6)
    for k in range(16): a(f'v_lshlrev_b32 v{XN+k}, 16, v{XV+k}')
    a('s_waitcnt lgkmcnt(0)')
    for pr in range(2):
        for k in range(4):
            r = XN + 8*pr + 2*k
            a(f'v_pk_add_f32 v[{r}:{r+1}], v[{r}:{r+1}], v[{58+2*pr}:{59+2*pr}] op_sel_hi:[1,0]')
    for k in range(8): a(f'v_cvt_pk_bf16_f32 v{XO+k}, v{XN+2*k}, v{XN+2*k+1}')
    for k in range(8): a(f'v_lshlrev_b32 v{XN+2*k}, 16, v{XO+k}\nv_and_b32 v{XN+2*k+1}, 0xffff0000, v{XO+k}')
    for pr in range(2):
        for k in range(4):
            r = XN + 8*pr + 2*k
            a(f'v_pk_mul_f32 v[{r}:{r+1}], v[{r}:{r+1}], v[{24+2*pr}:{25+2*pr}] op_sel_hi:[1,0]')
    for k in range(16): a(f'v_cvt_pk_bf16_f32 v{XN+k}, v{XN+k}, v{XN+k}')
    stamp('ln')
    kmore(4/6)
    if PP:
        while wiss[0] < 8: pstep()
    for t in range(8):
        for pr in range(2):
            ab = AB + 4*((2*t + pr) & 3)
            for r in range(4): a(f'v_and_b32 v{ab+r}, v{XN+8*pr+t}, v{4+r}')
        a.wait_vm(f'w{t}')
        for pr in range(2):
            ab = AB + 4*((2*t + pr) & 3); d = v4(ACC + 4*pr)
            a(f'v_mfma_f32_16x16x32_bf16 {d}, {v4(ab)}, {v4(WT+4*t)}, {0 if t == 0 else d}')
        if PP:
            idx = max(k for k, (tg, r) in enumerate(a.vm) if tg == f'w{t}')
            while len(a.vm) - 1 - idx < TP: pstep(False)
        elif t == 3: kmore(5/6)
    stamp('wland')
    kmore(1)
    if PP: KP0 = kissued[0]
    a(f's_cmp_eq_u32 {sW_}, 7\ns_cbranch_scc1 L_nopart')
    for pr in range(2): a(f'ds_write_b128 v22, {v4(ACC+4*pr)} offset:{1024*pr}')
    a.label('L_nopart')
    a('s_waitcnt lgkmcnt(0)\ns_barrier')
    stamp('barA')
    def padd(d, s_, n):
        for r in range(0, n, 2): a(f'v_pk_add_f32 v[{d+r}:{d+r+1}], v[{d+r}:{d+r+1}], v[{s_+r}:{s_+r+1}]')
    a(f'''
    s_cmp_lt_u32 {sW_}, 6
    s_cbranch_scc1 L_nopub
    v_and_b32 v14, 127, v0
    v_lshlrev_b32 v15, 4, v14
    ''')
    for u in range(7): a(f'ds_read_b128 {v4(16+4*u)}, v15 offset:{2048*u}')
    a(f'''
    v_lshrrev_b32 v14, 5, v14
    s_mov_b32 {sT0}, {36864-512}
    v_mad_u32_u24 v14, v14, {sT0}, v15     ; b*36864 + 16*(t&31)
    s_mul_i32 {sT0}, s93, 147456
    s_lshl_b32 {sT2}, s92, 9
    s_add_u32 {sT0}, {sT0}, {sT2}
    s_add_u32 {sT0}, {sT0}, {WS_P}
    s_cmp_ge_u32 s66, {216 if not (EXP & 8) else 0}
    s_cselect_b32 {sT0}, {BIG}, {sT0}
    s_waitcnt lgkmcnt(0)
    ''')
    padd(16, 32, 12); padd(16, 24, 8); padd(16, 20, 4)
    a(f'''
    v_add_u32 v16, 0x80, v16
    v_add_u32 v18, 0x80, v18
    v_and_b32 v16, 0xffffff00, v16
    v_and_b32 v18, 0xffffff00, v18
    v_or_b32 v16, {sTG0}, v16
    v_or_b32 v18, {sTG1}, v18
    ''')
    a(f'buffer_store_dwordx4 v[16:19], v14, {WS}, {sT0} offen {POL[PUBP]}'); a.vm.pop()
    a.label('L_nopub')
    kseq = []
    si = 0
    NR_ = NS - sissued[0]
    for i in range(KP0, 48):
        kseq.append('k')
        while si < NR_ and (si + 1) * (SEND - KP0) <= (i + 1 - KP0) * NR_:
            kseq.append('s'); si += 1
    assert si == NR_
    kp = [0]
    def kstep(paced):
        op = kseq[kp[0]]; kp[0] += 1
        if paced: a(f's_waitcnt vmcnt({T-1})')
        if op == 'k': kload()
        else: sload()
    if YP == 2:
        a(f's_cmp_lt_u32 {sW_}, 4\ns_cbranch_scc1 L_noyp\ns_setprio 1'); a.label('L_noyp')
    for _ in range(T - 1): kstep(True)
    stamp('sig')
    if PRD & 6:
        a(f's_cmp_lg_u32 {sW_}, 3\ns_cbranch_scc1 L_noprd2\nv_lshlrev_b32 v62, 6, v1')
        if PRD & 2:
            a(f's_mov_b32 exec_hi, 0xff\nbuffer_load_dword v63, v62, {WS}, {sYB} offen {POL[PRP]}'); a.vm.pop()
        if PRD & 4:
            a(f's_mov_b64 exec, 3\nbuffer_load_dword v63, v62, {WS}, {sSOWN} offen {POL[PRP]}'); a.vm.pop()
        a('s_mov_b64 exec, -1')
        a.label('L_noprd2')
    while kissued[0] < KPOLL: kstep(True)
    a(f's_cmp_eq_u32 {sW_}, 0\ns_cbranch_scc1 L_w0')
    fork = (list(a.vm), kissued[0], kp[0], sissued[0])
    while kp[0] < len(kseq): kstep(True)
    stamp('kiss'); stamp('poll'); stamp('qrdy')
    a('s_branch L_join')
    vm_join = list(a.vm)
    a.vm, kissued[0], kp[0], sissued[0] = fork
    a.label('L_w0')
    a(f'''
    v_min_u32 v60, 59, v1
    v_lshlrev_b32 v60, 2, v60
    s_mul_i32 {sT0}, {sH}, 192
    s_mul_i32 {sT2}, {sP}, 24
    s_add_u32 {sT2}, {sT2}, {6144-192}
    s_add_u32 {sT3}, {sT2}, {1536-24}
    v_mov_b32 v61, {sT0}
    v_mov_b32 v62, {sT2}
    v_cmp_le_u32 vcc, 48, v1
    v_cndmask_b32 v61, v61, v62, vcc
    v_mov_b32 v62, {sT3}
    v_cmp_le_u32 vcc, 54, v1
    v_cndmask_b32 v61, v61, v62, vcc
    v_add_u32 v60, v60, v61
    v_lshlrev_b32 v60, 2, v60
    s_mul_i32 s44, {sB}, 36864
    s_add_u32 s44, s44, {WS_P}
    s_add_u32 s45, s44, 147456
    s_add_u32 s46, s44, 294912
    s_mov_b32 {sT1}, {SPIN}
    ''')
    if EXP & 2: a(f'v_mov_b32 v60, {BIG}')
    for t in range(3): a(f'buffer_load_dwordx4 {v4(16+4*t)}, v60, {WS}, s{44+t} offen {POL[GLP]}', tag='gq')
    for _ in range(W0N): kstep(False)
    for _ in range(W0P): kstep(True)
    a.wait_vm('gq')
    a.label('L_spin1')
    for t in range(3): a(f'v_xor_b32 v{16+4*t}, {sTG0}, v{16+4*t}\nv_xor_b32 v{18+4*t}, {sTG1}, v{18+4*t}')
    a(f'''
    v_or3_b32 v14, v16, v18, v20
    v_or3_b32 v15, v22, v24, v26
    v_or_b32 v14, v14, v15
    v_and_b32 v14, 0xff, v14
    v_cmp_ne_u32 vcc, 0, v14
    s_cbranch_vccz L_ok1
    s_sub_u32 {sT1}, {sT1}, 1
    s_cbranch_scc1 L_ok1
    s_sleep {SLP}
    ''')
    for t in range(3):
        a(f'buffer_load_dwordx4 {v4(16+4*t)}, v60, {WS}, s{44+t} offen {POL[GLP]}'); a.vm.pop()
    a('s_waitcnt vmcnt(0)\ns_branch L_spin1')
    a.label('L_ok1')
    stamp('poll')
    padd(16, 20, 4); padd(16, 24, 4)
    a(f'''
    v_cvt_pk_bf16_f32 v16, v16, v17
    v_cvt_pk_bf16_f32 v17, v18, v19
    v_lshlrev_b32 v14, 3, v1
    ds_write_b64 v14, v[16:17] offset:{L_Q}
    v_min_u32 v14, 23, v1
    v_lshlrev_b32 v14, 1, v14
    s_waitcnt lgkmcnt(0)
    ds_read_u16 v20, v14 offset:{L_Q+384}
    ds_read_u16 v21, v14 offset:{L_Q+432}
    s_waitcnt lgkmcnt(0)
    v_lshlrev_b32 v20, 16, v20
    v_lshlrev_b32 v21, 16, v21             ; up
    v_mul_f32 v22, v20, v20
    v_mul_f32 v22, {f32(0.044715)}, v22
    v_fma_f32 v22, v22, v20, v20           ; x + c x^3
    v_mul_f32 v22, {f32(-2*0.7978845608028654*L2E)}, v22
    v_exp_f32 v22, v22
    v_add_f32 v22, 1.0, v22
    v_rcp_f32 v22, v22
    v_mul_f32 v22, v22, v20
    v_cvt_pk_bf16_f32 v22, v22, v22
    v_and_b32 v22, 0xffff0000, v22
    v_mul_f32 v22, v22, v21
    v_cvt_pk_bf16_f32 v22, v22, v22
    v_cmp_gt_u32 vcc, 24, v1
    v_cndmask_b32 v22, 0, v22, vcc
    v_min_u32 v14, 31, v1
    v_lshlrev_b32 v14, 2, v14
    ds_write_b32 v14, v22 offset:{L_HID}
    v_mov_b32 v14, {L_CNT}
    v_mov_b32 v15, 1
    s_waitcnt lgkmcnt(0)
    ds_write_b32 v14, v15 offset:4
    ''')
    def xred8(base, n, tmp):
        for r in range(n): a(f'v_add_f32_dpp v{base+r}, v{base+r}, v{base+r} row_ror:8 row_mask:0xf bank_mask:0xf')
        for sw in ('v_permlane16_swap_b32', 'v_permlane32_swap_b32'):
            for r in range(n): a(f'v_mov_b32 v{tmp+r}, v{base+r}')
            for r in range(n): a(f'{sw} v{base+r}, v{tmp+r}')
            padd(base, tmp, n)
    stamp('qrdy')
    while kp[0] < len(kseq): kstep(True)
    stamp('kiss')
    a.vm = vm_join
    a.label('L_join')
    a(f'v_mov_b32 v14, {L_CNT}\ns_mov_b32 {sT1}, {1<<24}')
    a.label('L_spinq')
    a(f'''
    ds_read_b32 v15, v14 offset:4
    s_waitcnt lgkmcnt(0)
    v_readfirstlane_b32 {sT0}, v15
    s_cmp_lg_u32 {sT0}, 0
    s_cbranch_scc1 L_okq
    s_sub_u32 {sT1}, {sT1}, 1
    s_cbranch_scc1 L_okq
    s_sleep 1
    s_branch L_spinq
    ''')
    a.label('L_okq')
    stamp('barB')
    if DBGS:
        a(f's_mul_i32 s74, s2, 0x2545F491\ns_add_u32 s74, s74, {sW_}\ns_mul_i32 s74, s74, 0x9E3779B1\ns_lshr_b32 s74, s74, 27\ns_cmp_lg_u32 s74, 5\ns_cbranch_scc1 L_nodbg2')
        for _ in range(DBGS >> 3): a('s_sleep 127')
        a.label('L_nodbg2')
    a(f'''
    v_and_b32 v14, 3, v2
    v_lshl_add_u32 v15, v3, 2, v14
    v_lshlrev_b32 v15, 4, v15
    ds_read_b128 v[56:59], v15 offset:{L_Q}
    v_and_b32 v15, 0x70, v15
    ds_read_b128 v[60:63], v15 offset:{L_Q+256}
    ''')
    mX = [lanemask(lambda m, g, u=u: (m >> 2) == u) for u in range(4)]
    mY = [lanemask(lambda m, g, w=w: (m >> 2) == 2*w + (g >> 1)) for w in range(2)]
    for k, m in enumerate(mX + mY):
        a(f's_mov_b32 s{44+2*k}, {hex(m & 0xffffffff)}\ns_mov_b32 s{45+2*k}, {hex(m >> 32)}')
    a('s_waitcnt lgkmcnt(0)')
    for k in range(6):
        src = 56 if k < 4 else 60
        for r in range(4): a(f'v_cndmask_b32 v{32+4*k+r}, 0, v{src+r}, s[{44+2*k}:{45+2*k}]')
    vissued = [0]
    def vreg(i): return kt(i % RV)
    def vload():
        i = vissued[0]; g, e = divmod(i, 6); c, x = divmod(e, 3)
        if e == 0:
            grp(g)
            a(f's_add_u32 {sKV2}, {sKV}, 3072')
        if x == 0:   a(f'buffer_load_dwordx4 {vreg(i)}, v10, {V}, {sKV} offen offset:{1536*c} {POL[KVPOL]}', tag=f'v{i}')
        elif x == 1: a(f'buffer_load_dwordx4 {vreg(i)}, v10, {V}, {sKV2} offen offset:{1536*c} {POL[KVPOL]}', tag=f'v{i}')
        else:        a(f'buffer_load_dwordx4 {vreg(i)}, v11, {V}, {sKV} offen offset:{1536*c} {POL[KVPOL]}', tag=f'v{i}')
        vissued[0] += 1
    assert RV <= 12
    extras = [('wd', c) for c in range(5)] + [('wo', n) for n in range(NS, 30)]
    xiss = [0]
    def xtile(e): return WDT + e[1] if e[0] == 'wd' else WOT + e[1]
    def xload():
        e = extras[xiss[0]]
        if e[0] == 'wd':
            a(f'buffer_load_dwordx4 {kt(xtile(e))}, v13, {WD}, {sWDB} offen offset:{256*e[1]} {POL[WPOL]}', tag='wd')
        else:
            so, imm = wotile(e[1])
            a(f'buffer_load_dwordx4 {kt(xtile(e))}, v12, {WO}, {so} offen offset:{imm} {POL[WPOL]}', tag=f'wo{e[1]}')
        xiss[0] += 1
    SC = 0.07216878364870322
    def score_post(g):
        d = 24 + 4*(g & 1); s_ = 16 + g
        a(f'''
        v_mov_b32_dpp v{s_}, v{d} quad_perm:[0,0,0,0] row_mask:0xf bank_mask:0xf
        v_mov_b32_dpp v14, v{d+2} quad_perm:[2,2,2,2] row_mask:0xf bank_mask:0xf
        v_add_f32_dpp v{s_}, v{d+1}, v{s_} quad_perm:[1,1,1,1] row_mask:0xf bank_mask:0xf
        v_add_f32_dpp v14, v{d+3}, v14 quad_perm:[3,3,3,3] row_mask:0xf bank_mask:0xf
        v_add_f32 v{s_}, v{s_}, v14
        ''')
        if NOS < 1: a(f'v_cvt_pk_bf16_f32 v{s_}, v{s_}, v{s_}\nv_and_b32 v{s_}, 0xffff0000, v{s_}')
        a(f'v_mul_f32 v{s_}, {f32(SC)}, v{s_}')
        if NOS < 2: a(f'v_cvt_pk_bf16_f32 v{s_}, v{s_}, v{s_}\nv_and_b32 v{s_}, 0xffff0000, v{s_}')
    nx = len(extras) - XL
    span = 48 - XBEG - XEND
    seq = []
    xi = 0
    for i in range(48):
        seq.append('v')
        if i == SLI: seq.append('sl')
        if WDB and xi < 5 and i >= XBEG:
            seq.append('x'); xi += 1
        while xi < nx and i >= XBEG and (xi + 1) * span <= (i + 1 - XBEG) * nx:
            seq.append('x'); xi += 1
    assert xi == nx
    seq += ['x'] * XL
    nx += XL
    sp = [0]
    did_wd = [False]
    SS = KB + 4*47
    st = KB + 4*WDT
    GF = st + 12
    def statload():
        a(f'''
        v_and_b32 v8, 1, v1
        v_lshlrev_b32 v8, 7, v8
        s_mul_i32 s95, {sP}, 43691
        s_lshr_b32 s95, s95, 17
        s_mul_i32 {sT0}, {sB}, 1280
        s_lshl_b32 {sT1}, s95, 6
        s_add_u32 s96, {sT0}, {sT1}
        s_mul_i32 {sT0}, s95, 3
        s_mov_b32 s97, 1
        s_cmp_lg_u32 {sT0}, {sP}
        s_cselect_b32 s97, 0, s97
        s_cmp_ge_u32 s95, 20
        s_cselect_b32 s97, 0, s97
        s_cmp_lg_u32 {sW_}, 7
        s_cselect_b32 s97, 0, s97
        v_lshlrev_b32 v9, 9, v1
        s_mov_b32 s98, {WS_S}
        s_cmp_eq_u32 s2, 0
        s_cselect_b32 s99, s97, 0
        s_cmp_eq_u32 s99, 0
        s_cbranch_scc1 L_nogf
        ''')
        for k in range(4):
            a(f'buffer_load_dword v{GF+k}, v9, {WS}, s98 offen offset:{128*k+4} sc1'); a.vm.pop()
        a.label('L_nogf')
        a(f'buffer_load_dwordx4 {v4(SS)}, v8, {WS}, {sSB} offen sc1', tag='sl')
    def pump(lasttag, kfree, vcons, boost=0):
        while sp[0] < len(seq):
            idx = max(k for k, (t, r) in enumerate(a.vm) if t == lasttag)
            if len(a.vm) - 1 - idx >= (TV if vcons < VE else TVE) + boost: break
            op = seq[sp[0]]
            if op == 'v':
                i = vissued[0]
                if i < RV:
                    if i >= kfree: break
                elif i - RV >= vcons: break
                vload()
            elif op == 'x':
                if xtile(extras[xiss[0]]) >= kfree: break
                xload()
            else:
                assert did_wd[0]
                statload()
            sp[0] += 1
    done = [t for (t, r) in a.vm[:len(a.vm) - T]]
    known = max(int(t[1:]) for t in done if t and t[0] == 'k' and t[1:].isdigit())
    a.wait_vm(f'k{known}')
    for g in range(8):
        d = v4(24 + 4*(g & 1))
        for e in range(6):
            i = 6*g + e
            if i > known:
                a.wait_vm(f'k{i}'); known = i
            a(f'v_mfma_f32_16x16x32_bf16 {d}, {v4(32+4*KO[e])}, {kt(i)}, {0 if e == 0 else d}')
            if i == known: pump(f'k{known}', i + 1, 0, TBO if i == 47 else TB0)
        if 6*g + 5 < known and (g % KE) == 0 and known < 47:
            known += 1
            a.wait_vm(f'k{known}')
            pump(f'k{known}', 6*g + 6, 0, TB0)
        if g > 0: score_post(g-1)
    score_post(7)
    if NS:
        a.wait_vm('stg')
        a(f'v_lshlrev_b32 v14, 4, v1\nv_add_u32 v14, {sSTG}, v14')
        for n in range(NS): a(f'ds_read_b128 {kt(WOT+n)}, v14 offset:{1024*n}')
    def allred(op, r, t):
        rowred(op, r, (4, 8))
        a(f'v_mov_b32 v{t}, v{r}\nv_permlane16_swap_b32 v{r}, v{t}\n{op} v{r}, v{r}, v{t}')
        a(f'v_mov_b32 v{t}, v{r}\nv_permlane32_swap_b32 v{r}, v{t}\n{op} v{r}, v{r}, v{t}')
    a('v_max3_f32 v28, v16, v17, v18\nv_max3_f32 v15, v19, v20, v21\nv_max3_f32 v28, v28, v22, v23\nv_max_f32 v28, v28, v15')
    allred('v_max_f32', 28, 15)
    for g in range(8): a(f'v_sub_f32 v{16+g}, v{16+g}, v28')
    for g in range(8): a(f'v_mul_f32 v{16+g}, {f32(L2E)}, v{16+g}')
    for g in range(8): a(f'v_exp_f32 v{16+g}, v{16+g}')
    a('v_add_f32 v30, v16, v17\nv_add_f32 v24, v18, v19\nv_add_f32 v25, v20, v21\nv_add_f32 v26, v22, v23\nv_add_f32 v30, v30, v24\nv_add_f32 v25, v25, v26\nv_add_f32 v30, v30, v25')
    allred('v_add_f32', 30, 24)
    for g in range(8): a(f'v_cvt_pk_bf16_f32 v{16+g}, v{16+g}, v{16+g}')
    a(f'''
    v_readfirstlane_b32 {sM}, v28          ; own m
    v_mov_b32 v29, v30
    s_lshl_b32 {sT0}, {sW_}, 3
    v_mov_b32 v24, {sT0}
    v_mov_b32 v25, 0
    v_mov_b32 v26, 1
    s_mov_b64 exec, 1
    ds_write_b64 v24, v[28:29] offset:{L_CNT+64}
    ds_add_rtn_u32 v27, v25, v26 offset:{L_CNT}
    s_mov_b64 exec, -1
    s_waitcnt lgkmcnt(0)
    v_readfirstlane_b32 {sT0}, v27
    s_cmp_lg_u32 {sT0}, 7
    s_cbranch_scc1 L_nostat
    v_and_b32 v24, 7, v1
    v_lshlrev_b32 v25, 3, v24
    ds_read_b64 v[26:27], v25 offset:{L_CNT+64}
    v_lshlrev_b32 v24, 4, v24
    s_waitcnt lgkmcnt(0)
    v_mov_b32 v28, v26
    ''')
    rowred('v_max_f32', 28, (4, 2, 1))
    a(f'v_sub_f32 v26, v26, v28\nv_mul_f32 v26, {f32(L2E)}, v26\nv_exp_f32 v26, v26\nv_mul_f32 v30, v26, v27')
    rowred('v_add_f32', 30, (4, 2, 1))
    a(f'''
    v_mov_b32 v29, s100
    v_mov_b32 v31, s101
    s_mov_b64 exec, {(1 << SLN) - 1}
    buffer_store_dwordx4 v[28:31], v24, {WS}, {sSOWN} offen {POL[STP]}
    s_mov_b64 exec, -1
    ''')
    a.vm.pop()
    a.label('L_nostat')
    stamp('smax')
    YA, OA = 44, 32
    a(f'''
    s_mul_i32 {sT0}, {sW_}, 12
    v_lshlrev_b32 v24, 2, v3
    v_add_u32 v24, {sT0}, v24
    v_mov_b32 v25, 124
    v_cmp_eq_u32 vcc, 3, v3
    v_cndmask_b32 v24, v24, v25, vcc
    ds_read_b32 v14, v24 offset:{L_HID}
    s_waitcnt lgkmcnt(0)
    ''')
    for g in range(8):
        if YP == 1 and g == YPG:
            a(f's_cmp_lt_u32 {sW_}, 4\ns_cbranch_scc1 L_noyp\ns_setprio 1'); a.label('L_noyp')
        for c in range(2):
            A = 24 + 4*c
            if c == 0: a(f'v_mov_b32 v15, v{16+g}\nv_mov_b32_dpp v15, v{16+g} row_shr:4 row_mask:0xf bank_mask:0xa')
            else:      a(f'v_mov_b32 v15, v{16+g}\nv_mov_b32_dpp v15, v{16+g} row_shl:4 row_mask:0xf bank_mask:0x5')
            for r in range(4): a(f'v_and_b32 v{A+r}, v15, v{4+r}')
            for x in range(3):
                i = 6*g + 3*c + x
                d = v4(OA + 4*x)
                a.wait_vm(f'v{i}')
                stamp(f'vc{i}')
                a(f'v_mfma_f32_16x16x32_bf16 {d}, {v4(A)}, {vreg(i)}, {0 if i < 3 else d}')
                pump(f'v{i}', 48, i + 1)
        if g == GWD:
            did_wd[0] = True
            assert xiss[0] >= 5
            if PK:
                a('s_mov_b32 s44, 0x00ff00ff\ns_mov_b32 s45, 0x00ff00ff\nv_cndmask_b32 v15, 0, v14, s[44:45]\nv_cndmask_b32 v14, v14, 0, s[44:45]')
                for r in range(4): a(f'v_and_b32 v{24+r}, v15, v{4+r}')
                for r in range(4): a(f'v_and_b32 v{28+r}, v14, v{4+r}')
                a.wait_vm('wd')
                for c in (0, 2, 4, 1, 3):
                    d = v4(YA+4*(c>>1))
                    a(f'v_mfma_f32_16x16x32_bf16 {d}, {v4(24+4*(c&1))}, {kt(WDT+c)}, {d if c & 1 else 0}')
            else:
                for r in range(4): a(f'v_and_b32 v{24+r}, v14, v{4+r}')
                a.wait_vm('wd')
                for c in range(5):
                    a(f'v_mfma_f32_16x16x32_bf16 {v4(YA+4*c)}, v[24:27], {kt(WDT+c)}, 0')
        if g == GST:
            a(f's_mov_b32 {sT1}, {SPIN}')
            a.wait_vm('sl')
            a.label('L_spin2')
            a(f'''
            v_cmp_ne_u32 vcc, s100, v{SS+1}
            v_cmp_ne_u32 s[44:45], s101, v{SS+3}
            s_or_b64 vcc, vcc, s[44:45]
            s_cbranch_scc0 L_ok2
            s_sub_u32 {sT1}, {sT1}, 1
            s_cbranch_scc1 L_ok2
            s_sleep 4
            buffer_load_dwordx4 {v4(SS)}, v8, {WS}, {sSB} offen sc1
            s_waitcnt vmcnt(0)
            s_branch L_spin2
            ''')
            a.vm.pop()
            a.label('L_ok2')
            a(f'''
            s_cmp_eq_u32 s99, 0
            s_cbranch_scc1 L_ok2b
            s_mov_b32 {sT1}, {SPIN}
            ''')
            a.label('L_spin2b')
            a(f'''
            v_cmp_ne_u32 vcc, s100, v{GF}
            v_cmp_ne_u32 s[44:45], s100, v{GF+1}
            v_cmp_ne_u32 s[46:47], s100, v{GF+2}
            v_cmp_ne_u32 s[48:49], s100, v{GF+3}
            s_or_b64 vcc, vcc, s[44:45]
            s_or_b64 s[46:47], s[46:47], s[48:49]
            s_or_b64 vcc, vcc, s[46:47]
            s_cbranch_scc0 L_ok2c
            s_sub_u32 {sT1}, {sT1}, 1
            s_cbranch_scc1 L_ok2c
            s_sleep {SLP}
            ''')
            for k in range(4):
                a(f'buffer_load_dword v{GF+k}, v9, {WS}, s98 offen offset:{128*k+4} sc1'); a.vm.pop()
            a('s_waitcnt vmcnt(0)\ns_branch L_spin2b')
            a.label('L_ok2c')
            a(f'''
            s_mov_b32 {sT2}, {WS_E}
            v_mov_b32 v{GF}, s100
            v_mov_b32 v{GF+1}, s101
            s_mov_b64 exec, 1
            buffer_store_dwordx2 v[{GF}:{GF+1}], v9, {WS}, {sT2} offen sc1
            s_mov_b64 exec, -1
            ''')
            a.vm.pop()
            a.label('L_ok2b')
            a(f'v_mov_b32 v{st+6}, v{SS}')
            rowred('v_max_f32', st+6, (1,))
            a(f'''
            v_sub_f32 v{st}, v{SS}, v{st+6}
            v_sub_f32 v{st+7}, {sM}, v{st+6}
            v_mul_f32 v{st}, {f32(L2E)}, v{st}
            v_mul_f32 v{st+7}, {f32(L2E)}, v{st+7}
            v_exp_f32 v{st}, v{st}
            v_exp_f32 v{st+7}, v{st+7}
            v_mul_f32 v{st}, v{st}, v{SS+2}
            ''')
            rowred('v_add_f32', st, (1,))
            a(f'''
            v_rcp_f32 v{st}, v{st}
            v_mul_f32 v14, v{st}, v{st+7}          ; factor
            v_and_b32 v{st+5}, 7, v1
            v_lshlrev_b32 v{st+5}, 3, v{st+5}
            v_and_b32 v{st+3}, 1, v3
            v_lshlrev_b32 v{st+3}, 2, v{st+3}
            v_and_b32 v{st+4}, 2, v3
            v_add3_u32 v{st+3}, v{st+3}, v{st+4}, v{st+5}
            s_min_u32 {sT0}, s96, 5056
            v_add_u32 v{st+4}, {sT0}, v{st+3}
            ds_read_u16 v{st+2}, v{st+4} offset:{L_X}
            v_and_b32 v{st+15}, 3, v2
            v_mul_u32_u24 v{st+15}, 0x5555, v{st+15}
            s_mov_b32 s44, 0x0f0f0f0f
            s_mov_b32 s45, 0x0f0f0f0f
            s_mov_b32 s46, 0xf0f0f0f0
            s_mov_b32 s47, 0xf0f0f0f0
            ''')
            a(f'''
            v_lshrrev_b32 v{st+6}, 1, v3
            s_lshl_b32 {sT0}, {sW_}, 1
            v_add_u32 v{st+7}, {sT0}, v{st+6}
            v_mul_u32_u24 v{st+7}, 784, v{st+7}
            v_and_b32 v{st+8}, 1, v3
            v_lshlrev_b32 v{st+11}, 4, v{st+8}
            v_add_u32 v{st+7}, v{st+7}, v{st+11}
            v_lshl_add_u32 v{st+8}, v2, 5, v{st+7}
            v_and_b32 v{st+9}, 7, v2
            v_lshl_add_u32 v{st+9}, v{st+9}, 5, v{st+7}
            v_add_u32 v{st+9}, 512, v{st+9}
            v_lshrrev_b32 v{st+7}, 3, v2
            v_cmp_eq_u32 vcc, v{st+7}, v{st+6}
            v_lshlrev_b32 v{st+7}, 4, v1
            v_add_u32 v{st+7}, {L_DUM}, v{st+7}
            v_cndmask_b32 v{st+9}, v{st+7}, v{st+9}, vcc
            v_mul_u32_u24 v{st+10}, 784, v2
            v_mul_u32_u24 v{st+7}, 24, v3
            s_mul_i32 {sT0}, {sW_}, 96
            v_add3_u32 v{st+10}, v{st+10}, v{st+7}, {sT0}
            s_mul_i32 {sT0}, {sW_}, 3200
            v_mul_u32_u24 v{st+11}, 24, v{st+11}
            v_lshl_add_u32 v{st+11}, v2, 4, v{st+11}
            v_add_u32 v{st+11}, {sT0}, v{st+11}           ; y write: 3200w + 384(g&1) + 16n
            ''')
            if YR == 0: a(f'''
            v_and_b32 v{st+13}, 31, v1
            v_lshrrev_b32 v{st+7}, 1, v{st+13}
            v_lshlrev_b32 v{st+13}, 4, v{st+13}
            s_lshl_b32 {sT0}, {sW_}, 9
            v_add_u32 v{st+13}, {sT0}, v{st+13}
            v_mul_u32_u24 v{st+12}, 12800, v{st+6}
            v_lshl_add_u32 v{st+12}, v{st+7}, 4, v{st+12}
            v_and_b32 v{st+7}, 1, v1
            v_mul_u32_u24 v{st+7}, 384, v{st+7}
            s_mul_i32 {sT0}, {sW_}, 640
            v_add3_u32 v{st+12}, v{st+12}, v{st+7}, {sT0}  ; y read: 12800(l>>5) + 640w + 384(l&1) + 16((l&31)>>1)
            ''')
            a(f'''
            v_lshrrev_b32 v{st+14}, 3, v1
            v_mul_u32_u24 v{st+14}, 2560, v{st+14}
            v_lshl_add_u32 v{st+14}, v{st+5}, 1, v{st+14}
            s_mul_i32 s94, {sB}, {64*2560}
            s_lshl_b32 {sT0}, s95, 7
            s_add_u32 s94, s94, {sT0}
            ''')
            for i in range(8): a(f's_add_u32 s{48+i}, s94, {8*2560*i}')
            if PK:
                for k, (r_, m_) in enumerate(((44, 0x000f000f), (46, 0x00f000f0), (16, 0x0f000f00), (18, 0xf000f000))):
                    a(f's_mov_b32 s{r_}, {hex(m_)}\ns_mov_b32 s{r_+1}, {hex(m_)}')
                a(f'v_mul_u32_u24 v{st+7}, 640, v{st+6}\nv_add_u32 v{st+11}, v{st+11}, v{st+7}')
            if YR == 1:
                a(f'''
                v_lshrrev_b32 v{st+7}, 2, v1
                v_lshlrev_b32 v{st+12}, 4, v{st+7}
                v_bfe_u32 v{st+7}, v1, 1, 1
                v_mul_u32_u24 v{st+7}, 384, v{st+7}
                s_mul_i32 {sT0}, {sW_}, 640
                v_add3_u32 v{st+12}, v{st+12}, v{st+7}, {sT0}
                v_and_b32 v{st+7}, 1, v1
                v_lshl_add_u32 v{st+12}, v{st+7}, 3, v{st+12}
                s_lshl_b32 {sT0}, {sW_}, 9
                v_lshl_add_u32 v{st+13}, v1, 3, {sT0}
                v_cmp_eq_u32 vcc, 1, v{st+7}
                v_mov_b32 v{st+18}, {sTG0}
                v_mov_b32 v{st+7}, {sTG1}
                v_cndmask_b32 v{st+18}, v{st+18}, v{st+7}, vcc
                ''')
            a('s_movk_i32 s98, 0xff')
            a(f'v_mov_b32 v{st+16}, {sTG0}\nv_mov_b32 v{st+17}, {sTG1}')
    assert xiss[0] == nx and sp[0] == len(seq)
    stamp('vend')
    for r in range(4): a(f'v_cndmask_b32 v{OA+r}, v{OA+4+r}, v{OA+r}, {sLO32}')
    for r in range(4): a(f'v_mul_f32 v{OA+r}, v{OA+r}, v14')
    a(f'ds_write_b128 v{st+8}, {v4(OA)}')
    for r in range(4): a(f'v_mul_f32 v{OA+8+r}, v{OA+8+r}, v14')
    a(f'ds_write_b128 v{st+9}, {v4(OA+8)}')
    a('s_waitcnt lgkmcnt(0)\ns_barrier')
    stamp('barC')
    for j in range(3): a(f'ds_read_b64 v[{16+2*j}:{17+2*j}], v{st+10} offset:{8*j}')
    def dpp(regs, steps):
        for s_ in steps:
            for r in regs: a(f'v_add_f32_dpp v{r}, v{r}, v{r} row_ror:{s_} row_mask:0xf bank_mask:0xf')
    if CM != 2:
        a('s_waitcnt lgkmcnt(0)')
        dpp(range(16, 22), (8, 4, 2, 1))
    AT = KB
    def abuild(u):
        for i in range(2):
            a(f'v_cvt_pk_bf16_f32 v{16+2*u+i}, v{16+2*u+i}, 0')
        for i in range(2):
            a(f'v_cndmask_b32 v{AT+4*u+2*i}, 0, v{16+2*u+i}, s[44:45]\nv_cndmask_b32 v{AT+4*u+2*i+1}, 0, v{16+2*u+i}, s[46:47]')
    def smf(u, c):
        n = (c*3 + u)*2
        if n + 1 >= 30 - XL: a.wait_vm(f'wo{n+1}')
        r = KB + 4*(WOT + n)
        a(f'v_smfmac_f32_16x16x64_bf16 {v4(YA+4*c)}, {v4(AT+4*u)}, v[{r}:{r+7}], v{st+15}')
    def ywrite(c):
        a(f's_mov_b64 exec, {sLO32}\nds_write_b128 v{st+11}, {v4(YA+4*c)} offset:{L_YP+640*c}\ns_mov_b64 exec, -1')
    if PK:
        def cv(u):
            for i in range(2): a(f'v_cvt_pk_bf16_f32 v{16+2*u+i}, v{16+2*u+i}, 0')
        def ab(u, hi):
            m0, m1 = ('s[44:45]', 's[46:47]') if not hi else ('s[16:17]', 's[18:19]')
            for i in range(2):
                a(f'v_cndmask_b32 v{AT+8*u+4*hi+2*i}, 0, v{16+2*u+i}, {m0}\nv_cndmask_b32 v{AT+8*u+4*hi+2*i+1}, 0, v{16+2*u+i}, {m1}')
        def sm(u, c):
            r = KB + 4*(WOT + (c*3 + u)*2)
            a(f'v_smfmac_f32_16x16x64_bf16 {v4(YA+4*(c>>1))}, {v4(AT+8*u+4*(c&1))}, v[{r}:{r+7}], v{st+15}')
        assert XL == 0
        a('s_waitcnt lgkmcnt(0)' if stamps == 3 else 's_waitcnt lgkmcnt(1)')
        dpp((16, 17, 18), (8, 4, 2, 1))
        cv(0); ab(0, 0)
        a('s_waitcnt lgkmcnt(0)')
        dpp((19, 20, 21), (8,))
        sm(0, 4); ab(0, 1)
        sm(0, 0); dpp((19, 20, 21), (4,))
        sm(0, 2); dpp((19, 20, 21), (2,))
        sm(0, 1); dpp((19, 20, 21), (1,))
        sm(0, 3); cv(1); ab(1, 0); cv(2)
        sm(1, 4); ab(2, 0)
        sm(1, 0); ab(1, 1)
        sm(2, 4); ab(2, 1)
        sm(2, 0); sm(1, 2); sm(1, 1); sm(2, 2)
        a(f's_mov_b64 exec, {sLO32}\nds_write_b128 v{st+11}, {v4(YA+8)} offset:{L_YP+2560}\ns_mov_b64 exec, -1')
        sm(2, 1); sm(1, 3); sm(2, 3)
        a(f'ds_write_b128 v{st+11}, {v4(YA)} offset:{L_YP}')
        a(f'ds_write_b128 v{st+11}, {v4(YA+4)} offset:{L_YP+1280}')
        stamp('mm')
        a('s_waitcnt lgkmcnt(0)\ns_barrier')
    elif CM == 2:
        a('s_waitcnt lgkmcnt(0)' if stamps == 3 else 's_waitcnt lgkmcnt(1)')
        dpp((16, 17, 18), (8, 4, 2, 1))
        abuild(0)
        a('s_waitcnt lgkmcnt(0)')
        dpp((19, 20, 21), (8,))
        smf(0, 0); dpp((19, 20, 21), (4,))
        smf(0, 1); dpp((19, 20, 21), (2,))
        smf(0, 2); dpp((19, 20, 21), (1,))
        smf(0, 3); abuild(1)
        smf(1, 0); abuild(2)
        order = [(1,1),(2,0),(1,2),(2,1),(1,3),(0,4),'w0',(2,2),'w1',(1,4),(2,3),(2,4),'w2','w3','w4']
        for o in order:
            if isinstance(o, str): ywrite(int(o[1]))
            else: smf(*o)
        stamp('mm')
        a('s_waitcnt lgkmcnt(0)\ns_barrier')
    elif CM:
        abuild(0); abuild(1)
        smf(0, 0); smf(0, 1)
        abuild(2)
        order = [(1,0),(1,1),(2,0),(2,1),(0,2),(0,3),(1,2),'w0',(1,3),'w1',(2,2),(0,4),(2,3),(1,4),'w2',(2,4),'w3','w4']
        for o in order:
            if isinstance(o, str): ywrite(int(o[1]))
            else: smf(*o)
        stamp('mm')
        a('s_waitcnt lgkmcnt(0)\ns_barrier')
    else:
        abuild(0); abuild(1)
        smf(0, 0); smf(0, 1)
        abuild(2)
        for c in range(2, 5): smf(0, c)
        for c in range(5): smf(1, c)
        for c in range(5): smf(2, c)
        stamp('mm')
        a(f's_mov_b64 exec, {sLO32}')
        for c in range(5): a(f'ds_write_b128 v{st+11}, {v4(YA+4*c)} offset:{L_YP+640*c}')
        a('s_mov_b64 exec, -1\ns_waitcnt lgkmcnt(0)\ns_barrier')
    stamp('barD'); stamp('pub'); stamp('c1')
    if DREL == 2: a('s_memrealtime s[60:61]')
    a(f's_cmp_ge_u32 {sW_}, 5\ns_cbranch_scc1 L_cons')
    if YR == 1:
        for u in range(8): a(f'ds_read_b64 v[{16+2*u}:{17+2*u}], v{st+12} offset:{L_YP+3200*u}')
        if stamps == 3: a('s_waitcnt lgkmcnt(0)')
        for u in range(4):
            a(f's_waitcnt lgkmcnt({6-2*u})\nv_pk_add_f32 v[{16+4*u}:{17+4*u}], v[{16+4*u}:{17+4*u}], v[{18+4*u}:{19+4*u}]')
            if u == 1: a('v_pk_add_f32 v[16:17], v[16:17], v[20:21]')
        a('v_pk_add_f32 v[24:25], v[24:25], v[28:29]\nv_pk_add_f32 v[16:17], v[16:17], v[24:25]')
        a(f'v_bfi_b32 v16, s98, v{st+18}, v16')
        a(f'buffer_store_dwordx2 v[16:17], v{st+13}, {WS}, {sYB} offen {POL[YSP]}')
    else:
        for u in range(4): a(f'ds_read_b128 {v4(16+4*u)}, v{st+12} offset:{L_YP+3200*u}')
        a('s_waitcnt lgkmcnt(0)')
        padd(16, 24, 8); padd(16, 20, 4)
        for r in range(4): a(f'v_mov_b32 v{20+r}, v{16+r}')
        for r in range(4): a(f'v_permlane32_swap_b32 v{16+r}, v{20+r}')
        padd(16, 20, 4)
        for r in range(2): a(f'v_bfi_b32 v{16+2*r}, s98, v{st+16+r}, v{16+2*r}')
        a(f's_mov_b64 exec, {sLO32}')
        if EXP & 512: a(f's_mov_b32 {sYB}, {BIG}')
        a(f'buffer_store_dwordx4 v[16:19], v{st+13}, {WS}, {sYB} offen {POL[YSP]}')
    if stamps:
        a('s_mov_b64 exec, -1\ns_waitcnt lgkmcnt(0)')
        stamp('pub')
        a('s_branch L_fin')
    else:
        a('s_endpgm')
    a.label('L_cons')
    a(f'''
    s_cmp_eq_u32 s97, 0
    s_cbranch_scc1 L_fin
    s_mov_b32 {sT1}, {SPIN}
    ''')
    def pissue(b):
        for i in range(8):
            a(f'buffer_load_dwordx4 {v4(b+4*i)}, v{st+14}, {WS}, s{48+i} offen {POL[YLP]}')
    def pcheck(b, extra):
        for i in range(8):
            r = b + 4*i
            a(f's_waitcnt vmcnt({7-i+extra})')
            for k in range(2): a(f'v_xor_b32 v{r+2*k}, v{r+2*k}, v{st+16+k}')
            if i == 0: a(f'v_or_b32 v15, v{r}, v{r+2}')
            else: a(f'v_or3_b32 v15, v15, v{r}, v{r+2}')
        a('v_and_b32 v15, s98, v15\nv_cmp_ne_u32 vcc, 0, v15')
    def pfinish(b):
        if stamps: a('s_waitcnt lgkmcnt(0)')
        stamp('c1'); stamp('c1x')
        padd(b, b+16, 16); padd(b, b+8, 8); padd(b, b+4, 4)
        a(f'''
        v_lshlrev_b32 v14, 16, v{st+2}
        v_permlane32_swap_b32 v{b}, v{b+1}
        v_permlane32_swap_b32 v{b+2}, v{b+3}
        v_add_f32 v{b}, v{b}, v{b+1}
        v_add_f32 v{b+2}, v{b+2}, v{b+3}
        v_permlane16_swap_b32 v{b}, v{b+2}
        v_add_f32 v{b}, v{b}, v{b+2}
        v_add_f32_dpp v{b}, v{b}, v{b} row_ror:8 row_mask:0xf bank_mask:0xf
        v_add_f32 v{b}, v{b}, v14
        v_cvt_pk_bf16_f32 v{b}, v{b}, v{b}
        s_mov_b32 exec_lo, 0x00ff00ff
        s_mov_b32 exec_hi, 0x00ff00ff
        buffer_store_short v{b}, v{st+3}, {OUT}, s96 offen {POL[OPOL]}
        s_mov_b64 exec, -1
        ''')
    if PM == 2:
        pissue(16)
        a.label('L_spin3')
        pissue(68)
        pcheck(16, 8)
        a('s_cbranch_vccz L_ok3')
        pissue(16)
        a(f's_sub_u32 {sT1}, {sT1}, 1')
        pcheck(68, 8)
        a('s_cbranch_scc1 L_ok3b\ns_and_b64 vcc, vcc, vcc')
        a.raw('  s_cbranch_scc1 L_spin3')
        a.label('L_ok3b')
        pfinish(68)
        a('s_branch L_ok3c')
        a.label('L_ok3')
        pfinish(16)
        a.label('L_ok3c')
    else:
        a.label('L_spin3')
        pissue(16)
        a(f's_sub_u32 {sT1}, {sT1}, 1')
        pcheck(16, 0)
        a('s_cbranch_scc1 L_ok3\ns_and_b64 vcc, vcc, vcc')
        a.raw('  s_cbranch_scc1 L_spin3')
        a.label('L_ok3')
        pfinish(16)
    if DLY:
        a(f'''
        s_waitcnt vmcnt(0)
        s_memrealtime s[84:85]
        s_waitcnt lgkmcnt(0)
        s_sub_u32 s82, {'s84, s80' if DREL == 1 else ('s60, s80' if DREL == 2 else (('s80' if DSEL else 's84') + ', s86'))}
        s_mul_i32 s82, s82, {DLY}
        s_add_u32 s82, s82, {(6000 if not PRE else 0) if DSEL else 0}
        s_min_u32 s82, s82, 200000
        ''')
        a.label('L_dly')
        a(f'''
        s_memrealtime s[84:85]
        s_waitcnt lgkmcnt(0)
        s_sub_u32 s83, s84, s86
        s_cmp_lt_u32 s83, s82
        s_cbranch_scc1 L_dly
        ''')
    a.label('L_fin')
    if stamps:
        a('s_waitcnt vmcnt(0)')
        stamp('end')
        a('s_waitcnt lgkmcnt(0)')
        if XID: a('s_getreg_b32 s84, hwreg(HW_REG_XCC_ID)')
        for k in range(8): a(f'v_mov_b32 v{16+k}, s{SREG[k]}')
        a(f'''
        s_lshl_b32 {sT0}, s2, 3
        s_add_u32 {sT0}, {sT0}, {sW_}
        s_lshl_b32 {sT0}, {sT0}, 5
        s_add_u32 {sT0}, {sT0}, {WS_T}
        v_mov_b32 v14, 0
        s_mov_b64 exec, 1
        buffer_store_dwordx4 v[16:19], v14, {WS}, {sT0} offen
        buffer_store_dwordx4 v[20:23], v14, {WS}, {sT0} offen offset:16
        ''')
    a.label('L_end')
    a('s_endpgm')
    a.raw(f'''.section .rodata,"a"
.p2align 6
.amdhsa_kernel {name}
  .amdhsa_next_free_vgpr 256
  .amdhsa_next_free_sgpr 102
  .amdhsa_accum_offset 256
  .amdhsa_group_segment_fixed_size 0
  .amdhsa_kernarg_size 96
  .amdhsa_user_sgpr_count 2
  .amdhsa_user_sgpr_kernarg_segment_ptr 1
  .amdhsa_system_sgpr_workgroup_id_x 1
  .amdhsa_float_denorm_mode_32 3
.end_amdhsa_kernel''')
    return a.text()

if __name__ == '__main__':
    out = sys.argv[1]
    kw = {}
    for x in sys.argv[2:]:
        k, v = x.split('='); kw[k] = int(v)
    open(out, 'w').write(gen(**kw))
```

```python
import sys, struct
from asmdsl import Asm

NAME = 'parallel_sum__sliding_block_cached__geglu_ffn__decode_kernel'
def f32(x): return '0x%08x' % struct.unpack('<I', struct.pack('<f', x))[0]
def lanemask(fn):
    m = 0
    for l in range(64):
        if fn(l & 15, l >> 4): m |= 1 << l
    return m

HEADER = open('parallel_sum__sliding_block_cached__geglu_ffn__decode.s.ref').read().split('; Override')[0]

WS_Y  = 0
WS_S  = 0x100000
WS_E  = 0x0F0000
WS_P  = 0x110000
WS_T  = 0x300000
WS_SZ = 0x400000
L_PART = 0
L_DUM  = 14336
L_Q    = 15360
L_HID  = 15872
L_CNT  = 16000
L_X    = 16128
L_STG  = 21504
L_YP   = L_STG
BIG = 0x40000000
L2E = 1.4426950408889634
POL = {0: '', 1: 'nt', 2: 'sc0 nt', 3: 'sc1 nt', 4: 'sc0', 5: 'sc1', 6: 'sc0 sc1', 7: 'sc0 sc1 nt'}

DESC = r'''
'''

def gen(KU=2, KW=0, KP0=10, PP=0, PG=2, PI=3, TP=5, XL=0, T=6, TV=6, TVE=12, VE=30, RV=12, ILV=1, XBEG=4, XEND=14, SLI=28, GST=5, PRIO=0, SLP=8, KPOLL=28, W0N=3, W0P=2, GLP=5, WDB=1, GWD=2, SB0=2, SLN=8, WPOL=5, SPOL=5, KVPOL=1, PPOL=1, DLY=0, DSEL=0, NOS=0, DREL=0, PRD=2, PRP=5, PUBP=3, STP=3, KORD=1, IDL=0, PK=0, J2=1, OM=2, PSC=1, AM=1, DBGS=0, XID=0, WPF=3, WFP=0, WFE=0, TBO=0, TB0=0, KE=2, YR=1, YP=0, YPG=0, RA=845, RB=64, RC=366, ALPHA=1, BETA=8, CM=2, PM=2, UM=2, OPOL=0, YLP=5, YSP=5, ROT=8,
        NS=17, SEND=46, EXP=0, stamps=0, name=NAME):
    a = Asm()
    SPIN = (1 << 19) if EXP == 0 else 0
    LDS_SZ = L_STG + max(8 * NS * 1024, 30720)
    assert LDS_SZ <= 163840
    SREG = [80, 82, 84, 86, 56, 58, 60, 62]
    SETS = {1: ['start', 'barA', 'sig', 'kiss', 'barB', 'smax', 'vend', 'end'],
            2: ['start', 'bar0', 'ln', 'barA', 'sig', 'poll', 'qrdy', 'end'],
            3: ['start', 'vend', 'barC', 'mm', 'barD', 'pub', 'c1', 'end'],
            5: ['start', 'ki12', 'ki18', 'ki24', 'ki30', 'ki36', 'ki42', 'ki47'],
            6: ['start', 'ki47', 'vc0', 'vc12', 'vc24', 'vc36', 'vc42', 'vc47'],
            7: ['start', 'bar0', 'barA', 'ki12', 'ki24', 'ki47', 'vc24', 'vc47'],
            11: ['start', 'barC', 't1', 't2', 't3', 't4', 'mm', 'barD'],
            4: ['start', 'karg', 'iss1', 'iss2', 'pre0', 'bar0', 'barA', 'end']}
    DN = ['end', 'karg', 'iss1', 'bar0', 'barA', 'sig', 'barB', 'vend', 'iss2', 'smax', 'pre', 'preK', 'c1x', 'barC', 'barDx']
    def stamp(nm):
        if DLY and DSEL and nm == DN[DSEL]: a('s_memrealtime s[80:81]')
        if stamps and nm in SETS[stamps]:
            r = SREG[SETS[stamps].index(nm)]
            a(f's_memrealtime s[{r}:{r+1}]')
    a.raw(HEADER.rstrip())
    a.raw(f'; @launch grid=(256,1,1) block=(512,1,1) lds={LDS_SZ}')
    a.raw('.amdgcn_target "amdgcn-amd-amdhsa--gfx950"\n.text' + DESC + '.globl %s\n.p2align 8\n.type %s,@function\n%s:' % (name, name, name))
    sW_, sH, sB, sS, sXCD, sP = 's3', 's4', 's5', 's6', 's68', 's69'
    K, V, W, WO, WD, X, WS, OUT = 's[8:11]', 's[12:15]', 's[16:19]', 's[20:23]', 's[24:27]', 's[28:31]', 's[32:35]', 's[36:39]'
    sWO0, sWO1, sWDB, sSTG, sWO2, sWO3 = 's40', 's41', 's42', 's43', 's64', 's65'
    sKV, sKV2, sKV0 = 's71', 's72', 's73'
    sT0, sT1, sT2, sT3 = 's74', 's75', 's76', 's77'
    sLO32 = 's[78:79]'
    sM, sSOWN, sYB, sSB = 's88', 's89', 's90', 's91'
    TAG = 's[100:101]'
    sTG0, sTG1 = 's70', 's7'
    KB = 64
    WDT, WOT = 12, 17
    def kt(i): return f'v[{KB+4*i}:{KB+4*i+3}]'
    def v4(r): return f'v[{r}:{r+3}]'
    def srd(d, p, n):
        a(f's_mov_b32 s{d}, s{p}\ns_and_b32 s{d+1}, s{p+1}, 0xffff\ns_mov_b32 s{d+2}, {n}\ns_mov_b32 s{d+3}, 0x20000')
    def rowred(op, r, steps=(8, 4, 2, 1)):
        for s_ in steps: a(f'{op}_dpp v{r}, v{r}, v{r} row_ror:{s_} row_mask:0xf bank_mask:0xf')
    gstep = 6144 * 8 if ILV else 6144
    def grp(g):
        if ROT == 7:
            a(f's_lshr_b32 {sKV}, s67, 16\ns_mul_i32 {sKV}, {sKV}, {g}\ns_add_u32 {sKV}, {sKV}, s67\ns_and_b32 {sKV}, {sKV}, 63\ns_mul_i32 {sKV}, {sKV}, 6144\ns_add_u32 {sKV}, {sKV}, {sKV0}')
        elif ROT == 8:
            a(f's_add_u32 {sKV}, s67, {(BETA*g)&63}\ns_and_b32 {sKV}, {sKV}, 63\ns_mul_i32 {sKV}, {sKV}, 6144\ns_add_u32 {sKV}, {sKV}, {sKV0}')
        elif ROT:
            a(f's_add_u32 {sKV}, s67, {g}\ns_and_b32 {sKV}, {sKV}, 7\ns_mul_i32 {sKV}, {sKV}, {gstep}\ns_add_u32 {sKV}, {sKV}, {sKV0}')
        else:
            a(f's_mov_b32 {sKV}, {sKV0}' if g == 0 else f's_add_u32 {sKV}, {sKV}, {gstep}')
    kissued = [0]
    KO = [[0,1,2,3,4,5],[0,1,4,2,3,5],[0,4,1,2,5,3]][KORD]
    assert all(KO[e] < 4 for e in range(KU))
    def kload():
        i = kissued[0]; g, e = divmod(i, 6)
        stamp(f'ki{i}')
        if e == 0 and g > 0: grp(g)
        e = KO[e]
        if e < 4: a(f'buffer_load_dwordx4 {kt(i)}, v8, {K}, {sKV} offen offset:{384*e} {POL[KVPOL]}', tag=f'k{i}')
        else:     a(f'buffer_load_dwordx4 {kt(i)}, v9, {K}, {sKV} offen offset:{768*(e-4)} {POL[KVPOL]}', tag=f'k{i}')
        kissued[0] += 1

    assert ILV == 1 and ROT in (3, 7, 8) and 1 <= KU <= 4
    a(f'''
    s_load_dwordx2 s[8:9], s[0:1], 8
    s_load_dwordx16 s[44:59], s[0:1], 0
    s_cmp_ge_u32 s2, 256
    s_cbranch_scc1 L_end''')
    stamp('start')
    if DBGS:
        a(f's_mul_i32 s74, s2, 0x9E3779B1\ns_lshr_b32 s74, s74, 29\ns_cmp_lg_u32 s74, {DBGS & 7}\ns_cbranch_scc1 L_nodbg')
        for _ in range(DBGS >> 3): a('s_sleep 127')
        a.label('L_nodbg')
    if DLY: a('s_memrealtime s[86:87]')
    if PRIO: a('s_setprio 3')
    a(f'''
    v_lshrrev_b32 v14, 6, v0
    v_bfe_u32 v20, v0, 2, 2
    v_readfirstlane_b32 {sW_}, v14
    v_and_b32 v21, 3, v0
    v_lshlrev_b32 v21, 4, v21
    v_mul_u32_u24 v9, 1536, v20
    v_bfe_u32 v3, v0, 4, 2
    v_add_u32 v9, v9, v21
    v_lshl_add_u32 v8, v3, 6, v9       ; vkx = 1536(n>>2)+16(n&3)+64g
    s_and_b32 {sXCD}, s2, 7
    s_lshr_b32 {sT0}, s2, 6
    s_lshl2_add_u32 {sH}, {sXCD}, {sT0}
    s_bfe_u32 {sB}, s2, 0x20004
    s_bfe_u32 {sS}, s2, 0x10003
    s_lshl_b32 {sT0}, {sB}, 5
    s_add_u32 {sSB}, {sT0}, {sH}       ; bh
    s_lshl3_add_u32 {sT0}, {sSB}, {sS}
    s_add_u32 {sT0}, {sT0}, 6
    s_lshl_b32 {sT0}, {sT0}, 6
    ''')
    if ROT == 8:
        a(f'''
        s_mul_i32 {sKV0}, {sT0}, 6144
        s_mul_i32 s67, {sH}, {RA}
        {f's_mul_i32 {sT0}, {sB}, {RB}' if RB else ''}
        {f's_add_u32 s67, s67, {sT0}' if RB else ''}
        s_mul_i32 {sT0}, {sS}, {RC}
        s_add_u32 s67, s67, {sT0}
        s_lshr_b32 s67, s67, 4
        ''')
        if ALPHA == 1: a(f's_add_u32 s67, s67, {sW_}')
        else: a(f's_mul_i32 {sT0}, {sW_}, {ALPHA}\ns_add_u32 s67, s67, {sT0}')
        a(f's_and_b32 s67, s67, 63\ns_mul_i32 {sKV}, s67, 6144\ns_add_u32 {sKV}, {sKV}, {sKV0}')
    else:
        a(f'''
        s_add_u32 {sT0}, {sT0}, {sW_}
        s_mul_i32 {sKV0}, {sT0}, 6144
        s_mul_i32 s67, s2, 0x9E3779B1
        s_bfe_u32 s67, s67, 0x30014
        s_mul_i32 {sKV}, s67, {gstep}
        s_add_u32 {sKV}, {sKV}, {sKV0}
        ''')
    a(f'''
    s_mov_b32 s10, 402653184
    s_mov_b32 s11, 0x20000
    s_waitcnt lgkmcnt(0)
    ''')
    stamp('karg')
    if ROT == 7:
        a(f's_lshl_b32 {sT0}, s2, 2\ns_load_dword s67, s[54:55], {sT0}\ns_mul_i32 {sT0}, {sW_}, 6144\ns_sub_u32 {sKV0}, {sKV0}, {sT0}\ns_waitcnt lgkmcnt(0)\ns_bfe_u32 {sT0}, s67, 0x60008\ns_mul_i32 {sT0}, {sT0}, {sW_}\ns_and_b32 {sT0}, {sT0}, 63\ns_add_u32 s67, s67, {sT0}')
        grp(0)
    for i in range(KU): kload()
    a(f'''
    s_load_dwordx2 s[24:25], s[0:1], 64
    s_load_dwordx2 s[36:37], s[0:1], 72
    s_load_dwordx2 s[32:33], s[0:1], 88
    v_and_b32 v1, 63, v0
    v_and_b32 v2, 15, v1
    v_lshlrev_b32 v20, 4, v1
    s_mov_b32 s28, s44
    s_mov_b32 s29, s45
    s_movk_i32 s30, 5120
    s_mov_b32 s31, 0x20000
    s_lshl_b32 {sT0}, {sW_}, 10
    s_add_u32 m0, {sT0}, {L_X}
    s_cmp_ge_u32 {sW_}, 5
    s_cbranch_scc1 L_nox
    ''')
    a.role = 'x'
    a(f'buffer_load_dwordx4 v20, {X}, {sT0} offen lds', tag='x')
    a.role = None
    a.label('L_nox')
    stamp('iss1')
    def touch(srd_, per_wg, per_wave, mask):
        a.comment("pull this WG's eighth of the rows its team shares into L2 now (one word per line)")
        a(f'''
        s_bfe_u32 {sT3}, s2, 0x30003
        s_lshl3_add_u32 {sT2}, {sH}, {sT3}
        s_mul_i32 {sT0}, {sT2}, {per_wg}
        s_mul_i32 {sT3}, {sW_}, {per_wave}
        s_add_u32 {sT0}, {sT0}, {sT3}
        v_lshlrev_b32 v62, 7, v1
        s_mov_b64 exec, {hex(mask)}
        buffer_load_dword v63, v62, {srd_}, {sT0} offen {POL[WFP]}
        s_mov_b64 exec, -1
        ''')
    if WPF and WFE == 1:
        srd(20, 52, 7864320); touch(WO, 30720, 3840, 0x3fffffff)
    if UM == 1:
        a(f'''
        s_mov_b32 s66, s2
        s_mul_i32 s92, s66, 43691
        s_lshr_b32 s92, s92, 17            ; blk
        s_mul_i32 {sT3}, s92, 3
        s_sub_u32 s93, s66, {sT3}          ; split
        ''')
    else:
        if UM == 2: a(f'''
        s_lshr_b32 {sT2}, s2, 6
        s_lshl2_add_u32 {sT2}, {sB}, {sT2}
        s_and_b32 {sT3}, s2, 15
        s_lshl4_add_u32 s66, {sT2}, {sT3}
        ''')
        else: a(f'''
        s_lshr_b32 {sT2}, s2, 6
        s_bfe_u32 {sT3}, s2, 0x30003
        s_lshl2_add_u32 {sT2}, {sT3}, {sT2}
        s_lshl3_add_u32 s66, {sT2}, {sXCD}
        ''')
        a(f'''
        s_mul_i32 s93, s66, 911
        s_lshr_b32 s93, s93, 16
        s_mul_i32 {sT3}, s93, 72
        s_sub_u32 s92, s66, {sT3}          ; blk
        ''')
    a(f'''
    s_mul_i32 s97, s93, 224
    s_lshl_b32 {sT2}, {sW_}, 5
    s_add_u32 s97, s97, {sT2}
    s_sub_u32 {sT2}, s92, 48
    s_sub_u32 {sT3}, s92, 60
    s_cmp_lt_u32 s92, 60
    s_cselect_b32 s16, s56, s58
    s_cselect_b32 s17, s57, s59
    s_cselect_b32 s98, {sT2}, {sT3}
    s_movk_i32 s96, 3072
    s_mov_b32 s18, 1966080
    s_cmp_lt_u32 s92, 48
    s_cselect_b32 s16, s50, s16
    s_cselect_b32 s17, s51, s17
    s_cselect_b32 s18, 7864320, s18
    s_cselect_b32 s96, 12288, s96
    s_cselect_b32 s98, s92, s98
    s_and_b32 s17, s17, 0xffff
    s_mov_b32 s19, 0x20000
    s_mul_i32 s94, s97, s96
    s_lshl_b32 s98, s98, 8
    s_add_u32 s94, s94, s98            ; soffset
    s_cmp_eq_u32 {sW_}, 7
    s_cselect_b32 s94, {BIG}, s94
    s_cmp_ge_u32 s66, {216 if not (EXP & 128) else 0}
    s_cselect_b32 s94, {BIG}, s94
    v_mul_lo_u32 v16, v3, s96
    v_lshl_add_u32 v16, v2, 4, v16     ; g*RS+16n
    s_lshl_b32 s96, s96, 2
    v_lshrrev_b32 v22, 1, v3
    v_mul_u32_u24 v21, 384, v22
    v_add_u32 v9, v9, v21
    v_and_b32 v22, 1, v3
    v_lshlrev_b32 v22, 6, v22
    v_add3_u32 v9, v9, v22, 64
    v_add_u32 v9, 192, v9              ; vky
    ''')
    WT = 224
    wiss = [0]
    def wload():
        t = wiss[0]
        a(f'buffer_load_dwordx4 {v4(WT+4*t)}, v16, {W}, s94 offen {POL[PPOL]}', tag=f'w{t}')
        if t < 7: a(f's_add_u32 s94, s94, s96')
        wiss[0] += 1
    pcnt = [0]
    def pstep(paced=True):
        if paced: a(f's_waitcnt vmcnt({TP-1})')
        pcnt[0] += 1
        if wiss[0] < 8 and pcnt[0] % (PG + 1) != 0: wload()
        else: kload()
    if PP:
        for _ in range(PI): pstep(False)
    else:
        for t in range(8):
            wload()
            if t == 3:
                for _ in range(KW): kload()
                if WPF and WFE == 2:
                    srd(20, 52, 7864320); touch(WO, 30720, 3840, 0x3fffffff)
        KU = KU + KW
    stamp('iss2')
    if PRIO: a('s_setprio 0')
    def wotile(n):
        uc, h = divmod(n, 2); c, u = divmod(uc, 3)
        return [[sWO0, sWO1], [sWO2, sWO3]][h][u == 2], (2560 if u == 1 else 0) + 256*c
    sissued = [0]
    def sload():
        n = sissued[0]; so, imm = wotile(n)
        a(f's_add_u32 m0, {sSTG}, {1024*n - imm}' if 1024*n >= imm else f's_sub_u32 m0, {sSTG}, {imm - 1024*n}')
        a(f'buffer_load_dwordx4 v12, {WO}, {so} offen offset:{imm} {POL[SPOL]} lds', tag='stg')
        sissued[0] += 1
    def kmore(frac):
        if PP: pstep(); return
        while kissued[0] < KU + int((KP0 - KU) * frac + 0.5): kload()
        while sissued[0] < int(SB0 * frac + 0.5): sload()
    def pmore():
        if PP: pstep()
    a(f's_waitcnt lgkmcnt(0)\ns_load_dwordx2 {TAG}, s[32:33], {WS_E}')
    a(f's_mov_b32 s34, {WS_SZ}\ns_mov_b32 s35, 0x20000\ns_mov_b32 s26, 1966080\ns_mov_b32 s27, 0x20000\ns_movk_i32 s38, 5120\ns_mov_b32 s39, 0x20000')
    srd(12, 48, 402653184); srd(20, 52, 7864320)
    if WPF:
        if not WFE: touch(WO, 30720, 3840, 0x3fffffff)
        touch(WD, 7680, 960, 0xff)
    a(f'''
    s_lshl_b32 {sP}, {sH}, 1
    s_add_u32 {sP}, {sP}, {sS}
    s_mov_b32 s78, -1
    s_mov_b32 s79, 0
    s_lshl_b32 {sT0}, {sB}, 6
    s_add_u32 {sT0}, {sT0}, {sP}
    s_mul_i32 {sYB}, {sT0}, 2560
    s_lshl_b32 {sSB}, {sSB}, 8
    s_add_u32 {sSB}, {sSB}, {WS_S}
    s_lshl_b32 {sT2}, {sS}, 7
    s_add_u32 {sSOWN}, {sSB}, {sT2}
    s_mul_i32 {sWDB}, {sP}, 24
    s_mul_i32 {sT0}, {sW_}, 3
    s_add_u32 {sWDB}, {sWDB}, {sT0}
    s_mul_i32 {sWDB}, {sWDB}, 1280
    s_mul_i32 {sWO0}, {sH}, 192
    s_mul_i32 {sT0}, {sW_}, 24
    s_add_u32 {sWO0}, {sWO0}, {sT0}
    s_mul_i32 {sWO0}, {sWO0}, 1280
    s_add_u32 {sWO1}, {sWO0}, 5120
    s_add_u32 {sWO2}, {sWO0}, 15360
    s_add_u32 {sWO3}, {sWO0}, 20480
    s_mul_i32 {sSTG}, {sW_}, {NS*1024}
    s_add_u32 {sSTG}, {sSTG}, {L_STG}
    v_mov_b32 v17, 1280
    v_mul_u32_u24 v18, 1280, v3
    v_lshl_add_u32 v18, v2, 4, v18     ; 1280g+16n
    s_lshl_b32 s97, s97, 1
    s_min_u32 s97, s97, 1216
    v_lshl_add_u32 v19, v3, 1, s97
    v_lshrrev_b32 v14, 3, v2
    v_mad_u32_u24 v19, v14, v17, v19   ; + 1280*(m>>3)
    v_and_b32 v15, 7, v2
    v_lshlrev_b32 v15, 4, v15          ; 16*(n&7)
    v_and_b32 v20, 1, v2
    v_cmp_eq_u32 vcc, 1, v20
    v_mov_b32 v21, 0xffff
    v_mov_b32 v22, 0xffff0000
    v_cndmask_b32 v21, v21, v22, vcc
    v_bfe_u32 v20, v2, 1, 2
    ''')
    for r in range(4):
        a(f'v_cmp_eq_u32 vcc, {r}, v20\nv_cndmask_b32 v{4+r}, 0, v21, vcc')
    a(f'''
    v_mul_u32_u24 v10, 384, v3
    v_lshrrev_b32 v20, 3, v2
    v_mul_u32_u24 v11, 3072, v20
    v_add3_u32 v11, v11, v10, v15
    v_add_u32 v11, 256, v11            ; vvy = (g+8*(n>>3))*384+256+16*(n&7)
    v_lshl_add_u32 v10, v2, 4, v10     ; vvx = g*384+16n
    v_lshrrev_b32 v12, 1, v3
    v_mul_u32_u24 v12, 5120, v12
    v_add_u32 v12, v12, v18            ; vwo = (6(g>>1)+(g&1))*1280+16n
    v_mov_b32 v22, {BIG}
    v_cmp_eq_u32 vcc, 3, v3
    v_cndmask_b32 v13, v18, v22, vcc   ; vwd = g*1280+16n  (g==3 -> out of range)
    v_lshrrev_b32 v20, 1, v3
    v_lshlrev_b32 v20, 9, v20
    v_and_b32 v22, 1, v3
    v_lshl_add_u32 v22, v22, 4, v20
    v_lshl_add_u32 v22, v2, 5, v22
    s_lshl_b32 {sT0}, {sW_}, 11
    v_add_u32 v22, {sT0}, v22
    v_mov_b32 v20, {L_CNT}
    v_mov_b32 v21, 0
    ds_write_b32 v20, v21
    ds_write_b32 v20, v21 offset:4
    ''')
    if EXP & 64: a(f'v_mov_b32 v12, {BIG}\nv_mov_b32 v13, {BIG}')
    stamp('pre0')
    tagcode = f'''
    s_waitcnt lgkmcnt(0)
    s_mul_i32 s100, s100, 0x9E3779B1
    s_add_u32 s100, s100, 0x7F4A7C15
    s_mul_i32 s101, s101, 0x85EBCA69
    s_add_u32 s101, s101, 0xC2B2AE35
    s_and_b32 {sTG0}, s100, 0xff
    s_and_b32 {sTG1}, s101, 0xff
    '''
    a(tagcode)
    a.role = 'x'; a.wait_vm('x'); a.role = None
    a('s_barrier')
    stamp('bar0')
    if IDL:
        a('s_cmp_lt_u32 s66, 216\ns_cbranch_scc1 L_act')
        fk = (list(a.vm), kissued[0], sissued[0])
        for n_ in range(1, 7):
            while kissued[0] < KU + int((KP0 - KU) * n_ / 6 + 0.5):
                a(f's_waitcnt vmcnt({T-1})'); kload()
            while sissued[0] < int(SB0 * n_ / 6 + 0.5):
                a(f's_waitcnt vmcnt({T-1})'); sload()
        stamp('barA')
        a('s_branch L_nopub')
        a.vm, kissued[0], sissued[0] = fk
        a.label('L_act')
    XS, XO, U, XN, AB, ACC, XV = 24, 44, 184, 184, 200, 216, 168
    for i in range(5): a(f'ds_read_b128 {v4(XS+4*i)}, v18 offset:{L_X+256*i}')
    for pr in range(2):
        for t in range(8): a(f'ds_read_u16 v{XV+8*pr+t}, v19 offset:{L_X+2560*pr+8*t}')
    kmore(1/6)
    a('s_waitcnt lgkmcnt(0)')
    for i in range(20):
        a(f'v_lshlrev_b32 v{U+2*i}, 16, v{XS+i}\nv_and_b32 v{U+2*i+1}, 0xffff0000, v{XS+i}')
    pmore()
    a(f'v_pk_add_f32 v[52:53], v[{U}:{U+1}], v[{U+2}:{U+3}]\nv_pk_add_f32 v[54:55], v[{U+4}:{U+5}], v[{U+6}:{U+7}]')
    for i in range(8, 40, 2):
        d = 52 + (i & 2)
        a(f'v_pk_add_f32 v[{d}:{d+1}], v[{d}:{d+1}], v[{U+i}:{U+i+1}]')
    a('v_pk_add_f32 v[52:53], v[52:53], v[54:55]\nv_add_f32 v52, v52, v53')
    rowred('v_add_f32', 52)
    a(f'v_mul_f32 v56, {f32(-1/640)}, v52')
    kmore(2/6)
    for i in range(0, 40, 2): a(f'v_pk_add_f32 v[{U+i}:{U+i+1}], v[{U+i}:{U+i+1}], v[56:57] op_sel_hi:[1,0]')
    a(f'v_pk_mul_f32 v[52:53], v[{U}:{U+1}], v[{U}:{U+1}]\nv_pk_mul_f32 v[54:55], v[{U+2}:{U+3}], v[{U+2}:{U+3}]')
    for i in range(4, 40, 2):
        d = 52 + (i & 2)
        a(f'v_pk_fma_f32 v[{d}:{d+1}], v[{U+i}:{U+i+1}], v[{U+i}:{U+i+1}], v[{d}:{d+1}]')
    a('v_pk_add_f32 v[52:53], v[52:53], v[54:55]\nv_add_f32 v52, v52, v53')
    rowred('v_add_f32', 52)
    a(f'''
    v_mul_f32 v52, {f32(1/640)}, v52
    v_cvt_pk_bf16_f32 v53, v56, v52
    v_lshlrev_b32 v56, 16, v53
    v_and_b32 v52, 0xffff0000, v53
    v_add_f32 v52, {f32(1e-5)}, v52
    v_cvt_pk_bf16_f32 v52, v52, v52
    v_and_b32 v52, 0xffff0000, v52
    v_sqrt_f32 v52, v52
    v_cvt_pk_bf16_f32 v52, v52, v52
    v_and_b32 v52, 0xffff0000, v52
    v_rcp_f32 v52, v52
    v_lshlrev_b32 v53, 6, v14
    v_add_u32 v54, 128, v53
    ds_bpermute_b32 v58, v53, v56
    ds_bpermute_b32 v60, v54, v56
    ds_bpermute_b32 v24, v53, v52
    ds_bpermute_b32 v26, v54, v52
    ''')
    kmore(3/6)
    for k in range(16): a(f'v_lshlrev_b32 v{XN+k}, 16, v{XV+k}')
    a('s_waitcnt lgkmcnt(0)')
    for pr in range(2):
        for k in range(4):
            r = XN + 8*pr + 2*k
            a(f'v_pk_add_f32 v[{r}:{r+1}], v[{r}:{r+1}], v[{58+2*pr}:{59+2*pr}] op_sel_hi:[1,0]')
    for k in range(8): a(f'v_cvt_pk_bf16_f32 v{XO+k}, v{XN+2*k}, v{XN+2*k+1}')
    for k in range(8): a(f'v_lshlrev_b32 v{XN+2*k}, 16, v{XO+k}\nv_and_b32 v{XN+2*k+1}, 0xffff0000, v{XO+k}')
    for pr in range(2):
        for k in range(4):
            r = XN + 8*pr + 2*k
            a(f'v_pk_mul_f32 v[{r}:{r+1}], v[{r}:{r+1}], v[{24+2*pr}:{25+2*pr}] op_sel_hi:[1,0]')
    for k in range(16): a(f'v_cvt_pk_bf16_f32 v{XN+k}, v{XN+k}, v{XN+k}')
    stamp('ln')
    kmore(4/6)
    if PP:
        while wiss[0] < 8: pstep()
    for t in range(8):
        for pr in range(2):
            ab = AB + 4*((2*t + pr) & 3)
            for r in range(4): a(f'v_and_b32 v{ab+r}, v{XN+8*pr+t}, v{4+r}')
        a.wait_vm(f'w{t}')
        for pr in range(2):
            ab = AB + 4*((2*t + pr) & 3); d = v4(ACC + 4*pr)
            a(f'v_mfma_f32_16x16x32_bf16 {d}, {v4(ab)}, {v4(WT+4*t)}, {0 if t == 0 else d}')
        if PP:
            idx = max(k for k, (tg, r) in enumerate(a.vm) if tg == f'w{t}')
            while len(a.vm) - 1 - idx < TP: pstep(False)
        elif t == 3: kmore(5/6)
    stamp('wland')
    kmore(1)
    if PP: KP0 = kissued[0]
    a(f's_cmp_eq_u32 {sW_}, 7\ns_cbranch_scc1 L_nopart')
    for pr in range(2): a(f'ds_write_b128 v22, {v4(ACC+4*pr)} offset:{1024*pr}')
    a.label('L_nopart')
    a('s_waitcnt lgkmcnt(0)\ns_barrier')
    stamp('barA')
    def padd(d, s_, n):
        for r in range(0, n, 2): a(f'v_pk_add_f32 v[{d+r}:{d+r+1}], v[{d+r}:{d+r+1}], v[{s_+r}:{s_+r+1}]')
    a(f'''
    s_cmp_lt_u32 {sW_}, 6
    s_cbranch_scc1 L_nopub
    v_and_b32 v14, 127, v0
    v_lshlrev_b32 v15, 4, v14
    ''')
    for u in range(7): a(f'ds_read_b128 {v4(16+4*u)}, v15 offset:{2048*u}')
    a(f'''
    v_lshrrev_b32 v14, 5, v14
    s_mov_b32 {sT0}, {36864-512}
    v_mad_u32_u24 v14, v14, {sT0}, v15     ; b*36864 + 16*(t&31)
    s_mul_i32 {sT0}, s93, 147456
    s_lshl_b32 {sT2}, s92, 9
    s_add_u32 {sT0}, {sT0}, {sT2}
    s_add_u32 {sT0}, {sT0}, {WS_P}
    s_cmp_ge_u32 s66, {216 if not (EXP & 8) else 0}
    s_cselect_b32 {sT0}, {BIG}, {sT0}
    s_waitcnt lgkmcnt(0)
    ''')
    padd(16, 32, 12); padd(16, 24, 8); padd(16, 20, 4)
    a(f'''
    v_add_u32 v16, 0x80, v16
    v_add_u32 v18, 0x80, v18
    v_and_b32 v16, 0xffffff00, v16
    v_and_b32 v18, 0xffffff00, v18
    v_or_b32 v16, {sTG0}, v16
    v_or_b32 v18, {sTG1}, v18
    ''')
    a(f'buffer_store_dwordx4 v[16:19], v14, {WS}, {sT0} offen {POL[PUBP]}'); a.vm.pop()
    a.label('L_nopub')
    kseq = []
    si = 0
    NR_ = NS - sissued[0]
    for i in range(KP0, 48):
        kseq.append('k')
        while si < NR_ and (si + 1) * (SEND - KP0) <= (i + 1 - KP0) * NR_:
            kseq.append('s'); si += 1
    assert si == NR_
    kp = [0]
    def kstep(paced):
        op = kseq[kp[0]]; kp[0] += 1
        if paced: a(f's_waitcnt vmcnt({T-1})')
        if op == 'k': kload()
        else: sload()
    if YP == 2:
        a(f's_cmp_lt_u32 {sW_}, 4\ns_cbranch_scc1 L_noyp\ns_setprio 1'); a.label('L_noyp')
    for _ in range(T - 1): kstep(True)
    stamp('sig')
    if PRD & 6:
        a(f's_cmp_lg_u32 {sW_}, 3\ns_cbranch_scc1 L_noprd2\nv_lshlrev_b32 v62, 6, v1')
        if PRD & 2:
            a(f's_mov_b32 exec_hi, 0xff\nbuffer_load_dword v63, v62, {WS}, {sYB} offen {POL[PRP]}'); a.vm.pop()
        if PRD & 4:
            a(f's_mov_b64 exec, 3\nbuffer_load_dword v63, v62, {WS}, {sSOWN} offen {POL[PRP]}'); a.vm.pop()
        a('s_mov_b64 exec, -1')
        a.label('L_noprd2')
    while kissued[0] < KPOLL: kstep(True)
    a(f's_cmp_eq_u32 {sW_}, 0\ns_cbranch_scc1 L_w0')
    fork = (list(a.vm), kissued[0], kp[0], sissued[0])
    while kp[0] < len(kseq): kstep(True)
    stamp('kiss'); stamp('poll'); stamp('qrdy')
    a('s_branch L_join')
    vm_join = list(a.vm)
    a.vm, kissued[0], kp[0], sissued[0] = fork
    a.label('L_w0')
    a(f'''
    v_min_u32 v60, 59, v1
    v_lshlrev_b32 v60, 2, v60
    s_mul_i32 {sT0}, {sH}, 192
    s_mul_i32 {sT2}, {sP}, 24
    s_add_u32 {sT2}, {sT2}, {6144-192}
    s_add_u32 {sT3}, {sT2}, {1536-24}
    v_mov_b32 v61, {sT0}
    v_mov_b32 v62, {sT2}
    v_cmp_le_u32 vcc, 48, v1
    v_cndmask_b32 v61, v61, v62, vcc
    v_mov_b32 v62, {sT3}
    v_cmp_le_u32 vcc, 54, v1
    v_cndmask_b32 v61, v61, v62, vcc
    v_add_u32 v60, v60, v61
    v_lshlrev_b32 v60, 2, v60
    s_mul_i32 s44, {sB}, 36864
    s_add_u32 s44, s44, {WS_P}
    s_add_u32 s45, s44, 147456
    s_add_u32 s46, s44, 294912
    s_mov_b32 {sT1}, {SPIN}
    ''')
    if EXP & 2: a(f'v_mov_b32 v60, {BIG}')
    for t in range(3): a(f'buffer_load_dwordx4 {v4(16+4*t)}, v60, {WS}, s{44+t} offen {POL[GLP]}', tag='gq')
    for _ in range(W0N): kstep(False)
    for _ in range(W0P): kstep(True)
    a.wait_vm('gq')
    a.label('L_spin1')
    for t in range(3): a(f'v_xor_b32 v{16+4*t}, {sTG0}, v{16+4*t}\nv_xor_b32 v{18+4*t}, {sTG1}, v{18+4*t}')
    a(f'''
    v_or3_b32 v14, v16, v18, v20
    v_or3_b32 v15, v22, v24, v26
    v_or_b32 v14, v14, v15
    v_and_b32 v14, 0xff, v14
    v_cmp_ne_u32 vcc, 0, v14
    s_cbranch_vccz L_ok1
    s_sub_u32 {sT1}, {sT1}, 1
    s_cbranch_scc1 L_ok1
    s_sleep {SLP}
    ''')
    for t in range(3):
        a(f'buffer_load_dwordx4 {v4(16+4*t)}, v60, {WS}, s{44+t} offen {POL[GLP]}'); a.vm.pop()
    a('s_waitcnt vmcnt(0)\ns_branch L_spin1')
    a.label('L_ok1')
    stamp('poll')
    padd(16, 20, 4); padd(16, 24, 4)
    a(f'''
    v_cvt_pk_bf16_f32 v16, v16, v17
    v_cvt_pk_bf16_f32 v17, v18, v19
    v_lshlrev_b32 v14, 3, v1
    ds_write_b64 v14, v[16:17] offset:{L_Q}
    v_min_u32 v14, 23, v1
    v_lshlrev_b32 v14, 1, v14
    s_waitcnt lgkmcnt(0)
    ds_read_u16 v20, v14 offset:{L_Q+384}
    ds_read_u16 v21, v14 offset:{L_Q+432}
    s_waitcnt lgkmcnt(0)
    v_lshlrev_b32 v20, 16, v20
    v_lshlrev_b32 v21, 16, v21             ; up
    v_mul_f32 v22, v20, v20
    v_mul_f32 v22, {f32(0.044715)}, v22
    v_fma_f32 v22, v22, v20, v20           ; x + c x^3
    v_mul_f32 v22, {f32(-2*0.7978845608028654*L2E)}, v22
    v_exp_f32 v22, v22
    v_add_f32 v22, 1.0, v22
    v_rcp_f32 v22, v22
    v_mul_f32 v22, v22, v20
    v_cvt_pk_bf16_f32 v22, v22, v22
    v_and_b32 v22, 0xffff0000, v22
    v_mul_f32 v22, v22, v21
    v_cvt_pk_bf16_f32 v22, v22, v22
    v_cmp_gt_u32 vcc, 24, v1
    v_cndmask_b32 v22, 0, v22, vcc
    v_min_u32 v14, 31, v1
    v_lshlrev_b32 v14, 2, v14
    ds_write_b32 v14, v22 offset:{L_HID}
    v_mov_b32 v14, {L_CNT}
    v_mov_b32 v15, 1
    s_waitcnt lgkmcnt(0)
    ds_write_b32 v14, v15 offset:4
    ''')
    def xred8(base, n, tmp):
        for r in range(n): a(f'v_add_f32_dpp v{base+r}, v{base+r}, v{base+r} row_ror:8 row_mask:0xf bank_mask:0xf')
        for sw in ('v_permlane16_swap_b32', 'v_permlane32_swap_b32'):
            for r in range(n): a(f'v_mov_b32 v{tmp+r}, v{base+r}')
            for r in range(n): a(f'{sw} v{base+r}, v{tmp+r}')
            padd(base, tmp, n)
    stamp('qrdy')
    while kp[0] < len(kseq): kstep(True)
    stamp('kiss')
    a.vm = vm_join
    a.label('L_join')
    a(f'v_mov_b32 v14, {L_CNT}\ns_mov_b32 {sT1}, {1<<24}')
    a.label('L_spinq')
    a(f'''
    ds_read_b32 v15, v14 offset:4
    s_waitcnt lgkmcnt(0)
    v_readfirstlane_b32 {sT0}, v15
    s_cmp_lg_u32 {sT0}, 0
    s_cbranch_scc1 L_okq
    s_sub_u32 {sT1}, {sT1}, 1
    s_cbranch_scc1 L_okq
    s_sleep 1
    s_branch L_spinq
    ''')
    a.label('L_okq')
    stamp('barB')
    if DBGS:
        a(f's_mul_i32 s74, s2, 0x2545F491\ns_add_u32 s74, s74, {sW_}\ns_mul_i32 s74, s74, 0x9E3779B1\ns_lshr_b32 s74, s74, 27\ns_cmp_lg_u32 s74, 5\ns_cbranch_scc1 L_nodbg2')
        for _ in range(DBGS >> 3): a('s_sleep 127')
        a.label('L_nodbg2')
    a(f'''
    v_and_b32 v14, 3, v2
    v_lshl_add_u32 v15, v3, 2, v14
    v_lshlrev_b32 v15, 4, v15
    ds_read_b128 v[56:59], v15 offset:{L_Q}
    v_and_b32 v15, 0x70, v15
    ds_read_b128 v[60:63], v15 offset:{L_Q+256}
    ''')
    mX = [lanemask(lambda m, g, u=u: (m >> 2) == u) for u in range(4)]
    mY = [lanemask(lambda m, g, w=w: (m >> 2) == 2*w + (g >> 1)) for w in range(2)]
    for k, m in enumerate(mX + mY):
        a(f's_mov_b32 s{44+2*k}, {hex(m & 0xffffffff)}\ns_mov_b32 s{45+2*k}, {hex(m >> 32)}')
    a('s_waitcnt lgkmcnt(0)')
    for k in range(6):
        src = 56 if k < 4 else 60
        for r in range(4): a(f'v_cndmask_b32 v{32+4*k+r}, 0, v{src+r}, s[{44+2*k}:{45+2*k}]')
    vissued = [0]
    def vreg(i): return kt(i % RV)
    def vload():
        i = vissued[0]; g, e = divmod(i, 6); c, x = divmod(e, 3)
        if e == 0:
            grp(g)
            a(f's_add_u32 {sKV2}, {sKV}, 3072')
        if x == 0:   a(f'buffer_load_dwordx4 {vreg(i)}, v10, {V}, {sKV} offen offset:{1536*c} {POL[KVPOL]}', tag=f'v{i}')
        elif x == 1: a(f'buffer_load_dwordx4 {vreg(i)}, v10, {V}, {sKV2} offen offset:{1536*c} {POL[KVPOL]}', tag=f'v{i}')
        else:        a(f'buffer_load_dwordx4 {vreg(i)}, v11, {V}, {sKV} offen offset:{1536*c} {POL[KVPOL]}', tag=f'v{i}')
        vissued[0] += 1
    assert RV <= 12
    extras = [('wd', c) for c in range(5)] + [('wo', n) for n in range(NS, 30)]
    xiss = [0]
    def xtile(e): return WDT + e[1] if e[0] == 'wd' else WOT + e[1]
    def xload():
        e = extras[xiss[0]]
        if e[0] == 'wd':
            a(f'buffer_load_dwordx4 {kt(xtile(e))}, v13, {WD}, {sWDB} offen offset:{256*e[1]} {POL[WPOL]}', tag='wd')
        else:
            so, imm = wotile(e[1])
            a(f'buffer_load_dwordx4 {kt(xtile(e))}, v12, {WO}, {so} offen offset:{imm} {POL[WPOL]}', tag=f'wo{e[1]}')
        xiss[0] += 1
    SC = 0.07216878364870322
    def score_post(g):
        d = 24 + 4*(g & 1); s_ = 16 + g
        a(f'''
        v_mov_b32_dpp v{s_}, v{d} quad_perm:[0,0,0,0] row_mask:0xf bank_mask:0xf
        v_mov_b32_dpp v14, v{d+2} quad_perm:[2,2,2,2] row_mask:0xf bank_mask:0xf
        v_add_f32_dpp v{s_}, v{d+1}, v{s_} quad_perm:[1,1,1,1] row_mask:0xf bank_mask:0xf
        v_add_f32_dpp v14, v{d+3}, v14 quad_perm:[3,3,3,3] row_mask:0xf bank_mask:0xf
        v_add_f32 v{s_}, v{s_}, v14
        ''')
        if NOS < 1: a(f'v_cvt_pk_bf16_f32 v{s_}, v{s_}, v{s_}\nv_and_b32 v{s_}, 0xffff0000, v{s_}')
        a(f'v_mul_f32 v{s_}, {f32(SC)}, v{s_}')
        if NOS < 2: a(f'v_cvt_pk_bf16_f32 v{s_}, v{s_}, v{s_}\nv_and_b32 v{s_}, 0xffff0000, v{s_}')
    nx = len(extras) - XL
    span = 48 - XBEG - XEND
    seq = []
    xi = 0
    for i in range(48):
        seq.append('v')
        if i == SLI: seq.append('sl')
        if WDB and xi < 5 and i >= XBEG:
            seq.append('x'); xi += 1
        while xi < nx and i >= XBEG and (xi + 1) * span <= (i + 1 - XBEG) * nx:
            seq.append('x'); xi += 1
    assert xi == nx
    seq += ['x'] * XL
    nx += XL
    sp = [0]
    did_wd = [False]
    SS = KB + 4*47
    st = KB + 4*WDT
    GF = st + 12
    def statload():
        a(f'''
        v_and_b32 v8, 1, v1
        v_lshlrev_b32 v8, 7, v8
        s_mul_i32 s95, {sP}, 43691
        s_lshr_b32 s95, s95, 17
        s_mul_i32 {sT0}, {sB}, 1280
        s_lshl_b32 {sT1}, s95, 6
        s_add_u32 s96, {sT0}, {sT1}
        s_mul_i32 {sT0}, s95, 3
        s_mov_b32 s97, 1
        s_cmp_lg_u32 {sT0}, {sP}
        s_cselect_b32 s97, 0, s97
        s_cmp_ge_u32 s95, 20
        s_cselect_b32 s97, 0, s97
        s_cmp_lg_u32 {sW_}, 7
        s_cselect_b32 s97, 0, s97
        v_lshlrev_b32 v9, 9, v1
        s_mov_b32 s98, {WS_S}
        s_cmp_eq_u32 s2, 0
        s_cselect_b32 s99, s97, 0
        s_cmp_eq_u32 s99, 0
        s_cbranch_scc1 L_nogf
        ''')
        for k in range(4):
            a(f'buffer_load_dword v{GF+k}, v9, {WS}, s98 offen offset:{128*k+4} sc1'); a.vm.pop()
        a.label('L_nogf')
        a(f'buffer_load_dwordx4 {v4(SS)}, v8, {WS}, {sSB} offen sc1', tag='sl')
    def pump(lasttag, kfree, vcons, boost=0):
        while sp[0] < len(seq):
            idx = max(k for k, (t, r) in enumerate(a.vm) if t == lasttag)
            if len(a.vm) - 1 - idx >= (TV if vcons < VE else TVE) + boost: break
            op = seq[sp[0]]
            if op == 'v':
                i = vissued[0]
                if i < RV:
                    if i >= kfree: break
                elif i - RV >= vcons: break
                vload()
            elif op == 'x':
                if xtile(extras[xiss[0]]) >= kfree: break
                xload()
            else:
                assert did_wd[0]
                statload()
            sp[0] += 1
    done = [t for (t, r) in a.vm[:len(a.vm) - T]]
    known = max(int(t[1:]) for t in done if t and t[0] == 'k' and t[1:].isdigit())
    a.wait_vm(f'k{known}')
    for g in range(8):
        d = v4(24 + 4*(g & 1))
        for e in range(6):
            i = 6*g + e
            if i > known:
                a.wait_vm(f'k{i}'); known = i
            a(f'v_mfma_f32_16x16x32_bf16 {d}, {v4(32+4*KO[e])}, {kt(i)}, {0 if e == 0 else d}')
            if i == known: pump(f'k{known}', i + 1, 0, TBO if i == 47 else TB0)
        if 6*g + 5 < known and (g % KE) == 0 and known < 47:
            known += 1
            a.wait_vm(f'k{known}')
            pump(f'k{known}', 6*g + 6, 0, TB0)
        if g > 0: score_post(g-1)
    score_post(7)
    if NS:
        a.wait_vm('stg')
        a(f'v_lshlrev_b32 v14, 4, v1\nv_add_u32 v14, {sSTG}, v14')
        for n in range(NS): a(f'ds_read_b128 {kt(WOT+n)}, v14 offset:{1024*n}')
    def allred(op, r, t):
        rowred(op, r, (4, 8))
        a(f'v_mov_b32 v{t}, v{r}\nv_permlane16_swap_b32 v{r}, v{t}\n{op} v{r}, v{r}, v{t}')
        a(f'v_mov_b32 v{t}, v{r}\nv_permlane32_swap_b32 v{r}, v{t}\n{op} v{r}, v{r}, v{t}')
    a('v_max3_f32 v28, v16, v17, v18\nv_max3_f32 v15, v19, v20, v21\nv_max3_f32 v28, v28, v22, v23\nv_max_f32 v28, v28, v15')
    allred('v_max_f32', 28, 15)
    for g in range(8): a(f'v_sub_f32 v{16+g}, v{16+g}, v28')
    for g in range(8): a(f'v_mul_f32 v{16+g}, {f32(L2E)}, v{16+g}')
    for g in range(8): a(f'v_exp_f32 v{16+g}, v{16+g}')
    a('v_add_f32 v30, v16, v17\nv_add_f32 v24, v18, v19\nv_add_f32 v25, v20, v21\nv_add_f32 v26, v22, v23\nv_add_f32 v30, v30, v24\nv_add_f32 v25, v25, v26\nv_add_f32 v30, v30, v25')
    allred('v_add_f32', 30, 24)
    for g in range(8):
        if not (PSC and g > GST): a(f'v_cvt_pk_bf16_f32 v{16+g}, v{16+g}, v{16+g}')
    a(f'''
    v_readfirstlane_b32 {sM}, v28          ; own m
    v_mov_b32 v29, v30
    s_lshl_b32 {sT0}, {sW_}, 3
    v_mov_b32 v24, {sT0}
    v_mov_b32 v25, 0
    v_mov_b32 v26, 1
    s_mov_b64 exec, 1
    ds_write_b64 v24, v[28:29] offset:{L_CNT+64}
    ds_add_rtn_u32 v27, v25, v26 offset:{L_CNT}
    s_mov_b64 exec, -1
    s_waitcnt lgkmcnt(0)
    v_readfirstlane_b32 {sT0}, v27
    s_cmp_lg_u32 {sT0}, 7
    s_cbranch_scc1 L_nostat
    v_and_b32 v24, 7, v1
    v_lshlrev_b32 v25, 3, v24
    ds_read_b64 v[26:27], v25 offset:{L_CNT+64}
    v_lshlrev_b32 v24, 4, v24
    s_waitcnt lgkmcnt(0)
    v_mov_b32 v28, v26
    ''')
    rowred('v_max_f32', 28, (4, 2, 1))
    a(f'v_sub_f32 v26, v26, v28\nv_mul_f32 v26, {f32(L2E)}, v26\nv_exp_f32 v26, v26\nv_mul_f32 v30, v26, v27')
    rowred('v_add_f32', 30, (4, 2, 1))
    a(f'''
    v_mov_b32 v29, s100
    v_mov_b32 v31, s101
    s_mov_b64 exec, {(1 << SLN) - 1}
    buffer_store_dwordx4 v[28:31], v24, {WS}, {sSOWN} offen {POL[STP]}
    s_mov_b64 exec, -1
    ''')
    a.vm.pop()
    a.label('L_nostat')
    stamp('smax')
    YA, OA = 44, 32
    a(f'''
    s_mul_i32 {sT0}, {sW_}, 12
    v_lshlrev_b32 v24, 2, v3
    v_add_u32 v24, {sT0}, v24
    v_mov_b32 v25, 124
    v_cmp_eq_u32 vcc, 3, v3
    v_cndmask_b32 v24, v24, v25, vcc
    ds_read_b32 v14, v24 offset:{L_HID}
    s_waitcnt lgkmcnt(0)
    ''')
    for g in range(8):
        if PK and OM and g == 7:
            a('v_mov_b32 v12, 0xffff\nv_mov_b32 v13, 0xffff0000')
            for hi, (m0, m1) in enumerate((('s[44:45]', 's[46:47]'), ('s[16:17]', 's[18:19]'))):
                a(f'v_cndmask_b32 v{56+4*hi}, 0, v12, {m0}\nv_cndmask_b32 v{57+4*hi}, 0, v12, {m1}\nv_cndmask_b32 v{58+4*hi}, 0, v13, {m0}\nv_cndmask_b32 v{59+4*hi}, 0, v13, {m1}')
        elif AM and g == 7:
            assert sp[0] == len(seq)
            a('v_mov_b32 v12, 0xffff\nv_mov_b32 v13, 0xffff0000\nv_cndmask_b32 v8, 0, v12, s[44:45]\nv_cndmask_b32 v9, 0, v12, s[46:47]\nv_cndmask_b32 v10, 0, v13, s[44:45]\nv_cndmask_b32 v11, 0, v13, s[46:47]')
        if YP == 1 and g == YPG:
            a(f's_cmp_lt_u32 {sW_}, 4\ns_cbranch_scc1 L_noyp\ns_setprio 1'); a.label('L_noyp')
        for c in range(2):
            A = 24 + 4*c
            if c == 0: a(f'v_mov_b32 v15, v{16+g}\nv_mov_b32_dpp v15, v{16+g} row_shr:4 row_mask:0xf bank_mask:0xa')
            else:      a(f'v_mov_b32 v15, v{16+g}\nv_mov_b32_dpp v15, v{16+g} row_shl:4 row_mask:0xf bank_mask:0x5')
            for r in range(4): a(f'v_and_b32 v{A+r}, v15, v{4+r}')
            for x in range(3):
                i = 6*g + 3*c + x
                d = v4(OA + 4*x)
                a.wait_vm(f'v{i}')
                stamp(f'vc{i}')
                a(f'v_mfma_f32_16x16x32_bf16 {d}, {v4(A)}, {vreg(i)}, {0 if i < 3 else d}')
                pump(f'v{i}', 48, i + 1)
        if g == GWD:
            did_wd[0] = True
            assert xiss[0] >= 5
            if J2:
                a('v_or3_b32 v15, v4, v5, v6\nv_or_b32 v15, v15, v7\nv_and_b32 v15, v15, v14')
                for r in range(4):
                    m_ = 0x00030003 << (4*r)
                    a(f's_mov_b32 s44, {hex(m_)}\ns_mov_b32 s45, {hex(m_)}\nv_cndmask_b32 v{24+r}, 0, v15, s[44:45]')
                a.wait_vm('wd')
                for c in range(5):
                    a(f'v_mfma_f32_16x16x32_bf16 {v4(YA+4*c)}, v[24:27], {kt(WDT+c)}, 0')
            elif PK:
                a('s_mov_b32 s44, 0x00ff00ff\ns_mov_b32 s45, 0x00ff00ff\nv_cndmask_b32 v15, 0, v14, s[44:45]\nv_cndmask_b32 v14, v14, 0, s[44:45]')
                for r in range(4): a(f'v_and_b32 v{24+r}, v15, v{4+r}')
                for r in range(4): a(f'v_and_b32 v{28+r}, v14, v{4+r}')
                a.wait_vm('wd')
                for c in (0, 2, 4, 1, 3):
                    d = v4(YA+4*(c>>1))
                    a(f'v_mfma_f32_16x16x32_bf16 {d}, {v4(24+4*(c&1))}, {kt(WDT+c)}, {d if c & 1 else 0}')
            else:
                for r in range(4): a(f'v_and_b32 v{24+r}, v14, v{4+r}')
                a.wait_vm('wd')
                for c in range(5):
                    a(f'v_mfma_f32_16x16x32_bf16 {v4(YA+4*c)}, v[24:27], {kt(WDT+c)}, 0')
        if g == GST:
            a(f's_mov_b32 {sT1}, {SPIN}')
            a.wait_vm('sl')
            a.label('L_spin2')
            a(f'''
            v_cmp_ne_u32 vcc, s100, v{SS+1}
            v_cmp_ne_u32 s[44:45], s101, v{SS+3}
            s_or_b64 vcc, vcc, s[44:45]
            s_cbranch_scc0 L_ok2
            s_sub_u32 {sT1}, {sT1}, 1
            s_cbranch_scc1 L_ok2
            s_sleep 4
            buffer_load_dwordx4 {v4(SS)}, v8, {WS}, {sSB} offen sc1
            s_waitcnt vmcnt(0)
            s_branch L_spin2
            ''')
            a.vm.pop()
            a.label('L_ok2')
            a(f'''
            s_cmp_eq_u32 s99, 0
            s_cbranch_scc1 L_ok2b
            s_mov_b32 {sT1}, {SPIN}
            ''')
            a.label('L_spin2b')
            a(f'''
            v_cmp_ne_u32 vcc, s100, v{GF}
            v_cmp_ne_u32 s[44:45], s100, v{GF+1}
            v_cmp_ne_u32 s[46:47], s100, v{GF+2}
            v_cmp_ne_u32 s[48:49], s100, v{GF+3}
            s_or_b64 vcc, vcc, s[44:45]
            s_or_b64 s[46:47], s[46:47], s[48:49]
            s_or_b64 vcc, vcc, s[46:47]
            s_cbranch_scc0 L_ok2c
            s_sub_u32 {sT1}, {sT1}, 1
            s_cbranch_scc1 L_ok2c
            s_sleep {SLP}
            ''')
            for k in range(4):
                a(f'buffer_load_dword v{GF+k}, v9, {WS}, s98 offen offset:{128*k+4} sc1'); a.vm.pop()
            a('s_waitcnt vmcnt(0)\ns_branch L_spin2b')
            a.label('L_ok2c')
            a(f'''
            s_mov_b32 {sT2}, {WS_E}
            v_mov_b32 v{GF}, s100
            v_mov_b32 v{GF+1}, s101
            s_mov_b64 exec, 1
            buffer_store_dwordx2 v[{GF}:{GF+1}], v9, {WS}, {sT2} offen sc1
            s_mov_b64 exec, -1
            ''')
            a.vm.pop()
            a.label('L_ok2b')
            a(f'v_mov_b32 v{st+6}, v{SS}')
            rowred('v_max_f32', st+6, (1,))
            a(f'''
            v_sub_f32 v{st}, v{SS}, v{st+6}
            v_sub_f32 v{st+7}, {sM}, v{st+6}
            v_mul_f32 v{st}, {f32(L2E)}, v{st}
            v_mul_f32 v{st+7}, {f32(L2E)}, v{st+7}
            v_exp_f32 v{st}, v{st}
            v_exp_f32 v{st+7}, v{st+7}
            v_mul_f32 v{st}, v{st}, v{SS+2}
            ''')
            rowred('v_add_f32', st, (1,))
            a(f'''
            v_rcp_f32 v{st}, v{st}
            v_mul_f32 v14, v{st}, v{st+7}          ; factor
            ''')
            if PSC:
                for r in range(12): a(f'v_mul_f32 v{OA+r}, v{OA+r}, v14')
                for gg in range(GST + 1, 8):
                    a(f'v_mul_f32 v{16+gg}, v{16+gg}, v14\nv_cvt_pk_bf16_f32 v{16+gg}, v{16+gg}, v{16+gg}')
            a(f'''
            v_and_b32 v{st+5}, 7, v1
            v_lshlrev_b32 v{st+5}, 3, v{st+5}
            v_and_b32 v{st+3}, 1, v3
            v_lshlrev_b32 v{st+3}, 2, v{st+3}
            v_and_b32 v{st+4}, 2, v3
            v_add3_u32 v{st+3}, v{st+3}, v{st+4}, v{st+5}
            s_min_u32 {sT0}, s96, 5056
            v_add_u32 v{st+4}, {sT0}, v{st+3}
            ds_read_u16 v{st+2}, v{st+4} offset:{L_X}
            ''')
            if not J2: a(f'''
            v_and_b32 v{st+15}, 3, v2
            v_mul_u32_u24 v{st+15}, 0x5555, v{st+15}
            s_mov_b32 s44, 0x0f0f0f0f
            s_mov_b32 s45, 0x0f0f0f0f
            s_mov_b32 s46, 0xf0f0f0f0
            s_mov_b32 s47, 0xf0f0f0f0
            ''')
            a(f'''
            v_lshrrev_b32 v{st+6}, 1, v3
            ''')
            if not (OM and J2): a(f'''
            s_lshl_b32 {sT0}, {sW_}, 1
            v_add_u32 v{st+7}, {sT0}, v{st+6}
            v_mul_u32_u24 v{st+7}, 784, v{st+7}
            v_and_b32 v{st+8}, 1, v3
            v_lshlrev_b32 v{st+11}, 4, v{st+8}
            v_add_u32 v{st+7}, v{st+7}, v{st+11}
            v_lshl_add_u32 v{st+8}, v2, 5, v{st+7}
            v_and_b32 v{st+9}, 7, v2
            v_lshl_add_u32 v{st+9}, v{st+9}, 5, v{st+7}
            v_add_u32 v{st+9}, 512, v{st+9}
            v_lshrrev_b32 v{st+7}, 3, v2
            v_cmp_eq_u32 vcc, v{st+7}, v{st+6}
            v_lshlrev_b32 v{st+7}, 4, v1
            v_add_u32 v{st+7}, {L_DUM}, v{st+7}
            v_cndmask_b32 v{st+9}, v{st+7}, v{st+9}, vcc
            v_mul_u32_u24 v{st+10}, 784, v2
            v_mul_u32_u24 v{st+7}, 24, v3
            s_mul_i32 {sT0}, {sW_}, 96
            v_add3_u32 v{st+10}, v{st+10}, v{st+7}, {sT0}
            s_mul_i32 {sT0}, {sW_}, 3200
            v_mul_u32_u24 v{st+11}, 24, v{st+11}
            v_lshl_add_u32 v{st+11}, v2, 4, v{st+11}
            v_add_u32 v{st+11}, {sT0}, v{st+11}           ; y write: 3200w + 384(g&1) + 16n
            ''')
            if YR == 0: a(f'''
            v_and_b32 v{st+13}, 31, v1
            v_lshrrev_b32 v{st+7}, 1, v{st+13}
            v_lshlrev_b32 v{st+13}, 4, v{st+13}
            s_lshl_b32 {sT0}, {sW_}, 9
            v_add_u32 v{st+13}, {sT0}, v{st+13}
            v_mul_u32_u24 v{st+12}, 12800, v{st+6}
            v_lshl_add_u32 v{st+12}, v{st+7}, 4, v{st+12}
            v_and_b32 v{st+7}, 1, v1
            v_mul_u32_u24 v{st+7}, 384, v{st+7}
            s_mul_i32 {sT0}, {sW_}, 640
            v_add3_u32 v{st+12}, v{st+12}, v{st+7}, {sT0}  ; y read: 12800(l>>5) + 640w + 384(l&1) + 16((l&31)>>1)
            ''')
            a(f'''
            v_lshrrev_b32 v{st+14}, 3, v1
            v_mul_u32_u24 v{st+14}, 2560, v{st+14}
            v_lshl_add_u32 v{st+14}, v{st+5}, 1, v{st+14}
            s_mul_i32 s94, {sB}, {64*2560}
            s_lshl_b32 {sT0}, s95, 7
            s_add_u32 s94, s94, {sT0}
            ''')
            for i in range(8): a(f's_add_u32 s{48+i}, s94, {8*2560*i}')
            if PK:
                for k, (r_, m_) in enumerate(((44, 0x000f000f), (46, 0x00f000f0), (16, 0x0f000f00), (18, 0xf000f000))):
                    a(f's_mov_b32 s{r_}, {hex(m_)}\ns_mov_b32 s{r_+1}, {hex(m_)}')
                a(f'v_mul_u32_u24 v{st+7}, 640, v{st+6}\nv_add_u32 v{st+11}, v{st+11}, v{st+7}')
            if OM:
                a(f'''
                v_and_b32 v{st+7}, 1, v3
                v_lshl_add_u32 v{st+8}, v2, 1, v{st+7}          ; quad 2n+(g&1)
                v_and_b32 v{st+9}, 15, v{st+8}
                v_add_u32 v{st+9}, 32, v{st+9}                  ; quad 32+2(n&7)+(g&1)
                v_and_b32 v{st+7}, 2, v3
                s_lshl_b32 {sT0}, {sW_}, 2
                v_add_u32 v{st+7}, {sT0}, v{st+7}               ; 2*(2w+(g>>1))
                s_movk_i32 {sT2}, 136
                v_mad_u32_u24 v{st+8}, v{st+8}, {sT2}, v{st+7}
                v_mad_u32_u24 v{st+9}, v{st+9}, {sT2}, v{st+7}
                v_lshrrev_b32 v{st+7}, 3, v2
                v_cmp_eq_u32 vcc, v{st+7}, v{st+6}
                v_lshlrev_b32 v{st+7}, 2, v1
                v_add_u32 v{st+7}, {L_DUM}, v{st+7}
                v_cndmask_b32 v{st+9}, v{st+7}, v{st+9}, vcc
                v_lshrrev_b32 v{st+7}, 2, v2
                v_mul_u32_u24 v{st+7}, 6, v{st+7}
                s_mul_i32 {sT0}, {sW_}, 24
                v_add_u32 v{st+7}, {sT0}, v{st+7}               ; 24w+6(i>>2)
                v_and_b32 v{st+10}, 3, v2
                v_add_u32 v{st+10}, v{st+10}, v{st+7}
                v_and_b32 v{st+19}, 1, v2
                v_add3_u32 v{st+19}, v{st+19}, v{st+7}, 4
                ''')
                for r_ in (st+10, st+19):
                    a(f'''
                    v_lshrrev_b32 v{st+7}, 2, v{r_}
                    v_lshlrev_b32 v{st+7}, 3, v{st+7}
                    v_lshl_add_u32 v{r_}, v{r_}, 5, v{st+7}
                    v_lshl_add_u32 v{r_}, v3, 3, v{r_}          ; 32d+8(d>>2)+8g
                    ''')
                a(f'v_mov_b32 v{st}, 0x3f803f80\nv_mov_b32 v{st+1}, 0x3f803f80')
            if J2:
                assert YR == 1 and AM and not PK
                a(f'''
                s_mov_b32 s44, 0x00330033
                s_mov_b32 s45, 0x00330033
                s_mov_b32 s46, 0x33003300
                s_mov_b32 s47, 0x33003300
                v_bfe_u32 v{st+7}, v2, 2, 1
                v_and_b32 v{st+15}, 1, v2
                v_lshl_add_u32 v{st+15}, v{st+7}, 1, v{st+15}
                v_mul_u32_u24 v{st+15}, 0x5555, v{st+15}
                v_mul_u32_u24 v{st+11}, 192, v3
                v_lshl_add_u32 v{st+11}, v2, 3, v{st+11}
                s_mul_i32 {sT0}, {sW_}, 3840
                v_add_u32 v{st+11}, {sT0}, v{st+11}               ; y write: 3840w + 192g + 8n
                v_and_b32 v{st+7}, 3, v1
                v_mul_u32_u24 v{st+12}, 192, v{st+7}
                v_lshrrev_b32 v{st+7}, 2, v1
                v_lshl_add_u32 v{st+12}, v{st+7}, 3, v{st+12}
                s_mul_i32 {sT0}, {sW_}, 768
                v_add_u32 v{st+12}, {sT0}, v{st+12}               ; y read: 768w + 192(l&3) + 8(l>>2)
                v_and_b32 v{st+7}, 1, v1
                s_lshl_b32 {sT0}, {sW_}, 9
                v_lshl_add_u32 v{st+13}, v1, 3, {sT0}
                v_cmp_eq_u32 vcc, 1, v{st+7}
                v_mov_b32 v{st+18}, {sTG0}
                v_mov_b32 v{st+7}, {sTG1}
                v_cndmask_b32 v{st+18}, v{st+18}, v{st+7}, vcc
                ''')
            elif YR == 1:
                a(f'''
                v_lshrrev_b32 v{st+7}, 2, v1
                v_lshlrev_b32 v{st+12}, 4, v{st+7}
                v_bfe_u32 v{st+7}, v1, 1, 1
                v_mul_u32_u24 v{st+7}, 384, v{st+7}
                s_mul_i32 {sT0}, {sW_}, 640
                v_add3_u32 v{st+12}, v{st+12}, v{st+7}, {sT0}
                v_and_b32 v{st+7}, 1, v1
                v_lshl_add_u32 v{st+12}, v{st+7}, 3, v{st+12}
                s_lshl_b32 {sT0}, {sW_}, 9
                v_lshl_add_u32 v{st+13}, v1, 3, {sT0}
                v_cmp_eq_u32 vcc, 1, v{st+7}
                v_mov_b32 v{st+18}, {sTG0}
                v_mov_b32 v{st+7}, {sTG1}
                v_cndmask_b32 v{st+18}, v{st+18}, v{st+7}, vcc
                ''')
            a('s_movk_i32 s98, 0xff')
            a(f'v_mov_b32 v{st+16}, {sTG0}\nv_mov_b32 v{st+17}, {sTG1}')
    assert xiss[0] == nx and sp[0] == len(seq)
    stamp('vend')
    if OM:
        assert PSC and AM and CM == 2
        for k in range(2): a(f'v_cvt_pk_bf16_f32 v{24+k}, v{OA+2*k}, v{OA+2*k+1}')
        for k in range(2): a(f'v_cvt_pk_bf16_f32 v{26+k}, v{OA+4+2*k}, v{OA+4+2*k+1}')
        for k in range(2): a(f'v_cndmask_b32 v{24+k}, v{26+k}, v{24+k}, {sLO32}')
        for k in range(2): a(f'ds_write_b16 v{st+8}, v{24+k} offset:{64*k}\nds_write_b16_d16_hi v{st+8}, v{24+k} offset:{64*k+32}')
        for k in range(2): a(f'v_cvt_pk_bf16_f32 v{26+k}, v{OA+8+2*k}, v{OA+8+2*k+1}')
        for k in range(2): a(f'ds_write_b16 v{st+9}, v{26+k} offset:{64*k}\nds_write_b16_d16_hi v{st+9}, v{26+k} offset:{64*k+32}')
    elif PSC == 1:
        for r in range(4): a(f'v_cndmask_b32 v{OA+r}, v{OA+4+r}, v{OA+r}, {sLO32}')
        a(f'ds_write_b128 v{st+8}, {v4(OA)}')
        a(f'ds_write_b128 v{st+9}, {v4(OA+8)}')
    elif PSC == 2:
        a(f's_mov_b64 exec, {sLO32}\nds_write_b128 v{st+8}, {v4(OA)}\ns_not_b64 exec, exec\nds_write_b128 v{st+8}, {v4(OA+4)}\ns_mov_b64 exec, -1')
        a(f'ds_write_b128 v{st+9}, {v4(OA+8)}')
    else:
        for r in range(4): a(f'v_cndmask_b32 v{OA+r}, v{OA+4+r}, v{OA+r}, {sLO32}')
        for r in range(4): a(f'v_mul_f32 v{OA+r}, v{OA+r}, v14')
        a(f'ds_write_b128 v{st+8}, {v4(OA)}')
        for r in range(4): a(f'v_mul_f32 v{OA+8+r}, v{OA+8+r}, v14')
        a(f'ds_write_b128 v{st+9}, {v4(OA+8)}')
    a('s_waitcnt lgkmcnt(0)\ns_barrier')
    stamp('barC')
    if OM: a(f'ds_read_b64 v[24:25], v{st+10}\nds_read_b64 v[26:27], v{st+19}')
    else:
        for j in range(3): a(f'ds_read_b64 v[{16+2*j}:{17+2*j}], v{st+10} offset:{8*j}')
    def dpp(regs, steps):
        for s_ in steps:
            for r in regs: a(f'v_add_f32_dpp v{r}, v{r}, v{r} row_ror:{s_} row_mask:0xf bank_mask:0xf')
    if CM != 2:
        a('s_waitcnt lgkmcnt(0)')
        dpp(range(16, 22), (8, 4, 2, 1))
    AT = KB
    def abuild(u):
        if AM:
            a(f'v_cvt_pk_bf16_f32 v{16+2*u}, v{16+2*u}, v{17+2*u}')
            for r in range(4): a(f'v_and_b32 v{AT+4*u+r}, v{16+2*u}, v{8+r}')
            return
        for i in range(2):
            a(f'v_cvt_pk_bf16_f32 v{16+2*u+i}, v{16+2*u+i}, 0')
        for i in range(2):
            a(f'v_cndmask_b32 v{AT+4*u+2*i}, 0, v{16+2*u+i}, s[44:45]\nv_cndmask_b32 v{AT+4*u+2*i+1}, 0, v{16+2*u+i}, s[46:47]')
    def smf(u, c):
        n = (c*3 + u)*2
        if n + 1 >= 30 - XL: a.wait_vm(f'wo{n+1}')
        r = KB + 4*(WOT + n)
        a(f'v_smfmac_f32_16x16x64_bf16 {v4(YA+4*c)}, {v4(AT+4*u)}, v[{r}:{r+7}], v{st+15}')
    def ywrite(c):
        if J2:
            a(f'ds_write_b64 v{st+11}, v[{YA+4*c}:{YA+4*c+1}] offset:{L_YP+768*c}'); return
        a(f's_mov_b64 exec, {sLO32}\nds_write_b128 v{st+11}, {v4(YA+4*c)} offset:{L_YP+640*c}\ns_mov_b64 exec, -1')
    if PK and OM:
        def cv(u): a(f'v_cvt_pk_bf16_f32 v{16+2*u}, v{16+2*u}, v{17+2*u}')
        def ab(u, hi):
            for r in range(4): a(f'v_and_b32 v{AT+8*u+4*hi+r}, v{16+2*u}, v{56+4*hi+r}')
        def sm(u, c):
            r = KB + 4*(WOT + (c*3 + u)*2)
            a(f'v_smfmac_f32_16x16x64_bf16 {v4(YA+4*(c>>1))}, {v4(AT+8*u+4*(c&1))}, v[{r}:{r+7}], v{st+15}')
        def w(k):
            if k == 2: a(f's_mov_b64 exec, {sLO32}')
            a(f'ds_write_b128 v{st+11}, {v4(YA+4*k)} offset:{L_YP+1280*k}')
            if k == 2: a('s_mov_b64 exec, -1')
        a('s_waitcnt lgkmcnt(0)' if stamps in (3, 11) else 's_waitcnt lgkmcnt(1)')
        stamp('t1')
        a(f'v_mfma_f32_16x16x16_bf16 v[16:19], v[24:25], v[{st}:{st+1}], 0')
        if stamps != 11: a('s_waitcnt lgkmcnt(0)')
        a(f'v_mfma_f32_16x16x16_bf16 v[20:23], v[26:27], v[{st}:{st+1}], 0')
        cv(0); ab(0, 0); cv(1); cv(2)
        stamp('t2')
        if PK == 1:
            sm(0, 4); ab(1, 0); sm(0, 0); ab(2, 0); sm(1, 4); ab(0, 1); sm(1, 0); ab(1, 1); sm(2, 4); ab(2, 1)
            stamp('t3')
            sm(2, 0); sm(0, 2); sm(0, 1); sm(1, 2); w(2); sm(1, 1); sm(2, 2); sm(2, 1); sm(0, 3); sm(1, 3); sm(2, 3)
            stamp('t4')
            w(0); w(1)
        else:
            sm(0, 0); ab(1, 0); sm(0, 2); ab(2, 0); sm(1, 0); ab(0, 1); sm(1, 2); ab(1, 1); sm(2, 0); ab(2, 1)
            stamp('t3')
            sm(0, 1); sm(2, 2); sm(1, 1); sm(0, 3); sm(2, 1); sm(1, 3); sm(0, 4); sm(2, 3); sm(1, 4); w(0); sm(2, 4)
            stamp('t4')
            w(1); w(2)
        stamp('mm')
        a('s_waitcnt lgkmcnt(0)\ns_barrier')
    elif PK:
        def cv(u):
            for i in range(2): a(f'v_cvt_pk_bf16_f32 v{16+2*u+i}, v{16+2*u+i}, 0')
        def ab(u, hi):
            m0, m1 = ('s[44:45]', 's[46:47]') if not hi else ('s[16:17]', 's[18:19]')
            for i in range(2):
                a(f'v_cndmask_b32 v{AT+8*u+4*hi+2*i}, 0, v{16+2*u+i}, {m0}\nv_cndmask_b32 v{AT+8*u+4*hi+2*i+1}, 0, v{16+2*u+i}, {m1}')
        def sm(u, c):
            r = KB + 4*(WOT + (c*3 + u)*2)
            a(f'v_smfmac_f32_16x16x64_bf16 {v4(YA+4*(c>>1))}, {v4(AT+8*u+4*(c&1))}, v[{r}:{r+7}], v{st+15}')
        assert XL == 0
        a('s_waitcnt lgkmcnt(0)' if stamps == 3 else 's_waitcnt lgkmcnt(1)')
        dpp((16, 17, 18), (8, 4, 2, 1))
        cv(0); ab(0, 0)
        a('s_waitcnt lgkmcnt(0)')
        dpp((19, 20, 21), (8,))
        sm(0, 4); ab(0, 1)
        sm(0, 0); dpp((19, 20, 21), (4,))
        sm(0, 2); dpp((19, 20, 21), (2,))
        sm(0, 1); dpp((19, 20, 21), (1,))
        sm(0, 3); cv(1); ab(1, 0); cv(2)
        sm(1, 4); ab(2, 0)
        sm(1, 0); ab(1, 1)
        sm(2, 4); ab(2, 1)
        sm(2, 0); sm(1, 2); sm(1, 1); sm(2, 2)
        a(f's_mov_b64 exec, {sLO32}\nds_write_b128 v{st+11}, {v4(YA+8)} offset:{L_YP+2560}\ns_mov_b64 exec, -1')
        sm(2, 1); sm(1, 3); sm(2, 3)
        a(f'ds_write_b128 v{st+11}, {v4(YA)} offset:{L_YP}')
        a(f'ds_write_b128 v{st+11}, {v4(YA+4)} offset:{L_YP+1280}')
        stamp('mm')
        a('s_waitcnt lgkmcnt(0)\ns_barrier')
    elif OM:
        a('s_waitcnt lgkmcnt(0)' if stamps in (3, 11) else 's_waitcnt lgkmcnt(1)')
        stamp('t1')
        a(f'v_mfma_f32_16x16x16_bf16 v[16:19], v[24:25], v[{st}:{st+1}], 0')
        if stamps != 11: a('s_waitcnt lgkmcnt(0)')
        a(f'v_mfma_f32_16x16x16_bf16 v[20:23], v[26:27], v[{st}:{st+1}], 0')
        abuild(0)
        if OM == 1:
            abuild(1)
            stamp('t2')
            smf(0, 0); smf(0, 1); abuild(2)
            stamp('t3')
            order = [(1,0),(1,1),(2,0),(2,1),(0,2),(0,3),(1,2),'w0',(1,3),'w1',(2,2),(0,4),(2,3),(1,4),'w2',(2,4),'w3','w4']
        else:
            stamp('t2')
            smf(0, 0); abuild(1); smf(0, 1); abuild(2)
            stamp('t3')
            order = {2: [(1,0),(0,2),(2,0),(1,1),(1,2),(2,1),(0,3),'w0',(2,2),(1,3),'w1',(0,4),(2,3),'w2',(1,4),(2,4),'w3','w4'],
                     3: [(0,2),(0,3),(0,4)] + [(1,c) for c in range(5)] + [(2,c) for c in range(5)] + ['T', 'W'],
                     4: [(0,2),(1,0),(1,1),(1,2),(2,0),(2,1),(2,2),(0,3),(0,4),(1,3),(1,4),'X',(2,3),(2,4),'T','Y'],
                     5: [(0,2),(1,0),(1,1),(1,2),(2,0),(2,1),(2,2),(0,3),(0,4),(1,3),(1,4),(2,3),(2,4),'T','W']}[OM]
        def wr(cs):
            if J2:
                for c in cs: ywrite(c)
                return
            a(f's_mov_b64 exec, {sLO32}')
            for c in cs: a(f'ds_write_b128 v{st+11}, {v4(YA+4*c)} offset:{L_YP+640*c}')
            a('s_mov_b64 exec, -1')
        for o in order:
            if o in ('w3', 'T'): stamp('t4')
            if o == 'T': pass
            elif o == 'W': wr(range(5))
            elif o == 'X': wr((0, 1, 2))
            elif o == 'Y': wr((3, 4))
            elif isinstance(o, str): ywrite(int(o[1]))
            else: smf(*o)
        stamp('mm')
        a('s_waitcnt lgkmcnt(0)\ns_barrier')
    elif CM == 2:
        a('s_waitcnt lgkmcnt(0)' if stamps in (3, 11) else 's_waitcnt lgkmcnt(1)')
        stamp('t1')
        dpp((16, 17, 18), (8, 4, 2, 1))
        abuild(0)
        if stamps != 11: a('s_waitcnt lgkmcnt(0)')
        dpp((19, 20, 21), (8,))
        stamp('t2')
        smf(0, 0); dpp((19, 20, 21), (4,))
        smf(0, 1); dpp((19, 20, 21), (2,))
        smf(0, 2); dpp((19, 20, 21), (1,))
        smf(0, 3); abuild(1)
        smf(1, 0); abuild(2)
        stamp('t3')
        order = [(1,1),(2,0),(1,2),(2,1),(1,3),(0,4),'w0',(2,2),'w1',(1,4),(2,3),(2,4),'w2','w3','w4']
        for o in order:
            if o == 'w2': stamp('t4')
            if isinstance(o, str): ywrite(int(o[1]))
            else: smf(*o)
        stamp('mm')
        a('s_waitcnt lgkmcnt(0)\ns_barrier')
    elif CM:
        abuild(0); abuild(1)
        smf(0, 0); smf(0, 1)
        abuild(2)
        order = [(1,0),(1,1),(2,0),(2,1),(0,2),(0,3),(1,2),'w0',(1,3),'w1',(2,2),(0,4),(2,3),(1,4),'w2',(2,4),'w3','w4']
        for o in order:
            if isinstance(o, str): ywrite(int(o[1]))
            else: smf(*o)
        stamp('mm')
        a('s_waitcnt lgkmcnt(0)\ns_barrier')
    else:
        abuild(0); abuild(1)
        smf(0, 0); smf(0, 1)
        abuild(2)
        for c in range(2, 5): smf(0, c)
        for c in range(5): smf(1, c)
        for c in range(5): smf(2, c)
        stamp('mm')
        a(f's_mov_b64 exec, {sLO32}')
        for c in range(5): a(f'ds_write_b128 v{st+11}, {v4(YA+4*c)} offset:{L_YP+640*c}')
        a('s_mov_b64 exec, -1\ns_waitcnt lgkmcnt(0)\ns_barrier')
    stamp('barD'); stamp('pub'); stamp('c1')
    if DREL == 2: a('s_memrealtime s[60:61]')
    a(f's_cmp_ge_u32 {sW_}, 5\ns_cbranch_scc1 L_cons')
    if YR == 1:
        for u in range(8): a(f'ds_read_b64 v[{16+2*u}:{17+2*u}], v{st+12} offset:{L_YP+(3840 if J2 else 3200)*u}')
        if stamps == 3: a('s_waitcnt lgkmcnt(0)')
        for u in range(4):
            a(f's_waitcnt lgkmcnt({6-2*u})\nv_pk_add_f32 v[{16+4*u}:{17+4*u}], v[{16+4*u}:{17+4*u}], v[{18+4*u}:{19+4*u}]')
            if u == 1: a('v_pk_add_f32 v[16:17], v[16:17], v[20:21]')
        a('v_pk_add_f32 v[24:25], v[24:25], v[28:29]\nv_pk_add_f32 v[16:17], v[16:17], v[24:25]')
        a(f'v_bfi_b32 v16, s98, v{st+18}, v16')
        a(f'buffer_store_dwordx2 v[16:17], v{st+13}, {WS}, {sYB} offen {POL[YSP]}')
    else:
        for u in range(4): a(f'ds_read_b128 {v4(16+4*u)}, v{st+12} offset:{L_YP+3200*u}')
        a('s_waitcnt lgkmcnt(0)')
        padd(16, 24, 8); padd(16, 20, 4)
        for r in range(4): a(f'v_mov_b32 v{20+r}, v{16+r}')
        for r in range(4): a(f'v_permlane32_swap_b32 v{16+r}, v{20+r}')
        padd(16, 20, 4)
        for r in range(2): a(f'v_bfi_b32 v{16+2*r}, s98, v{st+16+r}, v{16+2*r}')
        a(f's_mov_b64 exec, {sLO32}')
        if EXP & 512: a(f's_mov_b32 {sYB}, {BIG}')
        a(f'buffer_store_dwordx4 v[16:19], v{st+13}, {WS}, {sYB} offen {POL[YSP]}')
    if stamps:
        a('s_mov_b64 exec, -1\ns_waitcnt lgkmcnt(0)')
        stamp('pub')
        a('s_branch L_fin')
    else:
        a('s_endpgm')
    a.label('L_cons')
    a(f'''
    s_cmp_eq_u32 s97, 0
    s_cbranch_scc1 L_fin
    s_mov_b32 {sT1}, {SPIN}
    ''')
    def pissue(b):
        for i in range(8):
            a(f'buffer_load_dwordx4 {v4(b+4*i)}, v{st+14}, {WS}, s{48+i} offen {POL[YLP]}')
    def pcheck(b, extra):
        for i in range(8):
            r = b + 4*i
            a(f's_waitcnt vmcnt({7-i+extra})')
            for k in range(2): a(f'v_xor_b32 v{r+2*k}, v{r+2*k}, v{st+16+k}')
            if i == 0: a(f'v_or_b32 v15, v{r}, v{r+2}')
            else: a(f'v_or3_b32 v15, v15, v{r}, v{r+2}')
        a('v_and_b32 v15, s98, v15\nv_cmp_ne_u32 vcc, 0, v15')
    def pfinish(b):
        if stamps: a('s_waitcnt lgkmcnt(0)')
        stamp('c1'); stamp('c1x')
        padd(b, b+16, 16); padd(b, b+8, 8); padd(b, b+4, 4)
        a(f'''
        v_lshlrev_b32 v14, 16, v{st+2}
        v_permlane32_swap_b32 v{b}, v{b+1}
        v_permlane32_swap_b32 v{b+2}, v{b+3}
        v_add_f32 v{b}, v{b}, v{b+1}
        v_add_f32 v{b+2}, v{b+2}, v{b+3}
        v_permlane16_swap_b32 v{b}, v{b+2}
        v_add_f32 v{b}, v{b}, v{b+2}
        v_add_f32_dpp v{b}, v{b}, v{b} row_ror:8 row_mask:0xf bank_mask:0xf
        v_add_f32 v{b}, v{b}, v14
        v_cvt_pk_bf16_f32 v{b}, v{b}, v{b}
        s_mov_b32 exec_lo, 0x00ff00ff
        s_mov_b32 exec_hi, 0x00ff00ff
        buffer_store_short v{b}, v{st+3}, {OUT}, s96 offen {POL[OPOL]}
        s_mov_b64 exec, -1
        ''')
    if PM == 2:
        pissue(16)
        a.label('L_spin3')
        pissue(68)
        pcheck(16, 8)
        a('s_cbranch_vccz L_ok3')
        pissue(16)
        a(f's_sub_u32 {sT1}, {sT1}, 1')
        pcheck(68, 8)
        a('s_cbranch_scc1 L_ok3b\ns_and_b64 vcc, vcc, vcc')
        a.raw('  s_cbranch_scc1 L_spin3')
        a.label('L_ok3b')
        pfinish(68)
        a('s_branch L_ok3c')
        a.label('L_ok3')
        pfinish(16)
        a.label('L_ok3c')
    else:
        a.label('L_spin3')
        pissue(16)
        a(f's_sub_u32 {sT1}, {sT1}, 1')
        pcheck(16, 0)
        a('s_cbranch_scc1 L_ok3\ns_and_b64 vcc, vcc, vcc')
        a.raw('  s_cbranch_scc1 L_spin3')
        a.label('L_ok3')
        pfinish(16)
    if DLY:
        a(f'''
        s_waitcnt vmcnt(0)
        s_memrealtime s[84:85]
        s_waitcnt lgkmcnt(0)
        s_sub_u32 s82, {'s84, s80' if DREL == 1 else ('s60, s80' if DREL == 2 else (('s80' if DSEL else 's84') + ', s86'))}
        s_mul_i32 s82, s82, {DLY}
        s_add_u32 s82, s82, {(6000 if not PRE else 0) if DSEL else 0}
        s_min_u32 s82, s82, 200000
        ''')
        a.label('L_dly')
        a(f'''
        s_memrealtime s[84:85]
        s_waitcnt lgkmcnt(0)
        s_sub_u32 s83, s84, s86
        s_cmp_lt_u32 s83, s82
        s_cbranch_scc1 L_dly
        ''')
    a.label('L_fin')
    if stamps:
        a('s_waitcnt vmcnt(0)')
        stamp('end')
        a('s_waitcnt lgkmcnt(0)')
        if XID: a('s_getreg_b32 s84, hwreg(HW_REG_XCC_ID)')
        for k in range(8): a(f'v_mov_b32 v{16+k}, s{SREG[k]}')
        a(f'''
        s_lshl_b32 {sT0}, s2, 3
        s_add_u32 {sT0}, {sT0}, {sW_}
        s_lshl_b32 {sT0}, {sT0}, 5
        s_add_u32 {sT0}, {sT0}, {WS_T}
        v_mov_b32 v14, 0
        s_mov_b64 exec, 1
        buffer_store_dwordx4 v[16:19], v14, {WS}, {sT0} offen
        buffer_store_dwordx4 v[20:23], v14, {WS}, {sT0} offen offset:16
        ''')
    a.label('L_end')
    a('s_endpgm')
    a.raw(f'''.section .rodata,"a"
.p2align 6
.amdhsa_kernel {name}
  .amdhsa_next_free_vgpr 256
  .amdhsa_next_free_sgpr 102
  .amdhsa_accum_offset 256
  .amdhsa_group_segment_fixed_size 0
  .amdhsa_kernarg_size 96
  .amdhsa_user_sgpr_count 2
  .amdhsa_user_sgpr_kernarg_segment_ptr 1
  .amdhsa_system_sgpr_workgroup_id_x 1
  .amdhsa_float_denorm_mode_32 3
.end_amdhsa_kernel''')
    return a.text()

if __name__ == '__main__':
    out = sys.argv[1]
    kw = {}
    for x in sys.argv[2:]:
        k, v = x.split('='); kw[k] = int(v)
    open(out, 'w').write(gen(**kw))
```

```python
import sys, struct
from asmdsl import Asm

NAME = 'parallel_sum__sliding_block_cached__geglu_ffn__decode_kernel'
def f32(x): return '0x%08x' % struct.unpack('<I', struct.pack('<f', x))[0]
def lanemask(fn):
    m = 0
    for l in range(64):
        if fn(l & 15, l >> 4): m |= 1 << l
    return m

HEADER = open('parallel_sum__sliding_block_cached__geglu_ffn__decode.s.ref').read().split('; Override')[0]

WS_Y  = 0
WS_S  = 0x100000
WS_E  = 0x0F0000
WS_P  = 0x110000
WS_T  = 0x300000
WS_SZ = 0x400000
L_PART = 0
L_DUM  = 14336
L_Q    = 15360
L_HID  = 15872
L_CNT  = 16000
L_X    = 16128
L_STG  = 21504
L_YP   = L_STG
BIG = 0x40000000
L2E = 1.4426950408889634
POL = {0: '', 1: 'nt', 2: 'sc0 nt', 3: 'sc1 nt', 4: 'sc0', 5: 'sc1', 6: 'sc0 sc1', 7: 'sc0 sc1 nt'}

DESC = r'''
'''

def gen(KU=2, KW=0, KP0=10, PP=0, PG=2, PI=3, TP=5, XL=0, T=6, TV=6, TVE=12, VE=30, RV=12, ILV=1, XBEG=4, XEND=14, SLI=28, GST=5, PRIO=0, SLP=8, KPOLL=28, W0N=3, W0P=2, GLP=5, WDB=1, GWD=2, SB0=2, SLN=8, WPOL=5, SPOL=5, KVPOL=1, PPOL=1, DLY=0, DSEL=0, NOS=0, DREL=0, PRD=2, PRP=5, PUBP=3, STP=3, KORD=1, IDL=0, PK=0, HB=0, J2=1, OM=2, PSC=1, AM=1, DBGS=0, XID=0, WPF=3, WFP=0, WFE=0, TBO=0, TB0=0, KE=2, YR=1, YP=0, YPG=0, RA=845, RB=64, RC=366, ALPHA=1, BETA=8, CM=2, PM=2, UM=2, IDS=0, OPOL=0, YLP=5, YSP=5, ROT=8,
        NS=17, SEND=46, EXP=0, stamps=0, name=NAME):
    a = Asm()
    SPIN = (1 << 19) if EXP == 0 else 0
    LDS_SZ = L_STG + max(8 * NS * 1024, 30720)
    assert LDS_SZ <= 163840
    SREG = [80, 82, 84, 86, 56, 58, 60, 62]
    SETS = {1: ['start', 'barA', 'sig', 'kiss', 'barB', 'smax', 'vend', 'end'],
            2: ['start', 'bar0', 'ln', 'barA', 'sig', 'poll', 'qrdy', 'end'],
            3: ['start', 'vend', 'barC', 'mm', 'barD', 'pub', 'c1', 'end'],
            5: ['start', 'ki12', 'ki18', 'ki24', 'ki30', 'ki36', 'ki42', 'ki47'],
            6: ['start', 'ki47', 'vc0', 'vc12', 'vc24', 'vc36', 'vc42', 'vc47'],
            7: ['start', 'bar0', 'barA', 'ki12', 'ki24', 'ki47', 'vc24', 'vc47'],
            11: ['start', 'barC', 't1', 't2', 't3', 't4', 'mm', 'barD'],
            4: ['start', 'karg', 'iss1', 'iss2', 'pre0', 'bar0', 'barA', 'end']}
    DN = ['end', 'karg', 'iss1', 'bar0', 'barA', 'sig', 'barB', 'vend', 'iss2', 'smax', 'pre', 'preK', 'c1x', 'barC', 'barDx']
    def stamp(nm):
        if DLY and DSEL and DSEL < 90 and nm == DN[DSEL]: a('s_memrealtime s[80:81]')
        if stamps and nm in SETS[stamps]:
            r = SREG[SETS[stamps].index(nm)]
            a(f's_memrealtime s[{r}:{r+1}]')
    a.raw(HEADER.rstrip())
    a.raw(f'; @launch grid=(256,1,1) block=(512,1,1) lds={LDS_SZ}')
    a.raw('.amdgcn_target "amdgcn-amd-amdhsa--gfx950"\n.text' + DESC + '.globl %s\n.p2align 8\n.type %s,@function\n%s:' % (name, name, name))
    sW_, sH, sB, sS, sXCD, sP = 's3', 's4', 's5', 's6', 's68', 's69'
    K, V, W, WO, WD, X, WS, OUT = 's[8:11]', 's[12:15]', 's[16:19]', 's[20:23]', 's[24:27]', 's[28:31]', 's[32:35]', 's[36:39]'
    sWO0, sWO1, sWDB, sSTG, sWO2, sWO3 = 's40', 's41', 's42', 's43', 's64', 's65'
    sKV, sKV2, sKV0 = 's71', 's72', 's73'
    sT0, sT1, sT2, sT3 = 's74', 's75', 's76', 's77'
    sLO32 = 's[78:79]'
    sM, sSOWN, sYB, sSB = 's88', 's89', 's90', 's91'
    TAG = 's[100:101]'
    sTG0, sTG1 = 's70', 's7'
    KB = 64
    WDT, WOT = 12, 17
    def kt(i): return f'v[{KB+4*i}:{KB+4*i+3}]'
    def v4(r): return f'v[{r}:{r+3}]'
    def srd(d, p, n):
        a(f's_mov_b32 s{d}, s{p}\ns_and_b32 s{d+1}, s{p+1}, 0xffff\ns_mov_b32 s{d+2}, {n}\ns_mov_b32 s{d+3}, 0x20000')
    def rowred(op, r, steps=(8, 4, 2, 1)):
        for s_ in steps: a(f'{op}_dpp v{r}, v{r}, v{r} row_ror:{s_} row_mask:0xf bank_mask:0xf')
    gstep = 6144 * 8 if ILV else 6144
    def grp(g):
        if ROT == 7:
            a(f's_lshr_b32 {sKV}, s67, 16\ns_mul_i32 {sKV}, {sKV}, {g}\ns_add_u32 {sKV}, {sKV}, s67\ns_and_b32 {sKV}, {sKV}, 63\ns_mul_i32 {sKV}, {sKV}, 6144\ns_add_u32 {sKV}, {sKV}, {sKV0}')
        elif ROT == 8:
            a(f's_add_u32 {sKV}, s67, {(BETA*g)&63}\ns_and_b32 {sKV}, {sKV}, 63\ns_mul_i32 {sKV}, {sKV}, 6144\ns_add_u32 {sKV}, {sKV}, {sKV0}')
        elif ROT:
            a(f's_add_u32 {sKV}, s67, {g}\ns_and_b32 {sKV}, {sKV}, 7\ns_mul_i32 {sKV}, {sKV}, {gstep}\ns_add_u32 {sKV}, {sKV}, {sKV0}')
        else:
            a(f's_mov_b32 {sKV}, {sKV0}' if g == 0 else f's_add_u32 {sKV}, {sKV}, {gstep}')
    kissued = [0]
    KO = [[0,1,2,3,4,5],[0,1,4,2,3,5],[0,4,1,2,5,3]][KORD]
    assert all(KO[e] < 4 for e in range(KU))
    def kload():
        i = kissued[0]; g, e = divmod(i, 6)
        stamp(f'ki{i}')
        if e == 0 and g > 0: grp(g)
        e = KO[e]
        if e < 4: a(f'buffer_load_dwordx4 {kt(i)}, v8, {K}, {sKV} offen offset:{384*e} {POL[KVPOL]}', tag=f'k{i}')
        else:     a(f'buffer_load_dwordx4 {kt(i)}, v9, {K}, {sKV} offen offset:{768*(e-4)} {POL[KVPOL]}', tag=f'k{i}')
        kissued[0] += 1

    assert ILV == 1 and ROT in (3, 7, 8) and 1 <= KU <= 4
    a(f'''
    s_load_dwordx2 s[8:9], s[0:1], 8
    s_load_dwordx16 s[44:59], s[0:1], 0
    s_cmp_ge_u32 s2, 256
    s_cbranch_scc1 L_end''')
    stamp('start')
    if DBGS:
        a(f's_mul_i32 s74, s2, 0x9E3779B1\ns_lshr_b32 s74, s74, 29\ns_cmp_lg_u32 s74, {DBGS & 7}\ns_cbranch_scc1 L_nodbg')
        for _ in range(DBGS >> 3): a('s_sleep 127')
        a.label('L_nodbg')
    if DLY: a('s_memrealtime s[86:87]')
    if PRIO: a('s_setprio 3')
    a(f'''
    v_lshrrev_b32 v14, 6, v0
    v_bfe_u32 v20, v0, 2, 2
    v_readfirstlane_b32 {sW_}, v14
    v_and_b32 v21, 3, v0
    v_lshlrev_b32 v21, 4, v21
    v_mul_u32_u24 v9, 1536, v20
    v_bfe_u32 v3, v0, 4, 2
    v_add_u32 v9, v9, v21
    v_lshl_add_u32 v8, v3, 6, v9       ; vkx = 1536(n>>2)+16(n&3)+64g
    s_and_b32 {sXCD}, s2, 7
    s_lshr_b32 {sT0}, s2, 6
    s_lshl2_add_u32 {sH}, {sXCD}, {sT0}
    s_bfe_u32 {sB}, s2, 0x20004
    s_bfe_u32 {sS}, s2, 0x10003
    s_lshl_b32 {sT0}, {sB}, 5
    s_add_u32 {sSB}, {sT0}, {sH}       ; bh
    s_lshl3_add_u32 {sT0}, {sSB}, {sS}
    s_add_u32 {sT0}, {sT0}, 6
    s_lshl_b32 {sT0}, {sT0}, 6
    ''')
    if ROT == 8:
        a(f'''
        s_mul_i32 {sKV0}, {sT0}, 6144
        s_mul_i32 s67, {sH}, {RA}
        {f's_mul_i32 {sT0}, {sB}, {RB}' if RB else ''}
        {f's_add_u32 s67, s67, {sT0}' if RB else ''}
        s_mul_i32 {sT0}, {sS}, {RC}
        s_add_u32 s67, s67, {sT0}
        s_lshr_b32 s67, s67, 4
        ''')
        if ALPHA == 1: a(f's_add_u32 s67, s67, {sW_}')
        else: a(f's_mul_i32 {sT0}, {sW_}, {ALPHA}\ns_add_u32 s67, s67, {sT0}')
        a(f's_and_b32 s67, s67, 63\ns_mul_i32 {sKV}, s67, 6144\ns_add_u32 {sKV}, {sKV}, {sKV0}')
    else:
        a(f'''
        s_add_u32 {sT0}, {sT0}, {sW_}
        s_mul_i32 {sKV0}, {sT0}, 6144
        s_mul_i32 s67, s2, 0x9E3779B1
        s_bfe_u32 s67, s67, 0x30014
        s_mul_i32 {sKV}, s67, {gstep}
        s_add_u32 {sKV}, {sKV}, {sKV0}
        ''')
    a(f'''
    s_mov_b32 s10, 402653184
    s_mov_b32 s11, 0x20000
    s_waitcnt lgkmcnt(0)
    ''')
    stamp('karg')
    if ROT == 7:
        a(f's_lshl_b32 {sT0}, s2, 2\ns_load_dword s67, s[54:55], {sT0}\ns_mul_i32 {sT0}, {sW_}, 6144\ns_sub_u32 {sKV0}, {sKV0}, {sT0}\ns_waitcnt lgkmcnt(0)\ns_bfe_u32 {sT0}, s67, 0x60008\ns_mul_i32 {sT0}, {sT0}, {sW_}\ns_and_b32 {sT0}, {sT0}, 63\ns_add_u32 s67, s67, {sT0}')
        grp(0)
    for i in range(KU): kload()
    a(f'''
    s_load_dwordx2 s[24:25], s[0:1], 64
    s_load_dwordx2 s[36:37], s[0:1], 72
    s_load_dwordx2 s[32:33], s[0:1], 88
    v_and_b32 v1, 63, v0
    v_and_b32 v2, 15, v1
    v_lshlrev_b32 v20, 4, v1
    s_mov_b32 s28, s44
    s_mov_b32 s29, s45
    s_movk_i32 s30, 5120
    s_mov_b32 s31, 0x20000
    s_lshl_b32 {sT0}, {sW_}, 10
    s_add_u32 m0, {sT0}, {L_X}
    s_cmp_ge_u32 {sW_}, 5
    s_cbranch_scc1 L_nox
    ''')
    a.role = 'x'
    a(f'buffer_load_dwordx4 v20, {X}, {sT0} offen lds', tag='x')
    a.role = None
    a.label('L_nox')
    stamp('iss1')
    def touch(srd_, per_wg, per_wave, mask):
        a.comment("pull this WG's eighth of the rows its team shares into L2 now (one word per line)")
        a(f'''
        s_bfe_u32 {sT3}, s2, 0x30003
        s_lshl3_add_u32 {sT2}, {sH}, {sT3}
        s_mul_i32 {sT0}, {sT2}, {per_wg}
        s_mul_i32 {sT3}, {sW_}, {per_wave}
        s_add_u32 {sT0}, {sT0}, {sT3}
        v_lshlrev_b32 v62, 7, v1
        s_mov_b64 exec, {hex(mask)}
        buffer_load_dword v63, v62, {srd_}, {sT0} offen {POL[WFP]}
        s_mov_b64 exec, -1
        ''')
    if WPF and WFE == 1:
        srd(20, 52, 7864320); touch(WO, 30720, 3840, 0x3fffffff)
    if UM == 1:
        a(f'''
        s_mov_b32 s66, s2
        s_mul_i32 s92, s66, 43691
        s_lshr_b32 s92, s92, 17            ; blk
        s_mul_i32 {sT3}, s92, 3
        s_sub_u32 s93, s66, {sT3}          ; split
        ''')
    else:
        if UM == 2: a(f'''
        s_lshr_b32 {sT2}, s2, 6
        s_lshl2_add_u32 {sT2}, {sB}, {sT2}
        s_and_b32 {sT3}, s2, 15
        s_lshl4_add_u32 s66, {sT2}, {sT3}
        ''')
        elif UM == 4: a(f'''
        s_lshr_b32 {sT2}, s2, 6
        s_bfe_u32 {sT3}, s2, 0x30003
        s_lshl2_add_u32 {sT2}, {sT3}, {sT2}
        s_and_b32 {sT3}, s2, 3
        s_lshl2_add_u32 s66, {sT2}, {sT3}
        s_bfe_u32 {sT3}, s2, 0x10002
        s_lshl_b32 {sT3}, {sT3}, 7
        s_add_u32 s66, s66, {sT3}
        ''')
        elif UM == 5:
            idle = [(IDS >> (5*k)) & 31 for k in range(8)]
            assert sum(idle) == 40, idle
            cnt = [32 - i for i in idle]
            base = [sum(cnt[:k]) for k in range(8)]
            pk = lambda v: [sum(v[4*q+k] << (8*k) for k in range(4)) for q in range(2)]
            a(f'''
            s_lshr_b32 {sT2}, s2, 6
            s_bfe_u32 {sT3}, s2, 0x30003
            s_lshl2_add_u32 {sT2}, {sT3}, {sT2}
            s_lshl_b32 {sT3}, {sXCD}, 3
            s_mov_b32 s60, {hex(pk(base)[0])}
            s_mov_b32 s61, {hex(pk(base)[1])}
            s_lshr_b64 s[60:61], s[60:61], {sT3}
            s_and_b32 s66, s60, 0xff
            s_add_u32 s66, s66, {sT2}
            s_mov_b32 s60, {hex(pk(cnt)[0])}
            s_mov_b32 s61, {hex(pk(cnt)[1])}
            s_lshr_b64 s[60:61], s[60:61], {sT3}
            s_and_b32 s60, s60, 0xff
            s_cmp_lt_u32 {sT2}, s60
            s_cselect_b32 s66, s66, 255
            ''')
        else: a(f'''
        s_lshr_b32 {sT2}, s2, 6
        s_bfe_u32 {sT3}, s2, 0x30003
        s_lshl2_add_u32 {sT2}, {sT3}, {sT2}
        s_lshl3_add_u32 s66, {sT2}, {sXCD}
        ''')
        a(f'''
        s_mul_i32 s93, s66, 911
        s_lshr_b32 s93, s93, 16
        s_mul_i32 {sT3}, s93, 72
        s_sub_u32 s92, s66, {sT3}          ; blk
        ''')
    a(f'''
    s_mul_i32 s97, s93, 224
    s_lshl_b32 {sT2}, {sW_}, 5
    s_add_u32 s97, s97, {sT2}
    s_sub_u32 {sT2}, s92, 48
    s_sub_u32 {sT3}, s92, 60
    s_cmp_lt_u32 s92, 60
    s_cselect_b32 s16, s56, s58
    s_cselect_b32 s17, s57, s59
    s_cselect_b32 s98, {sT2}, {sT3}
    s_movk_i32 s96, 3072
    s_mov_b32 s18, 1966080
    s_cmp_lt_u32 s92, 48
    s_cselect_b32 s16, s50, s16
    s_cselect_b32 s17, s51, s17
    s_cselect_b32 s18, 7864320, s18
    s_cselect_b32 s96, 12288, s96
    s_cselect_b32 s98, s92, s98
    s_and_b32 s17, s17, 0xffff
    s_mov_b32 s19, 0x20000
    s_mul_i32 s94, s97, s96
    s_lshl_b32 s98, s98, 8
    s_add_u32 s94, s94, s98            ; soffset
    s_cmp_eq_u32 {sW_}, 7
    s_cselect_b32 s94, {BIG}, s94
    s_cmp_ge_u32 s66, {216 if not (EXP & 128) else 0}
    s_cselect_b32 s94, {BIG}, s94
    v_mul_lo_u32 v16, v3, s96
    v_lshl_add_u32 v16, v2, 4, v16     ; g*RS+16n
    s_lshl_b32 s96, s96, 2
    v_lshrrev_b32 v22, 1, v3
    v_mul_u32_u24 v21, 384, v22
    v_add_u32 v9, v9, v21
    v_and_b32 v22, 1, v3
    v_lshlrev_b32 v22, 6, v22
    v_add3_u32 v9, v9, v22, 64
    v_add_u32 v9, 192, v9              ; vky
    ''')
    WT = 224
    wiss = [0]
    def wload():
        t = wiss[0]
        a(f'buffer_load_dwordx4 {v4(WT+4*t)}, v16, {W}, s94 offen {POL[PPOL]}', tag=f'w{t}')
        if t < 7: a(f's_add_u32 s94, s94, s96')
        wiss[0] += 1
    pcnt = [0]
    def pstep(paced=True):
        if paced: a(f's_waitcnt vmcnt({TP-1})')
        pcnt[0] += 1
        if wiss[0] < 8 and pcnt[0] % (PG + 1) != 0: wload()
        else: kload()
    if PP:
        for _ in range(PI): pstep(False)
    else:
        for t in range(8):
            wload()
            if t == 3:
                for _ in range(KW): kload()
                if WPF and WFE == 2:
                    srd(20, 52, 7864320); touch(WO, 30720, 3840, 0x3fffffff)
        KU = KU + KW
    stamp('iss2')
    if PRIO: a('s_setprio 0')
    def wotile(n):
        uc, h = divmod(n, 2); c, u = divmod(uc, 3)
        return [[sWO0, sWO1], [sWO2, sWO3]][h][u == 2], (2560 if u == 1 else 0) + 256*c
    sissued = [0]
    def sload():
        n = sissued[0]; so, imm = wotile(n)
        a(f's_add_u32 m0, {sSTG}, {1024*n - imm}' if 1024*n >= imm else f's_sub_u32 m0, {sSTG}, {imm - 1024*n}')
        a(f'buffer_load_dwordx4 v12, {WO}, {so} offen offset:{imm} {POL[SPOL]} lds', tag='stg')
        sissued[0] += 1
    def kmore(frac):
        if PP: pstep(); return
        while kissued[0] < KU + int((KP0 - KU) * frac + 0.5): kload()
        while sissued[0] < int(SB0 * frac + 0.5): sload()
    def pmore():
        if PP: pstep()
    a(f's_waitcnt lgkmcnt(0)\ns_load_dwordx2 {TAG}, s[32:33], {WS_E}')
    a(f's_mov_b32 s34, {WS_SZ}\ns_mov_b32 s35, 0x20000\ns_mov_b32 s26, 1966080\ns_mov_b32 s27, 0x20000\ns_movk_i32 s38, 5120\ns_mov_b32 s39, 0x20000')
    srd(12, 48, 402653184); srd(20, 52, 7864320)
    if WPF:
        if not WFE: touch(WO, 30720, 3840, 0x3fffffff)
        touch(WD, 7680, 960, 0xff)
    a(f'''
    s_lshl_b32 {sP}, {sH}, 1
    s_add_u32 {sP}, {sP}, {sS}
    s_mov_b32 s78, -1
    s_mov_b32 s79, 0
    s_lshl_b32 {sT0}, {sB}, 6
    s_add_u32 {sT0}, {sT0}, {sP}
    s_mul_i32 {sYB}, {sT0}, 2560
    s_lshl_b32 {sSB}, {sSB}, 8
    s_add_u32 {sSB}, {sSB}, {WS_S}
    s_lshl_b32 {sT2}, {sS}, 7
    s_add_u32 {sSOWN}, {sSB}, {sT2}
    s_mul_i32 {sWDB}, {sP}, 24
    s_mul_i32 {sT0}, {sW_}, 3
    s_add_u32 {sWDB}, {sWDB}, {sT0}
    s_mul_i32 {sWDB}, {sWDB}, 1280
    s_mul_i32 {sWO0}, {sH}, 192
    s_mul_i32 {sT0}, {sW_}, 24
    s_add_u32 {sWO0}, {sWO0}, {sT0}
    s_mul_i32 {sWO0}, {sWO0}, 1280
    s_add_u32 {sWO1}, {sWO0}, 5120
    s_add_u32 {sWO2}, {sWO0}, 15360
    s_add_u32 {sWO3}, {sWO0}, 20480
    s_mul_i32 {sSTG}, {sW_}, {NS*1024}
    s_add_u32 {sSTG}, {sSTG}, {L_STG}
    v_mov_b32 v17, 1280
    v_mul_u32_u24 v18, 1280, v3
    v_lshl_add_u32 v18, v2, 4, v18     ; 1280g+16n
    s_lshl_b32 s97, s97, 1
    s_min_u32 s97, s97, 1216
    v_lshl_add_u32 v19, v3, 1, s97
    v_lshrrev_b32 v14, 3, v2
    v_mad_u32_u24 v19, v14, v17, v19   ; + 1280*(m>>3)
    v_and_b32 v15, 7, v2
    v_lshlrev_b32 v15, 4, v15          ; 16*(n&7)
    v_and_b32 v20, 1, v2
    v_cmp_eq_u32 vcc, 1, v20
    v_mov_b32 v21, 0xffff
    v_mov_b32 v22, 0xffff0000
    v_cndmask_b32 v21, v21, v22, vcc
    v_bfe_u32 v20, v2, 1, 2
    ''')
    for r in range(4):
        a(f'v_cmp_eq_u32 vcc, {r}, v20\nv_cndmask_b32 v{4+r}, 0, v21, vcc')
    a(f'''
    v_mul_u32_u24 v10, 384, v3
    v_lshrrev_b32 v20, 3, v2
    v_mul_u32_u24 v11, 3072, v20
    v_add3_u32 v11, v11, v10, v15
    v_add_u32 v11, 256, v11            ; vvy = (g+8*(n>>3))*384+256+16*(n&7)
    v_lshl_add_u32 v10, v2, 4, v10     ; vvx = g*384+16n
    v_lshrrev_b32 v12, 1, v3
    v_mul_u32_u24 v12, 5120, v12
    v_add_u32 v12, v12, v18            ; vwo = (6(g>>1)+(g&1))*1280+16n
    v_mov_b32 v22, {BIG}
    v_cmp_eq_u32 vcc, 3, v3
    v_cndmask_b32 v13, v18, v22, vcc   ; vwd = g*1280+16n  (g==3 -> out of range)
    v_lshrrev_b32 v20, 1, v3
    v_lshlrev_b32 v20, 9, v20
    v_and_b32 v22, 1, v3
    v_lshl_add_u32 v22, v22, 4, v20
    v_lshl_add_u32 v22, v2, 5, v22
    s_lshl_b32 {sT0}, {sW_}, 11
    v_add_u32 v22, {sT0}, v22
    v_mov_b32 v20, {L_CNT}
    v_mov_b32 v21, 0
    ds_write_b32 v20, v21
    ds_write_b32 v20, v21 offset:4
    ''')
    if EXP & 64: a(f'v_mov_b32 v12, {BIG}\nv_mov_b32 v13, {BIG}')
    stamp('pre0')
    if DSEL >= 90:
        a(f's_waitcnt lgkmcnt(0)\nv_mov_b32 v60, s86\nv_mov_b32 v61, 0\ns_lshl_b32 {sT0}, s2, 2\ns_add_u32 {sT0}, {sT0}, {WS_T}\ns_cmp_eq_u32 {sW_}, 0\ns_cselect_b32 {sT0}, {sT0}, {BIG}\ns_mov_b64 exec, 1')
        a(f'buffer_store_dword v60, v61, {WS}, {sT0} offen sc1'); a.vm.pop()
        a('s_mov_b64 exec, -1')
    tagcode = f'''
    s_waitcnt lgkmcnt(0)
    s_mul_i32 s100, s100, 0x9E3779B1
    s_add_u32 s100, s100, 0x7F4A7C15
    s_mul_i32 s101, s101, 0x85EBCA69
    s_add_u32 s101, s101, 0xC2B2AE35
    s_and_b32 {sTG0}, s100, 0xff
    s_and_b32 {sTG1}, s101, 0xff
    '''
    a(tagcode)
    a.role = 'x'; a.wait_vm('x'); a.role = None
    a('s_barrier')
    stamp('bar0')
    if IDL:
        a('s_cmp_lt_u32 s66, 216\ns_cbranch_scc1 L_act')
        fk = (list(a.vm), kissued[0], sissued[0])
        for n_ in range(1, 7):
            while kissued[0] < KU + int((KP0 - KU) * n_ / 6 + 0.5):
                a(f's_waitcnt vmcnt({T-1})'); kload()
            while sissued[0] < int(SB0 * n_ / 6 + 0.5):
                a(f's_waitcnt vmcnt({T-1})'); sload()
        stamp('barA')
        a('s_branch L_nopub')
        a.vm, kissued[0], sissued[0] = fk
        a.label('L_act')
    XS, XO, U, XN, AB, ACC, XV = 24, 44, 184, 184, 200, 216, 168
    for i in range(5): a(f'ds_read_b128 {v4(XS+4*i)}, v18 offset:{L_X+256*i}')
    for pr in range(2):
        for t in range(8): a(f'ds_read_u16 v{XV+8*pr+t}, v19 offset:{L_X+2560*pr+8*t}')
    kmore(1/6)
    a('s_waitcnt lgkmcnt(0)')
    for i in range(20):
        a(f'v_lshlrev_b32 v{U+2*i}, 16, v{XS+i}\nv_and_b32 v{U+2*i+1}, 0xffff0000, v{XS+i}')
    pmore()
    a(f'v_pk_add_f32 v[52:53], v[{U}:{U+1}], v[{U+2}:{U+3}]\nv_pk_add_f32 v[54:55], v[{U+4}:{U+5}], v[{U+6}:{U+7}]')
    for i in range(8, 40, 2):
        d = 52 + (i & 2)
        a(f'v_pk_add_f32 v[{d}:{d+1}], v[{d}:{d+1}], v[{U+i}:{U+i+1}]')
    a('v_pk_add_f32 v[52:53], v[52:53], v[54:55]\nv_add_f32 v52, v52, v53')
    rowred('v_add_f32', 52)
    a(f'v_mul_f32 v56, {f32(-1/640)}, v52')
    kmore(2/6)
    for i in range(0, 40, 2): a(f'v_pk_add_f32 v[{U+i}:{U+i+1}], v[{U+i}:{U+i+1}], v[56:57] op_sel_hi:[1,0]')
    a(f'v_pk_mul_f32 v[52:53], v[{U}:{U+1}], v[{U}:{U+1}]\nv_pk_mul_f32 v[54:55], v[{U+2}:{U+3}], v[{U+2}:{U+3}]')
    for i in range(4, 40, 2):
        d = 52 + (i & 2)
        a(f'v_pk_fma_f32 v[{d}:{d+1}], v[{U+i}:{U+i+1}], v[{U+i}:{U+i+1}], v[{d}:{d+1}]')
    a('v_pk_add_f32 v[52:53], v[52:53], v[54:55]\nv_add_f32 v52, v52, v53')
    rowred('v_add_f32', 52)
    a(f'''
    v_mul_f32 v52, {f32(1/640)}, v52
    v_cvt_pk_bf16_f32 v53, v56, v52
    v_lshlrev_b32 v56, 16, v53
    v_and_b32 v52, 0xffff0000, v53
    v_add_f32 v52, {f32(1e-5)}, v52
    v_cvt_pk_bf16_f32 v52, v52, v52
    v_and_b32 v52, 0xffff0000, v52
    v_sqrt_f32 v52, v52
    v_cvt_pk_bf16_f32 v52, v52, v52
    v_and_b32 v52, 0xffff0000, v52
    v_rcp_f32 v52, v52
    v_lshlrev_b32 v53, 6, v14
    v_add_u32 v54, 128, v53
    ds_bpermute_b32 v58, v53, v56
    ds_bpermute_b32 v60, v54, v56
    ds_bpermute_b32 v24, v53, v52
    ds_bpermute_b32 v26, v54, v52
    ''')
    kmore(3/6)
    for k in range(16): a(f'v_lshlrev_b32 v{XN+k}, 16, v{XV+k}')
    a('s_waitcnt lgkmcnt(0)')
    for pr in range(2):
        for k in range(4):
            r = XN + 8*pr + 2*k
            a(f'v_pk_add_f32 v[{r}:{r+1}], v[{r}:{r+1}], v[{58+2*pr}:{59+2*pr}] op_sel_hi:[1,0]')
    for k in range(8): a(f'v_cvt_pk_bf16_f32 v{XO+k}, v{XN+2*k}, v{XN+2*k+1}')
    for k in range(8): a(f'v_lshlrev_b32 v{XN+2*k}, 16, v{XO+k}\nv_and_b32 v{XN+2*k+1}, 0xffff0000, v{XO+k}')
    for pr in range(2):
        for k in range(4):
            r = XN + 8*pr + 2*k
            a(f'v_pk_mul_f32 v[{r}:{r+1}], v[{r}:{r+1}], v[{24+2*pr}:{25+2*pr}] op_sel_hi:[1,0]')
    for k in range(16): a(f'v_cvt_pk_bf16_f32 v{XN+k}, v{XN+k}, v{XN+k}')
    stamp('ln')
    kmore(4/6)
    if PP:
        while wiss[0] < 8: pstep()
    for t in range(8):
        for pr in range(2):
            ab = AB + 4*((2*t + pr) & 3)
            for r in range(4): a(f'v_and_b32 v{ab+r}, v{XN+8*pr+t}, v{4+r}')
        a.wait_vm(f'w{t}')
        for pr in range(2):
            ab = AB + 4*((2*t + pr) & 3); d = v4(ACC + 4*pr)
            a(f'v_mfma_f32_16x16x32_bf16 {d}, {v4(ab)}, {v4(WT+4*t)}, {0 if t == 0 else d}')
        if PP:
            idx = max(k for k, (tg, r) in enumerate(a.vm) if tg == f'w{t}')
            while len(a.vm) - 1 - idx < TP: pstep(False)
        elif t == 3: kmore(5/6)
    stamp('wland')
    kmore(1)
    if PP: KP0 = kissued[0]
    a(f's_cmp_eq_u32 {sW_}, 7\ns_cbranch_scc1 L_nopart')
    for pr in range(2): a(f'ds_write_b128 v22, {v4(ACC+4*pr)} offset:{1024*pr}')
    a.label('L_nopart')
    a('s_waitcnt lgkmcnt(0)\ns_barrier')
    stamp('barA')
    def padd(d, s_, n):
        for r in range(0, n, 2): a(f'v_pk_add_f32 v[{d+r}:{d+r+1}], v[{d+r}:{d+r+1}], v[{s_+r}:{s_+r+1}]')
    a(f'''
    s_cmp_lt_u32 {sW_}, 6
    s_cbranch_scc1 L_nopub
    v_and_b32 v14, 127, v0
    v_lshlrev_b32 v15, 4, v14
    ''')
    for u in range(7): a(f'ds_read_b128 {v4(16+4*u)}, v15 offset:{2048*u}')
    a(f'''
    v_lshrrev_b32 v14, 5, v14
    s_mov_b32 {sT0}, {36864-512}
    v_mad_u32_u24 v14, v14, {sT0}, v15     ; b*36864 + 16*(t&31)
    s_mul_i32 {sT0}, s93, 147456
    s_lshl_b32 {sT2}, s92, 9
    s_add_u32 {sT0}, {sT0}, {sT2}
    s_add_u32 {sT0}, {sT0}, {WS_P}
    s_cmp_ge_u32 s66, {216 if not (EXP & 8) else 0}
    s_cselect_b32 {sT0}, {BIG}, {sT0}
    s_waitcnt lgkmcnt(0)
    ''')
    padd(16, 32, 12); padd(16, 24, 8); padd(16, 20, 4)
    a(f'''
    v_add_u32 v16, 0x80, v16
    v_add_u32 v18, 0x80, v18
    v_and_b32 v16, 0xffffff00, v16
    v_and_b32 v18, 0xffffff00, v18
    v_or_b32 v16, {sTG0}, v16
    v_or_b32 v18, {sTG1}, v18
    ''')
    a(f'buffer_store_dwordx4 v[16:19], v14, {WS}, {sT0} offen {POL[PUBP]}'); a.vm.pop()
    a.label('L_nopub')
    kseq = []
    si = 0
    NR_ = NS - sissued[0]
    for i in range(KP0, 48):
        kseq.append('k')
        while si < NR_ and (si + 1) * (SEND - KP0) <= (i + 1 - KP0) * NR_:
            kseq.append('s'); si += 1
    assert si == NR_
    kp = [0]
    def kstep(paced):
        op = kseq[kp[0]]; kp[0] += 1
        if paced: a(f's_waitcnt vmcnt({T-1})')
        if op == 'k': kload()
        else: sload()
    if YP == 2:
        a(f's_cmp_lt_u32 {sW_}, 4\ns_cbranch_scc1 L_noyp\ns_setprio 1'); a.label('L_noyp')
    for _ in range(T - 1): kstep(True)
    stamp('sig')
    if PRD & 6:
        a(f's_cmp_lg_u32 {sW_}, 3\ns_cbranch_scc1 L_noprd2\nv_lshlrev_b32 v62, 6, v1')
        if PRD & 2:
            a(f's_mov_b32 exec_hi, 0xff\nbuffer_load_dword v63, v62, {WS}, {sYB} offen {POL[PRP]}'); a.vm.pop()
        if PRD & 4:
            a(f's_mov_b64 exec, 3\nbuffer_load_dword v63, v62, {WS}, {sSOWN} offen {POL[PRP]}'); a.vm.pop()
        a('s_mov_b64 exec, -1')
        a.label('L_noprd2')
    while kissued[0] < KPOLL: kstep(True)
    a(f's_cmp_eq_u32 {sW_}, 0\ns_cbranch_scc1 L_w0')
    fork = (list(a.vm), kissued[0], kp[0], sissued[0])
    while kp[0] < len(kseq): kstep(True)
    stamp('kiss'); stamp('poll'); stamp('qrdy')
    a('s_branch L_join')
    vm_join = list(a.vm)
    a.vm, kissued[0], kp[0], sissued[0] = fork
    a.label('L_w0')
    a(f'''
    v_min_u32 v60, 59, v1
    v_lshlrev_b32 v60, 2, v60
    s_mul_i32 {sT0}, {sH}, 192
    s_mul_i32 {sT2}, {sP}, 24
    s_add_u32 {sT2}, {sT2}, {6144-192}
    s_add_u32 {sT3}, {sT2}, {1536-24}
    v_mov_b32 v61, {sT0}
    v_mov_b32 v62, {sT2}
    v_cmp_le_u32 vcc, 48, v1
    v_cndmask_b32 v61, v61, v62, vcc
    v_mov_b32 v62, {sT3}
    v_cmp_le_u32 vcc, 54, v1
    v_cndmask_b32 v61, v61, v62, vcc
    v_add_u32 v60, v60, v61
    v_lshlrev_b32 v60, 2, v60
    s_mul_i32 s44, {sB}, 36864
    s_add_u32 s44, s44, {WS_P}
    s_add_u32 s45, s44, 147456
    s_add_u32 s46, s44, 294912
    s_mov_b32 {sT1}, {SPIN}
    ''')
    if EXP & 2: a(f'v_mov_b32 v60, {BIG}')
    for t in range(3): a(f'buffer_load_dwordx4 {v4(16+4*t)}, v60, {WS}, s{44+t} offen {POL[GLP]}', tag='gq')
    for _ in range(W0N): kstep(False)
    for _ in range(W0P): kstep(True)
    a.wait_vm('gq')
    a.label('L_spin1')
    for t in range(3): a(f'v_xor_b32 v{16+4*t}, {sTG0}, v{16+4*t}\nv_xor_b32 v{18+4*t}, {sTG1}, v{18+4*t}')
    a(f'''
    v_or3_b32 v14, v16, v18, v20
    v_or3_b32 v15, v22, v24, v26
    v_or_b32 v14, v14, v15
    v_and_b32 v14, 0xff, v14
    v_cmp_ne_u32 vcc, 0, v14
    s_cbranch_vccz L_ok1
    s_sub_u32 {sT1}, {sT1}, 1
    s_cbranch_scc1 L_ok1
    s_sleep {SLP}
    ''')
    for t in range(3):
        a(f'buffer_load_dwordx4 {v4(16+4*t)}, v60, {WS}, s{44+t} offen {POL[GLP]}'); a.vm.pop()
    a('s_waitcnt vmcnt(0)\ns_branch L_spin1')
    a.label('L_ok1')
    stamp('poll')
    padd(16, 20, 4); padd(16, 24, 4)
    a(f'''
    v_cvt_pk_bf16_f32 v16, v16, v17
    v_cvt_pk_bf16_f32 v17, v18, v19
    v_lshlrev_b32 v14, 3, v1
    ds_write_b64 v14, v[16:17] offset:{L_Q}
    v_min_u32 v14, 23, v1
    v_lshlrev_b32 v14, 1, v14
    s_waitcnt lgkmcnt(0)
    ds_read_u16 v20, v14 offset:{L_Q+384}
    ds_read_u16 v21, v14 offset:{L_Q+432}
    s_waitcnt lgkmcnt(0)
    v_lshlrev_b32 v20, 16, v20
    v_lshlrev_b32 v21, 16, v21             ; up
    v_mul_f32 v22, v20, v20
    v_mul_f32 v22, {f32(0.044715)}, v22
    v_fma_f32 v22, v22, v20, v20           ; x + c x^3
    v_mul_f32 v22, {f32(-2*0.7978845608028654*L2E)}, v22
    v_exp_f32 v22, v22
    v_add_f32 v22, 1.0, v22
    v_rcp_f32 v22, v22
    v_mul_f32 v22, v22, v20
    v_cvt_pk_bf16_f32 v22, v22, v22
    v_and_b32 v22, 0xffff0000, v22
    v_mul_f32 v22, v22, v21
    v_cvt_pk_bf16_f32 v22, v22, v22
    v_cmp_gt_u32 vcc, 24, v1
    v_cndmask_b32 v22, 0, v22, vcc
    v_min_u32 v14, 31, v1
    v_lshlrev_b32 v14, 2, v14
    ds_write_b32 v14, v22 offset:{L_HID}
    v_mov_b32 v14, {L_CNT}
    v_mov_b32 v15, 1
    s_waitcnt lgkmcnt(0)
    ds_write_b32 v14, v15 offset:4
    ''')
    def xred8(base, n, tmp):
        for r in range(n): a(f'v_add_f32_dpp v{base+r}, v{base+r}, v{base+r} row_ror:8 row_mask:0xf bank_mask:0xf')
        for sw in ('v_permlane16_swap_b32', 'v_permlane32_swap_b32'):
            for r in range(n): a(f'v_mov_b32 v{tmp+r}, v{base+r}')
            for r in range(n): a(f'{sw} v{base+r}, v{tmp+r}')
            padd(base, tmp, n)
    stamp('qrdy')
    while kp[0] < len(kseq): kstep(True)
    stamp('kiss')
    a.vm = vm_join
    a.label('L_join')
    a(f'v_mov_b32 v14, {L_CNT}\ns_mov_b32 {sT1}, {1<<24}')
    a.label('L_spinq')
    a(f'''
    ds_read_b32 v15, v14 offset:4
    s_waitcnt lgkmcnt(0)
    v_readfirstlane_b32 {sT0}, v15
    s_cmp_lg_u32 {sT0}, 0
    s_cbranch_scc1 L_okq
    s_sub_u32 {sT1}, {sT1}, 1
    s_cbranch_scc1 L_okq
    s_sleep 1
    s_branch L_spinq
    ''')
    a.label('L_okq')
    stamp('barB')
    if DBGS:
        a(f's_mul_i32 s74, s2, 0x2545F491\ns_add_u32 s74, s74, {sW_}\ns_mul_i32 s74, s74, 0x9E3779B1\ns_lshr_b32 s74, s74, 27\ns_cmp_lg_u32 s74, 5\ns_cbranch_scc1 L_nodbg2')
        for _ in range(DBGS >> 3): a('s_sleep 127')
        a.label('L_nodbg2')
    a(f'''
    v_and_b32 v14, 3, v2
    v_lshl_add_u32 v15, v3, 2, v14
    v_lshlrev_b32 v15, 4, v15
    ds_read_b128 v[56:59], v15 offset:{L_Q}
    v_and_b32 v15, 0x70, v15
    ds_read_b128 v[60:63], v15 offset:{L_Q+256}
    ''')
    mX = [lanemask(lambda m, g, u=u: (m >> 2) == u) for u in range(4)]
    mY = [lanemask(lambda m, g, w=w: (m >> 2) == 2*w + (g >> 1)) for w in range(2)]
    for k, m in enumerate(mX + mY):
        a(f's_mov_b32 s{44+2*k}, {hex(m & 0xffffffff)}\ns_mov_b32 s{45+2*k}, {hex(m >> 32)}')
    a('s_waitcnt lgkmcnt(0)')
    for k in range(6):
        src = 56 if k < 4 else 60
        for r in range(4): a(f'v_cndmask_b32 v{32+4*k+r}, 0, v{src+r}, s[{44+2*k}:{45+2*k}]')
    vissued = [0]
    def vreg(i): return kt(i % RV)
    def vload():
        i = vissued[0]; g, e = divmod(i, 6); c, x = divmod(e, 3)
        if e == 0:
            grp(g)
            a(f's_add_u32 {sKV2}, {sKV}, 3072')
        if x == 0:   a(f'buffer_load_dwordx4 {vreg(i)}, v10, {V}, {sKV} offen offset:{1536*c} {POL[KVPOL]}', tag=f'v{i}')
        elif x == 1: a(f'buffer_load_dwordx4 {vreg(i)}, v10, {V}, {sKV2} offen offset:{1536*c} {POL[KVPOL]}', tag=f'v{i}')
        else:        a(f'buffer_load_dwordx4 {vreg(i)}, v11, {V}, {sKV} offen offset:{1536*c} {POL[KVPOL]}', tag=f'v{i}')
        vissued[0] += 1
    assert RV <= 12
    extras = [('wd', c) for c in range(5)] + [('wo', n) for n in range(NS, 30)]
    xiss = [0]
    def xtile(e): return WDT + e[1] if e[0] == 'wd' else WOT + e[1]
    def xload():
        e = extras[xiss[0]]
        if e[0] == 'wd':
            a(f'buffer_load_dwordx4 {kt(xtile(e))}, v13, {WD}, {sWDB} offen offset:{256*e[1]} {POL[WPOL]}', tag='wd')
        else:
            so, imm = wotile(e[1])
            a(f'buffer_load_dwordx4 {kt(xtile(e))}, v12, {WO}, {so} offen offset:{imm} {POL[WPOL]}', tag=f'wo{e[1]}')
        xiss[0] += 1
    SC = 0.07216878364870322
    def score_post(g):
        d = 24 + 4*(g & 1); s_ = 16 + g
        a(f'''
        v_mov_b32_dpp v{s_}, v{d} quad_perm:[0,0,0,0] row_mask:0xf bank_mask:0xf
        v_mov_b32_dpp v14, v{d+2} quad_perm:[2,2,2,2] row_mask:0xf bank_mask:0xf
        v_add_f32_dpp v{s_}, v{d+1}, v{s_} quad_perm:[1,1,1,1] row_mask:0xf bank_mask:0xf
        v_add_f32_dpp v14, v{d+3}, v14 quad_perm:[3,3,3,3] row_mask:0xf bank_mask:0xf
        v_add_f32 v{s_}, v{s_}, v14
        ''')
        if NOS < 1: a(f'v_cvt_pk_bf16_f32 v{s_}, v{s_}, v{s_}\nv_and_b32 v{s_}, 0xffff0000, v{s_}')
        a(f'v_mul_f32 v{s_}, {f32(SC)}, v{s_}')
        if NOS < 2: a(f'v_cvt_pk_bf16_f32 v{s_}, v{s_}, v{s_}\nv_and_b32 v{s_}, 0xffff0000, v{s_}')
    nx = len(extras) - XL
    span = 48 - XBEG - XEND
    seq = []
    xi = 0
    for i in range(48):
        seq.append('v')
        if i == SLI: seq.append('sl')
        if WDB and xi < 5 and i >= XBEG:
            seq.append('x'); xi += 1
        while xi < nx and i >= XBEG and (xi + 1) * span <= (i + 1 - XBEG) * nx:
            seq.append('x'); xi += 1
    assert xi == nx
    seq += ['x'] * XL
    nx += XL
    sp = [0]
    did_wd = [False]
    SS = KB + 4*47
    NPL = 4 if HB else 8
    st = KB + 4*WDT
    GF = st + 12
    def statload():
        a(f'''
        v_and_b32 v8, 1, v1
        v_lshlrev_b32 v8, 7, v8
        ''')
        if HB: a(f'''
        s_lshr_b32 s95, {sP}, 3
        s_mul_i32 s95, s95, 5
        s_and_b32 {sT2}, {sP}, 7
        s_add_u32 s95, s95, {sT2}
        s_mul_i32 {sT0}, {sB}, 1280
        s_lshl_b32 {sT1}, s95, 5
        s_add_u32 s96, {sT0}, {sT1}
        s_cmp_lt_u32 {sT2}, 5
        s_cselect_b32 s97, 1, 0
        ''')
        else: a(f'''
        s_mul_i32 s95, {sP}, 43691
        s_lshr_b32 s95, s95, 17
        s_mul_i32 {sT0}, {sB}, 1280
        s_lshl_b32 {sT1}, s95, 6
        s_add_u32 s96, {sT0}, {sT1}
        s_mul_i32 {sT0}, s95, 3
        s_mov_b32 s97, 1
        s_cmp_lg_u32 {sT0}, {sP}
        s_cselect_b32 s97, 0, s97
        s_cmp_ge_u32 s95, 20
        s_cselect_b32 s97, 0, s97
        ''')
        a(f'''
        s_cmp_lg_u32 {sW_}, 7
        s_cselect_b32 s97, 0, s97
        v_lshlrev_b32 v9, 9, v1
        s_mov_b32 s98, {WS_S}
        s_cmp_eq_u32 s2, 0
        s_cselect_b32 s99, s97, 0
        s_cmp_eq_u32 s99, 0
        s_cbranch_scc1 L_nogf
        ''')
        for k in range(4):
            a(f'buffer_load_dword v{GF+k}, v9, {WS}, s98 offen offset:{128*k+4} sc1'); a.vm.pop()
        a.label('L_nogf')
        a(f'buffer_load_dwordx4 {v4(SS)}, v8, {WS}, {sSB} offen sc1', tag='sl')
    def pump(lasttag, kfree, vcons, boost=0):
        while sp[0] < len(seq):
            idx = max(k for k, (t, r) in enumerate(a.vm) if t == lasttag)
            if len(a.vm) - 1 - idx >= (TV if vcons < VE else TVE) + boost: break
            op = seq[sp[0]]
            if op == 'v':
                i = vissued[0]
                if i < RV:
                    if i >= kfree: break
                elif i - RV >= vcons: break
                vload()
            elif op == 'x':
                if xtile(extras[xiss[0]]) >= kfree: break
                xload()
            else:
                assert did_wd[0]
                statload()
            sp[0] += 1
    done = [t for (t, r) in a.vm[:len(a.vm) - T]]
    known = max(int(t[1:]) for t in done if t and t[0] == 'k' and t[1:].isdigit())
    a.wait_vm(f'k{known}')
    for g in range(8):
        d = v4(24 + 4*(g & 1))
        for e in range(6):
            i = 6*g + e
            if i > known:
                a.wait_vm(f'k{i}'); known = i
            a(f'v_mfma_f32_16x16x32_bf16 {d}, {v4(32+4*KO[e])}, {kt(i)}, {0 if e == 0 else d}')
            if i == known: pump(f'k{known}', i + 1, 0, TBO if i == 47 else TB0)
        if 6*g + 5 < known and (g % KE) == 0 and known < 47:
            known += 1
            a.wait_vm(f'k{known}')
            pump(f'k{known}', 6*g + 6, 0, TB0)
        if g > 0: score_post(g-1)
    score_post(7)
    if NS:
        a.wait_vm('stg')
        a(f'v_lshlrev_b32 v14, 4, v1\nv_add_u32 v14, {sSTG}, v14')
        for n in range(NS): a(f'ds_read_b128 {kt(WOT+n)}, v14 offset:{1024*n}')
    def allred(op, r, t):
        rowred(op, r, (4, 8))
        a(f'v_mov_b32 v{t}, v{r}\nv_permlane16_swap_b32 v{r}, v{t}\n{op} v{r}, v{r}, v{t}')
        a(f'v_mov_b32 v{t}, v{r}\nv_permlane32_swap_b32 v{r}, v{t}\n{op} v{r}, v{r}, v{t}')
    a('v_max3_f32 v28, v16, v17, v18\nv_max3_f32 v15, v19, v20, v21\nv_max3_f32 v28, v28, v22, v23\nv_max_f32 v28, v28, v15')
    allred('v_max_f32', 28, 15)
    for g in range(8): a(f'v_sub_f32 v{16+g}, v{16+g}, v28')
    for g in range(8): a(f'v_mul_f32 v{16+g}, {f32(L2E)}, v{16+g}')
    for g in range(8): a(f'v_exp_f32 v{16+g}, v{16+g}')
    a('v_add_f32 v30, v16, v17\nv_add_f32 v24, v18, v19\nv_add_f32 v25, v20, v21\nv_add_f32 v26, v22, v23\nv_add_f32 v30, v30, v24\nv_add_f32 v25, v25, v26\nv_add_f32 v30, v30, v25')
    allred('v_add_f32', 30, 24)
    for g in range(8):
        if not (PSC and g > GST): a(f'v_cvt_pk_bf16_f32 v{16+g}, v{16+g}, v{16+g}')
    a(f'''
    v_readfirstlane_b32 {sM}, v28          ; own m
    v_mov_b32 v29, v30
    s_lshl_b32 {sT0}, {sW_}, 3
    v_mov_b32 v24, {sT0}
    v_mov_b32 v25, 0
    v_mov_b32 v26, 1
    s_mov_b64 exec, 1
    ds_write_b64 v24, v[28:29] offset:{L_CNT+64}
    ds_add_rtn_u32 v27, v25, v26 offset:{L_CNT}
    s_mov_b64 exec, -1
    s_waitcnt lgkmcnt(0)
    v_readfirstlane_b32 {sT0}, v27
    s_cmp_lg_u32 {sT0}, 7
    s_cbranch_scc1 L_nostat
    v_and_b32 v24, 7, v1
    v_lshlrev_b32 v25, 3, v24
    ds_read_b64 v[26:27], v25 offset:{L_CNT+64}
    v_lshlrev_b32 v24, 4, v24
    s_waitcnt lgkmcnt(0)
    v_mov_b32 v28, v26
    ''')
    rowred('v_max_f32', 28, (4, 2, 1))
    a(f'v_sub_f32 v26, v26, v28\nv_mul_f32 v26, {f32(L2E)}, v26\nv_exp_f32 v26, v26\nv_mul_f32 v30, v26, v27')
    rowred('v_add_f32', 30, (4, 2, 1))
    a(f'''
    v_mov_b32 v29, s100
    v_mov_b32 v31, s101
    s_mov_b64 exec, {(1 << SLN) - 1}
    buffer_store_dwordx4 v[28:31], v24, {WS}, {sSOWN} offen {POL[STP]}
    s_mov_b64 exec, -1
    ''')
    a.vm.pop()
    a.label('L_nostat')
    stamp('smax')
    YA, OA = 44, 32
    a(f'''
    s_mul_i32 {sT0}, {sW_}, 12
    v_lshlrev_b32 v24, 2, v3
    v_add_u32 v24, {sT0}, v24
    v_mov_b32 v25, 124
    v_cmp_eq_u32 vcc, 3, v3
    v_cndmask_b32 v24, v24, v25, vcc
    ds_read_b32 v14, v24 offset:{L_HID}
    s_waitcnt lgkmcnt(0)
    ''')
    for g in range(8):
        if PK and OM and g == 7:
            a('v_mov_b32 v12, 0xffff\nv_mov_b32 v13, 0xffff0000')
            for hi, (m0, m1) in enumerate((('s[44:45]', 's[46:47]'), ('s[16:17]', 's[18:19]'))):
                a(f'v_cndmask_b32 v{56+4*hi}, 0, v12, {m0}\nv_cndmask_b32 v{57+4*hi}, 0, v12, {m1}\nv_cndmask_b32 v{58+4*hi}, 0, v13, {m0}\nv_cndmask_b32 v{59+4*hi}, 0, v13, {m1}')
        elif AM and g == 7:
            assert sp[0] == len(seq)
            a('v_mov_b32 v12, 0xffff\nv_mov_b32 v13, 0xffff0000\nv_cndmask_b32 v8, 0, v12, s[44:45]\nv_cndmask_b32 v9, 0, v12, s[46:47]\nv_cndmask_b32 v10, 0, v13, s[44:45]\nv_cndmask_b32 v11, 0, v13, s[46:47]')
        if YP == 1 and g == YPG:
            a(f's_cmp_lt_u32 {sW_}, 4\ns_cbranch_scc1 L_noyp\ns_setprio 1'); a.label('L_noyp')
        for c in range(2):
            A = 24 + 4*c
            if c == 0: a(f'v_mov_b32 v15, v{16+g}\nv_mov_b32_dpp v15, v{16+g} row_shr:4 row_mask:0xf bank_mask:0xa')
            else:      a(f'v_mov_b32 v15, v{16+g}\nv_mov_b32_dpp v15, v{16+g} row_shl:4 row_mask:0xf bank_mask:0x5')
            for r in range(4): a(f'v_and_b32 v{A+r}, v15, v{4+r}')
            for x in range(3):
                i = 6*g + 3*c + x
                d = v4(OA + 4*x)
                a.wait_vm(f'v{i}')
                stamp(f'vc{i}')
                a(f'v_mfma_f32_16x16x32_bf16 {d}, {v4(A)}, {vreg(i)}, {0 if i < 3 else d}')
                pump(f'v{i}', 48, i + 1)
        if g == GWD:
            did_wd[0] = True
            assert xiss[0] >= 5
            if J2:
                a('v_or3_b32 v15, v4, v5, v6\nv_or_b32 v15, v15, v7\nv_and_b32 v15, v15, v14')
                for r in range(4):
                    m_ = 0x00030003 << (4*r)
                    a(f's_mov_b32 s44, {hex(m_)}\ns_mov_b32 s45, {hex(m_)}\nv_cndmask_b32 v{24+r}, 0, v15, s[44:45]')
                a.wait_vm('wd')
                for c in range(5):
                    a(f'v_mfma_f32_16x16x32_bf16 {v4(YA+4*c)}, v[24:27], {kt(WDT+c)}, 0')
            elif PK:
                a('s_mov_b32 s44, 0x00ff00ff\ns_mov_b32 s45, 0x00ff00ff\nv_cndmask_b32 v15, 0, v14, s[44:45]\nv_cndmask_b32 v14, v14, 0, s[44:45]')
                for r in range(4): a(f'v_and_b32 v{24+r}, v15, v{4+r}')
                for r in range(4): a(f'v_and_b32 v{28+r}, v14, v{4+r}')
                a.wait_vm('wd')
                for c in (0, 2, 4, 1, 3):
                    d = v4(YA+4*(c>>1))
                    a(f'v_mfma_f32_16x16x32_bf16 {d}, {v4(24+4*(c&1))}, {kt(WDT+c)}, {d if c & 1 else 0}')
            else:
                for r in range(4): a(f'v_and_b32 v{24+r}, v14, v{4+r}')
                a.wait_vm('wd')
                for c in range(5):
                    a(f'v_mfma_f32_16x16x32_bf16 {v4(YA+4*c)}, v[24:27], {kt(WDT+c)}, 0')
        if g == GST:
            a(f's_mov_b32 {sT1}, {SPIN}')
            a.wait_vm('sl')
            a.label('L_spin2')
            a(f'''
            v_cmp_ne_u32 vcc, s100, v{SS+1}
            v_cmp_ne_u32 s[44:45], s101, v{SS+3}
            s_or_b64 vcc, vcc, s[44:45]
            s_cbranch_scc0 L_ok2
            s_sub_u32 {sT1}, {sT1}, 1
            s_cbranch_scc1 L_ok2
            s_sleep 4
            buffer_load_dwordx4 {v4(SS)}, v8, {WS}, {sSB} offen sc1
            s_waitcnt vmcnt(0)
            s_branch L_spin2
            ''')
            a.vm.pop()
            a.label('L_ok2')
            a(f'''
            s_cmp_eq_u32 s99, 0
            s_cbranch_scc1 L_ok2b
            s_mov_b32 {sT1}, {SPIN}
            ''')
            a.label('L_spin2b')
            a(f'''
            v_cmp_ne_u32 vcc, s100, v{GF}
            v_cmp_ne_u32 s[44:45], s100, v{GF+1}
            v_cmp_ne_u32 s[46:47], s100, v{GF+2}
            v_cmp_ne_u32 s[48:49], s100, v{GF+3}
            s_or_b64 vcc, vcc, s[44:45]
            s_or_b64 s[46:47], s[46:47], s[48:49]
            s_or_b64 vcc, vcc, s[46:47]
            s_cbranch_scc0 L_ok2c
            s_sub_u32 {sT1}, {sT1}, 1
            s_cbranch_scc1 L_ok2c
            s_sleep {SLP}
            ''')
            for k in range(4):
                a(f'buffer_load_dword v{GF+k}, v9, {WS}, s98 offen offset:{128*k+4} sc1'); a.vm.pop()
            a('s_waitcnt vmcnt(0)\ns_branch L_spin2b')
            a.label('L_ok2c')
            a(f'''
            s_mov_b32 {sT2}, {WS_E}
            v_mov_b32 v{GF}, s100
            v_mov_b32 v{GF+1}, s101
            s_mov_b64 exec, 1
            buffer_store_dwordx2 v[{GF}:{GF+1}], v9, {WS}, {sT2} offen sc1
            s_mov_b64 exec, -1
            ''')
            a.vm.pop()
            a.label('L_ok2b')
            a(f'v_mov_b32 v{st+6}, v{SS}')
            rowred('v_max_f32', st+6, (1,))
            a(f'''
            v_sub_f32 v{st}, v{SS}, v{st+6}
            v_sub_f32 v{st+7}, {sM}, v{st+6}
            v_mul_f32 v{st}, {f32(L2E)}, v{st}
            v_mul_f32 v{st+7}, {f32(L2E)}, v{st+7}
            v_exp_f32 v{st}, v{st}
            v_exp_f32 v{st+7}, v{st+7}
            v_mul_f32 v{st}, v{st}, v{SS+2}
            ''')
            rowred('v_add_f32', st, (1,))
            a(f'''
            v_rcp_f32 v{st}, v{st}
            v_mul_f32 v14, v{st}, v{st+7}          ; factor
            ''')
            if PSC:
                for r in range(12): a(f'v_mul_f32 v{OA+r}, v{OA+r}, v14')
                for gg in range(GST + 1, 8):
                    a(f'v_mul_f32 v{16+gg}, v{16+gg}, v14\nv_cvt_pk_bf16_f32 v{16+gg}, v{16+gg}, v{16+gg}')
            a(f'''
            v_and_b32 v{st+5}, {3 if HB else 7}, v1
            v_lshlrev_b32 v{st+5}, 3, v{st+5}
            v_and_b32 v{st+3}, 1, v3
            v_lshlrev_b32 v{st+3}, 2, v{st+3}
            v_and_b32 v{st+4}, 2, v3
            v_add3_u32 v{st+3}, v{st+3}, v{st+4}, v{st+5}
            s_min_u32 {sT0}, s96, {5088 if HB else 5056}
            v_add_u32 v{st+4}, {sT0}, v{st+3}
            ds_read_u16 v{st+2}, v{st+4} offset:{L_X}
            ''')
            if not J2: a(f'''
            v_and_b32 v{st+15}, 3, v2
            v_mul_u32_u24 v{st+15}, 0x5555, v{st+15}
            s_mov_b32 s44, 0x0f0f0f0f
            s_mov_b32 s45, 0x0f0f0f0f
            s_mov_b32 s46, 0xf0f0f0f0
            s_mov_b32 s47, 0xf0f0f0f0
            ''')
            a(f'''
            v_lshrrev_b32 v{st+6}, 1, v3
            ''')
            if not (OM and J2): a(f'''
            s_lshl_b32 {sT0}, {sW_}, 1
            v_add_u32 v{st+7}, {sT0}, v{st+6}
            v_mul_u32_u24 v{st+7}, 784, v{st+7}
            v_and_b32 v{st+8}, 1, v3
            v_lshlrev_b32 v{st+11}, 4, v{st+8}
            v_add_u32 v{st+7}, v{st+7}, v{st+11}
            v_lshl_add_u32 v{st+8}, v2, 5, v{st+7}
            v_and_b32 v{st+9}, 7, v2
            v_lshl_add_u32 v{st+9}, v{st+9}, 5, v{st+7}
            v_add_u32 v{st+9}, 512, v{st+9}
            v_lshrrev_b32 v{st+7}, 3, v2
            v_cmp_eq_u32 vcc, v{st+7}, v{st+6}
            v_lshlrev_b32 v{st+7}, 4, v1
            v_add_u32 v{st+7}, {L_DUM}, v{st+7}
            v_cndmask_b32 v{st+9}, v{st+7}, v{st+9}, vcc
            v_mul_u32_u24 v{st+10}, 784, v2
            v_mul_u32_u24 v{st+7}, 24, v3
            s_mul_i32 {sT0}, {sW_}, 96
            v_add3_u32 v{st+10}, v{st+10}, v{st+7}, {sT0}
            s_mul_i32 {sT0}, {sW_}, 3200
            v_mul_u32_u24 v{st+11}, 24, v{st+11}
            v_lshl_add_u32 v{st+11}, v2, 4, v{st+11}
            v_add_u32 v{st+11}, {sT0}, v{st+11}           ; y write: 3200w + 384(g&1) + 16n
            ''')
            if YR == 0: a(f'''
            v_and_b32 v{st+13}, 31, v1
            v_lshrrev_b32 v{st+7}, 1, v{st+13}
            v_lshlrev_b32 v{st+13}, 4, v{st+13}
            s_lshl_b32 {sT0}, {sW_}, 9
            v_add_u32 v{st+13}, {sT0}, v{st+13}
            v_mul_u32_u24 v{st+12}, 12800, v{st+6}
            v_lshl_add_u32 v{st+12}, v{st+7}, 4, v{st+12}
            v_and_b32 v{st+7}, 1, v1
            v_mul_u32_u24 v{st+7}, 384, v{st+7}
            s_mul_i32 {sT0}, {sW_}, 640
            v_add3_u32 v{st+12}, v{st+12}, v{st+7}, {sT0}  ; y read: 12800(l>>5) + 640w + 384(l&1) + 16((l&31)>>1)
            ''')
            a(f'''
            v_lshrrev_b32 v{st+14}, 3, v1
            v_mul_u32_u24 v{st+14}, {5120 if HB else 2560}, v{st+14}
            v_and_b32 v{st+5}, 7, v1
            v_lshl_add_u32 v{st+14}, v{st+5}, 4, v{st+14}
            s_mul_i32 s94, {sB}, {64*2560}
            s_lshl_b32 {sT0}, s95, 7
            s_add_u32 s94, s94, {sT0}
            ''')
            for i in range(NPL): a(f's_add_u32 s{48+i}, s94, {8*(5120 if HB else 2560)*i}')
            if PK:
                for k, (r_, m_) in enumerate(((44, 0x000f000f), (46, 0x00f000f0), (16, 0x0f000f00), (18, 0xf000f000))):
                    a(f's_mov_b32 s{r_}, {hex(m_)}\ns_mov_b32 s{r_+1}, {hex(m_)}')
                a(f'v_mul_u32_u24 v{st+7}, 640, v{st+6}\nv_add_u32 v{st+11}, v{st+11}, v{st+7}')
            if OM:
                a(f'''
                v_and_b32 v{st+7}, 1, v3
                v_lshl_add_u32 v{st+8}, v2, 1, v{st+7}          ; quad 2n+(g&1)
                v_and_b32 v{st+9}, 15, v{st+8}
                v_add_u32 v{st+9}, 32, v{st+9}                  ; quad 32+2(n&7)+(g&1)
                v_and_b32 v{st+7}, 2, v3
                s_lshl_b32 {sT0}, {sW_}, 2
                v_add_u32 v{st+7}, {sT0}, v{st+7}               ; 2*(2w+(g>>1))
                s_movk_i32 {sT2}, 136
                v_mad_u32_u24 v{st+8}, v{st+8}, {sT2}, v{st+7}
                v_mad_u32_u24 v{st+9}, v{st+9}, {sT2}, v{st+7}
                v_lshrrev_b32 v{st+7}, 3, v2
                v_cmp_eq_u32 vcc, v{st+7}, v{st+6}
                v_lshlrev_b32 v{st+7}, 2, v1
                v_add_u32 v{st+7}, {L_DUM}, v{st+7}
                v_cndmask_b32 v{st+9}, v{st+7}, v{st+9}, vcc
                v_lshrrev_b32 v{st+7}, 2, v2
                v_mul_u32_u24 v{st+7}, 6, v{st+7}
                s_mul_i32 {sT0}, {sW_}, 24
                v_add_u32 v{st+7}, {sT0}, v{st+7}               ; 24w+6(i>>2)
                v_and_b32 v{st+10}, 3, v2
                v_add_u32 v{st+10}, v{st+10}, v{st+7}
                v_and_b32 v{st+19}, 1, v2
                v_add3_u32 v{st+19}, v{st+19}, v{st+7}, 4
                ''')
                for r_ in (st+10, st+19):
                    a(f'''
                    v_lshrrev_b32 v{st+7}, 2, v{r_}
                    v_lshlrev_b32 v{st+7}, 3, v{st+7}
                    v_lshl_add_u32 v{r_}, v{r_}, 5, v{st+7}
                    v_lshl_add_u32 v{r_}, v3, 3, v{r_}          ; 32d+8(d>>2)+8g
                    ''')
                a(f'v_mov_b32 v{st}, 0x3f803f80\nv_mov_b32 v{st+1}, 0x3f803f80')
            if J2:
                assert YR == 1 and AM and not PK
                a(f'''
                s_mov_b32 s44, 0x00330033
                s_mov_b32 s45, 0x00330033
                s_mov_b32 s46, 0x33003300
                s_mov_b32 s47, 0x33003300
                v_bfe_u32 v{st+7}, v2, 2, 1
                v_and_b32 v{st+15}, 1, v2
                v_lshl_add_u32 v{st+15}, v{st+7}, 1, v{st+15}
                v_mul_u32_u24 v{st+15}, 0x5555, v{st+15}
                v_mul_u32_u24 v{st+11}, 192, v3
                v_lshl_add_u32 v{st+11}, v2, 3, v{st+11}
                s_mul_i32 {sT0}, {sW_}, 3840
                v_add_u32 v{st+11}, {sT0}, v{st+11}               ; y write: 3840w + 192g + 8n
                v_and_b32 v{st+7}, 3, v1
                v_mul_u32_u24 v{st+12}, 192, v{st+7}
                v_lshrrev_b32 v{st+7}, 2, v1
                v_lshl_add_u32 v{st+12}, v{st+7}, 3, v{st+12}
                s_mul_i32 {sT0}, {sW_}, 768
                v_add_u32 v{st+12}, {sT0}, v{st+12}               ; y read: 768w + 192(l&3) + 8(l>>2)
                v_and_b32 v{st+7}, 1, v1
                s_lshl_b32 {sT0}, {sW_}, 9
                v_lshl_add_u32 v{st+13}, v1, 3, {sT0}
                v_cmp_eq_u32 vcc, 1, v{st+7}
                v_mov_b32 v{st+18}, {sTG0}
                v_mov_b32 v{st+7}, {sTG1}
                v_cndmask_b32 v{st+18}, v{st+18}, v{st+7}, vcc
                ''')
            elif YR == 1:
                a(f'''
                v_lshrrev_b32 v{st+7}, 2, v1
                v_lshlrev_b32 v{st+12}, 4, v{st+7}
                v_bfe_u32 v{st+7}, v1, 1, 1
                v_mul_u32_u24 v{st+7}, 384, v{st+7}
                s_mul_i32 {sT0}, {sW_}, 640
                v_add3_u32 v{st+12}, v{st+12}, v{st+7}, {sT0}
                v_and_b32 v{st+7}, 1, v1
                v_lshl_add_u32 v{st+12}, v{st+7}, 3, v{st+12}
                s_lshl_b32 {sT0}, {sW_}, 9
                v_lshl_add_u32 v{st+13}, v1, 3, {sT0}
                v_cmp_eq_u32 vcc, 1, v{st+7}
                v_mov_b32 v{st+18}, {sTG0}
                v_mov_b32 v{st+7}, {sTG1}
                v_cndmask_b32 v{st+18}, v{st+18}, v{st+7}, vcc
                ''')
            if HB:
                a(f'''
                v_lshrrev_b32 v{st+7}, 3, v1
                v_lshlrev_b32 v{st+7}, 7, v{st+7}
                v_lshl_add_u32 v{st+13}, v{st+5}, 3, v{st+7}
                s_lshl_b32 {sT0}, {sW_}, 10
                v_add_u32 v{st+13}, {sT0}, v{st+13}
                s_mul_i32 {sT0}, {sS}, {2560-64}
                s_sub_u32 {sYB}, {sYB}, {sT0}
                ''')
            a('s_movk_i32 s98, 0xff')
            a(f'v_mov_b32 v{st+16}, {sTG0}\nv_mov_b32 v{st+17}, {sTG1}')
    assert xiss[0] == nx and sp[0] == len(seq)
    stamp('vend')
    if OM:
        assert PSC and AM and CM == 2
        for k in range(2): a(f'v_cvt_pk_bf16_f32 v{24+k}, v{OA+2*k}, v{OA+2*k+1}')
        for k in range(2): a(f'v_cvt_pk_bf16_f32 v{26+k}, v{OA+4+2*k}, v{OA+4+2*k+1}')
        for k in range(2): a(f'v_cndmask_b32 v{24+k}, v{26+k}, v{24+k}, {sLO32}')
        for k in range(2): a(f'ds_write_b16 v{st+8}, v{24+k} offset:{64*k}\nds_write_b16_d16_hi v{st+8}, v{24+k} offset:{64*k+32}')
        for k in range(2): a(f'v_cvt_pk_bf16_f32 v{26+k}, v{OA+8+2*k}, v{OA+8+2*k+1}')
        for k in range(2): a(f'ds_write_b16 v{st+9}, v{26+k} offset:{64*k}\nds_write_b16_d16_hi v{st+9}, v{26+k} offset:{64*k+32}')
    elif PSC == 1:
        for r in range(4): a(f'v_cndmask_b32 v{OA+r}, v{OA+4+r}, v{OA+r}, {sLO32}')
        a(f'ds_write_b128 v{st+8}, {v4(OA)}')
        a(f'ds_write_b128 v{st+9}, {v4(OA+8)}')
    elif PSC == 2:
        a(f's_mov_b64 exec, {sLO32}\nds_write_b128 v{st+8}, {v4(OA)}\ns_not_b64 exec, exec\nds_write_b128 v{st+8}, {v4(OA+4)}\ns_mov_b64 exec, -1')
        a(f'ds_write_b128 v{st+9}, {v4(OA+8)}')
    else:
        for r in range(4): a(f'v_cndmask_b32 v{OA+r}, v{OA+4+r}, v{OA+r}, {sLO32}')
        for r in range(4): a(f'v_mul_f32 v{OA+r}, v{OA+r}, v14')
        a(f'ds_write_b128 v{st+8}, {v4(OA)}')
        for r in range(4): a(f'v_mul_f32 v{OA+8+r}, v{OA+8+r}, v14')
        a(f'ds_write_b128 v{st+9}, {v4(OA+8)}')
    a('s_waitcnt lgkmcnt(0)\ns_barrier')
    stamp('barC')
    if OM: a(f'ds_read_b64 v[24:25], v{st+10}\nds_read_b64 v[26:27], v{st+19}')
    else:
        for j in range(3): a(f'ds_read_b64 v[{16+2*j}:{17+2*j}], v{st+10} offset:{8*j}')
    def dpp(regs, steps):
        for s_ in steps:
            for r in regs: a(f'v_add_f32_dpp v{r}, v{r}, v{r} row_ror:{s_} row_mask:0xf bank_mask:0xf')
    if CM != 2:
        a('s_waitcnt lgkmcnt(0)')
        dpp(range(16, 22), (8, 4, 2, 1))
    AT = KB
    def abuild(u):
        if AM:
            a(f'v_cvt_pk_bf16_f32 v{16+2*u}, v{16+2*u}, v{17+2*u}')
            for r in range(4): a(f'v_and_b32 v{AT+4*u+r}, v{16+2*u}, v{8+r}')
            return
        for i in range(2):
            a(f'v_cvt_pk_bf16_f32 v{16+2*u+i}, v{16+2*u+i}, 0')
        for i in range(2):
            a(f'v_cndmask_b32 v{AT+4*u+2*i}, 0, v{16+2*u+i}, s[44:45]\nv_cndmask_b32 v{AT+4*u+2*i+1}, 0, v{16+2*u+i}, s[46:47]')
    def smf(u, c):
        n = (c*3 + u)*2
        if n + 1 >= 30 - XL: a.wait_vm(f'wo{n+1}')
        r = KB + 4*(WOT + n)
        a(f'v_smfmac_f32_16x16x64_bf16 {v4(YA+4*c)}, {v4(AT+4*u)}, v[{r}:{r+7}], v{st+15}')
    def ywrite(c):
        if J2:
            a(f'ds_write_b64 v{st+11}, v[{YA+4*c}:{YA+4*c+1}] offset:{L_YP+768*c}'); return
        a(f's_mov_b64 exec, {sLO32}\nds_write_b128 v{st+11}, {v4(YA+4*c)} offset:{L_YP+640*c}\ns_mov_b64 exec, -1')
    if PK and OM:
        def cv(u): a(f'v_cvt_pk_bf16_f32 v{16+2*u}, v{16+2*u}, v{17+2*u}')
        def ab(u, hi):
            for r in range(4): a(f'v_and_b32 v{AT+8*u+4*hi+r}, v{16+2*u}, v{56+4*hi+r}')
        def sm(u, c):
            r = KB + 4*(WOT + (c*3 + u)*2)
            a(f'v_smfmac_f32_16x16x64_bf16 {v4(YA+4*(c>>1))}, {v4(AT+8*u+4*(c&1))}, v[{r}:{r+7}], v{st+15}')
        def w(k):
            if k == 2: a(f's_mov_b64 exec, {sLO32}')
            a(f'ds_write_b128 v{st+11}, {v4(YA+4*k)} offset:{L_YP+1280*k}')
            if k == 2: a('s_mov_b64 exec, -1')
        a('s_waitcnt lgkmcnt(0)' if stamps in (3, 11) else 's_waitcnt lgkmcnt(1)')
        stamp('t1')
        a(f'v_mfma_f32_16x16x16_bf16 v[16:19], v[24:25], v[{st}:{st+1}], 0')
        if stamps != 11: a('s_waitcnt lgkmcnt(0)')
        a(f'v_mfma_f32_16x16x16_bf16 v[20:23], v[26:27], v[{st}:{st+1}], 0')
        cv(0); ab(0, 0); cv(1); cv(2)
        stamp('t2')
        if PK == 1:
            sm(0, 4); ab(1, 0); sm(0, 0); ab(2, 0); sm(1, 4); ab(0, 1); sm(1, 0); ab(1, 1); sm(2, 4); ab(2, 1)
            stamp('t3')
            sm(2, 0); sm(0, 2); sm(0, 1); sm(1, 2); w(2); sm(1, 1); sm(2, 2); sm(2, 1); sm(0, 3); sm(1, 3); sm(2, 3)
            stamp('t4')
            w(0); w(1)
        else:
            sm(0, 0); ab(1, 0); sm(0, 2); ab(2, 0); sm(1, 0); ab(0, 1); sm(1, 2); ab(1, 1); sm(2, 0); ab(2, 1)
            stamp('t3')
            sm(0, 1); sm(2, 2); sm(1, 1); sm(0, 3); sm(2, 1); sm(1, 3); sm(0, 4); sm(2, 3); sm(1, 4); w(0); sm(2, 4)
            stamp('t4')
            w(1); w(2)
        stamp('mm')
        a('s_waitcnt lgkmcnt(0)\ns_barrier')
    elif PK:
        def cv(u):
            for i in range(2): a(f'v_cvt_pk_bf16_f32 v{16+2*u+i}, v{16+2*u+i}, 0')
        def ab(u, hi):
            m0, m1 = ('s[44:45]', 's[46:47]') if not hi else ('s[16:17]', 's[18:19]')
            for i in range(2):
                a(f'v_cndmask_b32 v{AT+8*u+4*hi+2*i}, 0, v{16+2*u+i}, {m0}\nv_cndmask_b32 v{AT+8*u+4*hi+2*i+1}, 0, v{16+2*u+i}, {m1}')
        def sm(u, c):
            r = KB + 4*(WOT + (c*3 + u)*2)
            a(f'v_smfmac_f32_16x16x64_bf16 {v4(YA+4*(c>>1))}, {v4(AT+8*u+4*(c&1))}, v[{r}:{r+7}], v{st+15}')
        assert XL == 0
        a('s_waitcnt lgkmcnt(0)' if stamps == 3 else 's_waitcnt lgkmcnt(1)')
        dpp((16, 17, 18), (8, 4, 2, 1))
        cv(0); ab(0, 0)
        a('s_waitcnt lgkmcnt(0)')
        dpp((19, 20, 21), (8,))
        sm(0, 4); ab(0, 1)
        sm(0, 0); dpp((19, 20, 21), (4,))
        sm(0, 2); dpp((19, 20, 21), (2,))
        sm(0, 1); dpp((19, 20, 21), (1,))
        sm(0, 3); cv(1); ab(1, 0); cv(2)
        sm(1, 4); ab(2, 0)
        sm(1, 0); ab(1, 1)
        sm(2, 4); ab(2, 1)
        sm(2, 0); sm(1, 2); sm(1, 1); sm(2, 2)
        a(f's_mov_b64 exec, {sLO32}\nds_write_b128 v{st+11}, {v4(YA+8)} offset:{L_YP+2560}\ns_mov_b64 exec, -1')
        sm(2, 1); sm(1, 3); sm(2, 3)
        a(f'ds_write_b128 v{st+11}, {v4(YA)} offset:{L_YP}')
        a(f'ds_write_b128 v{st+11}, {v4(YA+4)} offset:{L_YP+1280}')
        stamp('mm')
        a('s_waitcnt lgkmcnt(0)\ns_barrier')
    elif OM:
        a('s_waitcnt lgkmcnt(0)' if stamps in (3, 11) else 's_waitcnt lgkmcnt(1)')
        stamp('t1')
        a(f'v_mfma_f32_16x16x16_bf16 v[16:19], v[24:25], v[{st}:{st+1}], 0')
        if stamps != 11: a('s_waitcnt lgkmcnt(0)')
        a(f'v_mfma_f32_16x16x16_bf16 v[20:23], v[26:27], v[{st}:{st+1}], 0')
        abuild(0)
        if OM == 1:
            abuild(1)
            stamp('t2')
            smf(0, 0); smf(0, 1); abuild(2)
            stamp('t3')
            order = [(1,0),(1,1),(2,0),(2,1),(0,2),(0,3),(1,2),'w0',(1,3),'w1',(2,2),(0,4),(2,3),(1,4),'w2',(2,4),'w3','w4']
        else:
            stamp('t2')
            smf(0, 0); abuild(1); smf(0, 1); abuild(2)
            stamp('t3')
            order = {2: [(1,0),(0,2),(2,0),(1,1),(1,2),(2,1),(0,3),'w0',(2,2),(1,3),'w1',(0,4),(2,3),'w2',(1,4),(2,4),'w3','w4'],
                     3: [(0,2),(0,3),(0,4)] + [(1,c) for c in range(5)] + [(2,c) for c in range(5)] + ['T', 'W'],
                     4: [(0,2),(1,0),(1,1),(1,2),(2,0),(2,1),(2,2),(0,3),(0,4),(1,3),(1,4),'X',(2,3),(2,4),'T','Y'],
                     5: [(0,2),(1,0),(1,1),(1,2),(2,0),(2,1),(2,2),(0,3),(0,4),(1,3),(1,4),(2,3),(2,4),'T','W']}[OM]
        def wr(cs):
            if J2:
                for c in cs: ywrite(c)
                return
            a(f's_mov_b64 exec, {sLO32}')
            for c in cs: a(f'ds_write_b128 v{st+11}, {v4(YA+4*c)} offset:{L_YP+640*c}')
            a('s_mov_b64 exec, -1')
        for o in order:
            if o in ('w3', 'T'): stamp('t4')
            if o == 'T': pass
            elif o == 'W': wr(range(5))
            elif o == 'X': wr((0, 1, 2))
            elif o == 'Y': wr((3, 4))
            elif isinstance(o, str): ywrite(int(o[1]))
            else: smf(*o)
        stamp('mm')
        a('s_waitcnt lgkmcnt(0)\ns_barrier')
    elif CM == 2:
        a('s_waitcnt lgkmcnt(0)' if stamps in (3, 11) else 's_waitcnt lgkmcnt(1)')
        stamp('t1')
        dpp((16, 17, 18), (8, 4, 2, 1))
        abuild(0)
        if stamps != 11: a('s_waitcnt lgkmcnt(0)')
        dpp((19, 20, 21), (8,))
        stamp('t2')
        smf(0, 0); dpp((19, 20, 21), (4,))
        smf(0, 1); dpp((19, 20, 21), (2,))
        smf(0, 2); dpp((19, 20, 21), (1,))
        smf(0, 3); abuild(1)
        smf(1, 0); abuild(2)
        stamp('t3')
        order = [(1,1),(2,0),(1,2),(2,1),(1,3),(0,4),'w0',(2,2),'w1',(1,4),(2,3),(2,4),'w2','w3','w4']
        for o in order:
            if o == 'w2': stamp('t4')
            if isinstance(o, str): ywrite(int(o[1]))
            else: smf(*o)
        stamp('mm')
        a('s_waitcnt lgkmcnt(0)\ns_barrier')
    elif CM:
        abuild(0); abuild(1)
        smf(0, 0); smf(0, 1)
        abuild(2)
        order = [(1,0),(1,1),(2,0),(2,1),(0,2),(0,3),(1,2),'w0',(1,3),'w1',(2,2),(0,4),(2,3),(1,4),'w2',(2,4),'w3','w4']
        for o in order:
            if isinstance(o, str): ywrite(int(o[1]))
            else: smf(*o)
        stamp('mm')
        a('s_waitcnt lgkmcnt(0)\ns_barrier')
    else:
        abuild(0); abuild(1)
        smf(0, 0); smf(0, 1)
        abuild(2)
        for c in range(2, 5): smf(0, c)
        for c in range(5): smf(1, c)
        for c in range(5): smf(2, c)
        stamp('mm')
        a(f's_mov_b64 exec, {sLO32}')
        for c in range(5): a(f'ds_write_b128 v{st+11}, {v4(YA+4*c)} offset:{L_YP+640*c}')
        a('s_mov_b64 exec, -1\ns_waitcnt lgkmcnt(0)\ns_barrier')
    stamp('barD'); stamp('pub'); stamp('c1')
    if DREL == 2: a('s_memrealtime s[60:61]')
    a(f's_cmp_ge_u32 {sW_}, 5\ns_cbranch_scc1 L_cons')
    if YR == 1:
        for u in range(8): a(f'ds_read_b64 v[{16+2*u}:{17+2*u}], v{st+12} offset:{L_YP+(3840 if J2 else 3200)*u}')
        if stamps == 3: a('s_waitcnt lgkmcnt(0)')
        for u in range(4):
            a(f's_waitcnt lgkmcnt({6-2*u})\nv_pk_add_f32 v[{16+4*u}:{17+4*u}], v[{16+4*u}:{17+4*u}], v[{18+4*u}:{19+4*u}]')
            if u == 1: a('v_pk_add_f32 v[16:17], v[16:17], v[20:21]')
        a('v_pk_add_f32 v[24:25], v[24:25], v[28:29]\nv_pk_add_f32 v[16:17], v[16:17], v[24:25]')
        a(f'v_bfi_b32 v16, s98, v{st+18}, v16')
        a(f'buffer_store_dwordx2 v[16:17], v{st+13}, {WS}, {sYB} offen {POL[YSP]}')
    else:
        for u in range(4): a(f'ds_read_b128 {v4(16+4*u)}, v{st+12} offset:{L_YP+3200*u}')
        a('s_waitcnt lgkmcnt(0)')
        padd(16, 24, 8); padd(16, 20, 4)
        for r in range(4): a(f'v_mov_b32 v{20+r}, v{16+r}')
        for r in range(4): a(f'v_permlane32_swap_b32 v{16+r}, v{20+r}')
        padd(16, 20, 4)
        for r in range(2): a(f'v_bfi_b32 v{16+2*r}, s98, v{st+16+r}, v{16+2*r}')
        a(f's_mov_b64 exec, {sLO32}')
        if EXP & 512: a(f's_mov_b32 {sYB}, {BIG}')
        a(f'buffer_store_dwordx4 v[16:19], v{st+13}, {WS}, {sYB} offen {POL[YSP]}')
    if stamps:
        a('s_mov_b64 exec, -1\ns_waitcnt lgkmcnt(0)')
        stamp('pub')
        a('s_branch L_fin')
    else:
        a('s_endpgm')
    a.label('L_cons')
    a(f'''
    s_cmp_eq_u32 s97, 0
    s_cbranch_scc1 L_fin
    s_mov_b32 {sT1}, {SPIN}
    ''')
    def pissue(b):
        for i in range(NPL):
            a(f'buffer_load_dwordx4 {v4(b+4*i)}, v{st+14}, {WS}, s{48+i} offen {POL[YLP]}')
    def pcheck(b, extra):
        for i in range(NPL):
            r = b + 4*i
            a(f's_waitcnt vmcnt({NPL-1-i+extra})')
            for k in range(2): a(f'v_xor_b32 v{r+2*k}, v{r+2*k}, v{st+16+k}')
            if i == 0: a(f'v_or_b32 v15, v{r}, v{r+2}')
            else: a(f'v_or3_b32 v15, v15, v{r}, v{r+2}')
        a('v_and_b32 v15, s98, v15\nv_cmp_ne_u32 vcc, 0, v15')
    def pfinish(b):
        if stamps: a('s_waitcnt lgkmcnt(0)')
        stamp('c1'); stamp('c1x')
        if not HB: padd(b, b+16, 16)
        padd(b, b+8, 8); padd(b, b+4, 4)
        a(f'''
        v_lshlrev_b32 v14, 16, v{st+2}
        v_permlane32_swap_b32 v{b}, v{b+1}
        v_permlane32_swap_b32 v{b+2}, v{b+3}
        v_add_f32 v{b}, v{b}, v{b+1}
        v_add_f32 v{b+2}, v{b+2}, v{b+3}
        v_permlane16_swap_b32 v{b}, v{b+2}
        v_add_f32 v{b}, v{b}, v{b+2}
        v_add_f32_dpp v{b}, v{b}, v{b} row_ror:8 row_mask:0xf bank_mask:0xf
        {f'v_add_f32_dpp v{b}, v{b}, v{b} row_ror:4 row_mask:0xf bank_mask:0xf' if HB else ''}
        v_add_f32 v{b}, v{b}, v14
        v_cvt_pk_bf16_f32 v{b}, v{b}, v{b}
        s_mov_b32 exec_lo, {'0x000f000f' if HB else '0x00ff00ff'}
        s_mov_b32 exec_hi, {'0x000f000f' if HB else '0x00ff00ff'}
        buffer_store_short v{b}, v{st+3}, {OUT}, s96 offen {POL[OPOL]}
        s_mov_b64 exec, -1
        ''')
    if PM == 2:
        pissue(16)
        a.label('L_spin3')
        pissue(68)
        pcheck(16, NPL)
        a('s_cbranch_vccz L_ok3')
        pissue(16)
        a(f's_sub_u32 {sT1}, {sT1}, 1')
        pcheck(68, NPL)
        a('s_cbranch_scc1 L_ok3b\ns_and_b64 vcc, vcc, vcc')
        a.raw('  s_cbranch_scc1 L_spin3')
        a.label('L_ok3b')
        pfinish(68)
        a('s_branch L_ok3c')
        a.label('L_ok3')
        pfinish(16)
        a.label('L_ok3c')
    else:
        a.label('L_spin3')
        pissue(16)
        a(f's_sub_u32 {sT1}, {sT1}, 1')
        pcheck(16, 0)
        a('s_cbranch_scc1 L_ok3\ns_and_b64 vcc, vcc, vcc')
        a.raw('  s_cbranch_scc1 L_spin3')
        a.label('L_ok3')
        pfinish(16)
    if DSEL >= 90:
        a(f's_waitcnt vmcnt(0)\nv_lshlrev_b32 v14, 4, v1\ns_mov_b32 {sT0}, {WS_T}\nbuffer_load_dwordx4 v[16:19], v14, {WS}, {sT0} offen sc1\ns_waitcnt vmcnt(0)')
        if DSEL == 99:
            a('v_min3_u32 v20, v16, v17, v18\nv_min_u32 v20, v20, v19\nv_max3_u32 v21, v16, v17, v18\nv_max_u32 v21, v21, v19')
            for op, r in (('v_min_u32', 20), ('v_max_u32', 21)):
                rowred(op, r, (1, 2))
                allred(op, r, 22)
            a('v_readfirstlane_b32 s80, v21\nv_readfirstlane_b32 s81, v20\ns_sub_u32 s80, s80, s81\ns_add_u32 s80, s80, s86')
        else:
            x_ = DSEL - 90
            a(f'v_readlane_b32 s80, v{16+(x_&3)}, {x_>>2}\nv_readlane_b32 s81, v16, 0\ns_sub_u32 s80, s80, s81\ns_add_u32 s80, s80, 200\ns_add_u32 s80, s80, s86')
    if DLY:
        a(f'''
        s_waitcnt vmcnt(0)
        s_memrealtime s[84:85]
        s_waitcnt lgkmcnt(0)
        s_sub_u32 s82, {'s84, s80' if DREL == 1 else ('s60, s80' if DREL == 2 else (('s80' if DSEL else 's84') + ', s86'))}
        s_mul_i32 s82, s82, {DLY}
        s_add_u32 s82, s82, {6000 if DSEL else 0}
        s_min_u32 s82, s82, 200000
        ''')
        a.label('L_dly')
        a(f'''
        s_memrealtime s[84:85]
        s_waitcnt lgkmcnt(0)
        s_sub_u32 s83, s84, s86
        s_cmp_lt_u32 s83, s82
        s_cbranch_scc1 L_dly
        ''')
    a.label('L_fin')
    if stamps:
        a('s_waitcnt vmcnt(0)')
        stamp('end')
        a('s_waitcnt lgkmcnt(0)')
        if XID: a('s_getreg_b32 s84, hwreg(HW_REG_XCC_ID)')
        for k in range(8): a(f'v_mov_b32 v{16+k}, s{SREG[k]}')
        a(f'''
        s_lshl_b32 {sT0}, s2, 3
        s_add_u32 {sT0}, {sT0}, {sW_}
        s_lshl_b32 {sT0}, {sT0}, 5
        s_add_u32 {sT0}, {sT0}, {WS_T}
        v_mov_b32 v14, 0
        s_mov_b64 exec, 1
        buffer_store_dwordx4 v[16:19], v14, {WS}, {sT0} offen
        buffer_store_dwordx4 v[20:23], v14, {WS}, {sT0} offen offset:16
        ''')
    a.label('L_end')
    a('s_endpgm')
    a.raw(f'''.section .rodata,"a"
.p2align 6
.amdhsa_kernel {name}
  .amdhsa_next_free_vgpr 256
  .amdhsa_next_free_sgpr 102
  .amdhsa_accum_offset 256
  .amdhsa_group_segment_fixed_size 0
  .amdhsa_kernarg_size 96
  .amdhsa_user_sgpr_count 2
  .amdhsa_user_sgpr_kernarg_segment_ptr 1
  .amdhsa_system_sgpr_workgroup_id_x 1
  .amdhsa_float_denorm_mode_32 3
.end_amdhsa_kernel''')
    return a.text()

if __name__ == '__main__':
    out = sys.argv[1]
    kw = {}
    for x in sys.argv[2:]:
        k, v = x.split('='); kw[k] = int(v)
    open(out, 'w').write(gen(**kw))
```

```python
import sys, struct
from asmdsl import Asm

NAME = 'parallel_sum__sliding_block_cached__geglu_ffn__decode_kernel'
def f32(x): return '0x%08x' % struct.unpack('<I', struct.pack('<f', x))[0]
def lanemask(fn):
    m = 0
    for l in range(64):
        if fn(l & 15, l >> 4): m |= 1 << l
    return m

HEADER = open('parallel_sum__sliding_block_cached__geglu_ffn__decode.s.ref').read().split('; Override')[0]

WS_Y  = 0
WS_S  = 0x100000
WS_E  = 0x0F0000
WS_P  = 0x110000
WS_T  = 0x300000
WS_SZ = 0x400000
L_PART = 0
L_DUM  = 14336
L_Q    = 15360
L_HID  = 15872
L_CNT  = 16000
L_X    = 16128
L_STG  = 21504
L_YP   = L_STG
BIG = 0x40000000
L2E = 1.4426950408889634
POL = {0: '', 1: 'nt', 2: 'sc0 nt', 3: 'sc1 nt', 4: 'sc0', 5: 'sc1', 6: 'sc0 sc1', 7: 'sc0 sc1 nt'}

DESC = r'''
'''

def gen(KU=2, KW=0, KP0=10, PP=0, PG=2, PI=3, TP=5, XL=0, T=6, TV=6, TVE=12, VE=30, RV=12, ILV=1, XBEG=4, XEND=14, SLI=28, GST=5, PRIO=0, SLP=8, KPOLL=28, W0N=3, W0P=2, GLP=5, WDB=1, GWD=2, SB0=2, SLN=8, WPOL=5, SPOL=5, KVPOL=1, PPOL=1, DLY=0, DSEL=0, NOS=0, DREL=0, PRD=2, PRP=5, PRG=6, PUBP=3, STP=3, KORD=1, IDL=0, PK=0, HB=0, J2=1, OM=2, PSC=1, AM=1, DBGS=0, XID=0, WPF=3, WFP=0, WFE=0, TBO=0, TB0=0, KE=2, YR=1, YP=0, YPG=0, RA=845, RB=64, RC=366, ALPHA=1, BETA=8, CM=2, PM=2, UM=2, IDS=0, OPOL=0, YLP=5, YSP=5, ROT=8,
        NS=17, SEND=46, EXP=0, stamps=0, name=NAME):
    a = Asm()
    SPIN = (1 << 19) if EXP == 0 else 0
    LDS_SZ = L_STG + max(8 * NS * 1024, 30720)
    assert LDS_SZ <= 163840
    SREG = [80, 82, 84, 86, 56, 58, 60, 62]
    SETS = {1: ['start', 'barA', 'sig', 'kiss', 'barB', 'smax', 'vend', 'end'],
            2: ['start', 'bar0', 'ln', 'barA', 'sig', 'poll', 'qrdy', 'end'],
            3: ['start', 'vend', 'barC', 'mm', 'barD', 'pub', 'c1', 'end'],
            5: ['start', 'ki12', 'ki18', 'ki24', 'ki30', 'ki36', 'ki42', 'ki47'],
            6: ['start', 'ki47', 'vc0', 'vc12', 'vc24', 'vc36', 'vc42', 'vc47'],
            7: ['start', 'bar0', 'barA', 'ki12', 'ki24', 'ki47', 'vc24', 'vc47'],
            11: ['start', 'barC', 't1', 't2', 't3', 't4', 'mm', 'barD'],
            4: ['start', 'karg', 'iss1', 'iss2', 'pre0', 'bar0', 'barA', 'end']}
    DN = ['end', 'karg', 'iss1', 'bar0', 'barA', 'sig', 'barB', 'vend', 'iss2', 'smax', 'pre', 'preK', 'c1x', 'barC', 'barDx']
    def stamp(nm):
        if DLY and DSEL and DSEL < 90 and nm == DN[DSEL]: a('s_memrealtime s[80:81]')
        if stamps and nm in SETS[stamps]:
            r = SREG[SETS[stamps].index(nm)]
            a(f's_memrealtime s[{r}:{r+1}]')
    a.raw(HEADER.rstrip())
    a.raw(f'; @launch grid=(256,1,1) block=(512,1,1) lds={LDS_SZ}')
    a.raw('.amdgcn_target "amdgcn-amd-amdhsa--gfx950"\n.text' + DESC + '.globl %s\n.p2align 8\n.type %s,@function\n%s:' % (name, name, name))
    sW_, sH, sB, sS, sXCD, sP = 's3', 's4', 's5', 's6', 's68', 's69'
    K, V, W, WO, WD, X, WS, OUT = 's[8:11]', 's[12:15]', 's[16:19]', 's[20:23]', 's[24:27]', 's[28:31]', 's[32:35]', 's[36:39]'
    sWO0, sWO1, sWDB, sSTG, sWO2, sWO3 = 's40', 's41', 's42', 's43', 's64', 's65'
    sKV, sKV2, sKV0 = 's71', 's72', 's73'
    sT0, sT1, sT2, sT3 = 's74', 's75', 's76', 's77'
    sLO32 = 's[78:79]'
    sM, sSOWN, sYB, sSB = 's88', 's89', 's90', 's91'
    TAG = 's[100:101]'
    sTG0, sTG1 = 's70', 's7'
    KB = 64
    WDT, WOT = 12, 17
    def kt(i): return f'v[{KB+4*i}:{KB+4*i+3}]'
    def v4(r): return f'v[{r}:{r+3}]'
    def srd(d, p, n):
        a(f's_mov_b32 s{d}, s{p}\ns_and_b32 s{d+1}, s{p+1}, 0xffff\ns_mov_b32 s{d+2}, {n}\ns_mov_b32 s{d+3}, 0x20000')
    def rowred(op, r, steps=(8, 4, 2, 1)):
        for s_ in steps: a(f'{op}_dpp v{r}, v{r}, v{r} row_ror:{s_} row_mask:0xf bank_mask:0xf')
    gstep = 6144 * 8 if ILV else 6144
    def grp(g):
        if ROT == 7:
            a(f's_lshr_b32 {sKV}, s67, 16\ns_mul_i32 {sKV}, {sKV}, {g}\ns_add_u32 {sKV}, {sKV}, s67\ns_and_b32 {sKV}, {sKV}, 63\ns_mul_i32 {sKV}, {sKV}, 6144\ns_add_u32 {sKV}, {sKV}, {sKV0}')
        elif ROT == 8:
            a(f's_add_u32 {sKV}, s67, {(BETA*g)&63}\ns_and_b32 {sKV}, {sKV}, 63\ns_mul_i32 {sKV}, {sKV}, 6144\ns_add_u32 {sKV}, {sKV}, {sKV0}')
        elif ROT:
            a(f's_add_u32 {sKV}, s67, {g}\ns_and_b32 {sKV}, {sKV}, 7\ns_mul_i32 {sKV}, {sKV}, {gstep}\ns_add_u32 {sKV}, {sKV}, {sKV0}')
        else:
            a(f's_mov_b32 {sKV}, {sKV0}' if g == 0 else f's_add_u32 {sKV}, {sKV}, {gstep}')
    kissued = [0]
    KO = [[0,1,2,3,4,5],[0,1,4,2,3,5],[0,4,1,2,5,3]][KORD]
    assert all(KO[e] < 4 for e in range(KU))
    def kload():
        i = kissued[0]; g, e = divmod(i, 6)
        stamp(f'ki{i}')
        if e == 0 and g > 0: grp(g)
        e = KO[e]
        if e < 4: a(f'buffer_load_dwordx4 {kt(i)}, v8, {K}, {sKV} offen offset:{384*e} {POL[KVPOL]}', tag=f'k{i}')
        else:     a(f'buffer_load_dwordx4 {kt(i)}, v9, {K}, {sKV} offen offset:{768*(e-4)} {POL[KVPOL]}', tag=f'k{i}')
        kissued[0] += 1

    assert ILV == 1 and ROT in (3, 7, 8) and 1 <= KU <= 4
    a(f'''
    s_load_dwordx2 s[8:9], s[0:1], 8
    s_load_dwordx16 s[44:59], s[0:1], 0
    s_cmp_ge_u32 s2, 256
    s_cbranch_scc1 L_end''')
    stamp('start')
    if DBGS:
        a(f's_mul_i32 s74, s2, 0x9E3779B1\ns_lshr_b32 s74, s74, 29\ns_cmp_lg_u32 s74, {DBGS & 7}\ns_cbranch_scc1 L_nodbg')
        for _ in range(DBGS >> 3): a('s_sleep 127')
        a.label('L_nodbg')
    if DLY: a('s_memrealtime s[86:87]')
    if PRIO: a('s_setprio 3')
    a(f'''
    v_lshrrev_b32 v14, 6, v0
    v_bfe_u32 v20, v0, 2, 2
    v_readfirstlane_b32 {sW_}, v14
    v_and_b32 v21, 3, v0
    v_lshlrev_b32 v21, 4, v21
    v_mul_u32_u24 v9, 1536, v20
    v_bfe_u32 v3, v0, 4, 2
    v_add_u32 v9, v9, v21
    v_lshl_add_u32 v8, v3, 6, v9       ; vkx = 1536(n>>2)+16(n&3)+64g
    s_and_b32 {sXCD}, s2, 7
    s_lshr_b32 {sT0}, s2, 6
    s_lshl2_add_u32 {sH}, {sXCD}, {sT0}
    s_bfe_u32 {sB}, s2, 0x20004
    s_bfe_u32 {sS}, s2, 0x10003
    s_lshl_b32 {sT0}, {sB}, 5
    s_add_u32 {sSB}, {sT0}, {sH}       ; bh
    s_lshl3_add_u32 {sT0}, {sSB}, {sS}
    s_add_u32 {sT0}, {sT0}, 6
    s_lshl_b32 {sT0}, {sT0}, 6
    ''')
    if ROT == 8:
        a(f'''
        s_mul_i32 {sKV0}, {sT0}, 6144
        s_mul_i32 s67, {sH}, {RA}
        {f's_mul_i32 {sT0}, {sB}, {RB}' if RB else ''}
        {f's_add_u32 s67, s67, {sT0}' if RB else ''}
        s_mul_i32 {sT0}, {sS}, {RC}
        s_add_u32 s67, s67, {sT0}
        s_lshr_b32 s67, s67, 4
        ''')
        if ALPHA == 1: a(f's_add_u32 s67, s67, {sW_}')
        else: a(f's_mul_i32 {sT0}, {sW_}, {ALPHA}\ns_add_u32 s67, s67, {sT0}')
        a(f's_and_b32 s67, s67, 63\ns_mul_i32 {sKV}, s67, 6144\ns_add_u32 {sKV}, {sKV}, {sKV0}')
    else:
        a(f'''
        s_add_u32 {sT0}, {sT0}, {sW_}
        s_mul_i32 {sKV0}, {sT0}, 6144
        s_mul_i32 s67, s2, 0x9E3779B1
        s_bfe_u32 s67, s67, 0x30014
        s_mul_i32 {sKV}, s67, {gstep}
        s_add_u32 {sKV}, {sKV}, {sKV0}
        ''')
    a(f'''
    s_mov_b32 s10, 402653184
    s_mov_b32 s11, 0x20000
    s_waitcnt lgkmcnt(0)
    ''')
    stamp('karg')
    if ROT == 7:
        a(f's_lshl_b32 {sT0}, s2, 2\ns_load_dword s67, s[54:55], {sT0}\ns_mul_i32 {sT0}, {sW_}, 6144\ns_sub_u32 {sKV0}, {sKV0}, {sT0}\ns_waitcnt lgkmcnt(0)\ns_bfe_u32 {sT0}, s67, 0x60008\ns_mul_i32 {sT0}, {sT0}, {sW_}\ns_and_b32 {sT0}, {sT0}, 63\ns_add_u32 s67, s67, {sT0}')
        grp(0)
    for i in range(KU): kload()
    a(f'''
    s_load_dwordx2 s[24:25], s[0:1], 64
    s_load_dwordx2 s[36:37], s[0:1], 72
    s_load_dwordx2 s[32:33], s[0:1], 88
    v_and_b32 v1, 63, v0
    v_and_b32 v2, 15, v1
    v_lshlrev_b32 v20, 4, v1
    s_mov_b32 s28, s44
    s_mov_b32 s29, s45
    s_movk_i32 s30, 5120
    s_mov_b32 s31, 0x20000
    s_lshl_b32 {sT0}, {sW_}, 10
    s_add_u32 m0, {sT0}, {L_X}
    s_cmp_ge_u32 {sW_}, 5
    s_cbranch_scc1 L_nox
    ''')
    a.role = 'x'
    a(f'buffer_load_dwordx4 v20, {X}, {sT0} offen lds', tag='x')
    a.role = None
    a.label('L_nox')
    stamp('iss1')
    def touch(srd_, per_wg, per_wave, mask):
        a.comment("pull this WG's eighth of the rows its team shares into L2 now (one word per line)")
        a(f'''
        s_bfe_u32 {sT3}, s2, 0x30003
        s_lshl3_add_u32 {sT2}, {sH}, {sT3}
        s_mul_i32 {sT0}, {sT2}, {per_wg}
        s_mul_i32 {sT3}, {sW_}, {per_wave}
        s_add_u32 {sT0}, {sT0}, {sT3}
        v_lshlrev_b32 v62, 7, v1
        s_mov_b64 exec, {hex(mask)}
        buffer_load_dword v63, v62, {srd_}, {sT0} offen {POL[WFP]}
        s_mov_b64 exec, -1
        ''')
    if WPF and WFE == 1:
        srd(20, 52, 7864320); touch(WO, 30720, 3840, 0x3fffffff)
    if UM == 1:
        a(f'''
        s_mov_b32 s66, s2
        s_mul_i32 s92, s66, 43691
        s_lshr_b32 s92, s92, 17            ; blk
        s_mul_i32 {sT3}, s92, 3
        s_sub_u32 s93, s66, {sT3}          ; split
        ''')
    else:
        if UM == 2: a(f'''
        s_lshr_b32 {sT2}, s2, 6
        s_lshl2_add_u32 {sT2}, {sB}, {sT2}
        s_and_b32 {sT3}, s2, 15
        s_lshl4_add_u32 s66, {sT2}, {sT3}
        ''')
        elif UM == 4: a(f'''
        s_lshr_b32 {sT2}, s2, 6
        s_bfe_u32 {sT3}, s2, 0x30003
        s_lshl2_add_u32 {sT2}, {sT3}, {sT2}
        s_and_b32 {sT3}, s2, 3
        s_lshl2_add_u32 s66, {sT2}, {sT3}
        s_bfe_u32 {sT3}, s2, 0x10002
        s_lshl_b32 {sT3}, {sT3}, 7
        s_add_u32 s66, s66, {sT3}
        ''')
        elif UM == 5:
            idle = [(IDS >> (5*k)) & 31 for k in range(8)]
            assert sum(idle) == 40, idle
            cnt = [32 - i for i in idle]
            base = [sum(cnt[:k]) for k in range(8)]
            pk = lambda v: [sum(v[4*q+k] << (8*k) for k in range(4)) for q in range(2)]
            a(f'''
            s_lshr_b32 {sT2}, s2, 6
            s_bfe_u32 {sT3}, s2, 0x30003
            s_lshl2_add_u32 {sT2}, {sT3}, {sT2}
            s_lshl_b32 {sT3}, {sXCD}, 3
            s_mov_b32 s60, {hex(pk(base)[0])}
            s_mov_b32 s61, {hex(pk(base)[1])}
            s_lshr_b64 s[60:61], s[60:61], {sT3}
            s_and_b32 s66, s60, 0xff
            s_add_u32 s66, s66, {sT2}
            s_mov_b32 s60, {hex(pk(cnt)[0])}
            s_mov_b32 s61, {hex(pk(cnt)[1])}
            s_lshr_b64 s[60:61], s[60:61], {sT3}
            s_and_b32 s60, s60, 0xff
            s_cmp_lt_u32 {sT2}, s60
            s_cselect_b32 s66, s66, 255
            ''')
        else: a(f'''
        s_lshr_b32 {sT2}, s2, 6
        s_bfe_u32 {sT3}, s2, 0x30003
        s_lshl2_add_u32 {sT2}, {sT3}, {sT2}
        s_lshl3_add_u32 s66, {sT2}, {sXCD}
        ''')
        a(f'''
        s_mul_i32 s93, s66, 911
        s_lshr_b32 s93, s93, 16
        s_mul_i32 {sT3}, s93, 72
        s_sub_u32 s92, s66, {sT3}          ; blk
        ''')
    a(f'''
    s_mul_i32 s97, s93, 224
    s_lshl_b32 {sT2}, {sW_}, 5
    s_add_u32 s97, s97, {sT2}
    s_sub_u32 {sT2}, s92, 48
    s_sub_u32 {sT3}, s92, 60
    s_cmp_lt_u32 s92, 60
    s_cselect_b32 s16, s56, s58
    s_cselect_b32 s17, s57, s59
    s_cselect_b32 s98, {sT2}, {sT3}
    s_movk_i32 s96, 3072
    s_mov_b32 s18, 1966080
    s_cmp_lt_u32 s92, 48
    s_cselect_b32 s16, s50, s16
    s_cselect_b32 s17, s51, s17
    s_cselect_b32 s18, 7864320, s18
    s_cselect_b32 s96, 12288, s96
    s_cselect_b32 s98, s92, s98
    s_and_b32 s17, s17, 0xffff
    s_mov_b32 s19, 0x20000
    s_mul_i32 s94, s97, s96
    s_lshl_b32 s98, s98, 8
    s_add_u32 s94, s94, s98            ; soffset
    s_cmp_eq_u32 {sW_}, 7
    s_cselect_b32 s94, {BIG}, s94
    s_cmp_ge_u32 s66, {216 if not (EXP & 128) else 0}
    s_cselect_b32 s94, {BIG}, s94
    v_mul_lo_u32 v16, v3, s96
    v_lshl_add_u32 v16, v2, 4, v16     ; g*RS+16n
    s_lshl_b32 s96, s96, 2
    v_lshrrev_b32 v22, 1, v3
    v_mul_u32_u24 v21, 384, v22
    v_add_u32 v9, v9, v21
    v_and_b32 v22, 1, v3
    v_lshlrev_b32 v22, 6, v22
    v_add3_u32 v9, v9, v22, 64
    v_add_u32 v9, 192, v9              ; vky
    ''')
    WT = 224
    wiss = [0]
    def wload():
        t = wiss[0]
        a(f'buffer_load_dwordx4 {v4(WT+4*t)}, v16, {W}, s94 offen {POL[PPOL]}', tag=f'w{t}')
        if t < 7: a(f's_add_u32 s94, s94, s96')
        wiss[0] += 1
    pcnt = [0]
    def pstep(paced=True):
        if paced: a(f's_waitcnt vmcnt({TP-1})')
        pcnt[0] += 1
        if wiss[0] < 8 and pcnt[0] % (PG + 1) != 0: wload()
        else: kload()
    if PP:
        for _ in range(PI): pstep(False)
    else:
        for t in range(8):
            wload()
            if t == 3:
                for _ in range(KW): kload()
                if WPF and WFE == 2:
                    srd(20, 52, 7864320); touch(WO, 30720, 3840, 0x3fffffff)
        KU = KU + KW
    stamp('iss2')
    if PRIO: a('s_setprio 0')
    def wotile(n):
        uc, h = divmod(n, 2); c, u = divmod(uc, 3)
        return [[sWO0, sWO1], [sWO2, sWO3]][h][u == 2], (2560 if u == 1 else 0) + 256*c
    sissued = [0]
    def sload():
        n = sissued[0]; so, imm = wotile(n)
        a(f's_add_u32 m0, {sSTG}, {1024*n - imm}' if 1024*n >= imm else f's_sub_u32 m0, {sSTG}, {imm - 1024*n}')
        a(f'buffer_load_dwordx4 v12, {WO}, {so} offen offset:{imm} {POL[SPOL]} lds', tag='stg')
        sissued[0] += 1
    def kmore(frac):
        if PP: pstep(); return
        while kissued[0] < KU + int((KP0 - KU) * frac + 0.5): kload()
        while sissued[0] < int(SB0 * frac + 0.5): sload()
    def pmore():
        if PP: pstep()
    a(f's_waitcnt lgkmcnt(0)\ns_load_dwordx2 {TAG}, s[32:33], {WS_E}')
    a(f's_mov_b32 s34, {WS_SZ}\ns_mov_b32 s35, 0x20000\ns_mov_b32 s26, 1966080\ns_mov_b32 s27, 0x20000\ns_movk_i32 s38, 5120\ns_mov_b32 s39, 0x20000')
    srd(12, 48, 402653184); srd(20, 52, 7864320)
    if WPF:
        if not WFE: touch(WO, 30720, 3840, 0x3fffffff)
        touch(WD, 7680, 960, 0xff)
    a(f'''
    s_lshl_b32 {sP}, {sH}, 1
    s_add_u32 {sP}, {sP}, {sS}
    s_mov_b32 s78, -1
    s_mov_b32 s79, 0
    s_lshl_b32 {sT0}, {sB}, 6
    s_add_u32 {sT0}, {sT0}, {sP}
    s_mul_i32 {sYB}, {sT0}, 2560
    s_lshl_b32 {sSB}, {sSB}, 8
    s_add_u32 {sSB}, {sSB}, {WS_S}
    s_lshl_b32 {sT2}, {sS}, 7
    s_add_u32 {sSOWN}, {sSB}, {sT2}
    s_mul_i32 {sWDB}, {sP}, 24
    s_mul_i32 {sT0}, {sW_}, 3
    s_add_u32 {sWDB}, {sWDB}, {sT0}
    s_mul_i32 {sWDB}, {sWDB}, 1280
    s_mul_i32 {sWO0}, {sH}, 192
    s_mul_i32 {sT0}, {sW_}, 24
    s_add_u32 {sWO0}, {sWO0}, {sT0}
    s_mul_i32 {sWO0}, {sWO0}, 1280
    s_add_u32 {sWO1}, {sWO0}, 5120
    s_add_u32 {sWO2}, {sWO0}, 15360
    s_add_u32 {sWO3}, {sWO0}, 20480
    s_mul_i32 {sSTG}, {sW_}, {NS*1024}
    s_add_u32 {sSTG}, {sSTG}, {L_STG}
    v_mov_b32 v17, 1280
    v_mul_u32_u24 v18, 1280, v3
    v_lshl_add_u32 v18, v2, 4, v18     ; 1280g+16n
    s_lshl_b32 s97, s97, 1
    s_min_u32 s97, s97, 1216
    v_lshl_add_u32 v19, v3, 1, s97
    v_lshrrev_b32 v14, 3, v2
    v_mad_u32_u24 v19, v14, v17, v19   ; + 1280*(m>>3)
    v_and_b32 v15, 7, v2
    v_lshlrev_b32 v15, 4, v15          ; 16*(n&7)
    v_and_b32 v20, 1, v2
    v_cmp_eq_u32 vcc, 1, v20
    v_mov_b32 v21, 0xffff
    v_mov_b32 v22, 0xffff0000
    v_cndmask_b32 v21, v21, v22, vcc
    v_bfe_u32 v20, v2, 1, 2
    ''')
    for r in range(4):
        a(f'v_cmp_eq_u32 vcc, {r}, v20\nv_cndmask_b32 v{4+r}, 0, v21, vcc')
    a(f'''
    v_mul_u32_u24 v10, 384, v3
    v_lshrrev_b32 v20, 3, v2
    v_mul_u32_u24 v11, 3072, v20
    v_add3_u32 v11, v11, v10, v15
    v_add_u32 v11, 256, v11            ; vvy = (g+8*(n>>3))*384+256+16*(n&7)
    v_lshl_add_u32 v10, v2, 4, v10     ; vvx = g*384+16n
    v_lshrrev_b32 v12, 1, v3
    v_mul_u32_u24 v12, 5120, v12
    v_add_u32 v12, v12, v18            ; vwo = (6(g>>1)+(g&1))*1280+16n
    v_mov_b32 v22, {BIG}
    v_cmp_eq_u32 vcc, 3, v3
    v_cndmask_b32 v13, v18, v22, vcc   ; vwd = g*1280+16n  (g==3 -> out of range)
    v_lshrrev_b32 v20, 1, v3
    v_lshlrev_b32 v20, 9, v20
    v_and_b32 v22, 1, v3
    v_lshl_add_u32 v22, v22, 4, v20
    v_lshl_add_u32 v22, v2, 5, v22
    s_lshl_b32 {sT0}, {sW_}, 11
    v_add_u32 v22, {sT0}, v22
    v_mov_b32 v20, {L_CNT}
    v_mov_b32 v21, 0
    ds_write_b32 v20, v21
    ds_write_b32 v20, v21 offset:4
    ''')
    if EXP & 64: a(f'v_mov_b32 v12, {BIG}\nv_mov_b32 v13, {BIG}')
    if PRD & 8:
        a(f's_cmp_lg_u32 {sW_}, 7\ns_cbranch_scc1 L_noprd8\nv_lshlrev_b32 v62, {PRG}, v1')
        a('s_mov_b32 exec_hi, 0xff' if PRG == 6 else 's_mov_b64 exec, 0xfffff')
        a(f'buffer_load_dword v63, v62, {WS}, {sYB} offen {POL[PRP]}\ns_mov_b64 exec, -1'); a.vm.pop()
        a.label('L_noprd8')
    stamp('pre0')
    if DSEL >= 90:
        a(f's_waitcnt lgkmcnt(0)\nv_mov_b32 v60, s86\nv_mov_b32 v61, 0\ns_lshl_b32 {sT0}, s2, 2\ns_add_u32 {sT0}, {sT0}, {WS_T}\ns_cmp_eq_u32 {sW_}, 0\ns_cselect_b32 {sT0}, {sT0}, {BIG}\ns_mov_b64 exec, 1')
        a(f'buffer_store_dword v60, v61, {WS}, {sT0} offen sc1'); a.vm.pop()
        a('s_mov_b64 exec, -1')
    tagcode = f'''
    s_waitcnt lgkmcnt(0)
    s_mul_i32 s100, s100, 0x9E3779B1
    s_add_u32 s100, s100, 0x7F4A7C15
    s_mul_i32 s101, s101, 0x85EBCA69
    s_add_u32 s101, s101, 0xC2B2AE35
    s_and_b32 {sTG0}, s100, 0xff
    s_and_b32 {sTG1}, s101, 0xff
    '''
    a(tagcode)
    a.role = 'x'; a.wait_vm('x'); a.role = None
    a('s_barrier')
    stamp('bar0')
    if IDL:
        a('s_cmp_lt_u32 s66, 216\ns_cbranch_scc1 L_act')
        fk = (list(a.vm), kissued[0], sissued[0])
        for n_ in range(1, 7):
            while kissued[0] < KU + int((KP0 - KU) * n_ / 6 + 0.5):
                a(f's_waitcnt vmcnt({T-1})'); kload()
            while sissued[0] < int(SB0 * n_ / 6 + 0.5):
                a(f's_waitcnt vmcnt({T-1})'); sload()
        stamp('barA')
        a('s_branch L_nopub')
        a.vm, kissued[0], sissued[0] = fk
        a.label('L_act')
    XS, XO, U, XN, AB, ACC, XV = 24, 44, 184, 184, 200, 216, 168
    for i in range(5): a(f'ds_read_b128 {v4(XS+4*i)}, v18 offset:{L_X+256*i}')
    for pr in range(2):
        for t in range(8): a(f'ds_read_u16 v{XV+8*pr+t}, v19 offset:{L_X+2560*pr+8*t}')
    kmore(1/6)
    a('s_waitcnt lgkmcnt(0)')
    for i in range(20):
        a(f'v_lshlrev_b32 v{U+2*i}, 16, v{XS+i}\nv_and_b32 v{U+2*i+1}, 0xffff0000, v{XS+i}')
    pmore()
    a(f'v_pk_add_f32 v[52:53], v[{U}:{U+1}], v[{U+2}:{U+3}]\nv_pk_add_f32 v[54:55], v[{U+4}:{U+5}], v[{U+6}:{U+7}]')
    for i in range(8, 40, 2):
        d = 52 + (i & 2)
        a(f'v_pk_add_f32 v[{d}:{d+1}], v[{d}:{d+1}], v[{U+i}:{U+i+1}]')
    a('v_pk_add_f32 v[52:53], v[52:53], v[54:55]\nv_add_f32 v52, v52, v53')
    rowred('v_add_f32', 52)
    a(f'v_mul_f32 v56, {f32(-1/640)}, v52')
    kmore(2/6)
    for i in range(0, 40, 2): a(f'v_pk_add_f32 v[{U+i}:{U+i+1}], v[{U+i}:{U+i+1}], v[56:57] op_sel_hi:[1,0]')
    a(f'v_pk_mul_f32 v[52:53], v[{U}:{U+1}], v[{U}:{U+1}]\nv_pk_mul_f32 v[54:55], v[{U+2}:{U+3}], v[{U+2}:{U+3}]')
    for i in range(4, 40, 2):
        d = 52 + (i & 2)
        a(f'v_pk_fma_f32 v[{d}:{d+1}], v[{U+i}:{U+i+1}], v[{U+i}:{U+i+1}], v[{d}:{d+1}]')
    a('v_pk_add_f32 v[52:53], v[52:53], v[54:55]\nv_add_f32 v52, v52, v53')
    rowred('v_add_f32', 52)
    a(f'''
    v_mul_f32 v52, {f32(1/640)}, v52
    v_cvt_pk_bf16_f32 v53, v56, v52
    v_lshlrev_b32 v56, 16, v53
    v_and_b32 v52, 0xffff0000, v53
    v_add_f32 v52, {f32(1e-5)}, v52
    v_cvt_pk_bf16_f32 v52, v52, v52
    v_and_b32 v52, 0xffff0000, v52
    v_sqrt_f32 v52, v52
    v_cvt_pk_bf16_f32 v52, v52, v52
    v_and_b32 v52, 0xffff0000, v52
    v_rcp_f32 v52, v52
    v_lshlrev_b32 v53, 6, v14
    v_add_u32 v54, 128, v53
    ds_bpermute_b32 v58, v53, v56
    ds_bpermute_b32 v60, v54, v56
    ds_bpermute_b32 v24, v53, v52
    ds_bpermute_b32 v26, v54, v52
    ''')
    kmore(3/6)
    for k in range(16): a(f'v_lshlrev_b32 v{XN+k}, 16, v{XV+k}')
    a('s_waitcnt lgkmcnt(0)')
    for pr in range(2):
        for k in range(4):
            r = XN + 8*pr + 2*k
            a(f'v_pk_add_f32 v[{r}:{r+1}], v[{r}:{r+1}], v[{58+2*pr}:{59+2*pr}] op_sel_hi:[1,0]')
    for k in range(8): a(f'v_cvt_pk_bf16_f32 v{XO+k}, v{XN+2*k}, v{XN+2*k+1}')
    for k in range(8): a(f'v_lshlrev_b32 v{XN+2*k}, 16, v{XO+k}\nv_and_b32 v{XN+2*k+1}, 0xffff0000, v{XO+k}')
    for pr in range(2):
        for k in range(4):
            r = XN + 8*pr + 2*k
            a(f'v_pk_mul_f32 v[{r}:{r+1}], v[{r}:{r+1}], v[{24+2*pr}:{25+2*pr}] op_sel_hi:[1,0]')
    for k in range(16): a(f'v_cvt_pk_bf16_f32 v{XN+k}, v{XN+k}, v{XN+k}')
    stamp('ln')
    kmore(4/6)
    if PP:
        while wiss[0] < 8: pstep()
    for t in range(8):
        for pr in range(2):
            ab = AB + 4*((2*t + pr) & 3)
            for r in range(4): a(f'v_and_b32 v{ab+r}, v{XN+8*pr+t}, v{4+r}')
        a.wait_vm(f'w{t}')
        for pr in range(2):
            ab = AB + 4*((2*t + pr) & 3); d = v4(ACC + 4*pr)
            a(f'v_mfma_f32_16x16x32_bf16 {d}, {v4(ab)}, {v4(WT+4*t)}, {0 if t == 0 else d}')
        if PP:
            idx = max(k for k, (tg, r) in enumerate(a.vm) if tg == f'w{t}')
            while len(a.vm) - 1 - idx < TP: pstep(False)
        elif t == 3: kmore(5/6)
    stamp('wland')
    kmore(1)
    if PP: KP0 = kissued[0]
    a(f's_cmp_eq_u32 {sW_}, 7\ns_cbranch_scc1 L_nopart')
    for pr in range(2): a(f'ds_write_b128 v22, {v4(ACC+4*pr)} offset:{1024*pr}')
    a.label('L_nopart')
    a('s_waitcnt lgkmcnt(0)\ns_barrier')
    stamp('barA')
    def padd(d, s_, n):
        for r in range(0, n, 2): a(f'v_pk_add_f32 v[{d+r}:{d+r+1}], v[{d+r}:{d+r+1}], v[{s_+r}:{s_+r+1}]')
    a(f'''
    s_cmp_lt_u32 {sW_}, 6
    s_cbranch_scc1 L_nopub
    v_and_b32 v14, 127, v0
    v_lshlrev_b32 v15, 4, v14
    ''')
    for u in range(7): a(f'ds_read_b128 {v4(16+4*u)}, v15 offset:{2048*u}')
    a(f'''
    v_lshrrev_b32 v14, 5, v14
    s_mov_b32 {sT0}, {36864-512}
    v_mad_u32_u24 v14, v14, {sT0}, v15     ; b*36864 + 16*(t&31)
    s_mul_i32 {sT0}, s93, 147456
    s_lshl_b32 {sT2}, s92, 9
    s_add_u32 {sT0}, {sT0}, {sT2}
    s_add_u32 {sT0}, {sT0}, {WS_P}
    s_cmp_ge_u32 s66, {216 if not (EXP & 8) else 0}
    s_cselect_b32 {sT0}, {BIG}, {sT0}
    s_waitcnt lgkmcnt(0)
    ''')
    padd(16, 32, 12); padd(16, 24, 8); padd(16, 20, 4)
    a(f'''
    v_add_u32 v16, 0x80, v16
    v_add_u32 v18, 0x80, v18
    v_and_b32 v16, 0xffffff00, v16
    v_and_b32 v18, 0xffffff00, v18
    v_or_b32 v16, {sTG0}, v16
    v_or_b32 v18, {sTG1}, v18
    ''')
    a(f'buffer_store_dwordx4 v[16:19], v14, {WS}, {sT0} offen {POL[PUBP]}'); a.vm.pop()
    a.label('L_nopub')
    kseq = []
    si = 0
    NR_ = NS - sissued[0]
    for i in range(KP0, 48):
        kseq.append('k')
        while si < NR_ and (si + 1) * (SEND - KP0) <= (i + 1 - KP0) * NR_:
            kseq.append('s'); si += 1
    assert si == NR_
    kp = [0]
    def kstep(paced):
        op = kseq[kp[0]]; kp[0] += 1
        if paced: a(f's_waitcnt vmcnt({T-1})')
        if op == 'k': kload()
        else: sload()
    if YP == 2:
        a(f's_cmp_lt_u32 {sW_}, 4\ns_cbranch_scc1 L_noyp\ns_setprio 1'); a.label('L_noyp')
    for _ in range(T - 1): kstep(True)
    stamp('sig')
    if PRD & 6:
        a(f's_cmp_lg_u32 {sW_}, 3\ns_cbranch_scc1 L_noprd2\nv_lshlrev_b32 v62, {PRG}, v1')
        if PRD & 2:
            a('s_mov_b32 exec_hi, 0xff' if PRG == 6 else 's_mov_b64 exec, 0xfffff')
            a(f'buffer_load_dword v63, v62, {WS}, {sYB} offen {POL[PRP]}'); a.vm.pop()
        if PRD & 4:
            a(f's_mov_b64 exec, 3\nbuffer_load_dword v63, v62, {WS}, {sSOWN} offen {POL[PRP]}'); a.vm.pop()
        a('s_mov_b64 exec, -1')
        a.label('L_noprd2')
    while kissued[0] < KPOLL: kstep(True)
    a(f's_cmp_eq_u32 {sW_}, 0\ns_cbranch_scc1 L_w0')
    fork = (list(a.vm), kissued[0], kp[0], sissued[0])
    while kp[0] < len(kseq): kstep(True)
    stamp('kiss'); stamp('poll'); stamp('qrdy')
    a('s_branch L_join')
    vm_join = list(a.vm)
    a.vm, kissued[0], kp[0], sissued[0] = fork
    a.label('L_w0')
    a(f'''
    v_min_u32 v60, 59, v1
    v_lshlrev_b32 v60, 2, v60
    s_mul_i32 {sT0}, {sH}, 192
    s_mul_i32 {sT2}, {sP}, 24
    s_add_u32 {sT2}, {sT2}, {6144-192}
    s_add_u32 {sT3}, {sT2}, {1536-24}
    v_mov_b32 v61, {sT0}
    v_mov_b32 v62, {sT2}
    v_cmp_le_u32 vcc, 48, v1
    v_cndmask_b32 v61, v61, v62, vcc
    v_mov_b32 v62, {sT3}
    v_cmp_le_u32 vcc, 54, v1
    v_cndmask_b32 v61, v61, v62, vcc
    v_add_u32 v60, v60, v61
    v_lshlrev_b32 v60, 2, v60
    s_mul_i32 s44, {sB}, 36864
    s_add_u32 s44, s44, {WS_P}
    s_add_u32 s45, s44, 147456
    s_add_u32 s46, s44, 294912
    s_mov_b32 {sT1}, {SPIN}
    ''')
    if EXP & 2: a(f'v_mov_b32 v60, {BIG}')
    for t in range(3): a(f'buffer_load_dwordx4 {v4(16+4*t)}, v60, {WS}, s{44+t} offen {POL[GLP]}', tag='gq')
    for _ in range(W0N): kstep(False)
    for _ in range(W0P): kstep(True)
    a.wait_vm('gq')
    a.label('L_spin1')
    for t in range(3): a(f'v_xor_b32 v{16+4*t}, {sTG0}, v{16+4*t}\nv_xor_b32 v{18+4*t}, {sTG1}, v{18+4*t}')
    a(f'''
    v_or3_b32 v14, v16, v18, v20
    v_or3_b32 v15, v22, v24, v26
    v_or_b32 v14, v14, v15
    v_and_b32 v14, 0xff, v14
    v_cmp_ne_u32 vcc, 0, v14
    s_cbranch_vccz L_ok1
    s_sub_u32 {sT1}, {sT1}, 1
    s_cbranch_scc1 L_ok1
    s_sleep {SLP}
    ''')
    for t in range(3):
        a(f'buffer_load_dwordx4 {v4(16+4*t)}, v60, {WS}, s{44+t} offen {POL[GLP]}'); a.vm.pop()
    a('s_waitcnt vmcnt(0)\ns_branch L_spin1')
    a.label('L_ok1')
    stamp('poll')
    padd(16, 20, 4); padd(16, 24, 4)
    a(f'''
    v_cvt_pk_bf16_f32 v16, v16, v17
    v_cvt_pk_bf16_f32 v17, v18, v19
    v_lshlrev_b32 v14, 3, v1
    ds_write_b64 v14, v[16:17] offset:{L_Q}
    v_min_u32 v14, 23, v1
    v_lshlrev_b32 v14, 1, v14
    s_waitcnt lgkmcnt(0)
    ds_read_u16 v20, v14 offset:{L_Q+384}
    ds_read_u16 v21, v14 offset:{L_Q+432}
    s_waitcnt lgkmcnt(0)
    v_lshlrev_b32 v20, 16, v20
    v_lshlrev_b32 v21, 16, v21             ; up
    v_mul_f32 v22, v20, v20
    v_mul_f32 v22, {f32(0.044715)}, v22
    v_fma_f32 v22, v22, v20, v20           ; x + c x^3
    v_mul_f32 v22, {f32(-2*0.7978845608028654*L2E)}, v22
    v_exp_f32 v22, v22
    v_add_f32 v22, 1.0, v22
    v_rcp_f32 v22, v22
    v_mul_f32 v22, v22, v20
    v_cvt_pk_bf16_f32 v22, v22, v22
    v_and_b32 v22, 0xffff0000, v22
    v_mul_f32 v22, v22, v21
    v_cvt_pk_bf16_f32 v22, v22, v22
    v_cmp_gt_u32 vcc, 24, v1
    v_cndmask_b32 v22, 0, v22, vcc
    v_min_u32 v14, 31, v1
    v_lshlrev_b32 v14, 2, v14
    ds_write_b32 v14, v22 offset:{L_HID}
    v_mov_b32 v14, {L_CNT}
    v_mov_b32 v15, 1
    s_waitcnt lgkmcnt(0)
    ds_write_b32 v14, v15 offset:4
    ''')
    def xred8(base, n, tmp):
        for r in range(n): a(f'v_add_f32_dpp v{base+r}, v{base+r}, v{base+r} row_ror:8 row_mask:0xf bank_mask:0xf')
        for sw in ('v_permlane16_swap_b32', 'v_permlane32_swap_b32'):
            for r in range(n): a(f'v_mov_b32 v{tmp+r}, v{base+r}')
            for r in range(n): a(f'{sw} v{base+r}, v{tmp+r}')
            padd(base, tmp, n)
    stamp('qrdy')
    while kp[0] < len(kseq): kstep(True)
    stamp('kiss')
    a.vm = vm_join
    a.label('L_join')
    a(f'v_mov_b32 v14, {L_CNT}\ns_mov_b32 {sT1}, {1<<24}')
    a.label('L_spinq')
    a(f'''
    ds_read_b32 v15, v14 offset:4
    s_waitcnt lgkmcnt(0)
    v_readfirstlane_b32 {sT0}, v15
    s_cmp_lg_u32 {sT0}, 0
    s_cbranch_scc1 L_okq
    s_sub_u32 {sT1}, {sT1}, 1
    s_cbranch_scc1 L_okq
    s_sleep 1
    s_branch L_spinq
    ''')
    a.label('L_okq')
    stamp('barB')
    if DBGS:
        a(f's_mul_i32 s74, s2, 0x2545F491\ns_add_u32 s74, s74, {sW_}\ns_mul_i32 s74, s74, 0x9E3779B1\ns_lshr_b32 s74, s74, 27\ns_cmp_lg_u32 s74, 5\ns_cbranch_scc1 L_nodbg2')
        for _ in range(DBGS >> 3): a('s_sleep 127')
        a.label('L_nodbg2')
    a(f'''
    v_and_b32 v14, 3, v2
    v_lshl_add_u32 v15, v3, 2, v14
    v_lshlrev_b32 v15, 4, v15
    ds_read_b128 v[56:59], v15 offset:{L_Q}
    v_and_b32 v15, 0x70, v15
    ds_read_b128 v[60:63], v15 offset:{L_Q+256}
    ''')
    mX = [lanemask(lambda m, g, u=u: (m >> 2) == u) for u in range(4)]
    mY = [lanemask(lambda m, g, w=w: (m >> 2) == 2*w + (g >> 1)) for w in range(2)]
    for k, m in enumerate(mX + mY):
        a(f's_mov_b32 s{44+2*k}, {hex(m & 0xffffffff)}\ns_mov_b32 s{45+2*k}, {hex(m >> 32)}')
    a('s_waitcnt lgkmcnt(0)')
    for k in range(6):
        src = 56 if k < 4 else 60
        for r in range(4): a(f'v_cndmask_b32 v{32+4*k+r}, 0, v{src+r}, s[{44+2*k}:{45+2*k}]')
    vissued = [0]
    def vreg(i): return kt(i % RV)
    def vload():
        i = vissued[0]; g, e = divmod(i, 6); c, x = divmod(e, 3)
        if e == 0:
            grp(g)
            a(f's_add_u32 {sKV2}, {sKV}, 3072')
        if x == 0:   a(f'buffer_load_dwordx4 {vreg(i)}, v10, {V}, {sKV} offen offset:{1536*c} {POL[KVPOL]}', tag=f'v{i}')
        elif x == 1: a(f'buffer_load_dwordx4 {vreg(i)}, v10, {V}, {sKV2} offen offset:{1536*c} {POL[KVPOL]}', tag=f'v{i}')
        else:        a(f'buffer_load_dwordx4 {vreg(i)}, v11, {V}, {sKV} offen offset:{1536*c} {POL[KVPOL]}', tag=f'v{i}')
        vissued[0] += 1
    assert RV <= 12
    extras = [('wd', c) for c in range(5)] + [('wo', n) for n in range(NS, 30)]
    xiss = [0]
    def xtile(e): return WDT + e[1] if e[0] == 'wd' else WOT + e[1]
    def xload():
        e = extras[xiss[0]]
        if e[0] == 'wd':
            a(f'buffer_load_dwordx4 {kt(xtile(e))}, v13, {WD}, {sWDB} offen offset:{256*e[1]} {POL[WPOL]}', tag='wd')
        else:
            so, imm = wotile(e[1])
            a(f'buffer_load_dwordx4 {kt(xtile(e))}, v12, {WO}, {so} offen offset:{imm} {POL[WPOL]}', tag=f'wo{e[1]}')
        xiss[0] += 1
    SC = 0.07216878364870322
    def score_post(g):
        d = 24 + 4*(g & 1); s_ = 16 + g
        a(f'''
        v_mov_b32_dpp v{s_}, v{d} quad_perm:[0,0,0,0] row_mask:0xf bank_mask:0xf
        v_mov_b32_dpp v14, v{d+2} quad_perm:[2,2,2,2] row_mask:0xf bank_mask:0xf
        v_add_f32_dpp v{s_}, v{d+1}, v{s_} quad_perm:[1,1,1,1] row_mask:0xf bank_mask:0xf
        v_add_f32_dpp v14, v{d+3}, v14 quad_perm:[3,3,3,3] row_mask:0xf bank_mask:0xf
        v_add_f32 v{s_}, v{s_}, v14
        ''')
        if NOS < 1: a(f'v_cvt_pk_bf16_f32 v{s_}, v{s_}, v{s_}\nv_and_b32 v{s_}, 0xffff0000, v{s_}')
        a(f'v_mul_f32 v{s_}, {f32(SC)}, v{s_}')
        if NOS < 2: a(f'v_cvt_pk_bf16_f32 v{s_}, v{s_}, v{s_}\nv_and_b32 v{s_}, 0xffff0000, v{s_}')
    nx = len(extras) - XL
    span = 48 - XBEG - XEND
    seq = []
    xi = 0
    for i in range(48):
        seq.append('v')
        if i == SLI: seq.append('sl')
        if WDB and xi < 5 and i >= XBEG:
            seq.append('x'); xi += 1
        while xi < nx and i >= XBEG and (xi + 1) * span <= (i + 1 - XBEG) * nx:
            seq.append('x'); xi += 1
    assert xi == nx
    seq += ['x'] * XL
    nx += XL
    sp = [0]
    did_wd = [False]
    SS = KB + 4*47
    NPL = 4 if HB else 8
    st = KB + 4*WDT
    GF = st + 12
    def statload():
        a(f'''
        v_and_b32 v8, 1, v1
        v_lshlrev_b32 v8, 7, v8
        ''')
        if HB: a(f'''
        s_lshr_b32 s95, {sP}, 3
        s_mul_i32 s95, s95, 5
        s_and_b32 {sT2}, {sP}, 7
        s_add_u32 s95, s95, {sT2}
        s_mul_i32 {sT0}, {sB}, 1280
        s_lshl_b32 {sT1}, s95, 5
        s_add_u32 s96, {sT0}, {sT1}
        s_cmp_lt_u32 {sT2}, 5
        s_cselect_b32 s97, 1, 0
        ''')
        else: a(f'''
        s_mul_i32 s95, {sP}, 43691
        s_lshr_b32 s95, s95, 17
        s_mul_i32 {sT0}, {sB}, 1280
        s_lshl_b32 {sT1}, s95, 6
        s_add_u32 s96, {sT0}, {sT1}
        s_mul_i32 {sT0}, s95, 3
        s_mov_b32 s97, 1
        s_cmp_lg_u32 {sT0}, {sP}
        s_cselect_b32 s97, 0, s97
        s_cmp_ge_u32 s95, 20
        s_cselect_b32 s97, 0, s97
        ''')
        a(f'''
        s_cmp_lg_u32 {sW_}, 7
        s_cselect_b32 s97, 0, s97
        v_lshlrev_b32 v9, 9, v1
        s_mov_b32 s98, {WS_S}
        s_cmp_eq_u32 s2, 0
        s_cselect_b32 s99, s97, 0
        s_cmp_eq_u32 s99, 0
        s_cbranch_scc1 L_nogf
        ''')
        for k in range(4):
            a(f'buffer_load_dword v{GF+k}, v9, {WS}, s98 offen offset:{128*k+4} sc1'); a.vm.pop()
        a.label('L_nogf')
        a(f'buffer_load_dwordx4 {v4(SS)}, v8, {WS}, {sSB} offen sc1', tag='sl')
    def pump(lasttag, kfree, vcons, boost=0):
        while sp[0] < len(seq):
            idx = max(k for k, (t, r) in enumerate(a.vm) if t == lasttag)
            if len(a.vm) - 1 - idx >= (TV if vcons < VE else TVE) + boost: break
            op = seq[sp[0]]
            if op == 'v':
                i = vissued[0]
                if i < RV:
                    if i >= kfree: break
                elif i - RV >= vcons: break
                vload()
            elif op == 'x':
                if xtile(extras[xiss[0]]) >= kfree: break
                xload()
            else:
                assert did_wd[0]
                statload()
            sp[0] += 1
    done = [t for (t, r) in a.vm[:len(a.vm) - T]]
    known = max(int(t[1:]) for t in done if t and t[0] == 'k' and t[1:].isdigit())
    a.wait_vm(f'k{known}')
    for g in range(8):
        d = v4(24 + 4*(g & 1))
        for e in range(6):
            i = 6*g + e
            if i > known:
                a.wait_vm(f'k{i}'); known = i
            a(f'v_mfma_f32_16x16x32_bf16 {d}, {v4(32+4*KO[e])}, {kt(i)}, {0 if e == 0 else d}')
            if i == known: pump(f'k{known}', i + 1, 0, TBO if i == 47 else TB0)
        if 6*g + 5 < known and (g % KE) == 0 and known < 47:
            known += 1
            a.wait_vm(f'k{known}')
            pump(f'k{known}', 6*g + 6, 0, TB0)
        if g > 0: score_post(g-1)
    score_post(7)
    if NS:
        a.wait_vm('stg')
        a(f'v_lshlrev_b32 v14, 4, v1\nv_add_u32 v14, {sSTG}, v14')
        for n in range(NS): a(f'ds_read_b128 {kt(WOT+n)}, v14 offset:{1024*n}')
    def allred(op, r, t):
        rowred(op, r, (4, 8))
        a(f'v_mov_b32 v{t}, v{r}\nv_permlane16_swap_b32 v{r}, v{t}\n{op} v{r}, v{r}, v{t}')
        a(f'v_mov_b32 v{t}, v{r}\nv_permlane32_swap_b32 v{r}, v{t}\n{op} v{r}, v{r}, v{t}')
    a('v_max3_f32 v28, v16, v17, v18\nv_max3_f32 v15, v19, v20, v21\nv_max3_f32 v28, v28, v22, v23\nv_max_f32 v28, v28, v15')
    allred('v_max_f32', 28, 15)
    for g in range(8): a(f'v_sub_f32 v{16+g}, v{16+g}, v28')
    for g in range(8): a(f'v_mul_f32 v{16+g}, {f32(L2E)}, v{16+g}')
    for g in range(8): a(f'v_exp_f32 v{16+g}, v{16+g}')
    a('v_add_f32 v30, v16, v17\nv_add_f32 v24, v18, v19\nv_add_f32 v25, v20, v21\nv_add_f32 v26, v22, v23\nv_add_f32 v30, v30, v24\nv_add_f32 v25, v25, v26\nv_add_f32 v30, v30, v25')
    allred('v_add_f32', 30, 24)
    for g in range(8):
        if not (PSC and g > GST): a(f'v_cvt_pk_bf16_f32 v{16+g}, v{16+g}, v{16+g}')
    a(f'''
    v_readfirstlane_b32 {sM}, v28          ; own m
    v_mov_b32 v29, v30
    s_lshl_b32 {sT0}, {sW_}, 3
    v_mov_b32 v24, {sT0}
    v_mov_b32 v25, 0
    v_mov_b32 v26, 1
    s_mov_b64 exec, 1
    ds_write_b64 v24, v[28:29] offset:{L_CNT+64}
    ds_add_rtn_u32 v27, v25, v26 offset:{L_CNT}
    s_mov_b64 exec, -1
    s_waitcnt lgkmcnt(0)
    v_readfirstlane_b32 {sT0}, v27
    s_cmp_lg_u32 {sT0}, 7
    s_cbranch_scc1 L_nostat
    v_and_b32 v24, 7, v1
    v_lshlrev_b32 v25, 3, v24
    ds_read_b64 v[26:27], v25 offset:{L_CNT+64}
    v_lshlrev_b32 v24, 4, v24
    s_waitcnt lgkmcnt(0)
    v_mov_b32 v28, v26
    ''')
    rowred('v_max_f32', 28, (4, 2, 1))
    a(f'v_sub_f32 v26, v26, v28\nv_mul_f32 v26, {f32(L2E)}, v26\nv_exp_f32 v26, v26\nv_mul_f32 v30, v26, v27')
    rowred('v_add_f32', 30, (4, 2, 1))
    a(f'''
    v_mov_b32 v29, s100
    v_mov_b32 v31, s101
    s_mov_b64 exec, {(1 << SLN) - 1}
    buffer_store_dwordx4 v[28:31], v24, {WS}, {sSOWN} offen {POL[STP]}
    s_mov_b64 exec, -1
    ''')
    a.vm.pop()
    a.label('L_nostat')
    stamp('smax')
    YA, OA = 44, 32
    a(f'''
    s_mul_i32 {sT0}, {sW_}, 12
    v_lshlrev_b32 v24, 2, v3
    v_add_u32 v24, {sT0}, v24
    v_mov_b32 v25, 124
    v_cmp_eq_u32 vcc, 3, v3
    v_cndmask_b32 v24, v24, v25, vcc
    ds_read_b32 v14, v24 offset:{L_HID}
    s_waitcnt lgkmcnt(0)
    ''')
    for g in range(8):
        if PK and OM and g == 7:
            a('v_mov_b32 v12, 0xffff\nv_mov_b32 v13, 0xffff0000')
            for hi, (m0, m1) in enumerate((('s[44:45]', 's[46:47]'), ('s[16:17]', 's[18:19]'))):
                a(f'v_cndmask_b32 v{56+4*hi}, 0, v12, {m0}\nv_cndmask_b32 v{57+4*hi}, 0, v12, {m1}\nv_cndmask_b32 v{58+4*hi}, 0, v13, {m0}\nv_cndmask_b32 v{59+4*hi}, 0, v13, {m1}')
        elif AM and g == 7:
            assert sp[0] == len(seq)
            a('v_mov_b32 v12, 0xffff\nv_mov_b32 v13, 0xffff0000\nv_cndmask_b32 v8, 0, v12, s[44:45]\nv_cndmask_b32 v9, 0, v12, s[46:47]\nv_cndmask_b32 v10, 0, v13, s[44:45]\nv_cndmask_b32 v11, 0, v13, s[46:47]')
        if YP == 1 and g == YPG:
            a(f's_cmp_lt_u32 {sW_}, 4\ns_cbranch_scc1 L_noyp\ns_setprio 1'); a.label('L_noyp')
        for c in range(2):
            A = 24 + 4*c
            if c == 0: a(f'v_mov_b32 v15, v{16+g}\nv_mov_b32_dpp v15, v{16+g} row_shr:4 row_mask:0xf bank_mask:0xa')
            else:      a(f'v_mov_b32 v15, v{16+g}\nv_mov_b32_dpp v15, v{16+g} row_shl:4 row_mask:0xf bank_mask:0x5')
            for r in range(4): a(f'v_and_b32 v{A+r}, v15, v{4+r}')
            for x in range(3):
                i = 6*g + 3*c + x
                d = v4(OA + 4*x)
                a.wait_vm(f'v{i}')
                stamp(f'vc{i}')
                a(f'v_mfma_f32_16x16x32_bf16 {d}, {v4(A)}, {vreg(i)}, {0 if i < 3 else d}')
                pump(f'v{i}', 48, i + 1)
        if g == GWD:
            did_wd[0] = True
            assert xiss[0] >= 5
            if J2:
                a('v_or3_b32 v15, v4, v5, v6\nv_or_b32 v15, v15, v7\nv_and_b32 v15, v15, v14')
                for r in range(4):
                    m_ = 0x00030003 << (4*r)
                    a(f's_mov_b32 s44, {hex(m_)}\ns_mov_b32 s45, {hex(m_)}\nv_cndmask_b32 v{24+r}, 0, v15, s[44:45]')
                a.wait_vm('wd')
                for c in range(5):
                    a(f'v_mfma_f32_16x16x32_bf16 {v4(YA+4*c)}, v[24:27], {kt(WDT+c)}, 0')
            elif PK:
                a('s_mov_b32 s44, 0x00ff00ff\ns_mov_b32 s45, 0x00ff00ff\nv_cndmask_b32 v15, 0, v14, s[44:45]\nv_cndmask_b32 v14, v14, 0, s[44:45]')
                for r in range(4): a(f'v_and_b32 v{24+r}, v15, v{4+r}')
                for r in range(4): a(f'v_and_b32 v{28+r}, v14, v{4+r}')
                a.wait_vm('wd')
                for c in (0, 2, 4, 1, 3):
                    d = v4(YA+4*(c>>1))
                    a(f'v_mfma_f32_16x16x32_bf16 {d}, {v4(24+4*(c&1))}, {kt(WDT+c)}, {d if c & 1 else 0}')
            else:
                for r in range(4): a(f'v_and_b32 v{24+r}, v14, v{4+r}')
                a.wait_vm('wd')
                for c in range(5):
                    a(f'v_mfma_f32_16x16x32_bf16 {v4(YA+4*c)}, v[24:27], {kt(WDT+c)}, 0')
        if g == GST:
            a(f's_mov_b32 {sT1}, {SPIN}')
            a.wait_vm('sl')
            a.label('L_spin2')
            a(f'''
            v_cmp_ne_u32 vcc, s100, v{SS+1}
            v_cmp_ne_u32 s[44:45], s101, v{SS+3}
            s_or_b64 vcc, vcc, s[44:45]
            s_cbranch_scc0 L_ok2
            s_sub_u32 {sT1}, {sT1}, 1
            s_cbranch_scc1 L_ok2
            s_sleep 4
            buffer_load_dwordx4 {v4(SS)}, v8, {WS}, {sSB} offen sc1
            s_waitcnt vmcnt(0)
            s_branch L_spin2
            ''')
            a.vm.pop()
            a.label('L_ok2')
            a(f'''
            s_cmp_eq_u32 s99, 0
            s_cbranch_scc1 L_ok2b
            s_mov_b32 {sT1}, {SPIN}
            ''')
            a.label('L_spin2b')
            a(f'''
            v_cmp_ne_u32 vcc, s100, v{GF}
            v_cmp_ne_u32 s[44:45], s100, v{GF+1}
            v_cmp_ne_u32 s[46:47], s100, v{GF+2}
            v_cmp_ne_u32 s[48:49], s100, v{GF+3}
            s_or_b64 vcc, vcc, s[44:45]
            s_or_b64 s[46:47], s[46:47], s[48:49]
            s_or_b64 vcc, vcc, s[46:47]
            s_cbranch_scc0 L_ok2c
            s_sub_u32 {sT1}, {sT1}, 1
            s_cbranch_scc1 L_ok2c
            s_sleep {SLP}
            ''')
            for k in range(4):
                a(f'buffer_load_dword v{GF+k}, v9, {WS}, s98 offen offset:{128*k+4} sc1'); a.vm.pop()
            a('s_waitcnt vmcnt(0)\ns_branch L_spin2b')
            a.label('L_ok2c')
            a(f'''
            s_mov_b32 {sT2}, {WS_E}
            v_mov_b32 v{GF}, s100
            v_mov_b32 v{GF+1}, s101
            s_mov_b64 exec, 1
            buffer_store_dwordx2 v[{GF}:{GF+1}], v9, {WS}, {sT2} offen sc1
            s_mov_b64 exec, -1
            ''')
            a.vm.pop()
            a.label('L_ok2b')
            a(f'v_mov_b32 v{st+6}, v{SS}')
            rowred('v_max_f32', st+6, (1,))
            a(f'''
            v_sub_f32 v{st}, v{SS}, v{st+6}
            v_sub_f32 v{st+7}, {sM}, v{st+6}
            v_mul_f32 v{st}, {f32(L2E)}, v{st}
            v_mul_f32 v{st+7}, {f32(L2E)}, v{st+7}
            v_exp_f32 v{st}, v{st}
            v_exp_f32 v{st+7}, v{st+7}
            v_mul_f32 v{st}, v{st}, v{SS+2}
            ''')
            rowred('v_add_f32', st, (1,))
            a(f'''
            v_rcp_f32 v{st}, v{st}
            v_mul_f32 v14, v{st}, v{st+7}          ; factor
            ''')
            if PSC:
                for r in range(12): a(f'v_mul_f32 v{OA+r}, v{OA+r}, v14')
                for gg in range(GST + 1, 8):
                    a(f'v_mul_f32 v{16+gg}, v{16+gg}, v14\nv_cvt_pk_bf16_f32 v{16+gg}, v{16+gg}, v{16+gg}')
            a(f'''
            v_and_b32 v{st+5}, {3 if HB else 7}, v1
            v_lshlrev_b32 v{st+5}, 3, v{st+5}
            v_and_b32 v{st+3}, 1, v3
            v_lshlrev_b32 v{st+3}, 2, v{st+3}
            v_and_b32 v{st+4}, 2, v3
            v_add3_u32 v{st+3}, v{st+3}, v{st+4}, v{st+5}
            s_min_u32 {sT0}, s96, {5088 if HB else 5056}
            v_add_u32 v{st+4}, {sT0}, v{st+3}
            ds_read_u16 v{st+2}, v{st+4} offset:{L_X}
            ''')
            if not J2: a(f'''
            v_and_b32 v{st+15}, 3, v2
            v_mul_u32_u24 v{st+15}, 0x5555, v{st+15}
            s_mov_b32 s44, 0x0f0f0f0f
            s_mov_b32 s45, 0x0f0f0f0f
            s_mov_b32 s46, 0xf0f0f0f0
            s_mov_b32 s47, 0xf0f0f0f0
            ''')
            a(f'''
            v_lshrrev_b32 v{st+6}, 1, v3
            ''')
            if not (OM and J2): a(f'''
            s_lshl_b32 {sT0}, {sW_}, 1
            v_add_u32 v{st+7}, {sT0}, v{st+6}
            v_mul_u32_u24 v{st+7}, 784, v{st+7}
            v_and_b32 v{st+8}, 1, v3
            v_lshlrev_b32 v{st+11}, 4, v{st+8}
            v_add_u32 v{st+7}, v{st+7}, v{st+11}
            v_lshl_add_u32 v{st+8}, v2, 5, v{st+7}
            v_and_b32 v{st+9}, 7, v2
            v_lshl_add_u32 v{st+9}, v{st+9}, 5, v{st+7}
            v_add_u32 v{st+9}, 512, v{st+9}
            v_lshrrev_b32 v{st+7}, 3, v2
            v_cmp_eq_u32 vcc, v{st+7}, v{st+6}
            v_lshlrev_b32 v{st+7}, 4, v1
            v_add_u32 v{st+7}, {L_DUM}, v{st+7}
            v_cndmask_b32 v{st+9}, v{st+7}, v{st+9}, vcc
            v_mul_u32_u24 v{st+10}, 784, v2
            v_mul_u32_u24 v{st+7}, 24, v3
            s_mul_i32 {sT0}, {sW_}, 96
            v_add3_u32 v{st+10}, v{st+10}, v{st+7}, {sT0}
            s_mul_i32 {sT0}, {sW_}, 3200
            v_mul_u32_u24 v{st+11}, 24, v{st+11}
            v_lshl_add_u32 v{st+11}, v2, 4, v{st+11}
            v_add_u32 v{st+11}, {sT0}, v{st+11}           ; y write: 3200w + 384(g&1) + 16n
            ''')
            if YR == 0: a(f'''
            v_and_b32 v{st+13}, 31, v1
            v_lshrrev_b32 v{st+7}, 1, v{st+13}
            v_lshlrev_b32 v{st+13}, 4, v{st+13}
            s_lshl_b32 {sT0}, {sW_}, 9
            v_add_u32 v{st+13}, {sT0}, v{st+13}
            v_mul_u32_u24 v{st+12}, 12800, v{st+6}
            v_lshl_add_u32 v{st+12}, v{st+7}, 4, v{st+12}
            v_and_b32 v{st+7}, 1, v1
            v_mul_u32_u24 v{st+7}, 384, v{st+7}
            s_mul_i32 {sT0}, {sW_}, 640
            v_add3_u32 v{st+12}, v{st+12}, v{st+7}, {sT0}  ; y read: 12800(l>>5) + 640w + 384(l&1) + 16((l&31)>>1)
            ''')
            a(f'''
            v_lshrrev_b32 v{st+14}, 3, v1
            v_mul_u32_u24 v{st+14}, {5120 if HB else 2560}, v{st+14}
            v_and_b32 v{st+5}, 7, v1
            v_lshl_add_u32 v{st+14}, v{st+5}, 4, v{st+14}
            s_mul_i32 s94, {sB}, {64*2560}
            s_lshl_b32 {sT0}, s95, 7
            s_add_u32 s94, s94, {sT0}
            ''')
            for i in range(NPL): a(f's_add_u32 s{48+i}, s94, {8*(5120 if HB else 2560)*i}')
            if PK:
                for k, (r_, m_) in enumerate(((44, 0x000f000f), (46, 0x00f000f0), (16, 0x0f000f00), (18, 0xf000f000))):
                    a(f's_mov_b32 s{r_}, {hex(m_)}\ns_mov_b32 s{r_+1}, {hex(m_)}')
                a(f'v_mul_u32_u24 v{st+7}, 640, v{st+6}\nv_add_u32 v{st+11}, v{st+11}, v{st+7}')
            if OM:
                a(f'''
                v_and_b32 v{st+7}, 1, v3
                v_lshl_add_u32 v{st+8}, v2, 1, v{st+7}          ; quad 2n+(g&1)
                v_and_b32 v{st+9}, 15, v{st+8}
                v_add_u32 v{st+9}, 32, v{st+9}                  ; quad 32+2(n&7)+(g&1)
                v_and_b32 v{st+7}, 2, v3
                s_lshl_b32 {sT0}, {sW_}, 2
                v_add_u32 v{st+7}, {sT0}, v{st+7}               ; 2*(2w+(g>>1))
                s_movk_i32 {sT2}, 136
                v_mad_u32_u24 v{st+8}, v{st+8}, {sT2}, v{st+7}
                v_mad_u32_u24 v{st+9}, v{st+9}, {sT2}, v{st+7}
                v_lshrrev_b32 v{st+7}, 3, v2
                v_cmp_eq_u32 vcc, v{st+7}, v{st+6}
                v_lshlrev_b32 v{st+7}, 2, v1
                v_add_u32 v{st+7}, {L_DUM}, v{st+7}
                v_cndmask_b32 v{st+9}, v{st+7}, v{st+9}, vcc
                v_lshrrev_b32 v{st+7}, 2, v2
                v_mul_u32_u24 v{st+7}, 6, v{st+7}
                s_mul_i32 {sT0}, {sW_}, 24
                v_add_u32 v{st+7}, {sT0}, v{st+7}               ; 24w+6(i>>2)
                v_and_b32 v{st+10}, 3, v2
                v_add_u32 v{st+10}, v{st+10}, v{st+7}
                v_and_b32 v{st+19}, 1, v2
                v_add3_u32 v{st+19}, v{st+19}, v{st+7}, 4
                ''')
                for r_ in (st+10, st+19):
                    a(f'''
                    v_lshrrev_b32 v{st+7}, 2, v{r_}
                    v_lshlrev_b32 v{st+7}, 3, v{st+7}
                    v_lshl_add_u32 v{r_}, v{r_}, 5, v{st+7}
                    v_lshl_add_u32 v{r_}, v3, 3, v{r_}          ; 32d+8(d>>2)+8g
                    ''')
                a(f'v_mov_b32 v{st}, 0x3f803f80\nv_mov_b32 v{st+1}, 0x3f803f80')
            if J2:
                assert YR == 1 and AM and not PK
                a(f'''
                s_mov_b32 s44, 0x00330033
                s_mov_b32 s45, 0x00330033
                s_mov_b32 s46, 0x33003300
                s_mov_b32 s47, 0x33003300
                v_bfe_u32 v{st+7}, v2, 2, 1
                v_and_b32 v{st+15}, 1, v2
                v_lshl_add_u32 v{st+15}, v{st+7}, 1, v{st+15}
                v_mul_u32_u24 v{st+15}, 0x5555, v{st+15}
                v_mul_u32_u24 v{st+11}, 192, v3
                v_lshl_add_u32 v{st+11}, v2, 3, v{st+11}
                s_mul_i32 {sT0}, {sW_}, 3840
                v_add_u32 v{st+11}, {sT0}, v{st+11}               ; y write: 3840w + 192g + 8n
                v_and_b32 v{st+7}, 3, v1
                v_mul_u32_u24 v{st+12}, 192, v{st+7}
                v_lshrrev_b32 v{st+7}, 2, v1
                v_lshl_add_u32 v{st+12}, v{st+7}, 3, v{st+12}
                s_mul_i32 {sT0}, {sW_}, 768
                v_add_u32 v{st+12}, {sT0}, v{st+12}               ; y read: 768w + 192(l&3) + 8(l>>2)
                v_and_b32 v{st+7}, 1, v1
                s_lshl_b32 {sT0}, {sW_}, 9
                v_lshl_add_u32 v{st+13}, v1, 3, {sT0}
                v_cmp_eq_u32 vcc, 1, v{st+7}
                v_mov_b32 v{st+18}, {sTG0}
                v_mov_b32 v{st+7}, {sTG1}
                v_cndmask_b32 v{st+18}, v{st+18}, v{st+7}, vcc
                ''')
            elif YR == 1:
                a(f'''
                v_lshrrev_b32 v{st+7}, 2, v1
                v_lshlrev_b32 v{st+12}, 4, v{st+7}
                v_bfe_u32 v{st+7}, v1, 1, 1
                v_mul_u32_u24 v{st+7}, 384, v{st+7}
                s_mul_i32 {sT0}, {sW_}, 640
                v_add3_u32 v{st+12}, v{st+12}, v{st+7}, {sT0}
                v_and_b32 v{st+7}, 1, v1
                v_lshl_add_u32 v{st+12}, v{st+7}, 3, v{st+12}
                s_lshl_b32 {sT0}, {sW_}, 9
                v_lshl_add_u32 v{st+13}, v1, 3, {sT0}
                v_cmp_eq_u32 vcc, 1, v{st+7}
                v_mov_b32 v{st+18}, {sTG0}
                v_mov_b32 v{st+7}, {sTG1}
                v_cndmask_b32 v{st+18}, v{st+18}, v{st+7}, vcc
                ''')
            if HB:
                a(f'''
                v_lshrrev_b32 v{st+7}, 3, v1
                v_lshlrev_b32 v{st+7}, 7, v{st+7}
                v_lshl_add_u32 v{st+13}, v{st+5}, 3, v{st+7}
                s_lshl_b32 {sT0}, {sW_}, 10
                v_add_u32 v{st+13}, {sT0}, v{st+13}
                s_mul_i32 {sT0}, {sS}, {2560-64}
                s_sub_u32 {sYB}, {sYB}, {sT0}
                ''')
            a('s_movk_i32 s98, 0xff')
            a(f'v_mov_b32 v{st+16}, {sTG0}\nv_mov_b32 v{st+17}, {sTG1}')
    assert xiss[0] == nx and sp[0] == len(seq)
    stamp('vend')
    if OM:
        assert PSC and AM and CM == 2
        for k in range(2): a(f'v_cvt_pk_bf16_f32 v{24+k}, v{OA+2*k}, v{OA+2*k+1}')
        for k in range(2): a(f'v_cvt_pk_bf16_f32 v{26+k}, v{OA+4+2*k}, v{OA+4+2*k+1}')
        for k in range(2): a(f'v_cndmask_b32 v{24+k}, v{26+k}, v{24+k}, {sLO32}')
        for k in range(2): a(f'ds_write_b16 v{st+8}, v{24+k} offset:{64*k}\nds_write_b16_d16_hi v{st+8}, v{24+k} offset:{64*k+32}')
        for k in range(2): a(f'v_cvt_pk_bf16_f32 v{26+k}, v{OA+8+2*k}, v{OA+8+2*k+1}')
        for k in range(2): a(f'ds_write_b16 v{st+9}, v{26+k} offset:{64*k}\nds_write_b16_d16_hi v{st+9}, v{26+k} offset:{64*k+32}')
    elif PSC == 1:
        for r in range(4): a(f'v_cndmask_b32 v{OA+r}, v{OA+4+r}, v{OA+r}, {sLO32}')
        a(f'ds_write_b128 v{st+8}, {v4(OA)}')
        a(f'ds_write_b128 v{st+9}, {v4(OA+8)}')
    elif PSC == 2:
        a(f's_mov_b64 exec, {sLO32}\nds_write_b128 v{st+8}, {v4(OA)}\ns_not_b64 exec, exec\nds_write_b128 v{st+8}, {v4(OA+4)}\ns_mov_b64 exec, -1')
        a(f'ds_write_b128 v{st+9}, {v4(OA+8)}')
    else:
        for r in range(4): a(f'v_cndmask_b32 v{OA+r}, v{OA+4+r}, v{OA+r}, {sLO32}')
        for r in range(4): a(f'v_mul_f32 v{OA+r}, v{OA+r}, v14')
        a(f'ds_write_b128 v{st+8}, {v4(OA)}')
        for r in range(4): a(f'v_mul_f32 v{OA+8+r}, v{OA+8+r}, v14')
        a(f'ds_write_b128 v{st+9}, {v4(OA+8)}')
    a('s_waitcnt lgkmcnt(0)\ns_barrier')
    stamp('barC')
    if OM: a(f'ds_read_b64 v[24:25], v{st+10}\nds_read_b64 v[26:27], v{st+19}')
    else:
        for j in range(3): a(f'ds_read_b64 v[{16+2*j}:{17+2*j}], v{st+10} offset:{8*j}')
    def dpp(regs, steps):
        for s_ in steps:
            for r in regs: a(f'v_add_f32_dpp v{r}, v{r}, v{r} row_ror:{s_} row_mask:0xf bank_mask:0xf')
    if CM != 2:
        a('s_waitcnt lgkmcnt(0)')
        dpp(range(16, 22), (8, 4, 2, 1))
    AT = KB
    def abuild(u):
        if AM:
            a(f'v_cvt_pk_bf16_f32 v{16+2*u}, v{16+2*u}, v{17+2*u}')
            for r in range(4): a(f'v_and_b32 v{AT+4*u+r}, v{16+2*u}, v{8+r}')
            return
        for i in range(2):
            a(f'v_cvt_pk_bf16_f32 v{16+2*u+i}, v{16+2*u+i}, 0')
        for i in range(2):
            a(f'v_cndmask_b32 v{AT+4*u+2*i}, 0, v{16+2*u+i}, s[44:45]\nv_cndmask_b32 v{AT+4*u+2*i+1}, 0, v{16+2*u+i}, s[46:47]')
    def smf(u, c):
        n = (c*3 + u)*2
        if n + 1 >= 30 - XL: a.wait_vm(f'wo{n+1}')
        r = KB + 4*(WOT + n)
        a(f'v_smfmac_f32_16x16x64_bf16 {v4(YA+4*c)}, {v4(AT+4*u)}, v[{r}:{r+7}], v{st+15}')
    def ywrite(c):
        if J2:
            a(f'ds_write_b64 v{st+11}, v[{YA+4*c}:{YA+4*c+1}] offset:{L_YP+768*c}'); return
        a(f's_mov_b64 exec, {sLO32}\nds_write_b128 v{st+11}, {v4(YA+4*c)} offset:{L_YP+640*c}\ns_mov_b64 exec, -1')
    if PK and OM:
        def cv(u): a(f'v_cvt_pk_bf16_f32 v{16+2*u}, v{16+2*u}, v{17+2*u}')
        def ab(u, hi):
            for r in range(4): a(f'v_and_b32 v{AT+8*u+4*hi+r}, v{16+2*u}, v{56+4*hi+r}')
        def sm(u, c):
            r = KB + 4*(WOT + (c*3 + u)*2)
            a(f'v_smfmac_f32_16x16x64_bf16 {v4(YA+4*(c>>1))}, {v4(AT+8*u+4*(c&1))}, v[{r}:{r+7}], v{st+15}')
        def w(k):
            if k == 2: a(f's_mov_b64 exec, {sLO32}')
            a(f'ds_write_b128 v{st+11}, {v4(YA+4*k)} offset:{L_YP+1280*k}')
            if k == 2: a('s_mov_b64 exec, -1')
        a('s_waitcnt lgkmcnt(0)' if stamps in (3, 11) else 's_waitcnt lgkmcnt(1)')
        stamp('t1')
        a(f'v_mfma_f32_16x16x16_bf16 v[16:19], v[24:25], v[{st}:{st+1}], 0')
        if stamps != 11: a('s_waitcnt lgkmcnt(0)')
        a(f'v_mfma_f32_16x16x16_bf16 v[20:23], v[26:27], v[{st}:{st+1}], 0')
        cv(0); ab(0, 0); cv(1); cv(2)
        stamp('t2')
        if PK == 1:
            sm(0, 4); ab(1, 0); sm(0, 0); ab(2, 0); sm(1, 4); ab(0, 1); sm(1, 0); ab(1, 1); sm(2, 4); ab(2, 1)
            stamp('t3')
            sm(2, 0); sm(0, 2); sm(0, 1); sm(1, 2); w(2); sm(1, 1); sm(2, 2); sm(2, 1); sm(0, 3); sm(1, 3); sm(2, 3)
            stamp('t4')
            w(0); w(1)
        else:
            sm(0, 0); ab(1, 0); sm(0, 2); ab(2, 0); sm(1, 0); ab(0, 1); sm(1, 2); ab(1, 1); sm(2, 0); ab(2, 1)
            stamp('t3')
            sm(0, 1); sm(2, 2); sm(1, 1); sm(0, 3); sm(2, 1); sm(1, 3); sm(0, 4); sm(2, 3); sm(1, 4); w(0); sm(2, 4)
            stamp('t4')
            w(1); w(2)
        stamp('mm')
        a('s_waitcnt lgkmcnt(0)\ns_barrier')
    elif PK:
        def cv(u):
            for i in range(2): a(f'v_cvt_pk_bf16_f32 v{16+2*u+i}, v{16+2*u+i}, 0')
        def ab(u, hi):
            m0, m1 = ('s[44:45]', 's[46:47]') if not hi else ('s[16:17]', 's[18:19]')
            for i in range(2):
                a(f'v_cndmask_b32 v{AT+8*u+4*hi+2*i}, 0, v{16+2*u+i}, {m0}\nv_cndmask_b32 v{AT+8*u+4*hi+2*i+1}, 0, v{16+2*u+i}, {m1}')
        def sm(u, c):
            r = KB + 4*(WOT + (c*3 + u)*2)
            a(f'v_smfmac_f32_16x16x64_bf16 {v4(YA+4*(c>>1))}, {v4(AT+8*u+4*(c&1))}, v[{r}:{r+7}], v{st+15}')
        assert XL == 0
        a('s_waitcnt lgkmcnt(0)' if stamps == 3 else 's_waitcnt lgkmcnt(1)')
        dpp((16, 17, 18), (8, 4, 2, 1))
        cv(0); ab(0, 0)
        a('s_waitcnt lgkmcnt(0)')
        dpp((19, 20, 21), (8,))
        sm(0, 4); ab(0, 1)
        sm(0, 0); dpp((19, 20, 21), (4,))
        sm(0, 2); dpp((19, 20, 21), (2,))
        sm(0, 1); dpp((19, 20, 21), (1,))
        sm(0, 3); cv(1); ab(1, 0); cv(2)
        sm(1, 4); ab(2, 0)
        sm(1, 0); ab(1, 1)
        sm(2, 4); ab(2, 1)
        sm(2, 0); sm(1, 2); sm(1, 1); sm(2, 2)
        a(f's_mov_b64 exec, {sLO32}\nds_write_b128 v{st+11}, {v4(YA+8)} offset:{L_YP+2560}\ns_mov_b64 exec, -1')
        sm(2, 1); sm(1, 3); sm(2, 3)
        a(f'ds_write_b128 v{st+11}, {v4(YA)} offset:{L_YP}')
        a(f'ds_write_b128 v{st+11}, {v4(YA+4)} offset:{L_YP+1280}')
        stamp('mm')
        a('s_waitcnt lgkmcnt(0)\ns_barrier')
    elif OM:
        a('s_waitcnt lgkmcnt(0)' if stamps in (3, 11) else 's_waitcnt lgkmcnt(1)')
        stamp('t1')
        a(f'v_mfma_f32_16x16x16_bf16 v[16:19], v[24:25], v[{st}:{st+1}], 0')
        if stamps != 11: a('s_waitcnt lgkmcnt(0)')
        a(f'v_mfma_f32_16x16x16_bf16 v[20:23], v[26:27], v[{st}:{st+1}], 0')
        abuild(0)
        if OM == 1:
            abuild(1)
            stamp('t2')
            smf(0, 0); smf(0, 1); abuild(2)
            stamp('t3')
            order = [(1,0),(1,1),(2,0),(2,1),(0,2),(0,3),(1,2),'w0',(1,3),'w1',(2,2),(0,4),(2,3),(1,4),'w2',(2,4),'w3','w4']
        else:
            stamp('t2')
            smf(0, 0); abuild(1); smf(0, 1); abuild(2)
            stamp('t3')
            order = {2: [(1,0),(0,2),(2,0),(1,1),(1,2),(2,1),(0,3),'w0',(2,2),(1,3),'w1',(0,4),(2,3),'w2',(1,4),(2,4),'w3','w4'],
                     3: [(0,2),(0,3),(0,4)] + [(1,c) for c in range(5)] + [(2,c) for c in range(5)] + ['T', 'W'],
                     4: [(0,2),(1,0),(1,1),(1,2),(2,0),(2,1),(2,2),(0,3),(0,4),(1,3),(1,4),'X',(2,3),(2,4),'T','Y'],
                     5: [(0,2),(1,0),(1,1),(1,2),(2,0),(2,1),(2,2),(0,3),(0,4),(1,3),(1,4),(2,3),(2,4),'T','W']}[OM]
        def wr(cs):
            if J2:
                for c in cs: ywrite(c)
                return
            a(f's_mov_b64 exec, {sLO32}')
            for c in cs: a(f'ds_write_b128 v{st+11}, {v4(YA+4*c)} offset:{L_YP+640*c}')
            a('s_mov_b64 exec, -1')
        for o in order:
            if o in ('w3', 'T'): stamp('t4')
            if o == 'T': pass
            elif o == 'W': wr(range(5))
            elif o == 'X': wr((0, 1, 2))
            elif o == 'Y': wr((3, 4))
            elif isinstance(o, str): ywrite(int(o[1]))
            else: smf(*o)
        stamp('mm')
        a('s_waitcnt lgkmcnt(0)\ns_barrier')
    elif CM == 2:
        a('s_waitcnt lgkmcnt(0)' if stamps in (3, 11) else 's_waitcnt lgkmcnt(1)')
        stamp('t1')
        dpp((16, 17, 18), (8, 4, 2, 1))
        abuild(0)
        if stamps != 11: a('s_waitcnt lgkmcnt(0)')
        dpp((19, 20, 21), (8,))
        stamp('t2')
        smf(0, 0); dpp((19, 20, 21), (4,))
        smf(0, 1); dpp((19, 20, 21), (2,))
        smf(0, 2); dpp((19, 20, 21), (1,))
        smf(0, 3); abuild(1)
        smf(1, 0); abuild(2)
        stamp('t3')
        order = [(1,1),(2,0),(1,2),(2,1),(1,3),(0,4),'w0',(2,2),'w1',(1,4),(2,3),(2,4),'w2','w3','w4']
        for o in order:
            if o == 'w2': stamp('t4')
            if isinstance(o, str): ywrite(int(o[1]))
            else: smf(*o)
        stamp('mm')
        a('s_waitcnt lgkmcnt(0)\ns_barrier')
    elif CM:
        abuild(0); abuild(1)
        smf(0, 0); smf(0, 1)
        abuild(2)
        order = [(1,0),(1,1),(2,0),(2,1),(0,2),(0,3),(1,2),'w0',(1,3),'w1',(2,2),(0,4),(2,3),(1,4),'w2',(2,4),'w3','w4']
        for o in order:
            if isinstance(o, str): ywrite(int(o[1]))
            else: smf(*o)
        stamp('mm')
        a('s_waitcnt lgkmcnt(0)\ns_barrier')
    else:
        abuild(0); abuild(1)
        smf(0, 0); smf(0, 1)
        abuild(2)
        for c in range(2, 5): smf(0, c)
        for c in range(5): smf(1, c)
        for c in range(5): smf(2, c)
        stamp('mm')
        a(f's_mov_b64 exec, {sLO32}')
        for c in range(5): a(f'ds_write_b128 v{st+11}, {v4(YA+4*c)} offset:{L_YP+640*c}')
        a('s_mov_b64 exec, -1\ns_waitcnt lgkmcnt(0)\ns_barrier')
    stamp('barD'); stamp('pub'); stamp('c1')
    if DREL == 2: a('s_memrealtime s[60:61]')
    a(f's_cmp_ge_u32 {sW_}, 5\ns_cbranch_scc1 L_cons')
    if YR == 1:
        for u in range(8): a(f'ds_read_b64 v[{16+2*u}:{17+2*u}], v{st+12} offset:{L_YP+(3840 if J2 else 3200)*u}')
        if stamps == 3: a('s_waitcnt lgkmcnt(0)')
        for u in range(4):
            a(f's_waitcnt lgkmcnt({6-2*u})\nv_pk_add_f32 v[{16+4*u}:{17+4*u}], v[{16+4*u}:{17+4*u}], v[{18+4*u}:{19+4*u}]')
            if u == 1: a('v_pk_add_f32 v[16:17], v[16:17], v[20:21]')
        a('v_pk_add_f32 v[24:25], v[24:25], v[28:29]\nv_pk_add_f32 v[16:17], v[16:17], v[24:25]')
        a(f'v_bfi_b32 v16, s98, v{st+18}, v16')
        a(f'buffer_store_dwordx2 v[16:17], v{st+13}, {WS}, {sYB} offen {POL[YSP]}')
    else:
        for u in range(4): a(f'ds_read_b128 {v4(16+4*u)}, v{st+12} offset:{L_YP+3200*u}')
        a('s_waitcnt lgkmcnt(0)')
        padd(16, 24, 8); padd(16, 20, 4)
        for r in range(4): a(f'v_mov_b32 v{20+r}, v{16+r}')
        for r in range(4): a(f'v_permlane32_swap_b32 v{16+r}, v{20+r}')
        padd(16, 20, 4)
        for r in range(2): a(f'v_bfi_b32 v{16+2*r}, s98, v{st+16+r}, v{16+2*r}')
        a(f's_mov_b64 exec, {sLO32}')
        if EXP & 512: a(f's_mov_b32 {sYB}, {BIG}')
        a(f'buffer_store_dwordx4 v[16:19], v{st+13}, {WS}, {sYB} offen {POL[YSP]}')
    if stamps:
        a('s_mov_b64 exec, -1\ns_waitcnt lgkmcnt(0)')
        stamp('pub')
        a('s_branch L_fin')
    else:
        a('s_endpgm')
    a.label('L_cons')
    a(f'''
    s_cmp_eq_u32 s97, 0
    s_cbranch_scc1 L_fin
    s_mov_b32 {sT1}, {SPIN}
    ''')
    def pissue(b):
        for i in range(NPL):
            a(f'buffer_load_dwordx4 {v4(b+4*i)}, v{st+14}, {WS}, s{48+i} offen {POL[YLP]}')
    def pcheck(b, extra):
        for i in range(NPL):
            r = b + 4*i
            a(f's_waitcnt vmcnt({NPL-1-i+extra})')
            for k in range(2): a(f'v_xor_b32 v{r+2*k}, v{r+2*k}, v{st+16+k}')
            if i == 0: a(f'v_or_b32 v15, v{r}, v{r+2}')
            else: a(f'v_or3_b32 v15, v15, v{r}, v{r+2}')
        a('v_and_b32 v15, s98, v15\nv_cmp_ne_u32 vcc, 0, v15')
    def pfinish(b):
        if stamps: a('s_waitcnt lgkmcnt(0)')
        stamp('c1'); stamp('c1x')
        if not HB: padd(b, b+16, 16)
        padd(b, b+8, 8); padd(b, b+4, 4)
        a(f'''
        v_lshlrev_b32 v14, 16, v{st+2}
        v_permlane32_swap_b32 v{b}, v{b+1}
        v_permlane32_swap_b32 v{b+2}, v{b+3}
        v_add_f32 v{b}, v{b}, v{b+1}
        v_add_f32 v{b+2}, v{b+2}, v{b+3}
        v_permlane16_swap_b32 v{b}, v{b+2}
        v_add_f32 v{b}, v{b}, v{b+2}
        v_add_f32_dpp v{b}, v{b}, v{b} row_ror:8 row_mask:0xf bank_mask:0xf
        {f'v_add_f32_dpp v{b}, v{b}, v{b} row_ror:4 row_mask:0xf bank_mask:0xf' if HB else ''}
        v_add_f32 v{b}, v{b}, v14
        v_cvt_pk_bf16_f32 v{b}, v{b}, v{b}
        s_mov_b32 exec_lo, {'0x000f000f' if HB else '0x00ff00ff'}
        s_mov_b32 exec_hi, {'0x000f000f' if HB else '0x00ff00ff'}
        buffer_store_short v{b}, v{st+3}, {OUT}, s96 offen {POL[OPOL]}
        s_mov_b64 exec, -1
        ''')
    if PM == 2:
        pissue(16)
        a.label('L_spin3')
        pissue(68)
        pcheck(16, NPL)
        a('s_cbranch_vccz L_ok3')
        pissue(16)
        a(f's_sub_u32 {sT1}, {sT1}, 1')
        pcheck(68, NPL)
        a('s_cbranch_scc1 L_ok3b\ns_and_b64 vcc, vcc, vcc')
        a.raw('  s_cbranch_scc1 L_spin3')
        a.label('L_ok3b')
        pfinish(68)
        a('s_branch L_ok3c')
        a.label('L_ok3')
        pfinish(16)
        a.label('L_ok3c')
    else:
        a.label('L_spin3')
        pissue(16)
        a(f's_sub_u32 {sT1}, {sT1}, 1')
        pcheck(16, 0)
        a('s_cbranch_scc1 L_ok3\ns_and_b64 vcc, vcc, vcc')
        a.raw('  s_cbranch_scc1 L_spin3')
        a.label('L_ok3')
        pfinish(16)
    if DSEL >= 90:
        a(f's_waitcnt vmcnt(0)\nv_lshlrev_b32 v14, 4, v1\ns_mov_b32 {sT0}, {WS_T}\nbuffer_load_dwordx4 v[16:19], v14, {WS}, {sT0} offen sc1\ns_waitcnt vmcnt(0)')
        if DSEL == 99:
            a('v_min3_u32 v20, v16, v17, v18\nv_min_u32 v20, v20, v19\nv_max3_u32 v21, v16, v17, v18\nv_max_u32 v21, v21, v19')
            for op, r in (('v_min_u32', 20), ('v_max_u32', 21)):
                rowred(op, r, (1, 2))
                allred(op, r, 22)
            a('v_readfirstlane_b32 s80, v21\nv_readfirstlane_b32 s81, v20\ns_sub_u32 s80, s80, s81\ns_add_u32 s80, s80, s86')
        else:
            x_ = DSEL - 90
            a(f'v_readlane_b32 s80, v{16+(x_&3)}, {x_>>2}\nv_readlane_b32 s81, v16, 0\ns_sub_u32 s80, s80, s81\ns_add_u32 s80, s80, 200\ns_add_u32 s80, s80, s86')
    if DLY:
        a(f'''
        s_waitcnt vmcnt(0)
        s_memrealtime s[84:85]
        s_waitcnt lgkmcnt(0)
        s_sub_u32 s82, {'s84, s80' if DREL == 1 else ('s60, s80' if DREL == 2 else (('s80' if DSEL else 's84') + ', s86'))}
        s_mul_i32 s82, s82, {DLY}
        s_add_u32 s82, s82, {6000 if DSEL else 0}
        s_min_u32 s82, s82, 200000
        ''')
        a.label('L_dly')
        a(f'''
        s_memrealtime s[84:85]
        s_waitcnt lgkmcnt(0)
        s_sub_u32 s83, s84, s86
        s_cmp_lt_u32 s83, s82
        s_cbranch_scc1 L_dly
        ''')
    a.label('L_fin')
    if stamps:
        a('s_waitcnt vmcnt(0)')
        stamp('end')
        a('s_waitcnt lgkmcnt(0)')
        if XID: a('s_getreg_b32 s84, hwreg(HW_REG_XCC_ID)')
        for k in range(8): a(f'v_mov_b32 v{16+k}, s{SREG[k]}')
        a(f'''
        s_lshl_b32 {sT0}, s2, 3
        s_add_u32 {sT0}, {sT0}, {sW_}
        s_lshl_b32 {sT0}, {sT0}, 5
        s_add_u32 {sT0}, {sT0}, {WS_T}
        v_mov_b32 v14, 0
        s_mov_b64 exec, 1
        buffer_store_dwordx4 v[16:19], v14, {WS}, {sT0} offen
        buffer_store_dwordx4 v[20:23], v14, {WS}, {sT0} offen offset:16
        ''')
    a.label('L_end')
    a('s_endpgm')
    a.raw(f'''.section .rodata,"a"
.p2align 6
.amdhsa_kernel {name}
  .amdhsa_next_free_vgpr 256
  .amdhsa_next_free_sgpr 102
  .amdhsa_accum_offset 256
  .amdhsa_group_segment_fixed_size 0
  .amdhsa_kernarg_size 96
  .amdhsa_user_sgpr_count 2
  .amdhsa_user_sgpr_kernarg_segment_ptr 1
  .amdhsa_system_sgpr_workgroup_id_x 1
  .amdhsa_float_denorm_mode_32 3
.end_amdhsa_kernel''')
    return a.text()

if __name__ == '__main__':
    out = sys.argv[1]
    kw = {}
    for x in sys.argv[2:]:
        k, v = x.split('='); kw[k] = int(v)
    open(out, 'w').write(gen(**kw))
```
